```python
import torch

def _softmax(x, axis=-1):
    return torch.softmax(x, dim=axis)

def _gelu(x):
    return torch.nn.functional.gelu(x, approximate='tanh')

def _silu(x):
    return torch.nn.functional.silu(x)

def _sigmoid(x):
    return torch.sigmoid(x)

def _layernorm(x, axis=-1, eps=1e-05):
    m = x.mean(dim=axis, keepdim=True)
    v = x.var(dim=axis, keepdim=True, unbiased=False)
    return (x - m) / torch.sqrt(v + eps)

def _scatter_add(tgt, idx, src, axis=0):
    return tgt.clone().index_add_(axis, idx, src)

def _segment_sum(src, seg, n):
    out = torch.zeros((n,) + src.shape[1:], dtype=src.dtype)
    return out.index_add_(0, seg, src)

def _pad(x, pw):
    flat = tuple((v for pair in reversed(pw) for v in pair))
    return torch.nn.functional.pad(x, flat)
kernel_name = 'adaLN_cond__gqa_block_cached__mixer_token_mlp__decode'

def setup_inputs():

    _w = lambda a: (lambda t: t.to(torch.bfloat16) if t.is_floating_point() else t)(torch.as_tensor(a))

    def _A_setup():
        B, Sq, D = (1, 1, 1024)
        Hq, Hkv, Sk, Dh = (32, 4, 65536, 128)
        assert Hq % Hkv == 0, (Hq, Hkv)
        return {'x': _w((lambda *s: torch.randn(*s, dtype=torch.bfloat16) * 0.1)(B, Sq, D)), 'k_cache': _w((lambda *s: torch.randn(*s, dtype=torch.bfloat16) * 3.2)(B, Hkv, Sk, Dh)), 'v_cache': _w((lambda *s: torch.randn(*s, dtype=torch.bfloat16) * 1.6)(B, Hkv, Sk, Dh)), 'wq': _w((lambda *s: torch.randn(*s, dtype=torch.bfloat16) * 3.2)(D, Hq * Dh) * D ** (-0.5)), 'wo': _w((lambda *s: torch.randn(*s, dtype=torch.bfloat16) * 1.6)(Hq * Dh, D) * (Hq * Dh) ** (-0.5))}
    _A_in = _A_setup()

    def _B_setup():
        B, S, D, F = (1, 1, 1024, 3584)
        return {'x': _w((lambda *s: torch.randn(*s, dtype=torch.bfloat16) * 0.1)(B, S, D)), 'w1': _w((lambda *s: torch.randn(*s, dtype=torch.bfloat16) * 1.6)(S, F) * S ** (-0.5)), 'b1': _w((lambda *s: torch.randn(*s, dtype=torch.bfloat16) * 1.6)(F) * 0.02), 'w2': _w((lambda *s: torch.randn(*s, dtype=torch.bfloat16) * 1.6)(F, S) * F ** (-0.5)), 'b2': _w((lambda *s: torch.randn(*s, dtype=torch.bfloat16) * 1.6)(S) * 0.02)}
    _B_in = _B_setup()
    return {'A_x': _A_in['x'], 'A_k_cache': _A_in['k_cache'], 'A_v_cache': _A_in['v_cache'], 'A_wq': _A_in['wq'], 'A_wo': _A_in['wo'], 'B_x': _B_in['x'], 'B_w1': _B_in['w1'], 'B_b1': _B_in['b1'], 'B_w2': _B_in['w2'], 'B_b2': _B_in['b2'], 'c': _w((lambda *s: torch.randn(*s, dtype=torch.bfloat16) * 0.1)(1, 1024) * 8.0), 'w_mod': _w((lambda *s: torch.randn(*s, dtype=torch.bfloat16) * 0.1)(1024, 6 * 1024) * 1024 ** (-0.5) * 8.0)}

def reference(A_x, A_k_cache, A_v_cache, A_wq, A_wo, B_x, B_w1, B_b1, B_w2, B_b2, c, w_mod):

    def _A_ref(x, k_cache, v_cache, wq, wo):
        B, Sq, D = x.shape
        Hq, Dh = (32, 128)
        Hkv = k_cache.shape[1]
        rep = Hq // Hkv
        q = (lambda x, *d: x.permute(*d))((x @ wq).reshape(B, Sq, Hq, Dh), 0, 2, 1, 3)
        k = (lambda x, n, axis: torch.repeat_interleave(x, n, dim=axis))(k_cache, rep, axis=1)
        v = (lambda x, n, axis: torch.repeat_interleave(x, n, dim=axis))(v_cache, rep, axis=1)
        scores = torch.einsum('bhqd,bhkd->bhqk', q, k) * Dh ** (-0.5)
        p = _softmax(scores, axis=-1)
        o = torch.einsum('bhqk,bhkd->bhqd', p, v)
        return (lambda x, *d: x.permute(*d))(o, 0, 2, 1, 3).reshape(B, Sq, Hq * Dh) @ wo

    def _B_ref(x, w1, b1, w2, b2):
        B, S, D = x.shape
        h = _layernorm(x, axis=-1)
        u = torch.einsum('bsd,sf->bdf', h, w1) + b1
        u = _gelu(u)
        y = torch.einsum('bdf,fs->bds', u, w2) + b2
        return (lambda x, *d: x.permute(*d))(y, 0, 2, 1)
    x = A_x
    mod = (_silu(c) @ w_mod).reshape(c.shape[0], 6, 1, -1)
    sa, ca, ga, sb, cb, gb = (mod[:, 0].clone(), mod[:, 1].clone(), mod[:, 2].clone(), mod[:, 3].clone(), mod[:, 4].clone(), mod[:, 5].clone())
    h = _layernorm(x, axis=-1) * (1 + ca) + sa
    x = x + ga * _A_ref(h, A_k_cache, A_v_cache, A_wq, A_wo)
    h = _layernorm(x, axis=-1) * (1 + cb) + sb
    x = x + gb * _B_ref(h, B_w1, B_b1, B_w2, B_b2)
    return x
```

```python
import re

TRANS = ('v_exp_f32', 'v_log_f32', 'v_rcp_f32', 'v_rsq_f32', 'v_sqrt_f32', 'v_sin_f32', 'v_cos_f32')
REG = re.compile(r'^(-?)(?:abs\()?([vs])(?:(\d+)|\[(\d+):(\d+)\])\)?$')

def regs_of(tok):
    tok = tok.strip()
    if tok == 'vcc': return {('s', 106), ('s', 107)}
    if tok == 'exec': return {('s', 126), ('s', 127)}
    if tok == 'm0': return {('s', 124)}
    if tok == 'vcc_lo': return {('s', 106)}
    if tok == 'vcc_hi': return {('s', 107)}
    m = REG.match(tok)
    if not m: return set()
    f = m.group(2)
    if m.group(3) is not None: return {(f, int(m.group(3)))}
    return {(f, i) for i in range(int(m.group(4)), int(m.group(5)) + 1)}

class Ins:
    def __init__(self, text):
        self.text = text
        t = text.split(';')[0].strip()
        self.label = t.endswith(':')
        self.directive = t.startswith('.')
        self.op = t.split()[0] if t and not self.label else ''
        rest = t[len(self.op):].strip()
        rest = re.sub(r'(quad_perm|op_sel|op_sel_hi|neg_lo|neg_hi):\[[^\]]*\]', r'\1:x', rest)
        parts = [p.strip() for p in rest.split(',')] if rest else []
        self.mods = ''
        if parts:
            last = parts[-1].split()
            parts[-1] = last[0] if last else ''
            self.mods = ' '.join(last[1:])
        self.ops = parts
        op = self.op
        self.mfma = op.startswith('v_mfma')
        self.valu = op.startswith('v_') and not self.mfma
        self.trans = any(op.startswith(x) for x in TRANS)
        self.vmem = op.startswith(('buffer_', 'global_'))
        self.ds = op.startswith('ds_')
        self.salu = op.startswith('s_')
        self.dpp = self.valu and bool(re.search(r'row_|quad_perm|wave_', self.mods))
        self.permlane = op.startswith('v_permlane')
        self.readlane = op.startswith(('v_readfirstlane', 'v_readlane'))
        self.ldsdma = self.vmem and ('lds' in self.mods.split() or '_lds_' in op)
        R = [regs_of(p) for p in parts]
        w, r = set(), set()
        u = lambda l: set().union(*l) if l else set()
        if self.mfma:
            w = R[0]; self.A, self.B, self.C = R[1], R[2], R[3]; r = R[1] | R[2] | R[3]
        elif self.valu:
            if self.permlane: w = R[0] | R[1]; r = R[0] | R[1]
            elif op.startswith(('v_add_co', 'v_sub_co', 'v_addc_co')): w = R[0] | R[1]; r = u(R[2:])
            else:
                w = R[0]; r = u(R[1:])
                if op.startswith(('v_fmac', 'v_dot2c', 'v_writelane')) or self.dpp: r = r | R[0]
                if op.startswith('v_cndmask') and len(parts) == 3: r = r | regs_of('vcc')
        elif self.vmem:
            if self.ldsdma: r = u(R) | regs_of('m0')
            elif 'load' in op: w = R[0]; r = u(R[1:])
            elif 'atomic' in op and 'sc0' in self.mods.split():
                w = R[0]; r = u(R) if op.startswith('buffer') else u(R[1:])
            else: r = u(R)
        elif self.ds:
            if op.startswith(('ds_read', 'ds_bpermute', 'ds_permute', 'ds_swizzle')) or '_rtn' in op: w = R[0]; r = u(R[1:])
            else: r = u(R)
        elif self.salu:
            if op.startswith(('s_cmp', 's_cbranch', 's_branch', 's_waitcnt', 's_nop', 's_barrier', 's_sleep', 's_endpgm', 's_setprio')): r = u(R)
            else: w = R[0] if R else set(); r = u(R[1:])
        self.w, self.r = w, r
        self.store_data = set()
        if self.vmem and 'store' in op and op.endswith(('x3', 'x4')):
            self.store_data = R[0] if op.startswith('buffer') else R[1]
    def states(self):
        if self.label or self.directive or not self.op: return 0
        if self.op == 's_nop': return int(self.ops[0], 0) + 1
        return 1

def need(p, c):
    n = 0
    pv = {x for x in p.w if x[0] == 'v'}; ps = {x for x in p.w if x[0] == 's'}
    if p.valu:
        if c.mfma and pv & c.r: n = max(n, 2)
        if (c.dpp or c.permlane) and pv & c.r: n = max(n, 2)
        if c.readlane and pv & c.r: n = max(n, 1)
        if p.trans and c.valu and not c.trans and pv & c.r: n = max(n, 1)
        if p.trans and c.trans and pv & c.r: n = max(n, 1)
        if ps:
            if (c.valu or c.mfma) and ps & c.r: n = max(n, 4 if c.op.startswith(('v_readlane', 'v_writelane')) else 2)
            if c.vmem and ps & c.r: n = max(n, 5)
            if c.salu and ps & c.r and not c.op.startswith('s_cbranch'): n = max(n, 1)
    if p.mfma:
        if c.mfma:
            if pv & (c.A | c.B): n = max(n, 8)
            if pv & c.C and pv != c.C: n = max(n, 6)
        elif c.valu or c.vmem or c.ds:
            if pv & (c.r | c.w): n = max(n, 8)
        if c.valu and p.C & c.w: n = max(n, 3)
    if p.salu and ('s', 124) in ps and c.ldsdma: n = max(n, 1)
    if p.store_data and (p.store_data & c.w): n = max(n, 2)
    return n

class Asm:
    def __init__(self):
        self.L = []
        self.uid = 0
    def __call__(self, text):
        for line in text.split('\n'):
            line = line.strip()
            if line: self.L.append(line)
    def lab(self, base):
        self.uid += 1
        return f'L_{base}_{self.uid}'
    def finish(self):
        out = []; hist = []
        nn = 0
        for t in self.L:
            i = Ins(t)
            if i.op and not i.label and not i.directive:
                dist = 0; pad = 0
                for p in reversed(hist):
                    if dist >= 8: break
                    k = need(p, i)
                    if k > dist: pad = max(pad, k - dist)
                    dist += p.states()
                if pad:
                    nop = Ins(f's_nop {pad-1}')
                    out.append('    ' + nop.text); hist.append(nop); nn += 1
                hist.append(i)
                if i.op in ('s_branch', 's_endpgm', 's_setpc_b64'): hist = []
            out.append(t if (i.label or i.directive or t.startswith(';')) else '    ' + t)
        return '\n'.join(out) + '\n', nn
```

```python
import sys, struct, math
from asmlib import Asm
NAME = 'adaLN_cond__gqa_block_cached__mixer_token_mlp__decode'

def f2u(x): return struct.unpack('<I', struct.pack('<f', x))[0]
LOG2E = 1.4426950408889634

WS_MOD, WS_Q, WS_ML, WS_T2, WS_T1, WS_STAMP = 0x0, 0x4000, 0x8000, 0x10000, 0x100000, 0x200000
DB_H, DB_Q, DB_REST, DB_ML = 0, 16, 32, 128
LM = 131072
L_CNT = LM
L_ML = LM + 256
L_Q = LM + 512
L_CONST = LM + 2560
L_MLP = LM + 10752
L_ASTAGE = L_CONST
L_JRED = L_CONST + 2048
LDS_BYTES = 163840
OSTRIDE = 528
L_RED2 = 8192
L_ST1 = 8192 + 1024
L_ST2 = 8192 + 1024 + 64
L_OWN = 8192 + 1024 + 128
L_RED3 = 8192 + 1024 + 256

SPIN_CAP = 0x40000

def gen(DA=6, DB=8, diag=False, wo_late=True):
    A = Asm()
    nstamp = [0]
    def stamp(k):
        if diag:
            A(f's_memrealtime s[{80+2*k}:{81+2*k}]'); A('s_waitcnt lgkmcnt(0)')
    def v(a, n=1): return f'v{a}' if n == 1 else f'v[{a}:{a+n-1}]'
    def rnd2(a, b, t):
        A(f'v_cvt_pk_bf16_f32 v{t}, v{a}, v{b}'); A(f'v_lshlrev_b32 v{a}, 16, v{t}'); A(f'v_and_b32 v{b}, s62, v{t}')
    def rnd1(a):
        A(f'v_cvt_pk_bf16_f32 v{a}, v{a}, v{a}'); A(f'v_lshlrev_b32 v{a}, 16, v{a}')
    def lds_spin(vaddr, off, target, vt, sleep=1):
        l0 = A.lab('spin'); l1 = A.lab('spun')
        A('s_mov_b32 s14, 0')
        A(f'{l0}:')
        A(f'ds_read_b32 v{vt}, v{vaddr} offset:{off}'); A('s_waitcnt lgkmcnt(0)')
        A(f'v_readfirstlane_b32 s15, v{vt}')
        A(f's_cmp_ge_u32 s15, {target}'); A(f's_cbranch_scc1 {l1}')
        if sleep: A(f's_sleep {sleep}')
        A('s_add_u32 s14, s14, 1'); A(f's_cmp_lt_u32 s14, {SPIN_CAP}'); A(f's_cbranch_scc1 {l0}')
        A(f'{l1}:')
    def lds_add(vaddr, off, vt):
        A('s_waitcnt lgkmcnt(0)')
        A('s_mov_b64 exec, 1'); A(f'v_mov_b32 v{vt}, 1'); A(f'ds_add_u32 v{vaddr}, v{vt} offset:{off}'); A('s_mov_b64 exec, -1')
    def dbg_spin(off_operand, target, sleep=4):
        l0 = A.lab('gspin'); l1 = A.lab('gspun')
        A('s_mov_b32 s14, 0')
        A(f'{l0}:')
        A(f's_load_dword s15, s[42:43], {off_operand} glc'); A('s_waitcnt lgkmcnt(0)')
        A(f's_cmp_ge_u32 s15, {target}'); A(f's_cbranch_scc1 {l1}')
        if sleep: A(f's_sleep {sleep}')
        A('s_add_u32 s14, s14, 1'); A(f's_cmp_lt_u32 s14, {SPIN_CAP}'); A(f's_cbranch_scc1 {l0}')
        A(f'{l1}:')
    def xg_reduce(op, a, t):
        A(f'v_mov_b32 v{t}, v{a}'); A(f'v_permlane32_swap_b32 v{a}, v{t}'); A(f'{op} v{a}, v{a}, v{t}')
        A(f'v_mov_b32 v{t}, v{a}'); A(f'v_permlane16_swap_b32 v{a}, v{t}'); A(f'{op} v{a}, v{a}, v{t}')
    def row_reduce(op, regs):
        for sh in (8, 4, 2, 1):
            for a in regs: A(f'{op}_dpp v{a}, v{a}, v{a} row_ror:{sh} row_mask:0xf bank_mask:0xf')
    def pv(Vb, P, first, ds=range(8), O=64, T=96):
        ds = list(ds)
        def perms(d):
            for m in range(4):
                A(f'v_perm_b32 v{T+4*d+m}, v{Vb+8*m+4+(d>>1)}, v{Vb+8*m+(d>>1)}, s{60+(d&1)}')
        perms(ds[0])
        for k, d in enumerate(ds):
            if k + 1 < len(ds): perms(ds[k+1])
            c = '0' if first else v(O+4*d, 4)
            A(f'v_mfma_f32_16x16x32_bf16 {v(O+4*d,4)}, {v(T+4*d,4)}, {v(P,4)}, {c}')

    A(f'; @launch grid=(256,1,1) block=(512,1,1) lds={LDS_BYTES}')
    A('.amdgcn_target "amdgcn-amd-amdhsa--gfx950"')
    A('.text'); A(f'.globl {NAME}_kernel'); A('.p2align 8'); A(f'.type {NAME}_kernel,@function')
    A(f'{NAME}_kernel:')
    A('s_load_dwordx16 s[16:31], s[0:1], 0')
    A('s_load_dwordx8 s[32:39], s[0:1], 64')
    A('s_load_dwordx4 s[40:43], s[0:1], 96')
    A('s_load_dwordx2 s[44:45], s[0:1], 112')
    A('s_cmp_ge_u32 s2, 256'); A('s_cbranch_scc1 L_end')
    if diag: A('s_memrealtime s[80:81]')
    A('v_lshrrev_b32 v1, 6, v0'); A('v_and_b32 v0, 63, v0'); A('v_readfirstlane_b32 s3, v1')
    A('s_bfe_u32 s4, s2, 0x20001')
    A('s_lshr_b32 s5, s2, 3'); A('s_and_b32 s7, s5, 15')
    A('s_and_b32 s8, s2, 1'); A('s_lshl_b32 s8, s8, 5'); A('s_or_b32 s5, s5, s8')
    A('s_mov_b32 s50, 0x4000000'); A('s_mov_b32 s51, 0x20000'); A('s_mov_b32 s55, 0x20000')
    A('s_cmp_ge_u32 s3, 4'); A('s_cbranch_scc1 L_service')

    A('s_lshl_b32 s9, s5, 2'); A('s_add_u32 s9, s9, s3'); A('s_lshl_b32 s9, s9, 13')
    A('s_lshl_b32 s8, s4, 24'); A('s_add_u32 s9, s9, s8')
    A('s_lshl_b32 s12, s3, 15')
    A('v_lshrrev_b32 v13, 4, v0'); A('v_and_b32 v14, 15, v0')
    A('v_lshlrev_b32 v15, 2, v13'); A('v_xor_b32 v1, v14, v15'); A('v_lshlrev_b32 v1, 4, v1')
    A('v_lshl_add_u32 v1, v13, 8, v1')
    A('v_xor_b32 v2, 16, v1'); A('v_xor_b32 v3, 32, v1'); A('v_xor_b32 v4, 48, v1')
    A('v_lshlrev_b32 v5, 4, v0')
    A('s_mov_b32 s54, 0x4000000')
    A('s_waitcnt lgkmcnt(0)')
    A('s_mov_b32 s48, s18'); A('s_mov_b32 s49, s19'); A('s_mov_b32 s52, s20'); A('s_mov_b32 s53, s21')
    issued = [0]
    TS = 64 * 4 * 8192
    def kload(t, n, D):
        if n % 4 == 0:
            A(f's_add_u32 m0, s12, {(t % 4) * 8192 + (n // 4) * 4096}')
            A(f's_add_u32 s10, s9, {t * TS + (n // 4) * 4096}')
        if issued[0] >= D: A(f's_waitcnt vmcnt({D-1})')
        A(f'buffer_load_dwordx4 v{1 + n % 4}, s[48:51], s10 offen offset:{(n % 4) * 1024} nt lds')
        issued[0] += 1
    def vload(t, e, D):
        if e % 4 == 0:
            A(f's_add_u32 s10, s9, {t * TS + (e // 4) * 4096}')
        if issued[0] >= D: A(f's_waitcnt vmcnt({D-1})')
        A(f'buffer_load_dwordx4 {v(128 + 32 * (t % 4) + 4 * e, 4)}, v5, s[52:55], s10 offen offset:{(e % 4) * 1024} nt')
        issued[0] += 1
    for t in range(4):
        for n in range(8):
            if issued[0] == DA:
                A('s_barrier')
                A('s_mov_b32 s60, 0x05040100'); A('s_mov_b32 s61, 0x07060302'); A('s_mov_b32 s62, 0xffff0000')
                A(f's_mov_b32 s63, {f2u(128 ** -0.5):#x}'); A(f's_mov_b32 s64, {f2u(LOG2E):#x}')
                A('s_mov_b32 s56, s44'); A('s_mov_b32 s57, s45'); A('s_mov_b32 s58, 0x400000'); A('s_mov_b32 s59, 0x20000')
                A('v_and_b32 v6, 3, v14'); A('v_lshlrev_b32 v6, 2, v6'); A('v_lshrrev_b32 v15, 2, v14'); A('v_add_u32 v6, v6, v15')
                A('v_lshlrev_b32 v6, 8, v6'); A('v_xor_b32 v15, v13, v14'); A('v_lshl_add_u32 v6, v15, 4, v6'); A('v_add_u32 v6, s12, v6')
                A('v_xor_b32 v7, 64, v6'); A('v_xor_b32 v8, 0x80, v6'); A('v_xor_b32 v9, 0xc0, v6')
            kload(t, n, DA)
    for t in range(4):
        for e in range(8): vload(t, e, DA)
    stamp(1)
    A(f'v_mov_b32 v13, {LM}')
    lds_spin(13, 4, 1, 14)
    A('v_and_b32 v14, 7, v0'); A('v_lshlrev_b32 v14, 8, v14'); A('v_lshrrev_b32 v15, 4, v0'); A('v_lshl_add_u32 v14, v15, 4, v14')
    A(f'v_add_u32 v14, {L_Q}, v14')
    for s in range(4): A(f'ds_read_b128 {v(16+4*s,4)}, v14 offset:{64*s}')
    stamp(2)
    def qk(t):
        off = (t % 4) * 8192
        for hb in range(2):
            for s in range(4): A(f'ds_read_b128 {v(96+16*hb+4*s,4)}, v{6+s} offset:{off + hb*4096}')
        for hb in range(2):
            S = 32 + 8 * (t % 4) + 4 * hb
            for s in range(4):
                A(f's_waitcnt lgkmcnt({7 - 4*hb - s})')
                c = '0' if s == 0 else v(S, 4)
                A(f'v_mfma_f32_16x16x32_bf16 {v(S,4)}, {v(96+16*hb+4*s,4)}, {v(16+4*s,4)}, {c}')
    def rscale(t):
        S = 32 + 8 * (t % 4)
        for k in range(4): A(f'v_cvt_pk_bf16_f32 v{96+k}, v{S+2*k}, v{S+2*k+1}')
        for k in range(4):
            A(f'v_lshlrev_b32 v{S+2*k}, 16, v{96+k}'); A(f'v_and_b32 v{S+2*k+1}, s62, v{96+k}')
        for k in range(8): A(f'v_mul_f32 v{S+k}, s63, v{S+k}')
        for k in range(4): A(f'v_cvt_pk_bf16_f32 v{96+k}, v{S+2*k}, v{S+2*k+1}')
        for k in range(4):
            A(f'v_lshlrev_b32 v{S+2*k}, 16, v{96+k}'); A(f'v_and_b32 v{S+2*k+1}, s62, v{96+k}')
        if t == 0: A(f'v_max_f32 v15, v{S}, v{S+1}')
        elif t == 4: A(f'v_max3_f32 v15, v{S}, v{S+1}, v10')
        else: A(f'v_max3_f32 v15, v{S}, v{S+1}, v15')
        for k in range(1, 4): A(f'v_max3_f32 v15, v{S+2*k}, v{S+2*k+1}, v15')
    def mfin(second):
        xg_reduce('v_max_f32', 15, 14)
        if second:
            A('v_sub_f32 v14, v10, v15'); A('v_mul_f32 v14, s64, v14'); A('v_exp_f32 v14, v14')
        A('v_mov_b32 v10, v15'); A('v_mul_f32 v12, s64, v15')
        if second:
            A('v_mul_f32 v11, v11, v14')
            for k in range(32): A(f'v_mul_f32 v{64+k}, v{64+k}, v14')
    def expo(t):
        S = 32 + 8 * (t % 4)
        for k in range(8): A(f'v_fma_f32 v{S+k}, v{S+k}, s64, -v12')
        for k in range(8): A(f'v_exp_f32 v{S+k}, v{S+k}')
        A(f'v_add_f32 v96, v{S}, v{S+1}'); A(f'v_add_f32 v97, v{S+2}, v{S+3}'); A(f'v_add_f32 v98, v{S+4}, v{S+5}'); A(f'v_add_f32 v99, v{S+6}, v{S+7}')
        for k in range(4): A(f'v_cvt_pk_bf16_f32 v{S+k}, v{S+2*k}, v{S+2*k+1}')
        A('v_add_f32 v96, v96, v97'); A('v_add_f32 v98, v98, v99')
        if t == 0: A('v_add_f32 v11, v96, v98')
        else: A('v_add_f32 v96, v96, v98'); A('v_add_f32 v11, v11, v96')
    def pvt(t, half):
        pv(128 + 32 * (t % 4), 32 + 8 * (t % 4), t == 0, range(4 * half, 4 * half + 4))
    def publish_ml():
        xg_reduce('v_add_f32', 11, 14)
        A('v_lshlrev_b32 v14, 3, v0'); A('s_lshl_b32 s8, s3, 6'); A(f's_add_u32 s8, s8, {L_ML}'); A('v_add_u32 v14, s8, v14')
        A('s_mov_b64 exec, 0xff'); A('ds_write_b64 v14, v[10:11]'); A('s_mov_b64 exec, -1')
        lds_add(13, 8, 14)
    sched = {i: [] for i in range(-1, 64)}
    need_landed = {}
    def put(pos, fn, landed=None): sched[pos].append((fn, landed))
    put(-1, lambda: qk(0))
    put(0, lambda: qk(1)); put(1, lambda: qk(2)); put(2, lambda: qk(3))
    for t in range(4): put(3 + t, (lambda t=t: rscale(t)))
    put(7, lambda: mfin(False))
    for t in range(4): put(8 + t, (lambda t=t: expo(t)))
    for t in range(4):
        for h in range(2): put(12 + 2 * t + h, (lambda t=t, h=h: pvt(t, h)), -1)
    pos = {4: max(20, 7 + DB), 5: max(22, 15 + DB), 6: 23 + DB, 7: 31 + DB}
    for t in range(4, 8):
        put(pos[t], (lambda t=t: qk(t)), 8 * (t - 4) + 7)
        put(pos[t] + 1, (lambda t=t: rscale(t)))
    b = pos[7] + 2
    put(b, lambda: mfin(True))
    put(b + 1, lambda: (expo(4), expo(5))); put(b + 2, lambda: (expo(6), expo(7), publish_ml()))
    p4 = max(b + 3, 39 + DB)
    put(p4, lambda: pvt(4, 0), 39); put(p4 + 1, lambda: pvt(4, 1))
    p5 = max(p4 + 2, 47 + DB)
    put(p5, lambda: pvt(5, 0), 47); put(p5 + 1, lambda: pvt(5, 1))
    assert p5 + 1 <= 63
    def run(posn):
        for fn, landed in sched[posn]:
            if landed is not None:
                outstanding_ok = posn - landed
                if outstanding_ok < DB or posn < DA: A(f's_waitcnt vmcnt({max(outstanding_ok, 0)})')
            fn()
    run(-1)
    for L in range(64):
        if L < 32: kload(4 + L // 8, L % 8, DB)
        else: vload(4 + (L - 32) // 8, L % 8, DB)
        if L == 63:
            lds_add(13, 12, 14)
        run(L)
    stamp(3)
    lds_spin(13, 8, 4, 14)
    A('v_lshrrev_b32 v14, 5, v0'); A('s_lshl_b32 s8, s3, 1'); A('v_add_u32 v14, s8, v14')
    A(f'v_mul_u32_u24 v20, {OSTRIDE}, v14')
    A('v_lshlrev_b32 v14, 3, v14'); A(f'v_add_u32 v14, {L_ML}, v14')
    for w in range(4): A(f'ds_read_b32 v{16+w}, v14 offset:{64*w}')
    A('v_and_b32 v21, 31, v0'); A('v_lshl_add_u32 v20, v21, 4, v20')
    A('v_add_u32 v21, 0x10000, v20')
    A('v_and_b32 v22, 15, v0'); A(f'v_mul_u32_u24 v22, {OSTRIDE}, v22'); A('v_lshrrev_b32 v23, 4, v0'); A('v_lshl_add_u32 v22, v23, 4, v22')
    A('v_add_u32 v22, s12, v22')
    A('s_lshl_b32 s8, s4, 2'); A('s_add_u32 s8, s8, s3'); A('s_lshl_b32 s8, s8, 15'); A('s_lshl_b32 s11, s5, 9'); A('s_add_u32 s11, s11, s8')
    A(f's_add_u32 s11, s11, {WS_T1}')
    A('v_lshlrev_b32 v23, 3, v0')
    A('s_waitcnt lgkmcnt(0)')
    A('v_max_f32 v14, v16, v17'); A('v_max3_f32 v14, v18, v19, v14')
    for w in range(4): A(f'v_sub_f32 v{16+w}, v{16+w}, v14')
    for w in range(4): A(f'v_mul_f32 v{16+w}, s64, v{16+w}')
    for w in range(4): A(f'v_exp_f32 v{16+w}, v{16+w}')
    A('s_waitcnt vmcnt(8)')
    pvt(6, 0); pvt(6, 1)
    Vb = 128 + 96; P = 32 + 24
    for m in range(3):
        A(f's_waitcnt vmcnt({6 - 2*m})')
        for d in range(8): A(f'v_perm_b32 v{96+4*d+m}, v{Vb+8*m+4+(d>>1)}, v{Vb+8*m+(d>>1)}, s{60+(d&1)}')
    A('s_waitcnt vmcnt(0)')
    stamp(4)
    for d in range(8): A(f'v_perm_b32 v{96+4*d+3}, v{Vb+28+(d>>1)}, v{Vb+24+(d>>1)}, s{60+(d&1)}')
    for d in range(8): A(f'v_mfma_f32_16x16x32_bf16 {v(64+4*d,4)}, {v(96+4*d,4)}, {v(P,4)}, {v(64+4*d,4)}')
    A('s_mov_b32 exec_lo, 0x00ff00ff'); A('s_mov_b32 exec_hi, 0x00ff00ff')
    for d in range(8): A(f'ds_write_b128 v22, {v(64+4*d,4)} offset:{64*d}')
    A('s_mov_b64 exec, -1')
    A('s_waitcnt lgkmcnt(0)')
    A('s_barrier')
    A('ds_read_b128 v[32:35], v20'); A('ds_read_b128 v[36:39], v20 offset:32768')
    A('ds_read_b128 v[40:43], v21'); A('ds_read_b128 v[44:47], v21 offset:32768')
    for w in range(4):
        A(f's_waitcnt lgkmcnt({3-w})')
        for k in range(4):
            if w == 0: A(f'v_mul_f32 v{32+k}, v{32+k}, v16')
            else: A(f'v_fmac_f32 v{32+k}, v{32+4*w+k}, v{16+w}')
    A('v_cvt_pk_bf16_f32 v24, v32, v33'); A('v_cvt_pk_bf16_f32 v25, v34, v35')
    A('v_min_u32 v24, -2, v24'); A('v_min_u32 v25, -2, v25')
    A('buffer_store_dwordx2 v[24:25], v23, s[56:59], s11 offen sc1')
    stamp(5)
    A('s_branch L_tail')

    A('L_service:')
    A('s_sub_u32 s3, s3, 4')
    A('s_and_b32 s6, s2, 7'); A('s_lshl_b32 s6, s6, 1'); A('s_lshr_b32 s8, s2, 7'); A('s_add_u32 s6, s6, s8')
    A('s_mov_b32 s60, 0x05040100'); A('s_mov_b32 s61, 0x07060302'); A('s_mov_b32 s62, 0xffff0000')
    A(f's_mov_b32 s64, {f2u(LOG2E):#x}')
    A('s_mov_b32 s58, 0x400000'); A('s_mov_b32 s59, 0x20000')
    A(f'v_mov_b32 v13, {LM}')
    A('s_cmp_ge_u32 s2, 160'); A('s_cbranch_scc1 L_nojob')
    A('s_sub_u32 s8, s2, 32'); A('s_cmp_lt_u32 s8, 64'); A('s_cselect_b32 s65, 1, 0')
    A('s_movk_i32 s66, 0x3000'); A('s_cselect_b32 s66, 0x2000, s66'); A('s_lshl_b32 s50, s66, 10')
    A('s_sub_u32 s10, s2, 64'); A('s_cmp_lt_u32 s2, 32'); A('s_cselect_b32 s67, s2, s10'); A(f's_cselect_b32 s69, {DB_H}, {DB_REST}')
    A('s_cmp_eq_u32 s65, 1'); A('s_cselect_b32 s67, s8, s67'); A('s_lshl_b32 s67, s67, 7')
    A('s_lshr_b32 s8, s8, 4'); A('s_lshl_b32 s8, s8, 2'); A(f's_add_u32 s8, s8, {DB_Q}')
    A('s_cmp_eq_u32 s65, 1'); A('s_cselect_b32 s69, s8, s69'); A(f's_cselect_b32 s68, {WS_Q}, {WS_MOD}'); A('s_add_u32 s68, s68, s67')
    A('v_lshrrev_b32 v1, 3, v0'); A('v_lshlrev_b32 v1, 3, v1'); A('v_mul_lo_u32 v1, v1, s66')
    A('v_and_b32 v2, 7, v0'); A('v_lshl_add_u32 v1, v2, 4, v1')
    A('s_lshl_b32 s8, s3, 8'); A('s_mul_i32 s10, s8, s66'); A('s_add_u32 s10, s10, s67')
    A('s_mul_i32 s11, s66, 57')
    A('s_lshl_b32 s8, s3, 9'); A('v_lshlrev_b32 v2, 3, v0'); A('v_add_u32 v2, s8, v2')
    A('v_lshlrev_b32 v3, 5, v0')
    A('s_waitcnt lgkmcnt(0)')
    A('s_mov_b32 s56, s44'); A('s_mov_b32 s57, s45')
    A('s_cmp_eq_u32 s65, 1')
    A('s_cselect_b32 s48, s22, s38'); A('s_cselect_b32 s49, s23, s39')
    A('s_cselect_b32 s70, s16, s36'); A('s_cselect_b32 s71, s17, s37')
    A('global_load_dwordx2 v[4:5], v2, s[70:71]')
    A('global_load_dwordx4 v[16:19], v3, s[16:17]'); A('global_load_dwordx4 v[20:23], v3, s[16:17] offset:16')
    for G in range(4):
        for r in range(8):
            A(f'buffer_load_dwordx4 {v(128+32*G+4*r,4)}, v1, s[48:51], s10 offen nt')
            if not (G == 3 and r == 7): A(f's_add_u32 s10, s10, {"s11" if r == 7 else "s66"}')
    A('s_cmp_lg_u32 s3, 0'); A('s_cbranch_scc1 L_noinit')
    A('v_mov_b32 v14, 0'); A('v_lshl_add_u32 v15, v0, 2, v13'); A('ds_write_b32 v15, v14'); A('s_waitcnt lgkmcnt(0)')
    A('L_noinit:')
    A('s_barrier')
    A('s_waitcnt vmcnt(32)')
    A('v_lshlrev_b32 v6, 16, v4'); A('v_and_b32 v7, s62, v4'); A('v_lshlrev_b32 v8, 16, v5'); A('v_and_b32 v9, s62, v5')
    A('s_cmp_eq_u32 s65, 1'); A('s_cbranch_scc1 L_jobq')
    for k in range(4): A(f'v_mul_f32 v{24+k}, s64, v{6+k}')
    for k in range(4): A(f'v_exp_f32 v{24+k}, -v{24+k}')
    for k in range(4): A(f'v_add_f32 v{24+k}, 1.0, v{24+k}')
    for k in range(4): A(f'v_rcp_f32 v{24+k}, v{24+k}')
    for k in range(4): A(f'v_mul_f32 v{6+k}, v{6+k}, v{24+k}')
    A('s_branch L_jobcommon')
    A('L_jobq:')
    for k in range(8):
        A(f'v_lshlrev_b32 v{96+2*k}, 16, v{16+k}'); A(f'v_and_b32 v{97+2*k}, s62, v{16+k}')
    A('v_add_f32 v24, v96, v97')
    for k in range(2, 16): A(f'v_add_f32 v24, v24, v{96+k}')
    row_reduce('v_add_f32', [24]); xg_reduce('v_add_f32', 24, 25)
    A(f'v_mul_f32 v24, {f2u(1/1024):#x}, v24')
    for k in range(16): A(f'v_sub_f32 v{96+k}, v{96+k}, v24')
    A('v_mul_f32 v26, v96, v96')
    for k in range(1, 16): A(f'v_fmac_f32 v26, v{96+k}, v{96+k}')
    row_reduce('v_add_f32', [26]); xg_reduce('v_add_f32', 26, 25)
    A(f'v_mul_f32 v26, {f2u(1/1024):#x}, v26')
    rnd2(24, 26, 25)
    A(f'v_add_f32 v26, {f2u(1e-5):#x}, v26'); rnd1(26); A('v_sqrt_f32 v26, v26'); rnd1(26); A('v_rcp_f32 v26, v26')
    for k in range(4): A(f'v_sub_f32 v{6+k}, v{6+k}, v24')
    rnd2(6, 7, 25); rnd2(8, 9, 25)
    for k in range(4): A(f'v_mul_f32 v{6+k}, v{6+k}, v26')
    rnd2(6, 7, 25); rnd2(8, 9, 25)
    dbg_spin(DB_H, 32)
    A(f'buffer_load_dwordx2 v[16:17], v2, s[56:59], 0 offen sc1')
    A(f'buffer_load_dwordx2 v[18:19], v2, s[56:59], 0 offen offset:2048 sc1')
    A('s_waitcnt vmcnt(0)')
    A('v_lshlrev_b32 v24, 16, v18'); A('v_and_b32 v25, s62, v18'); A('v_lshlrev_b32 v26, 16, v19'); A('v_and_b32 v27, s62, v19')
    for k in range(4): A(f'v_add_f32 v{24+k}, 1.0, v{24+k}')
    rnd2(24, 25, 28); rnd2(26, 27, 28)
    for k in range(4): A(f'v_mul_f32 v{6+k}, v{6+k}, v{24+k}')
    rnd2(6, 7, 28); rnd2(8, 9, 28)
    A('v_lshlrev_b32 v24, 16, v16'); A('v_and_b32 v25, s62, v16'); A('v_lshlrev_b32 v26, 16, v17'); A('v_and_b32 v27, s62, v17')
    for k in range(4): A(f'v_add_f32 v{6+k}, v{6+k}, v{24+k}')
    A('L_jobcommon:')
    A('v_cvt_pk_bf16_f32 v4, v6, v7'); A('v_cvt_pk_bf16_f32 v5, v8, v9')
    A(f'v_add_u32 v2, {L_ASTAGE}, v2')
    A('ds_write_b64 v2, v[4:5]')
    A('v_lshrrev_b32 v3, 4, v0'); A('v_lshlrev_b32 v3, 1, v3'); A('v_and_b32 v6, 1, v0'); A('v_add_u32 v3, v3, v6'); A('v_lshlrev_b32 v3, 4, v3')
    A('s_lshl_b32 s8, s3, 9'); A(f's_add_u32 s8, s8, {L_ASTAGE}'); A('v_add_u32 v3, s8, v3')
    A('s_waitcnt lgkmcnt(0)')
    for G in range(4): A(f'ds_read_b128 {v(32+8*G,4)}, v3 offset:{128*G}')
    A('s_waitcnt lgkmcnt(0)')
    for G in range(4):
        A(f's_waitcnt vmcnt({24 - 8*G})')
        pv(128 + 32 * G, 32 + 8 * G, G == 0)
    A('v_lshrrev_b32 v3, 5, v0'); A('v_lshlrev_b32 v3, 8, v3'); A('v_and_b32 v6, 16, v0'); A('v_add_u32 v3, v3, v6')
    A('s_lshl_b32 s8, s3, 9'); A(f's_add_u32 s8, s8, {L_JRED}'); A('v_add_u32 v3, s8, v3')
    A('s_mov_b32 exec_lo, 0x00010001'); A('s_mov_b32 exec_hi, 0x00020002')
    for e in range(8): A(f'ds_write_b128 v3, {v(64+4*e,4)} offset:{32*e}')
    A('s_waitcnt lgkmcnt(0)')
    A('s_mov_b64 exec, 1'); A('v_mov_b32 v6, 1'); A('ds_add_rtn_u32 v6, v13, v6'); A('s_mov_b64 exec, -1')
    A('s_waitcnt lgkmcnt(0)')
    A('v_readfirstlane_b32 s8, v6')
    A('s_cmp_lg_u32 s8, 3'); A('s_cbranch_scc1 L_jobwait')
    A('v_and_b32 v3, 7, v0'); A('v_lshlrev_b32 v3, 5, v3'); A('v_lshrrev_b32 v6, 3, v0'); A('v_lshl_add_u32 v3, v6, 2, v3')
    A(f'v_add_u32 v3, {L_JRED}, v3')
    for q in range(8): A(f'ds_read_b32 v{16+q}, v3 offset:{256*q}')
    A('s_waitcnt lgkmcnt(0)')
    for q in range(4): A(f'v_add_f32 v{16+2*q}, v{16+2*q}, v{17+2*q}')
    A('v_add_f32 v16, v16, v18'); A('v_add_f32 v20, v20, v22'); A('v_add_f32 v16, v16, v20')
    A('v_cvt_pk_bf16_f32 v16, v16, v16')
    A('v_lshlrev_b32 v3, 1, v0')
    A('buffer_store_short v16, v3, s[56:59], s68 offen sc1')
    lds_add(13, 0, 6)
    A('s_waitcnt vmcnt(0)')
    A('s_mov_b64 exec, 1'); A('v_mov_b32 v6, 1'); A('v_mov_b32 v3, s69')
    A('global_atomic_add v3, v6, s[42:43] sc1')
    A('s_mov_b64 exec, -1')
    A('L_jobwait:')
    lds_spin(13, 0, 5, 6)
    A('s_branch L_jobdone')
    A('L_nojob:')
    A('s_cmp_lg_u32 s3, 0'); A('s_cbranch_scc1 L_noinit2')
    A('v_mov_b32 v14, 0'); A('v_lshl_add_u32 v15, v0, 2, v13'); A('ds_write_b32 v15, v14')
    A('L_noinit2:')
    A('s_waitcnt lgkmcnt(0)')
    A('s_mov_b32 s56, s44'); A('s_mov_b32 s57, s45')
    A('s_getpc_b64 s[70:71]')
    A('L_pcref:')
    A(f's_sub_u32 s70, s70, L_pcref-{NAME}_kernel'); A('s_subb_u32 s71, s71, 0')
    A('v_lshlrev_b32 v1, 7, v0'); A('s_lshl_b32 s8, s3, 13'); A('v_add_u32 v1, s8, v1')
    A(f'v_min_u32 v1, L_end-{NAME}_kernel, v1')
    A('global_load_dword v255, v1, s[70:71]')
    A('s_barrier')
    A('L_jobdone:')
    stamp(1)
    A('s_cmp_eq_u32 s3, 0'); A('s_cbranch_scc1 L_sw0')
    A('s_cmp_eq_u32 s3, 1'); A('s_cbranch_scc1 L_sw1')
    A('v_lshlrev_b32 v1, 4, v0')
    A('s_cmp_eq_u32 s3, 2'); A('s_cbranch_scc0 L_sw3')
    def dma(base, lds_off, n0, n1):
        for n in range(n0, n1):
            if n == n0 or n % 4 == 0:
                A(f's_mov_b32 m0, {lds_off + (n // 4) * 4096}')
                A(f'v_add_u32 v2, {(n // 4) * 4096}, v1')
            A(f'global_load_lds_dwordx4 v2, {base} offset:{(n % 4) * 1024}')
    dma('s[28:29]', L_MLP, 0, 7); dma('s[30:31]', L_MLP + 7168, 0, 4)
    A('s_branch L_staged')
    A('L_sw3:')
    dma('s[30:31]', L_MLP + 7168, 4, 7); dma('s[32:33]', L_MLP + 14336, 0, 7)
    A('s_branch L_staged')
    A('L_sw1:')
    A('v_lshlrev_b32 v1, 4, v0')
    dma('s[16:17]', L_CONST, 0, 2)
    dbg_spin(DB_REST, 64, sleep=8)
    A(f's_mov_b32 s8, {WS_MOD + 4096}'); A(f's_mov_b32 s10, {WS_MOD + 8192}')
    for n in range(6):
        A(f'buffer_load_dwordx4 {v(16+4*n,4)}, v1, s[56:59], {"s8" if n < 4 else "s10"} offen offset:{(n % 4) * 1024} sc1')
    A(f'v_add_u32 v2, {L_CONST + 2048}, v1')
    for n in range(6):
        A(f's_waitcnt vmcnt({5-n})'); A(f'ds_write_b128 v2, {v(16+4*n,4)} offset:{1024*n}')
    A('s_branch L_staged')
    A('L_sw0:')
    A('v_mov_b32 v16, -1'); A('v_mov_b32 v17, -1'); A('v_mov_b32 v18, -1'); A('v_mov_b32 v19, -1')
    A('v_lshrrev_b32 v1, 5, v0'); A('v_lshlrev_b32 v1, 15, v1'); A('v_and_b32 v2, 31, v0'); A('v_lshl_add_u32 v1, v2, 4, v1')
    A('s_lshl_b32 s8, s4, 17'); A('s_lshl_b32 s10, s5, 9'); A('s_add_u32 s8, s8, s10'); A(f's_add_u32 s8, s8, {WS_T1}'); A('s_add_u32 s10, s8, 0x10000')
    A('buffer_store_dwordx4 v[16:19], v1, s[56:59], s8 offen sc1')
    A('buffer_store_dwordx4 v[16:19], v1, s[56:59], s10 offen sc1')
    A('s_lshl_b32 s72, s6, 11'); A('s_lshl_b32 s10, s7, 7'); A('s_add_u32 s72, s72, s10'); A(f's_add_u32 s72, s72, {WS_T2}')
    A('v_lshlrev_b32 v1, 4, v0')
    A('s_mov_b64 exec, 0xff'); A('buffer_store_dwordx4 v[16:19], v1, s[56:59], s72 offen sc1'); A('s_mov_b64 exec, -1')
    A('s_lshl_b32 s10, s4, 2'); A(f's_add_u32 s10, s10, {DB_Q}')
    dbg_spin('s10', 16)
    A('s_lshl_b32 s8, s4, 11'); A(f's_add_u32 s8, s8, {WS_Q}')
    A('buffer_load_dwordx4 v[20:23], v1, s[56:59], s8 offen sc1'); A('buffer_load_dwordx4 v[24:27], v1, s[56:59], s8 offen offset:1024 sc1')
    A(f'v_add_u32 v2, {L_Q}, v1')
    A('s_waitcnt vmcnt(0)')
    A('ds_write_b128 v2, v[20:23]'); A('ds_write_b128 v2, v[24:27] offset:1024')
    lds_add(13, 4, 6)
    stamp(2)
    lds_spin(13, 8, 4, 6, sleep=2)
    A('v_and_b32 v1, 7, v0'); A('v_lshlrev_b32 v1, 3, v1'); A(f'v_add_u32 v2, {L_ML}, v1')
    for w in range(4): A(f'ds_read_b64 {v(16+2*w,2)}, v2 offset:{64*w}')
    A('s_waitcnt lgkmcnt(0)')
    A('v_max_f32 v24, v16, v18'); A('v_max3_f32 v24, v20, v22, v24')
    for w in range(4): A(f'v_sub_f32 v{16+2*w}, v{16+2*w}, v24')
    for w in range(4): A(f'v_mul_f32 v{16+2*w}, s64, v{16+2*w}')
    for w in range(4): A(f'v_exp_f32 v{16+2*w}, v{16+2*w}')
    A('v_mul_f32 v25, v16, v17')
    for w in range(1, 4): A(f'v_fmac_f32 v25, v{16+2*w}, v{17+2*w}')
    A('s_lshl_b32 s8, s4, 6'); A('s_add_u32 s8, s8, s5'); A('s_lshl_b32 s8, s8, 6'); A(f's_add_u32 s8, s8, {WS_ML}')
    A('s_mov_b64 exec, 0xff'); A('buffer_store_dwordx2 v[24:25], v1, s[56:59], s8 offen sc1')
    A('s_waitcnt vmcnt(0)')
    A('s_mov_b64 exec, 1'); A('s_lshl_b32 s8, s4, 2'); A(f's_add_u32 s8, s8, {DB_ML}')
    A('v_mov_b32 v6, 1'); A('v_mov_b32 v3, s8')
    A('global_atomic_add v3, v6, s[42:43] sc1')
    A('s_mov_b64 exec, -1')
    stamp(3)
    A('L_staged:')
    A('s_mov_b32 s52, s24'); A('s_mov_b32 s53, s25'); A('s_mov_b32 s54, 0x800000')
    A('v_lshrrev_b32 v4, 4, v0'); A('v_lshlrev_b32 v4, 15, v4'); A('v_and_b32 v5, 15, v0'); A('v_lshl_add_u32 v4, v5, 3, v4')
    A('s_lshl_b32 s73, s6, 8'); A('s_lshr_b32 s8, s3, 1'); A('s_lshl_b32 s8, s8, 7'); A('s_add_u32 s73, s73, s8')
    A('s_and_b32 s8, s3, 1'); A('s_lshl_b32 s8, s8, 2'); A('s_add_u32 s73, s73, s8'); A('s_lshl_b32 s73, s73, 11')
    A('s_lshl_b32 s8, s7, 7'); A('s_add_u32 s73, s73, s8')
    def wo_loads():
        for ks in range(2):
            for m in range(4):
                for hh in range(2):
                    row = 64 * (m & 1) + 8 * hh + 2 * ks + (m >> 1)
                    A(f's_add_u32 s8, s73, {row * 2048}')
                    A(f'buffer_load_dwordx2 {v(176 + 16*ks + 4*m + 2*hh, 2)}, v4, s[52:55], s8 offen nt')
    if not wo_late: wo_loads()
    lds_spin(13, 8, 4, 6, sleep=4)
    l0 = A.lab('mlspin'); l1 = A.lab('mlspun')
    A('s_mov_b32 s14, 0'); A(f'{l0}:')
    A(f's_load_dwordx4 s[76:79], s[42:43], {DB_ML} glc'); A('s_waitcnt lgkmcnt(0)')
    A('s_add_u32 s76, s76, s77'); A('s_add_u32 s78, s78, s79'); A('s_add_u32 s76, s76, s78')
    A('s_cmp_ge_u32 s76, 256'); A(f's_cbranch_scc1 {l1}')
    A('s_sleep 6')
    A('s_add_u32 s14, s14, 1'); A(f's_cmp_lt_u32 s14, {SPIN_CAP}'); A(f's_cbranch_scc1 {l0}')
    A(f'{l1}:')
    A('s_and_b32 s8, s6, 3'); A('s_lshl_b32 s8, s8, 1'); A('s_lshr_b32 s10, s3, 1'); A('s_add_u32 s8, s8, s10'); A('s_lshl_b32 s8, s8, 3')
    A('s_lshl_b32 s10, s4, 12'); A('s_add_u32 s8, s8, s10'); A(f's_add_u32 s8, s8, {WS_ML}')
    A('v_lshlrev_b32 v1, 6, v0')
    A('buffer_load_dwordx2 v[16:17], v1, s[56:59], s8 offen sc1')
    stamp(4)
    if wo_late:
        lds_spin(13, 12, 4, 6, sleep=1)
        wo_loads()
        A('s_waitcnt vmcnt(16)')
    else:
        A('s_waitcnt vmcnt(0)')
    A('v_mov_b32 v18, v16')
    row_reduce('v_max_f32', [18]); xg_reduce('v_max_f32', 18, 19)
    A('v_sub_f32 v16, v16, v18'); A('v_mul_f32 v16, s64, v16'); A('v_exp_f32 v16, v16')
    A('v_mul_f32 v17, v16, v17')
    row_reduce('v_add_f32', [17]); xg_reduce('v_add_f32', 17, 19)
    A('v_rcp_f32 v17, v17'); A('v_mul_f32 v16, v16, v17')
    A('v_lshrrev_b32 v1, 3, v0'); A('v_lshlrev_b32 v1, 2, v1')
    for n in range(8): A(f'ds_bpermute_b32 v{160+n}, v1, v16 offset:{32*n}')
    A('v_lshrrev_b32 v5, 3, v0'); A('v_lshlrev_b32 v5, 9, v5'); A('v_and_b32 v2, 7, v0'); A('v_lshl_add_u32 v5, v2, 4, v5')
    A('s_lshl_b32 s74, s6, 15'); A('s_lshl_b32 s8, s3, 7'); A('s_add_u32 s74, s74, s8'); A(f's_add_u32 s74, s74, {WS_T1}')
    A('v_lshrrev_b32 v3, 4, v0'); A('v_lshlrev_b32 v3, 4, v3'); A('s_lshl_b32 s8, s3, 8'); A(f's_add_u32 s8, s8, {L_RED2}'); A('v_add_u32 v3, s8, v3')
    A('s_waitcnt lgkmcnt(0)')
    stamp(5)
    A('s_barrier')
    def t1_load(n):
        A(f's_add_u32 s8, s74, {4096 * n}')
        A(f'buffer_load_dwordx4 {v(128+4*n,4)}, v5, s[56:59], s8 offen sc1')
    for n in range(8): t1_load(n)
    A('s_waitcnt vmcnt(8)')
    for ks in range(2):
        for e in range(4):
            for m in range(4):
                src = 176 + 16*ks + 4*m + (e >> 1)
                A(f'v_perm_b32 v{208 + 16*ks + 4*e + m}, v{src+2}, v{src}, s{60 + (e & 1)}')
    A('s_mov_b32 s14, 0')
    for n in range(8):
        lc = A.lab('t1c'); lo = A.lab('t1ok')
        A(f's_waitcnt vmcnt({7-n})')
        A(f'{lc}:')
        d = 128 + 4*n
        A(f'v_max3_u32 v6, v{d}, v{d+1}, v{d+2}'); A(f'v_max_u32 v6, v6, v{d+3}'); A('v_cmp_eq_u32 vcc, -1, v6')
        A(f's_cbranch_vccz {lo}')
        for k in range(n, 8): t1_load(k)
        A('s_waitcnt vmcnt(0)')
        A('s_add_u32 s14, s14, 1'); A(f's_cmp_lt_u32 s14, {SPIN_CAP}'); A(f's_cbranch_scc1 {lc}')
        A(f'{lo}:')
        for k in range(4):
            A(f'v_lshlrev_b32 v{96+2*k}, 16, v{d+k}'); A(f'v_and_b32 v{97+2*k}, s62, v{d+k}')
        for k in range(8):
            A(f'v_mul_f32 v{168+k}, v{96+k}, v160' if n == 0 else f'v_fmac_f32 v{168+k}, v{96+k}, v{160+n}')
    stamp(6)
    for e in range(4): A(f'v_permlane32_swap_b32 v{168+e}, v{172+e}')
    for e in range(4): A(f'v_add_f32 v{168+e}, v{168+e}, v{172+e}')
    for e in range(2): A(f'v_permlane16_swap_b32 v{168+e}, v{170+e}')
    for e in range(2): A(f'v_add_f32 v{168+e}, v{168+e}, v{170+e}')
    for e in range(2): A(f'v_add_f32_dpp v{168+e}, v{168+e}, v{168+e} row_ror:8 row_mask:0xf bank_mask:0xf')
    A('v_cvt_pk_bf16_f32 v168, v168, v169')
    for c in range(8): A(f'v_mov_b32_dpp v{240+c}, v168 row_newbcast:{c} row_mask:0xf bank_mask:0xf')
    for ks in range(2):
        for e in range(4):
            c = '0' if ks == 0 else v(64+4*e, 4)
            A(f'v_mfma_f32_16x16x32_bf16 {v(64+4*e,4)}, {v(208+16*ks+4*e,4)}, {v(240+4*ks,4)}, {c}')
    A('s_mov_b32 exec_lo, 0x00010001'); A('s_mov_b32 exec_hi, 0x00010001')
    for e in range(4): A(f'ds_write_b128 v3, {v(64+4*e,4)} offset:{64*e}')
    A('s_mov_b64 exec, -1')
    A('s_add_u32 s3, s3, 4')
    A('s_waitcnt lgkmcnt(0)')

    A('L_tail:')
    A('s_barrier')
    A('s_cmp_lg_u32 s3, 4'); A('s_cbranch_scc1 L_t2wait')
    A('v_lshlrev_b32 v1, 4, v0'); A('v_lshlrev_b32 v2, 3, v0')
    A('s_mov_b64 exec, 0xffff')
    for w in range(4): A(f'ds_read_b128 {v(16+4*w,4)}, v1 offset:{L_RED2 + 256*w}')
    A('s_waitcnt lgkmcnt(2)')
    for k in range(4): A(f'v_add_f32 v{16+k}, v{16+k}, v{20+k}')
    A('s_waitcnt lgkmcnt(0)')
    for k in range(4): A(f'v_add_f32 v{24+k}, v{24+k}, v{28+k}')
    for k in range(4): A(f'v_add_f32 v{16+k}, v{16+k}, v{24+k}')
    A('v_cvt_pk_bf16_f32 v16, v16, v17'); A('v_cvt_pk_bf16_f32 v17, v18, v19')
    A('v_min_u32 v16, -2, v16'); A('v_min_u32 v17, -2, v17')
    A('buffer_store_dwordx2 v[16:17], v2, s[56:59], s72 offen sc1')
    A('s_mov_b64 exec, -1')
    A('L_t2wait:')
    A('v_lshrrev_b32 v4, 4, v0'); A('v_and_b32 v5, 15, v0')
    A('v_lshlrev_b32 v1, 11, v4'); A('v_lshl_add_u32 v1, v5, 4, v1')
    A('s_lshl_b32 s74, s3, 8'); A(f's_add_u32 s74, s74, {WS_T2}')
    A('s_waitcnt vmcnt(0)')
    A('s_barrier')
    stamp(7)
    def t2_load(n):
        A(f's_add_u32 s8, s74, {8192 * n}')
        A(f'buffer_load_dwordx4 {v(16+4*n,4)}, v1, s[56:59], s8 offen sc1')
    for n in range(4): t2_load(n)
    A('v_and_b32 v2, 3, v0'); A('v_lshlrev_b32 v2, 1, v2'); A('s_lshl_b32 s8, s2, 3'); A('v_add_u32 v2, s8, v2')
    A(f's_mov_b32 s8, {WS_MOD + 10240}')
    A('buffer_load_ushort v60, v2, s[56:59], s8 offen sc1')
    A('s_load_dword s75, s[34:35], 0')
    A('v_lshrrev_b32 v6, 3, v5'); A('v_lshlrev_b32 v6, 6, v6'); A('v_and_b32 v7, 1, v5'); A('v_lshl_add_u32 v6, v7, 5, v6')
    A('v_lshl_add_u32 v6, v4, 3, v6'); A('v_bfe_u32 v7, v5, 1, 2'); A('s_lshl_b32 s8, s3, 7'); A('v_add3_u32 v6, v6, v7, s8')
    A('v_lshrrev_b32 v8, 2, v6'); A('v_cmp_eq_u32 s[76:77], s2, v8'); A('v_add_u32 v8, 1, v8'); A('v_cmp_eq_u32 s[78:79], s2, v8')
    A('v_lshlrev_b32 v7, 3, v7')
    A('v_lshlrev_b32 v6, 1, v6'); A(f'v_add_u32 v6, {L_CONST}, v6')
    for a in range(4):
        for e in range(2): A(f'ds_read_u16 v{32+2*a+e}, v6 offset:{2048*a + 8*e}')
    A('s_lshl_b32 s8, s3, 7'); A(f's_add_u32 s8, s8, {L_MLP}'); A('v_lshl_add_u32 v9, v0, 1, s8')
    for k in range(7): A(f'ds_read_u16 v{64+k}, v9 offset:{1024*k}')
    A('s_waitcnt lgkmcnt(0)')
    for k in range(7): A(f'ds_read_u16 v{71+k}, v9 offset:{7168 + 1024*k}')
    for k in range(7): A(f'ds_read_u16 v{78+k}, v9 offset:{14336 + 1024*k}')
    for k in range(8): A(f'v_lshlrev_b32 v{32+k}, 16, v{32+k}')
    A('v_add_f32 v38, 1.0, v38'); A('v_add_f32 v39, 1.0, v39'); rnd2(38, 39, 40)
    A('s_waitcnt lgkmcnt(0)')
    for k in range(21): A(f'v_lshlrev_b32 v{64+k}, 16, v{64+k}')
    c0 = -2.0 * math.sqrt(2.0 / math.pi) * LOG2E; c1 = c0 * 0.044715
    A(f's_mov_b32 s66, {f2u(c0):#x}'); A(f's_mov_b32 s67, {f2u(c1):#x}'); A(f's_mov_b32 s68, {f2u(3*c1):#x}')
    for k in range(7):
        w1, b1, w2 = 64+k, 71+k, 78+k
        A(f'v_mul_f32 v40, v{w1}, v{w1}'); A(f'v_mul_f32 v41, v{b1}, v{b1}')
        A(f'v_mul_f32 v42, s67, v40'); A(f'v_mul_f32 v{96+k}, v42, v{w1}')
        A(f'v_mul_f32 v42, s68, v40'); A(f'v_mul_f32 v{103+k}, v42, v{b1}')
        A(f'v_mov_b32 v43, s66'); A(f'v_fma_f32 v42, s68, v41, v43'); A(f'v_mul_f32 v{110+k}, v42, v{w1}')
        A(f'v_fma_f32 v42, s67, v41, v43'); A(f'v_mul_f32 v{117+k}, v42, v{b1}')
        A(f'v_mul_f32 v{124+k}, v{w1}, v{w2}'); A(f'v_mul_f32 v{131+k}, v{b1}, v{w2}')
    A('s_mov_b32 s14, 0')
    for n in range(4):
        lc = A.lab('t2c'); lo = A.lab('t2ok')
        A(f's_waitcnt vmcnt({4-n})')
        A(f'{lc}:')
        d = 16 + 4*n
        A(f'v_max3_u32 v40, v{d}, v{d+1}, v{d+2}'); A(f'v_max_u32 v40, v40, v{d+3}'); A('v_cmp_eq_u32 vcc, -1, v40')
        A(f's_cbranch_vccz {lo}')
        for k in range(n, 4): t2_load(k)
        A('s_waitcnt vmcnt(0)')
        A('s_add_u32 s14, s14, 1'); A(f's_cmp_lt_u32 s14, {SPIN_CAP}'); A(f's_cbranch_scc1 {lc}')
        A(f'{lo}:')
        if n == 0:
            for k in range(4):
                A(f'v_lshlrev_b32 v{44+2*k}, 16, v{d+k}'); A(f'v_and_b32 v{45+2*k}, s62, v{d+k}')
        else:
            for k in range(4):
                A(f'v_lshlrev_b32 v{52+2*k}, 16, v{d+k}'); A(f'v_and_b32 v{53+2*k}, s62, v{d+k}')
            for k in range(8): A(f'v_add_f32 v{44+k}, v{44+k}, v{52+k}')
    stamp(8)
    for e in range(4): A(f'v_permlane32_swap_b32 v{44+e}, v{48+e}')
    for e in range(4): A(f'v_add_f32 v{44+e}, v{44+e}, v{48+e}')
    for e in range(2): A(f'v_permlane16_swap_b32 v{44+e}, v{46+e}')
    for e in range(2): A(f'v_add_f32 v{44+e}, v{44+e}, v{46+e}')
    rnd2(44, 45, 40)
    A('v_mul_f32 v44, v34, v44'); A('v_mul_f32 v45, v35, v45'); rnd2(44, 45, 40)
    A('v_add_f32 v44, v32, v44'); A('v_add_f32 v45, v33, v45'); rnd2(44, 45, 40)
    def stats(a, b, lds_off):
        A(f'v_add_f32 v46, v{a}, v{b}'); A(f'v_mul_f32 v47, v{a}, v{a}'); A(f'v_fmac_f32 v47, v{b}, v{b}')
        A('v_permlane32_swap_b32 v46, v47'); A('v_add_f32 v46, v46, v47')
        A('v_mov_b32 v47, v46'); A('v_permlane16_swap_b32 v46, v47'); A('v_add_f32 v46, v46, v47')
        row_reduce('v_add_f32', [46])
        A('s_mov_b32 exec_lo, 1'); A('s_mov_b32 exec_hi, 1')
        A(f'ds_write_b32 v10, v46 offset:{lds_off}')
    def stats_fin(lds_off):
        A('s_mov_b64 exec, -1')
        A('s_waitcnt lgkmcnt(0)')
        A('s_barrier')
        for k in range(4): A(f'ds_read_b128 {v(48+4*k,4) if k < 3 else v(140,4)}, v11 offset:{lds_off + 16*k}')
    def stats_calc():
        for k in range(4): A(f'v_add_f32 v{48+k}, v{48+k}, v{52+k}')
        for k in range(4): A(f'v_add_f32 v{56+k}, v{56+k}, v{140+k}')
        A('v_add_f32 v48, v48, v49'); A('v_add_f32 v50, v50, v51'); A('v_add_f32 v56, v56, v57'); A('v_add_f32 v58, v58, v59')
        A('v_add_f32 v46, v48, v50'); A('v_add_f32 v47, v56, v58')
        A(f'v_mul_f32 v46, {f2u(1/1024):#x}, v46'); A(f'v_mul_f32 v47, {f2u(1/1024):#x}, v47')
        A('v_fma_f32 v47, -v46, v46, v47'); A('v_max_f32 v47, 0, v47')
        rnd2(46, 47, 40)
        A(f'v_add_f32 v47, {f2u(1e-5):#x}, v47'); rnd1(47); A('v_sqrt_f32 v47, v47'); rnd1(47); A('v_rcp_f32 v47, v47')
    A('v_lshrrev_b32 v10, 5, v0'); A('v_lshlrev_b32 v10, 5, v10'); A('s_lshl_b32 s8, s3, 2'); A('v_add_u32 v10, s8, v10')
    A('v_mov_b32 v11, 0')
    stats(44, 45, L_ST1); stats_fin(L_ST1)
    A('s_waitcnt lgkmcnt(0)')
    stats_calc()
    A('v_sub_f32 v42, v44, v46'); A('v_sub_f32 v43, v45, v46'); rnd2(42, 43, 40)
    A('v_mul_f32 v42, v42, v47'); A('v_mul_f32 v43, v43, v47'); rnd2(42, 43, 40)
    A('v_mul_f32 v42, v42, v38'); A('v_mul_f32 v43, v43, v39'); rnd2(42, 43, 40)
    A('v_add_f32 v42, v42, v36'); A('v_add_f32 v43, v43, v37'); rnd2(42, 43, 40)
    A('s_mov_b64 exec, s[76:77]'); A(f'ds_write2_b32 v7, v42, v44 offset0:0 offset1:1')
    A('s_mov_b64 exec, s[78:79]'); A(f'ds_write2_b32 v7, v43, v45 offset0:0 offset1:1')
    A('s_mov_b64 exec, -1')
    stats(42, 43, L_ST2); stats_fin(L_ST2)
    A('ds_read_b128 v[16:19], v11'); A('ds_read_b128 v[20:23], v11 offset:16')
    A('s_waitcnt lgkmcnt(2)')
    stats_calc()
    A('s_waitcnt lgkmcnt(0)')
    for k in range(4): A(f'v_sub_f32 v{24+k}, v{16+2*k}, v46')
    rnd2(24, 25, 40); rnd2(26, 27, 40)
    for k in range(4): A(f'v_mul_f32 v{24+k}, v{24+k}, v47')
    rnd2(24, 25, 40); rnd2(26, 27, 40)
    stamp(9)
    for k in range(7):
        for d in range(4): A(f'v_fma_f32 v{48+d}, v{96+k}, v{24+d}, v{103+k}')
        for d in range(4): A(f'v_fma_f32 v{48+d}, v{48+d}, v{24+d}, v{110+k}')
        for d in range(4): A(f'v_fma_f32 v{48+d}, v{48+d}, v{24+d}, v{117+k}')
        for d in range(4): A(f'v_exp_f32 v{48+d}, v{48+d}')
        for d in range(4): A(f'v_fma_f32 v{52+d}, v{124+k}, v{24+d}, v{131+k}')
        for d in range(4): A(f'v_add_f32 v{48+d}, 1.0, v{48+d}')
        for d in range(4): A(f'v_rcp_f32 v{48+d}, v{48+d}')
        for d in range(4):
            A(f'v_mul_f32 v{28+d}, v{52+d}, v{48+d}' if k == 0 else f'v_fmac_f32 v{28+d}, v{52+d}, v{48+d}')
    for e in range(2): A(f'v_permlane32_swap_b32 v{28+e}, v{30+e}')
    for e in range(2): A(f'v_add_f32 v{28+e}, v{28+e}, v{30+e}')
    A('v_permlane16_swap_b32 v28, v29'); A('v_add_f32 v28, v28, v29')
    row_reduce('v_add_f32', [28])
    A('v_lshrrev_b32 v10, 4, v0'); A('v_lshlrev_b32 v10, 5, v10'); A('s_lshl_b32 s8, s3, 2'); A('v_add_u32 v10, s8, v10')
    A('s_mov_b32 exec_lo, 0x00010001'); A('s_mov_b32 exec_hi, 0x00010001')
    A(f'ds_write_b32 v10, v28 offset:{L_RED3}')
    A('s_mov_b64 exec, -1')
    A('s_waitcnt lgkmcnt(0)')
    A('s_barrier')
    A('s_cmp_lg_u32 s3, 0'); A('s_cbranch_scc1 L_fin')
    A('s_mov_b64 exec, 15')
    A('v_lshlrev_b32 v10, 5, v0'); A('v_lshlrev_b32 v11, 3, v0')
    A(f'ds_read_b128 v[48:51], v10 offset:{L_RED3}'); A(f'ds_read_b128 v[52:55], v10 offset:{L_RED3+16}')
    A('ds_read_b32 v56, v11 offset:4')
    A('s_lshl_b32 s75, s75, 16')
    A('s_waitcnt vmcnt(0) lgkmcnt(0)')
    for k in range(4): A(f'v_add_f32 v{48+k}, v{48+k}, v{52+k}')
    A('v_add_f32 v48, v48, v49'); A('v_add_f32 v50, v50, v51'); A('v_add_f32 v48, v48, v50')
    rnd1(48); A('v_add_f32 v48, s75, v48'); rnd1(48)
    A('v_lshlrev_b32 v60, 16, v60'); A('v_mul_f32 v48, v60, v48'); rnd1(48)
    A('v_add_f32 v48, v56, v48'); A('v_cvt_pk_bf16_f32 v48, v48, v48')
    A('global_store_short v2, v48, s[40:41]')
    A('s_mov_b64 exec, -1')
    A('L_fin:')
    if diag:
        A('s_waitcnt vmcnt(0)')
        stamp(10)
        for k in range(11): A(f'v_writelane_b32 v61, s{80+2*k}, {k}')
        A('s_lshl_b32 s8, s2, 3'); A('s_add_u32 s8, s8, s3'); A('s_lshl_b32 s8, s8, 6'); A(f's_add_u32 s8, s8, {WS_STAMP}')
        A('v_lshlrev_b32 v1, 2, v0'); A('s_mov_b64 exec, 0xffff')
        A('buffer_store_dword v61, v1, s[56:59], s8 offen')
    A('L_end:')
    A('s_endpgm')
    A('.section .rodata,"a"'); A('.p2align 6'); A(f'.amdhsa_kernel {NAME}_kernel')
    A('.amdhsa_next_free_vgpr 256'); A('.amdhsa_next_free_sgpr 102'); A('.amdhsa_accum_offset 256')
    A('.amdhsa_group_segment_fixed_size 0'); A('.amdhsa_kernarg_size 120'); A('.amdhsa_user_sgpr_count 2')
    A('.amdhsa_user_sgpr_kernarg_segment_ptr 1'); A('.amdhsa_system_sgpr_workgroup_id_x 1')
    A('.amdhsa_float_denorm_mode_32 3')
    A('.end_amdhsa_kernel')
    txt, nn = A.finish()
    return txt

if __name__ == '__main__':
    kw = eval('dict(%s)' % (sys.argv[2] if len(sys.argv) > 2 else ''))
    open(sys.argv[1], 'w').write(gen(**kw))
```

```python
import sys, struct, math
from asmlib import Asm
NAME = 'adaLN_cond__gqa_block_cached__mixer_token_mlp__decode'

def f2u(x): return struct.unpack('<I', struct.pack('<f', x))[0]
LOG2E = 1.4426950408889634

WS_MOD, WS_Q, WS_ML, WS_T2, WS_CLR, WS_EPOCH, WS_T1, WS_STAMP = 0x0, 0x8000, 0x10000, 0x20000, 0x28000, 0x29000, 0x100000, 0x200000
LM = 131072
L_CNT = LM
L_ML = LM + 256
L_Q = LM + 512
L_CONST = LM + 2560
L_MLP = LM + 10752
L_ASTAGE = L_CONST
L_JRED = L_CONST + 2048
LDS_BYTES = 163840
OSTRIDE = 528
L_RED2 = 8192
L_ST1 = 8192 + 1024
L_ST2 = 8192 + 1024 + 64
L_OWN = 8192 + 1024 + 128
L_RED3 = 8192 + 1024 + 256

SPIN_CAP = 0x40000

def gen(DA=6, DB=8, diag=False, wo_late=True, q_at=24, ml_at=56):
    A = Asm()
    nstamp = [0]
    def stamp(k):
        if diag:
            A(f's_memrealtime s[{80+2*k}:{81+2*k}]'); A('s_waitcnt lgkmcnt(0)')
    def v(a, n=1): return f'v{a}' if n == 1 else f'v[{a}:{a+n-1}]'
    def rnd2(a, b, t):
        A(f'v_cvt_pk_bf16_f32 v{t}, v{a}, v{b}'); A(f'v_lshlrev_b32 v{a}, 16, v{t}'); A(f'v_and_b32 v{b}, s62, v{t}')
    def rnd1(a):
        A(f'v_cvt_pk_bf16_f32 v{a}, v{a}, v{a}'); A(f'v_lshlrev_b32 v{a}, 16, v{a}')
    def lds_spin(vaddr, off, target, vt, sleep=1):
        l0 = A.lab('spin'); l1 = A.lab('spun')
        A('s_mov_b32 s14, 0')
        A(f'{l0}:')
        A(f'ds_read_b32 v{vt}, v{vaddr} offset:{off}'); A('s_waitcnt lgkmcnt(0)')
        A(f'v_readfirstlane_b32 s15, v{vt}')
        A(f's_cmp_ge_u32 s15, {target}'); A(f's_cbranch_scc1 {l1}')
        if sleep: A(f's_sleep {sleep}')
        A('s_add_u32 s14, s14, 1'); A(f's_cmp_lt_u32 s14, {SPIN_CAP}'); A(f's_cbranch_scc1 {l0}')
        A(f'{l1}:')
    def lds_add(vaddr, off, vt):
        A('s_waitcnt lgkmcnt(0)')
        A('s_mov_b64 exec, 1'); A(f'v_mov_b32 v{vt}, 1'); A(f'ds_add_u32 v{vaddr}, v{vt} offset:{off}'); A('s_mov_b64 exec, -1')
    def tag_gather(loads, vt, sleep=2, tagregs=(1, 3)):
        l0 = A.lab('tg'); l1 = A.lab('tgok')
        A('s_mov_b32 s14, 0')
        A(f'{l0}:')
        for d, txt in loads: A(txt)
        A('s_waitcnt vmcnt(0)')
        first = True
        for d, txt in loads:
            for r in tagregs:
                if first: A(f'v_xor_b32 v{vt}, s46, v{d+r}'); first = False
                else: A(f'v_xor_b32 v{vt+1}, s46, v{d+r}'); A(f'v_or_b32 v{vt}, v{vt}, v{vt+1}')
        A(f'v_cmp_ne_u32 vcc, 0, v{vt}')
        A(f's_cbranch_vccz {l1}')
        if sleep: A(f's_sleep {sleep}')
        A('s_add_u32 s14, s14, 1'); A(f's_cmp_lt_u32 s14, {SPIN_CAP}'); A(f's_cbranch_scc1 {l0}')
        A(f'{l1}:')
    def xg_reduce(op, a, t):
        A(f'v_mov_b32 v{t}, v{a}'); A(f'v_permlane32_swap_b32 v{a}, v{t}'); A(f'{op} v{a}, v{a}, v{t}')
        A(f'v_mov_b32 v{t}, v{a}'); A(f'v_permlane16_swap_b32 v{a}, v{t}'); A(f'{op} v{a}, v{a}, v{t}')
    def row_reduce(op, regs):
        for sh in (8, 4, 2, 1):
            for a in regs: A(f'{op}_dpp v{a}, v{a}, v{a} row_ror:{sh} row_mask:0xf bank_mask:0xf')
    def pv(Vb, P, first, ds=range(8), O=64, T=96):
        ds = list(ds)
        def perms(d):
            for m in range(4):
                A(f'v_perm_b32 v{T+4*d+m}, v{Vb+8*m+4+(d>>1)}, v{Vb+8*m+(d>>1)}, s{60+(d&1)}')
        perms(ds[0])
        for k, d in enumerate(ds):
            if k + 1 < len(ds): perms(ds[k+1])
            c = '0' if first else v(O+4*d, 4)
            A(f'v_mfma_f32_16x16x32_bf16 {v(O+4*d,4)}, {v(T+4*d,4)}, {v(P,4)}, {c}')

    A(f'; @launch grid=(256,1,1) block=(512,1,1) lds={LDS_BYTES}')
    A('.amdgcn_target "amdgcn-amd-amdhsa--gfx950"')
    A('.text'); A(f'.globl {NAME}_kernel'); A('.p2align 8'); A(f'.type {NAME}_kernel,@function')
    A(f'{NAME}_kernel:')
    A('s_load_dwordx16 s[16:31], s[0:1], 0')
    A('s_load_dwordx8 s[32:39], s[0:1], 64')
    A('s_load_dwordx4 s[40:43], s[0:1], 96')
    A('s_load_dwordx2 s[44:45], s[0:1], 112')
    A('s_cmp_ge_u32 s2, 256'); A('s_cbranch_scc1 L_end')
    if diag: A('s_memrealtime s[80:81]')
    A('v_lshrrev_b32 v1, 6, v0'); A('v_and_b32 v0, 63, v0'); A('v_readfirstlane_b32 s3, v1')
    A('s_bfe_u32 s4, s2, 0x20001')
    A('s_lshr_b32 s5, s2, 3'); A('s_and_b32 s7, s5, 15')
    A('s_and_b32 s8, s2, 1'); A('s_lshl_b32 s8, s8, 5'); A('s_or_b32 s5, s5, s8')
    A('s_mov_b32 s50, 0x4000000'); A('s_mov_b32 s51, 0x20000'); A('s_mov_b32 s55, 0x20000')
    A('s_cmp_ge_u32 s3, 4'); A('s_cbranch_scc1 L_service')

    A('s_lshl_b32 s9, s5, 2'); A('s_add_u32 s9, s9, s3'); A('s_lshl_b32 s9, s9, 13')
    A('s_lshl_b32 s8, s4, 24'); A('s_add_u32 s9, s9, s8')
    A('s_lshl_b32 s12, s3, 15')
    A('v_lshrrev_b32 v13, 4, v0'); A('v_and_b32 v14, 15, v0')
    A('v_lshlrev_b32 v15, 2, v13'); A('v_xor_b32 v1, v14, v15'); A('v_lshlrev_b32 v1, 4, v1')
    A('v_lshl_add_u32 v1, v13, 8, v1')
    A('v_xor_b32 v2, 16, v1'); A('v_xor_b32 v3, 32, v1'); A('v_xor_b32 v4, 48, v1')
    A('v_lshlrev_b32 v5, 4, v0')
    A('s_mov_b32 s54, 0x4000000')
    A('s_waitcnt lgkmcnt(0)')
    A('s_mov_b32 s48, s18'); A('s_mov_b32 s49, s19'); A('s_mov_b32 s52, s20'); A('s_mov_b32 s53, s21')
    issued = [0]
    TS = 64 * 4 * 8192
    def kload(t, n, D):
        if n % 4 == 0:
            A(f's_add_u32 m0, s12, {(t % 4) * 8192 + (n // 4) * 4096}')
            A(f's_add_u32 s10, s9, {t * TS + (n // 4) * 4096}')
        if issued[0] >= D: A(f's_waitcnt vmcnt({D-1})')
        A(f'buffer_load_dwordx4 v{1 + n % 4}, s[48:51], s10 offen offset:{(n % 4) * 1024} nt lds')
        issued[0] += 1
    def vload(t, e, D):
        if e % 4 == 0:
            A(f's_add_u32 s10, s9, {t * TS + (e // 4) * 4096}')
        if issued[0] >= D: A(f's_waitcnt vmcnt({D-1})')
        A(f'buffer_load_dwordx4 {v(128 + 32 * (t % 4) + 4 * e, 4)}, v5, s[52:55], s10 offen offset:{(e % 4) * 1024} nt')
        issued[0] += 1
    for t in range(4):
        for n in range(8):
            if issued[0] == DA:
                A('s_barrier')
                A('s_mov_b32 s60, 0x05040100'); A('s_mov_b32 s61, 0x07060302'); A('s_mov_b32 s62, 0xffff0000')
                A(f's_mov_b32 s63, {f2u(128 ** -0.5):#x}'); A(f's_mov_b32 s64, {f2u(LOG2E):#x}')
                A('s_mov_b32 s56, s44'); A('s_mov_b32 s57, s45'); A('s_mov_b32 s58, 0x400000'); A('s_mov_b32 s59, 0x20000')
                A('v_and_b32 v6, 3, v14'); A('v_lshlrev_b32 v6, 2, v6'); A('v_lshrrev_b32 v15, 2, v14'); A('v_add_u32 v6, v6, v15')
                A('v_lshlrev_b32 v6, 8, v6'); A('v_xor_b32 v15, v13, v14'); A('v_lshl_add_u32 v6, v15, 4, v6'); A('v_add_u32 v6, s12, v6')
                A('v_xor_b32 v7, 64, v6'); A('v_xor_b32 v8, 0x80, v6'); A('v_xor_b32 v9, 0xc0, v6')
                A(f'v_mov_b32 v13, {LM}')
            kload(t, n, DA)
            if issued[0] == q_at: lds_add(13, 12, 14)
    for t in range(4):
        for e in range(8):
            vload(t, e, DA)
            if issued[0] == q_at: lds_add(13, 12, 14)
    stamp(1)
    lds_spin(13, 4, 1, 14)
    A('v_and_b32 v14, 7, v0'); A('v_lshlrev_b32 v14, 8, v14'); A('v_lshrrev_b32 v15, 4, v0'); A('v_lshl_add_u32 v14, v15, 4, v14')
    A(f'v_add_u32 v14, {L_Q}, v14')
    for s in range(4): A(f'ds_read_b128 {v(16+4*s,4)}, v14 offset:{64*s}')
    stamp(2)
    def qk(t):
        off = (t % 4) * 8192
        for hb in range(2):
            for s in range(4): A(f'ds_read_b128 {v(96+16*hb+4*s,4)}, v{6+s} offset:{off + hb*4096}')
        for hb in range(2):
            S = 32 + 8 * (t % 4) + 4 * hb
            for s in range(4):
                A(f's_waitcnt lgkmcnt({7 - 4*hb - s})')
                c = '0' if s == 0 else v(S, 4)
                A(f'v_mfma_f32_16x16x32_bf16 {v(S,4)}, {v(96+16*hb+4*s,4)}, {v(16+4*s,4)}, {c}')
    def rscale(t):
        S = 32 + 8 * (t % 4)
        for k in range(4): A(f'v_cvt_pk_bf16_f32 v{96+k}, v{S+2*k}, v{S+2*k+1}')
        for k in range(4):
            A(f'v_lshlrev_b32 v{S+2*k}, 16, v{96+k}'); A(f'v_and_b32 v{S+2*k+1}, s62, v{96+k}')
        for k in range(8): A(f'v_mul_f32 v{S+k}, s63, v{S+k}')
        for k in range(4): A(f'v_cvt_pk_bf16_f32 v{96+k}, v{S+2*k}, v{S+2*k+1}')
        for k in range(4):
            A(f'v_lshlrev_b32 v{S+2*k}, 16, v{96+k}'); A(f'v_and_b32 v{S+2*k+1}, s62, v{96+k}')
        if t == 0: A(f'v_max_f32 v15, v{S}, v{S+1}')
        elif t == 4: A(f'v_max3_f32 v15, v{S}, v{S+1}, v10')
        else: A(f'v_max3_f32 v15, v{S}, v{S+1}, v15')
        for k in range(1, 4): A(f'v_max3_f32 v15, v{S+2*k}, v{S+2*k+1}, v15')
    def mfin(second):
        xg_reduce('v_max_f32', 15, 14)
        if second:
            A('v_sub_f32 v14, v10, v15'); A('v_mul_f32 v14, s64, v14'); A('v_exp_f32 v14, v14')
        A('v_mov_b32 v10, v15'); A('v_mul_f32 v12, s64, v15')
        if second:
            A('v_mul_f32 v11, v11, v14')
            for k in range(32): A(f'v_mul_f32 v{64+k}, v{64+k}, v14')
    def expo(t):
        S = 32 + 8 * (t % 4)
        for k in range(8): A(f'v_fma_f32 v{S+k}, v{S+k}, s64, -v12')
        for k in range(8): A(f'v_exp_f32 v{S+k}, v{S+k}')
        A(f'v_add_f32 v96, v{S}, v{S+1}'); A(f'v_add_f32 v97, v{S+2}, v{S+3}'); A(f'v_add_f32 v98, v{S+4}, v{S+5}'); A(f'v_add_f32 v99, v{S+6}, v{S+7}')
        for k in range(4): A(f'v_cvt_pk_bf16_f32 v{S+k}, v{S+2*k}, v{S+2*k+1}')
        A('v_add_f32 v96, v96, v97'); A('v_add_f32 v98, v98, v99')
        if t == 0: A('v_add_f32 v11, v96, v98')
        else: A('v_add_f32 v96, v96, v98'); A('v_add_f32 v11, v11, v96')
    def pvt(t, half):
        pv(128 + 32 * (t % 4), 32 + 8 * (t % 4), t == 0, range(4 * half, 4 * half + 4))
    def publish_ml():
        xg_reduce('v_add_f32', 11, 14)
        A('v_lshlrev_b32 v14, 3, v0'); A('s_lshl_b32 s8, s3, 6'); A(f's_add_u32 s8, s8, {L_ML}'); A('v_add_u32 v14, s8, v14')
        A('s_mov_b64 exec, 0xff'); A('ds_write_b64 v14, v[10:11]'); A('s_mov_b64 exec, -1')
        lds_add(13, 8, 14)
    sched = {i: [] for i in range(-1, 64)}
    need_landed = {}
    def put(pos, fn, landed=None): sched[pos].append((fn, landed))
    put(-1, lambda: qk(0))
    put(0, lambda: qk(1)); put(1, lambda: qk(2)); put(2, lambda: qk(3))
    for t in range(4): put(3 + t, (lambda t=t: rscale(t)))
    put(7, lambda: mfin(False))
    for t in range(4): put(8 + t, (lambda t=t: expo(t)))
    for t in range(4):
        for h in range(2): put(12 + 2 * t + h, (lambda t=t, h=h: pvt(t, h)), -1)
    pos = {4: max(20, 7 + DB), 5: max(22, 15 + DB), 6: 23 + DB, 7: 31 + DB}
    for t in range(4, 8):
        put(pos[t], (lambda t=t: qk(t)), 8 * (t - 4) + 7)
        put(pos[t] + 1, (lambda t=t: rscale(t)))
    b = pos[7] + 2
    put(b, lambda: mfin(True))
    put(b + 1, lambda: (expo(4), expo(5))); put(b + 2, lambda: (expo(6), expo(7), publish_ml()))
    p4 = max(b + 3, 39 + DB)
    put(p4, lambda: pvt(4, 0), 39); put(p4 + 1, lambda: pvt(4, 1))
    p5 = max(p4 + 2, 47 + DB)
    put(p5, lambda: pvt(5, 0), 47); put(p5 + 1, lambda: pvt(5, 1))
    assert p5 + 1 <= 63
    def run(posn):
        for fn, landed in sched[posn]:
            if landed is not None:
                outstanding_ok = posn - landed
                if outstanding_ok < DB or posn < DA: A(f's_waitcnt vmcnt({max(outstanding_ok, 0)})')
            fn()
    run(-1)
    for L in range(64):
        if L < 32: kload(4 + L // 8, L % 8, DB)
        else: vload(4 + (L - 32) // 8, L % 8, DB)
        if L == 63 or L == ml_at:
            lds_add(13, 12, 14)
        run(L)
    stamp(3)
    lds_spin(13, 8, 4, 14)
    A('v_lshrrev_b32 v14, 5, v0'); A('s_lshl_b32 s8, s3, 1'); A('v_add_u32 v14, s8, v14')
    A(f'v_mul_u32_u24 v20, {OSTRIDE}, v14')
    A('v_lshlrev_b32 v14, 3, v14'); A(f'v_add_u32 v14, {L_ML}, v14')
    for w in range(4): A(f'ds_read_b32 v{16+w}, v14 offset:{64*w}')
    A('v_and_b32 v21, 31, v0'); A('v_lshl_add_u32 v20, v21, 4, v20')
    A('v_add_u32 v21, 0x10000, v20')
    A('v_and_b32 v22, 15, v0'); A(f'v_mul_u32_u24 v22, {OSTRIDE}, v22'); A('v_lshrrev_b32 v23, 4, v0'); A('v_lshl_add_u32 v22, v23, 4, v22')
    A('v_add_u32 v22, s12, v22')
    A('s_lshl_b32 s8, s4, 2'); A('s_add_u32 s8, s8, s3'); A('s_lshl_b32 s8, s8, 15'); A('s_lshl_b32 s11, s5, 9'); A('s_add_u32 s11, s11, s8')
    A(f's_add_u32 s11, s11, {WS_T1}')
    A('v_lshlrev_b32 v23, 3, v0')
    A('s_waitcnt lgkmcnt(0)')
    A('v_max_f32 v14, v16, v17'); A('v_max3_f32 v14, v18, v19, v14')
    for w in range(4): A(f'v_sub_f32 v{16+w}, v{16+w}, v14')
    for w in range(4): A(f'v_mul_f32 v{16+w}, s64, v{16+w}')
    for w in range(4): A(f'v_exp_f32 v{16+w}, v{16+w}')
    A('s_waitcnt vmcnt(8)')
    pvt(6, 0); pvt(6, 1)
    Vb = 128 + 96; P = 32 + 24
    for m in range(3):
        A(f's_waitcnt vmcnt({6 - 2*m})')
        for d in range(8): A(f'v_perm_b32 v{96+4*d+m}, v{Vb+8*m+4+(d>>1)}, v{Vb+8*m+(d>>1)}, s{60+(d&1)}')
    A('s_waitcnt vmcnt(0)')
    stamp(4)
    for d in range(8): A(f'v_perm_b32 v{96+4*d+3}, v{Vb+28+(d>>1)}, v{Vb+24+(d>>1)}, s{60+(d&1)}')
    for d in range(8): A(f'v_mfma_f32_16x16x32_bf16 {v(64+4*d,4)}, {v(96+4*d,4)}, {v(P,4)}, {v(64+4*d,4)}')
    A('s_mov_b32 exec_lo, 0x00ff00ff'); A('s_mov_b32 exec_hi, 0x00ff00ff')
    for d in range(8): A(f'ds_write_b128 v22, {v(64+4*d,4)} offset:{64*d}')
    A('s_mov_b64 exec, -1')
    A('s_waitcnt lgkmcnt(0)')
    A('s_barrier')
    A('ds_read_b128 v[32:35], v20'); A('ds_read_b128 v[36:39], v20 offset:32768')
    A('ds_read_b128 v[40:43], v21'); A('ds_read_b128 v[44:47], v21 offset:32768')
    for w in range(4):
        A(f's_waitcnt lgkmcnt({3-w})')
        for k in range(4):
            if w == 0: A(f'v_mul_f32 v{32+k}, v{32+k}, v16')
            else: A(f'v_fmac_f32 v{32+k}, v{32+4*w+k}, v{16+w}')
    A('v_cvt_pk_bf16_f32 v24, v32, v33'); A('v_cvt_pk_bf16_f32 v25, v34, v35')
    A('v_min_u32 v24, -2, v24'); A('v_min_u32 v25, -2, v25')
    A('buffer_store_dwordx2 v[24:25], v23, s[56:59], s11 offen sc1')
    stamp(5)
    A('s_branch L_tail')

    A('L_service:')
    A('s_sub_u32 s3, s3, 4')
    A('s_and_b32 s6, s2, 7'); A('s_lshl_b32 s6, s6, 1'); A('s_lshr_b32 s8, s2, 7'); A('s_add_u32 s6, s6, s8')
    A('s_mov_b32 s60, 0x05040100'); A('s_mov_b32 s61, 0x07060302'); A('s_mov_b32 s62, 0xffff0000')
    A(f's_mov_b32 s64, {f2u(LOG2E):#x}')
    A('s_mov_b32 s58, 0x400000'); A('s_mov_b32 s59, 0x20000')
    A(f'v_mov_b32 v13, {LM}')
    A('s_cmp_ge_u32 s2, 160'); A('s_cbranch_scc1 L_nojob')
    A('s_sub_u32 s8, s2, 32'); A('s_cmp_lt_u32 s8, 64'); A('s_cselect_b32 s65, 1, 0')
    A('s_movk_i32 s66, 0x3000'); A('s_cselect_b32 s66, 0x2000, s66'); A('s_lshl_b32 s50, s66, 10')
    A('s_sub_u32 s10, s2, 64'); A('s_cmp_lt_u32 s2, 32'); A('s_cselect_b32 s67, s2, s10')
    A('s_cmp_eq_u32 s65, 1'); A('s_cselect_b32 s67, s8, s67'); A(f's_cselect_b32 s68, {WS_Q}, {WS_MOD}')
    A('s_lshl_b32 s67, s67, 7'); A('s_lshl_b32 s8, s67, 1'); A('s_add_u32 s68, s68, s8')
    A('v_lshrrev_b32 v1, 3, v0'); A('v_lshlrev_b32 v1, 3, v1'); A('v_mul_lo_u32 v1, v1, s66')
    A('v_and_b32 v2, 7, v0'); A('v_lshl_add_u32 v1, v2, 4, v1')
    A('s_lshl_b32 s8, s3, 8'); A('s_mul_i32 s10, s8, s66'); A('s_add_u32 s10, s10, s67')
    A('s_mul_i32 s11, s66, 57')
    A('s_lshl_b32 s8, s3, 9'); A('v_lshlrev_b32 v2, 3, v0'); A('v_add_u32 v2, s8, v2')
    A('v_lshlrev_b32 v3, 5, v0')
    A('s_waitcnt lgkmcnt(0)')
    A('s_mov_b32 s56, s44'); A('s_mov_b32 s57, s45')
    A(f's_load_dword s46, s[44:45], {WS_EPOCH}')
    A('s_cmp_eq_u32 s65, 1')
    A('s_cselect_b32 s48, s22, s38'); A('s_cselect_b32 s49, s23, s39')
    A('s_cselect_b32 s70, s16, s36'); A('s_cselect_b32 s71, s17, s37')
    A('global_load_dwordx2 v[4:5], v2, s[70:71]')
    A('global_load_dwordx4 v[16:19], v3, s[16:17]'); A('global_load_dwordx4 v[20:23], v3, s[16:17] offset:16')
    for G in range(4):
        for r in range(8):
            A(f'buffer_load_dwordx4 {v(128+32*G+4*r,4)}, v1, s[48:51], s10 offen nt')
            if not (G == 3 and r == 7): A(f's_add_u32 s10, s10, {"s11" if r == 7 else "s66"}')
    A('s_cmp_lg_u32 s3, 0'); A('s_cbranch_scc1 L_noinit')
    A('v_mov_b32 v14, 0'); A('v_lshl_add_u32 v15, v0, 2, v13'); A('ds_write_b32 v15, v14'); A('s_waitcnt lgkmcnt(0)')
    A('L_noinit:')
    A('s_barrier')
    A('s_waitcnt lgkmcnt(0)'); A('s_add_u32 s46, s46, 1')
    A('s_waitcnt vmcnt(32)')
    A('v_lshlrev_b32 v6, 16, v4'); A('v_and_b32 v7, s62, v4'); A('v_lshlrev_b32 v8, 16, v5'); A('v_and_b32 v9, s62, v5')
    A('s_cmp_eq_u32 s65, 1'); A('s_cbranch_scc1 L_jobq')
    for k in range(4): A(f'v_mul_f32 v{24+k}, s64, v{6+k}')
    for k in range(4): A(f'v_exp_f32 v{24+k}, -v{24+k}')
    for k in range(4): A(f'v_add_f32 v{24+k}, 1.0, v{24+k}')
    for k in range(4): A(f'v_rcp_f32 v{24+k}, v{24+k}')
    for k in range(4): A(f'v_mul_f32 v{6+k}, v{6+k}, v{24+k}')
    A('s_branch L_jobcommon')
    A('L_jobq:')
    for k in range(8):
        A(f'v_lshlrev_b32 v{96+2*k}, 16, v{16+k}'); A(f'v_and_b32 v{97+2*k}, s62, v{16+k}')
    A('v_add_f32 v24, v96, v97')
    for k in range(2, 16): A(f'v_add_f32 v24, v24, v{96+k}')
    row_reduce('v_add_f32', [24]); xg_reduce('v_add_f32', 24, 25)
    A(f'v_mul_f32 v24, {f2u(1/1024):#x}, v24')
    for k in range(16): A(f'v_sub_f32 v{96+k}, v{96+k}, v24')
    A('v_mul_f32 v26, v96, v96')
    for k in range(1, 16): A(f'v_fmac_f32 v26, v{96+k}, v{96+k}')
    row_reduce('v_add_f32', [26]); xg_reduce('v_add_f32', 26, 25)
    A(f'v_mul_f32 v26, {f2u(1/1024):#x}, v26')
    rnd2(24, 26, 25)
    A(f'v_add_f32 v26, {f2u(1e-5):#x}, v26'); rnd1(26); A('v_sqrt_f32 v26, v26'); rnd1(26); A('v_rcp_f32 v26, v26')
    for k in range(4): A(f'v_sub_f32 v{6+k}, v{6+k}, v24')
    rnd2(6, 7, 25); rnd2(8, 9, 25)
    for k in range(4): A(f'v_mul_f32 v{6+k}, v{6+k}, v26')
    rnd2(6, 7, 25); rnd2(8, 9, 25)
    A('v_lshlrev_b32 v3, 1, v2'); A('s_movk_i32 s8, 0x1000')
    tag_gather([(16, 'buffer_load_dwordx4 v[16:19], v3, s[56:59], 0 offen sc1'), (20, 'buffer_load_dwordx4 v[20:23], v3, s[56:59], s8 offen sc1')], 28)
    A('v_lshlrev_b32 v24, 16, v20'); A('v_and_b32 v25, s62, v20'); A('v_lshlrev_b32 v26, 16, v22'); A('v_and_b32 v27, s62, v22')
    for k in range(4): A(f'v_add_f32 v{24+k}, 1.0, v{24+k}')
    rnd2(24, 25, 28); rnd2(26, 27, 28)
    for k in range(4): A(f'v_mul_f32 v{6+k}, v{6+k}, v{24+k}')
    rnd2(6, 7, 28); rnd2(8, 9, 28)
    A('v_lshlrev_b32 v24, 16, v16'); A('v_and_b32 v25, s62, v16'); A('v_lshlrev_b32 v26, 16, v18'); A('v_and_b32 v27, s62, v18')
    for k in range(4): A(f'v_add_f32 v{6+k}, v{6+k}, v{24+k}')
    A('L_jobcommon:')
    A('v_cvt_pk_bf16_f32 v4, v6, v7'); A('v_cvt_pk_bf16_f32 v5, v8, v9')
    A(f'v_add_u32 v2, {L_ASTAGE}, v2')
    A('ds_write_b64 v2, v[4:5]')
    A('v_lshrrev_b32 v3, 4, v0'); A('v_lshlrev_b32 v3, 1, v3'); A('v_and_b32 v6, 1, v0'); A('v_add_u32 v3, v3, v6'); A('v_lshlrev_b32 v3, 4, v3')
    A('s_lshl_b32 s8, s3, 9'); A(f's_add_u32 s8, s8, {L_ASTAGE}'); A('v_add_u32 v3, s8, v3')
    A('s_waitcnt lgkmcnt(0)')
    for G in range(4): A(f'ds_read_b128 {v(32+8*G,4)}, v3 offset:{128*G}')
    A('s_waitcnt lgkmcnt(0)')
    for G in range(4):
        A(f's_waitcnt vmcnt({24 - 8*G})')
        pv(128 + 32 * G, 32 + 8 * G, G == 0)
    A('v_lshrrev_b32 v3, 5, v0'); A('v_lshlrev_b32 v3, 8, v3'); A('v_and_b32 v6, 16, v0'); A('v_add_u32 v3, v3, v6')
    A('s_lshl_b32 s8, s3, 9'); A(f's_add_u32 s8, s8, {L_JRED}'); A('v_add_u32 v3, s8, v3')
    A('s_mov_b32 exec_lo, 0x00010001'); A('s_mov_b32 exec_hi, 0x00020002')
    for e in range(8): A(f'ds_write_b128 v3, {v(64+4*e,4)} offset:{32*e}')
    A('s_waitcnt lgkmcnt(0)')
    A('s_mov_b64 exec, 1'); A('v_mov_b32 v6, 1'); A('ds_add_rtn_u32 v6, v13, v6'); A('s_mov_b64 exec, -1')
    A('s_waitcnt lgkmcnt(0)')
    A('v_readfirstlane_b32 s8, v6')
    A('s_cmp_lg_u32 s8, 3'); A('s_cbranch_scc1 L_jobwait')
    A('v_and_b32 v3, 7, v0'); A('v_lshlrev_b32 v3, 5, v3'); A('v_lshrrev_b32 v6, 3, v0'); A('v_lshl_add_u32 v3, v6, 2, v3')
    A(f'v_add_u32 v3, {L_JRED}, v3')
    for q in range(8): A(f'ds_read_b32 v{16+q}, v3 offset:{256*q}')
    A('s_waitcnt lgkmcnt(0)')
    for q in range(4): A(f'v_add_f32 v{16+2*q}, v{16+2*q}, v{17+2*q}')
    A('v_add_f32 v16, v16, v18'); A('v_add_f32 v20, v20, v22'); A('v_add_f32 v16, v16, v20')
    A('v_mov_b32_dpp v17, v16 quad_perm:[1,1,3,3] row_mask:0xf bank_mask:0xf')
    A('v_cvt_pk_bf16_f32 v16, v16, v17'); A('v_mov_b32 v17, s46')
    A('v_lshlrev_b32 v3, 2, v0')
    A('s_mov_b32 exec_lo, 0x55555555'); A('s_mov_b32 exec_hi, 0x55555555')
    A('buffer_store_dwordx2 v[16:17], v3, s[56:59], s68 offen sc1')
    A('s_mov_b64 exec, -1')
    lds_add(13, 0, 6)
    A('L_jobwait:')
    lds_spin(13, 0, 5, 6)
    A('s_branch L_jobdone')
    A('L_nojob:')
    A('s_cmp_lg_u32 s3, 0'); A('s_cbranch_scc1 L_noinit2')
    A('v_mov_b32 v14, 0'); A('v_lshl_add_u32 v15, v0, 2, v13'); A('ds_write_b32 v15, v14')
    A('L_noinit2:')
    A('s_waitcnt lgkmcnt(0)')
    A('s_mov_b32 s56, s44'); A('s_mov_b32 s57, s45')
    A(f's_load_dword s46, s[44:45], {WS_EPOCH}')
    A('s_getpc_b64 s[70:71]')
    A('L_pcref:')
    A(f's_sub_u32 s70, s70, L_pcref-{NAME}_kernel'); A('s_subb_u32 s71, s71, 0')
    A('v_lshlrev_b32 v1, 7, v0'); A('s_lshl_b32 s8, s3, 13'); A('v_add_u32 v1, s8, v1')
    A(f'v_min_u32 v1, L_end-{NAME}_kernel, v1')
    A('global_load_dword v255, v1, s[70:71]')
    A('s_barrier')
    A('s_waitcnt lgkmcnt(0)'); A('s_add_u32 s46, s46, 1')
    A('L_jobdone:')
    stamp(1)
    A('s_cmp_eq_u32 s3, 0'); A('s_cbranch_scc1 L_sw0')
    A('s_cmp_eq_u32 s3, 1'); A('s_cbranch_scc1 L_sw1')
    A('v_lshlrev_b32 v1, 4, v0')
    A('s_cmp_eq_u32 s3, 2'); A('s_cbranch_scc0 L_sw3')
    def dma(base, lds_off, n0, n1):
        for n in range(n0, n1):
            if n == n0 or n % 4 == 0:
                A(f's_mov_b32 m0, {lds_off + (n // 4) * 4096}')
                A(f'v_add_u32 v2, {(n // 4) * 4096}, v1')
            A(f'global_load_lds_dwordx4 v2, {base} offset:{(n % 4) * 1024}')
    dma('s[28:29]', L_MLP, 0, 7); dma('s[30:31]', L_MLP + 7168, 0, 4)
    A('s_branch L_staged')
    A('L_sw3:')
    dma('s[30:31]', L_MLP + 7168, 4, 7); dma('s[32:33]', L_MLP + 14336, 0, 7)
    A('s_branch L_staged')
    A('L_sw1:')
    A('v_lshlrev_b32 v1, 4, v0')
    dma('s[16:17]', L_CONST, 0, 2)
    lds_spin(13, 4, 1, 6, sleep=8)
    for k in range(4): A(f's_mov_b32 s{66+k}, {WS_MOD + 8192 + 4096*k}')
    tag_gather([(16+4*n, f'buffer_load_dwordx4 {v(16+4*n,4)}, v1, s[56:59], s{66 + n//4} offen offset:{(n % 4) * 1024} sc1') for n in range(16)], 6, sleep=16)
    A(f'v_lshrrev_b32 v2, 1, v1'); A(f'v_add_u32 v2, {L_CONST + 2048}, v2')
    for n in range(12):
        A(f'v_mov_b32 v{17+4*n}, v{18+4*n}'); A(f'ds_write_b64 v2, {v(16+4*n,2)} offset:{512*n}')
    A(f's_mov_b32 s8, {WS_CLR}')
    tag_gather([(16, 'buffer_load_dwordx4 v[16:19], v1, s[56:59], s8 offen sc1')], 6, sleep=16, tagregs=(0, 1, 2, 3))
    A('s_branch L_staged')
    A('L_sw0:')
    A('v_mov_b32 v16, -1'); A('v_mov_b32 v17, -1'); A('v_mov_b32 v18, -1'); A('v_mov_b32 v19, -1')
    A('v_lshrrev_b32 v1, 5, v0'); A('v_lshlrev_b32 v1, 15, v1'); A('v_and_b32 v2, 31, v0'); A('v_lshl_add_u32 v1, v2, 4, v1')
    A('s_lshl_b32 s8, s4, 17'); A('s_lshl_b32 s10, s5, 9'); A('s_add_u32 s8, s8, s10'); A(f's_add_u32 s8, s8, {WS_T1}'); A('s_add_u32 s10, s8, 0x10000')
    A('buffer_store_dwordx4 v[16:19], v1, s[56:59], s8 offen sc1')
    A('buffer_store_dwordx4 v[16:19], v1, s[56:59], s10 offen sc1')
    A('s_lshl_b32 s72, s6, 11'); A('s_lshl_b32 s10, s7, 7'); A('s_add_u32 s72, s72, s10'); A(f's_add_u32 s72, s72, {WS_T2}')
    A('v_lshlrev_b32 v1, 4, v0')
    A('s_mov_b64 exec, 0xff'); A('buffer_store_dwordx4 v[16:19], v1, s[56:59], s72 offen sc1'); A('s_mov_b64 exec, -1')
    A('s_waitcnt vmcnt(0)')
    A('s_lshl_b32 s8, s2, 2'); A(f's_add_u32 s8, s8, {WS_CLR}'); A('v_mov_b32 v16, s46')
    A('s_mov_b64 exec, 1'); A('buffer_store_dword v16, v1, s[56:59], s8 offen sc1'); A('s_mov_b64 exec, -1')
    lds_spin(13, 12, 4, 6, sleep=4)
    A('s_lshl_b32 s8, s4, 12'); A(f's_add_u32 s8, s8, {WS_Q}')
    tag_gather([(20+4*n, f'buffer_load_dwordx4 {v(20+4*n,4)}, v1, s[56:59], s8 offen offset:{1024*n} sc1') for n in range(4)], 6, sleep=8)
    A(f'v_lshrrev_b32 v2, 1, v1'); A(f'v_add_u32 v2, {L_Q}, v2')
    for n in range(4):
        A(f'v_mov_b32 v{21+4*n}, v{22+4*n}'); A(f'ds_write_b64 v2, {v(20+4*n,2)} offset:{512*n}')
    lds_add(13, 4, 6)
    stamp(2)
    lds_spin(13, 8, 4, 6, sleep=2)
    A('v_and_b32 v1, 7, v0'); A('v_lshlrev_b32 v1, 3, v1'); A(f'v_add_u32 v2, {L_ML}, v1')
    for w in range(4): A(f'ds_read_b64 {v(16+2*w,2)}, v2 offset:{64*w}')
    A('s_waitcnt lgkmcnt(0)')
    A('v_max_f32 v24, v16, v18'); A('v_max3_f32 v24, v20, v22, v24')
    for w in range(4): A(f'v_sub_f32 v{16+2*w}, v{16+2*w}, v24')
    for w in range(4): A(f'v_mul_f32 v{16+2*w}, s64, v{16+2*w}')
    for w in range(4): A(f'v_exp_f32 v{16+2*w}, v{16+2*w}')
    A('v_mul_f32 v26, v16, v17')
    for w in range(1, 4): A(f'v_fmac_f32 v26, v{16+2*w}, v{17+2*w}')
    A('v_mov_b32 v25, s46'); A('v_mov_b32 v27, s46')
    A('v_lshrrev_b32 v1, 1, v0'); A('v_lshlrev_b32 v1, 11, v1'); A('v_and_b32 v2, 1, v0'); A('v_lshl_add_u32 v1, v2, 4, v1')
    A('s_lshl_b32 s8, s4, 13'); A('s_lshl_b32 s10, s5, 5'); A('s_add_u32 s8, s8, s10'); A(f's_add_u32 s8, s8, {WS_ML}')
    A('s_mov_b64 exec, 0xff'); A('buffer_store_dwordx4 v[24:27], v1, s[56:59], s8 offen sc1')
    A('s_mov_b64 exec, -1')
    stamp(3)
    A('L_staged:')
    A('s_mov_b32 s52, s24'); A('s_mov_b32 s53, s25'); A('s_mov_b32 s54, 0x800000')
    A('v_lshrrev_b32 v4, 4, v0'); A('v_lshlrev_b32 v4, 15, v4'); A('v_and_b32 v5, 15, v0'); A('v_lshl_add_u32 v4, v5, 3, v4')
    A('s_lshl_b32 s73, s6, 8'); A('s_lshr_b32 s8, s3, 1'); A('s_lshl_b32 s8, s8, 7'); A('s_add_u32 s73, s73, s8')
    A('s_and_b32 s8, s3, 1'); A('s_lshl_b32 s8, s8, 2'); A('s_add_u32 s73, s73, s8'); A('s_lshl_b32 s73, s73, 11')
    A('s_lshl_b32 s8, s7, 7'); A('s_add_u32 s73, s73, s8')
    def wo_loads():
        for ks in range(2):
            for m in range(4):
                for hh in range(2):
                    row = 64 * (m & 1) + 8 * hh + 2 * ks + (m >> 1)
                    A(f's_add_u32 s8, s73, {row * 2048}')
                    A(f'buffer_load_dwordx2 {v(176 + 16*ks + 4*m + 2*hh, 2)}, v4, s[52:55], s8 offen nt')
    if not wo_late: wo_loads()
    lds_spin(13, 12, 8, 6, sleep=2)
    A('s_lshl_b32 s8, s6, 11'); A('s_lshr_b32 s10, s3, 1'); A('s_lshl_b32 s10, s10, 4'); A('s_add_u32 s8, s8, s10'); A(f's_add_u32 s8, s8, {WS_ML}')
    A('v_lshlrev_b32 v1, 5, v0')
    tag_gather([(16, 'buffer_load_dwordx4 v[16:19], v1, s[56:59], s8 offen sc1')], 6, sleep=4)
    stamp(4)
    if wo_late:
        lds_spin(13, 12, 12, 6, sleep=1)
        wo_loads()
    A('v_mov_b32 v17, v18')
    A('v_mov_b32 v18, v16')
    row_reduce('v_max_f32', [18]); xg_reduce('v_max_f32', 18, 19)
    A('v_sub_f32 v16, v16, v18'); A('v_mul_f32 v16, s64, v16'); A('v_exp_f32 v16, v16')
    A('v_mul_f32 v17, v16, v17')
    row_reduce('v_add_f32', [17]); xg_reduce('v_add_f32', 17, 19)
    A('v_rcp_f32 v17, v17'); A('v_mul_f32 v16, v16, v17')
    A('v_lshrrev_b32 v1, 3, v0'); A('v_lshlrev_b32 v1, 2, v1')
    for n in range(8): A(f'ds_bpermute_b32 v{160+n}, v1, v16 offset:{32*n}')
    A('v_lshrrev_b32 v5, 3, v0'); A('v_lshlrev_b32 v5, 9, v5'); A('v_and_b32 v2, 7, v0'); A('v_lshl_add_u32 v5, v2, 4, v5')
    A('s_lshl_b32 s74, s6, 15'); A('s_lshl_b32 s8, s3, 7'); A('s_add_u32 s74, s74, s8'); A(f's_add_u32 s74, s74, {WS_T1}')
    A('v_lshrrev_b32 v3, 4, v0'); A('v_lshlrev_b32 v3, 4, v3'); A('s_lshl_b32 s8, s3, 8'); A(f's_add_u32 s8, s8, {L_RED2}'); A('v_add_u32 v3, s8, v3')
    A('s_waitcnt lgkmcnt(0)')
    stamp(5)
    A('s_barrier')
    def t1_load(n):
        A(f's_add_u32 s8, s74, {4096 * n}')
        A(f'buffer_load_dwordx4 {v(128+4*n,4)}, v5, s[56:59], s8 offen sc1')
    for n in range(8): t1_load(n)
    A('s_waitcnt vmcnt(8)')
    for ks in range(2):
        for e in range(4):
            for m in range(4):
                src = 176 + 16*ks + 4*m + (e >> 1)
                A(f'v_perm_b32 v{208 + 16*ks + 4*e + m}, v{src+2}, v{src}, s{60 + (e & 1)}')
    A('s_mov_b32 s14, 0')
    for n in range(8):
        lc = A.lab('t1c'); lo = A.lab('t1ok')
        A(f's_waitcnt vmcnt({7-n})')
        A(f'{lc}:')
        d = 128 + 4*n
        A(f'v_max3_u32 v6, v{d}, v{d+1}, v{d+2}'); A(f'v_max_u32 v6, v6, v{d+3}'); A('v_cmp_eq_u32 vcc, -1, v6')
        A(f's_cbranch_vccz {lo}')
        for k in range(n, 8): t1_load(k)
        A('s_waitcnt vmcnt(0)')
        A('s_add_u32 s14, s14, 1'); A(f's_cmp_lt_u32 s14, {SPIN_CAP}'); A(f's_cbranch_scc1 {lc}')
        A(f'{lo}:')
        for k in range(4):
            A(f'v_lshlrev_b32 v{96+2*k}, 16, v{d+k}'); A(f'v_and_b32 v{97+2*k}, s62, v{d+k}')
        for k in range(8):
            A(f'v_mul_f32 v{168+k}, v{96+k}, v160' if n == 0 else f'v_fmac_f32 v{168+k}, v{96+k}, v{160+n}')
    stamp(6)
    for e in range(4): A(f'v_permlane32_swap_b32 v{168+e}, v{172+e}')
    for e in range(4): A(f'v_add_f32 v{168+e}, v{168+e}, v{172+e}')
    for e in range(2): A(f'v_permlane16_swap_b32 v{168+e}, v{170+e}')
    for e in range(2): A(f'v_add_f32 v{168+e}, v{168+e}, v{170+e}')
    for e in range(2): A(f'v_add_f32_dpp v{168+e}, v{168+e}, v{168+e} row_ror:8 row_mask:0xf bank_mask:0xf')
    A('v_cvt_pk_bf16_f32 v168, v168, v169')
    for c in range(8): A(f'v_mov_b32_dpp v{240+c}, v168 row_newbcast:{c} row_mask:0xf bank_mask:0xf')
    for ks in range(2):
        for e in range(4):
            c = '0' if ks == 0 else v(64+4*e, 4)
            A(f'v_mfma_f32_16x16x32_bf16 {v(64+4*e,4)}, {v(208+16*ks+4*e,4)}, {v(240+4*ks,4)}, {c}')
    A('s_mov_b32 exec_lo, 0x00010001'); A('s_mov_b32 exec_hi, 0x00010001')
    for e in range(4): A(f'ds_write_b128 v3, {v(64+4*e,4)} offset:{64*e}')
    A('s_mov_b64 exec, -1')
    A('s_add_u32 s3, s3, 4')
    A('s_waitcnt lgkmcnt(0)')

    A('L_tail:')
    A('s_barrier')
    A('s_cmp_lg_u32 s3, 4'); A('s_cbranch_scc1 L_t2wait')
    A('v_lshlrev_b32 v1, 4, v0'); A('v_lshlrev_b32 v2, 3, v0')
    A('s_mov_b64 exec, 0xffff')
    for w in range(4): A(f'ds_read_b128 {v(16+4*w,4)}, v1 offset:{L_RED2 + 256*w}')
    A('s_waitcnt lgkmcnt(2)')
    for k in range(4): A(f'v_add_f32 v{16+k}, v{16+k}, v{20+k}')
    A('s_waitcnt lgkmcnt(0)')
    for k in range(4): A(f'v_add_f32 v{24+k}, v{24+k}, v{28+k}')
    for k in range(4): A(f'v_add_f32 v{16+k}, v{16+k}, v{24+k}')
    A('v_cvt_pk_bf16_f32 v16, v16, v17'); A('v_cvt_pk_bf16_f32 v17, v18, v19')
    A('v_min_u32 v16, -2, v16'); A('v_min_u32 v17, -2, v17')
    A('buffer_store_dwordx2 v[16:17], v2, s[56:59], s72 offen sc1')
    A('s_mov_b64 exec, -1')
    A('L_t2wait:')
    A('v_lshrrev_b32 v4, 4, v0'); A('v_and_b32 v5, 15, v0')
    A('v_lshlrev_b32 v1, 11, v4'); A('v_lshl_add_u32 v1, v5, 4, v1')
    A('s_lshl_b32 s74, s3, 8'); A(f's_add_u32 s74, s74, {WS_T2}')
    A('s_waitcnt vmcnt(0)')
    A('s_barrier')
    stamp(7)
    def t2_load(n):
        A(f's_add_u32 s8, s74, {8192 * n}')
        A(f'buffer_load_dwordx4 {v(16+4*n,4)}, v1, s[56:59], s8 offen sc1')
    for n in range(4): t2_load(n)
    A('v_and_b32 v2, 3, v0'); A('v_lshlrev_b32 v2, 1, v2'); A('s_lshl_b32 s8, s2, 3'); A('v_add_u32 v2, s8, v2')
    A('v_and_b32 v3, 2, v2'); A('v_and_b32 v8, -4, v2'); A('v_lshl_add_u32 v3, v8, 1, v3')
    A(f's_mov_b32 s8, {WS_MOD + 20480}')
    A('buffer_load_ushort v60, v3, s[56:59], s8 offen sc1')
    A('s_load_dword s75, s[34:35], 0')
    A('v_lshrrev_b32 v6, 3, v5'); A('v_lshlrev_b32 v6, 6, v6'); A('v_and_b32 v7, 1, v5'); A('v_lshl_add_u32 v6, v7, 5, v6')
    A('v_lshl_add_u32 v6, v4, 3, v6'); A('v_bfe_u32 v7, v5, 1, 2'); A('s_lshl_b32 s8, s3, 7'); A('v_add3_u32 v6, v6, v7, s8')
    A('v_lshrrev_b32 v8, 2, v6'); A('v_cmp_eq_u32 s[76:77], s2, v8'); A('v_add_u32 v8, 1, v8'); A('v_cmp_eq_u32 s[78:79], s2, v8')
    A('v_lshlrev_b32 v7, 3, v7')
    A('v_lshlrev_b32 v6, 1, v6'); A(f'v_add_u32 v6, {L_CONST}, v6')
    for a in range(4):
        for e in range(2): A(f'ds_read_u16 v{32+2*a+e}, v6 offset:{2048*a + 8*e}')
    A('s_lshl_b32 s8, s3, 7'); A(f's_add_u32 s8, s8, {L_MLP}'); A('v_lshl_add_u32 v9, v0, 1, s8')
    for k in range(7): A(f'ds_read_u16 v{64+k}, v9 offset:{1024*k}')
    A('s_waitcnt lgkmcnt(0)')
    for k in range(7): A(f'ds_read_u16 v{71+k}, v9 offset:{7168 + 1024*k}')
    for k in range(7): A(f'ds_read_u16 v{78+k}, v9 offset:{14336 + 1024*k}')
    for k in range(8): A(f'v_lshlrev_b32 v{32+k}, 16, v{32+k}')
    A('v_add_f32 v38, 1.0, v38'); A('v_add_f32 v39, 1.0, v39'); rnd2(38, 39, 40)
    A('s_waitcnt lgkmcnt(0)')
    for k in range(21): A(f'v_lshlrev_b32 v{64+k}, 16, v{64+k}')
    c0 = -2.0 * math.sqrt(2.0 / math.pi) * LOG2E; c1 = c0 * 0.044715
    A(f's_mov_b32 s66, {f2u(c0):#x}'); A(f's_mov_b32 s67, {f2u(c1):#x}'); A(f's_mov_b32 s68, {f2u(3*c1):#x}')
    for k in range(7):
        w1, b1, w2 = 64+k, 71+k, 78+k
        A(f'v_mul_f32 v40, v{w1}, v{w1}'); A(f'v_mul_f32 v41, v{b1}, v{b1}')
        A(f'v_mul_f32 v42, s67, v40'); A(f'v_mul_f32 v{96+k}, v42, v{w1}')
        A(f'v_mul_f32 v42, s68, v40'); A(f'v_mul_f32 v{103+k}, v42, v{b1}')
        A(f'v_mov_b32 v43, s66'); A(f'v_fma_f32 v42, s68, v41, v43'); A(f'v_mul_f32 v{110+k}, v42, v{w1}')
        A(f'v_fma_f32 v42, s67, v41, v43'); A(f'v_mul_f32 v{117+k}, v42, v{b1}')
        A(f'v_mul_f32 v{124+k}, v{w1}, v{w2}'); A(f'v_mul_f32 v{131+k}, v{b1}, v{w2}')
    A('s_mov_b32 s14, 0')
    for n in range(4):
        lc = A.lab('t2c'); lo = A.lab('t2ok')
        A(f's_waitcnt vmcnt({4-n})')
        A(f'{lc}:')
        d = 16 + 4*n
        A(f'v_max3_u32 v40, v{d}, v{d+1}, v{d+2}'); A(f'v_max_u32 v40, v40, v{d+3}'); A('v_cmp_eq_u32 vcc, -1, v40')
        A(f's_cbranch_vccz {lo}')
        for k in range(n, 4): t2_load(k)
        A('s_waitcnt vmcnt(0)')
        A('s_add_u32 s14, s14, 1'); A(f's_cmp_lt_u32 s14, {SPIN_CAP}'); A(f's_cbranch_scc1 {lc}')
        A(f'{lo}:')
        if n == 0:
            for k in range(4):
                A(f'v_lshlrev_b32 v{44+2*k}, 16, v{d+k}'); A(f'v_and_b32 v{45+2*k}, s62, v{d+k}')
        else:
            for k in range(4):
                A(f'v_lshlrev_b32 v{52+2*k}, 16, v{d+k}'); A(f'v_and_b32 v{53+2*k}, s62, v{d+k}')
            for k in range(8): A(f'v_add_f32 v{44+k}, v{44+k}, v{52+k}')
    stamp(8)
    for e in range(4): A(f'v_permlane32_swap_b32 v{44+e}, v{48+e}')
    for e in range(4): A(f'v_add_f32 v{44+e}, v{44+e}, v{48+e}')
    for e in range(2): A(f'v_permlane16_swap_b32 v{44+e}, v{46+e}')
    for e in range(2): A(f'v_add_f32 v{44+e}, v{44+e}, v{46+e}')
    rnd2(44, 45, 40)
    A('v_mul_f32 v44, v34, v44'); A('v_mul_f32 v45, v35, v45'); rnd2(44, 45, 40)
    A('v_add_f32 v44, v32, v44'); A('v_add_f32 v45, v33, v45'); rnd2(44, 45, 40)
    def stats(a, b, lds_off):
        A(f'v_add_f32 v46, v{a}, v{b}'); A(f'v_mul_f32 v47, v{a}, v{a}'); A(f'v_fmac_f32 v47, v{b}, v{b}')
        A('v_permlane32_swap_b32 v46, v47'); A('v_add_f32 v46, v46, v47')
        A('v_mov_b32 v47, v46'); A('v_permlane16_swap_b32 v46, v47'); A('v_add_f32 v46, v46, v47')
        row_reduce('v_add_f32', [46])
        A('s_mov_b32 exec_lo, 1'); A('s_mov_b32 exec_hi, 1')
        A(f'ds_write_b32 v10, v46 offset:{lds_off}')
    def stats_fin(lds_off):
        A('s_mov_b64 exec, -1')
        A('s_waitcnt lgkmcnt(0)')
        A('s_barrier')
        for k in range(4): A(f'ds_read_b128 {v(48+4*k,4) if k < 3 else v(140,4)}, v11 offset:{lds_off + 16*k}')
    def stats_calc():
        for k in range(4): A(f'v_add_f32 v{48+k}, v{48+k}, v{52+k}')
        for k in range(4): A(f'v_add_f32 v{56+k}, v{56+k}, v{140+k}')
        A('v_add_f32 v48, v48, v49'); A('v_add_f32 v50, v50, v51'); A('v_add_f32 v56, v56, v57'); A('v_add_f32 v58, v58, v59')
        A('v_add_f32 v46, v48, v50'); A('v_add_f32 v47, v56, v58')
        A(f'v_mul_f32 v46, {f2u(1/1024):#x}, v46'); A(f'v_mul_f32 v47, {f2u(1/1024):#x}, v47')
        A('v_fma_f32 v47, -v46, v46, v47'); A('v_max_f32 v47, 0, v47')
        rnd2(46, 47, 40)
        A(f'v_add_f32 v47, {f2u(1e-5):#x}, v47'); rnd1(47); A('v_sqrt_f32 v47, v47'); rnd1(47); A('v_rcp_f32 v47, v47')
    A('v_lshrrev_b32 v10, 5, v0'); A('v_lshlrev_b32 v10, 5, v10'); A('s_lshl_b32 s8, s3, 2'); A('v_add_u32 v10, s8, v10')
    A('v_mov_b32 v11, 0')
    stats(44, 45, L_ST1); stats_fin(L_ST1)
    A('s_waitcnt lgkmcnt(0)')
    stats_calc()
    A('v_sub_f32 v42, v44, v46'); A('v_sub_f32 v43, v45, v46'); rnd2(42, 43, 40)
    A('v_mul_f32 v42, v42, v47'); A('v_mul_f32 v43, v43, v47'); rnd2(42, 43, 40)
    A('v_mul_f32 v42, v42, v38'); A('v_mul_f32 v43, v43, v39'); rnd2(42, 43, 40)
    A('v_add_f32 v42, v42, v36'); A('v_add_f32 v43, v43, v37'); rnd2(42, 43, 40)
    A('s_mov_b64 exec, s[76:77]'); A(f'ds_write2_b32 v7, v42, v44 offset0:0 offset1:1')
    A('s_mov_b64 exec, s[78:79]'); A(f'ds_write2_b32 v7, v43, v45 offset0:0 offset1:1')
    A('s_mov_b64 exec, -1')
    stats(42, 43, L_ST2); stats_fin(L_ST2)
    A('ds_read_b128 v[16:19], v11'); A('ds_read_b128 v[20:23], v11 offset:16')
    A('s_waitcnt lgkmcnt(2)')
    stats_calc()
    A('s_waitcnt lgkmcnt(0)')
    for k in range(4): A(f'v_sub_f32 v{24+k}, v{16+2*k}, v46')
    rnd2(24, 25, 40); rnd2(26, 27, 40)
    for k in range(4): A(f'v_mul_f32 v{24+k}, v{24+k}, v47')
    rnd2(24, 25, 40); rnd2(26, 27, 40)
    stamp(9)
    for k in range(7):
        for d in range(4): A(f'v_fma_f32 v{48+d}, v{96+k}, v{24+d}, v{103+k}')
        for d in range(4): A(f'v_fma_f32 v{48+d}, v{48+d}, v{24+d}, v{110+k}')
        for d in range(4): A(f'v_fma_f32 v{48+d}, v{48+d}, v{24+d}, v{117+k}')
        for d in range(4): A(f'v_exp_f32 v{48+d}, v{48+d}')
        for d in range(4): A(f'v_fma_f32 v{52+d}, v{124+k}, v{24+d}, v{131+k}')
        for d in range(4): A(f'v_add_f32 v{48+d}, 1.0, v{48+d}')
        for d in range(4): A(f'v_rcp_f32 v{48+d}, v{48+d}')
        for d in range(4):
            A(f'v_mul_f32 v{28+d}, v{52+d}, v{48+d}' if k == 0 else f'v_fmac_f32 v{28+d}, v{52+d}, v{48+d}')
    for e in range(2): A(f'v_permlane32_swap_b32 v{28+e}, v{30+e}')
    for e in range(2): A(f'v_add_f32 v{28+e}, v{28+e}, v{30+e}')
    A('v_permlane16_swap_b32 v28, v29'); A('v_add_f32 v28, v28, v29')
    row_reduce('v_add_f32', [28])
    A('v_lshrrev_b32 v10, 4, v0'); A('v_lshlrev_b32 v10, 5, v10'); A('s_lshl_b32 s8, s3, 2'); A('v_add_u32 v10, s8, v10')
    A('s_mov_b32 exec_lo, 0x00010001'); A('s_mov_b32 exec_hi, 0x00010001')
    A(f'ds_write_b32 v10, v28 offset:{L_RED3}')
    A('s_mov_b64 exec, -1')
    A('s_waitcnt lgkmcnt(0)')
    A('s_barrier')
    A('s_cmp_eq_u32 s3, 0'); A('s_cbranch_scc1 L_out')
    A('s_cmp_lg_u32 s3, 4'); A('s_cbranch_scc1 L_fin')
    A('s_cmp_lg_u32 s2, 0'); A('s_cbranch_scc1 L_fin')
    A('s_mov_b64 exec, 1'); A('v_mov_b32 v16, s46'); A(f's_mov_b32 s8, {WS_EPOCH}')
    A('buffer_store_dword v16, v11, s[56:59], s8 offen')
    A('s_mov_b64 exec, -1')
    A('s_branch L_fin')
    A('L_out:')
    A('s_mov_b64 exec, 15')
    A('v_lshlrev_b32 v10, 5, v0'); A('v_lshlrev_b32 v11, 3, v0')
    A(f'ds_read_b128 v[48:51], v10 offset:{L_RED3}'); A(f'ds_read_b128 v[52:55], v10 offset:{L_RED3+16}')
    A('ds_read_b32 v56, v11 offset:4')
    A('s_lshl_b32 s75, s75, 16')
    A('s_waitcnt vmcnt(0) lgkmcnt(0)')
    for k in range(4): A(f'v_add_f32 v{48+k}, v{48+k}, v{52+k}')
    A('v_add_f32 v48, v48, v49'); A('v_add_f32 v50, v50, v51'); A('v_add_f32 v48, v48, v50')
    rnd1(48); A('v_add_f32 v48, s75, v48'); rnd1(48)
    A('v_lshlrev_b32 v60, 16, v60'); A('v_mul_f32 v48, v60, v48'); rnd1(48)
    A('v_add_f32 v48, v56, v48'); A('v_cvt_pk_bf16_f32 v48, v48, v48')
    A('global_store_short v2, v48, s[40:41]')
    A('s_mov_b64 exec, -1')
    A('L_fin:')
    if diag:
        A('s_waitcnt vmcnt(0)')
        stamp(10)
        for k in range(11): A(f'v_writelane_b32 v61, s{80+2*k}, {k}')
        A('s_lshl_b32 s8, s2, 3'); A('s_add_u32 s8, s8, s3'); A('s_lshl_b32 s8, s8, 6'); A(f's_add_u32 s8, s8, {WS_STAMP}')
        A('v_lshlrev_b32 v1, 2, v0'); A('s_mov_b64 exec, 0xffff')
        A('buffer_store_dword v61, v1, s[56:59], s8 offen')
    A('L_end:')
    A('s_endpgm')
    A('.section .rodata,"a"'); A('.p2align 6'); A(f'.amdhsa_kernel {NAME}_kernel')
    A('.amdhsa_next_free_vgpr 256'); A('.amdhsa_next_free_sgpr 102'); A('.amdhsa_accum_offset 256')
    A('.amdhsa_group_segment_fixed_size 0'); A('.amdhsa_kernarg_size 120'); A('.amdhsa_user_sgpr_count 2')
    A('.amdhsa_user_sgpr_kernarg_segment_ptr 1'); A('.amdhsa_system_sgpr_workgroup_id_x 1')
    A('.amdhsa_float_denorm_mode_32 3')
    A('.end_amdhsa_kernel')
    txt, nn = A.finish()
    return txt

if __name__ == '__main__':
    kw = eval('dict(%s)' % (sys.argv[2] if len(sys.argv) > 2 else ''))
    open(sys.argv[1], 'w').write(gen(**kw))
```

```python
import sys, struct, math
from asmlib import Asm
NAME = 'adaLN_cond__gqa_block_cached__mixer_token_mlp__decode'

def f2u(x): return struct.unpack('<I', struct.pack('<f', x))[0]
LOG2E = 1.4426950408889634

WS_MOD, WS_TAB, WS_ML, WS_T2, WS_CLR, WS_EPOCH = 0x0, 0x8000, 0x10000, 0x20000, 0x28000, 0x29000
WS_PART, WS_T1, WS_STAMP = 0x40000, 0x100000, 0x200000
PSTR = 10240 * 8
LM = 131072
C_Q, C_ML, C_PROG, C_STG, C_TAB, C_FB, C_DONE, C_P2, C_GO = 4, 8, 12, 16, 20, 24, 28, 32, 36
L_ML = LM + 256
L_FAC = LM + 512
L_TP = LM + 768
L_Q = LM + 1024
L_CONST = LM + 3072
L_TABLE = LM + 13312
L_SCR = LM + 21760
LDS_BYTES = 163840
OSTRIDE = 528
L_RED2 = 8192
L_ST1 = 8192 + 1024
L_ST2 = 8192 + 1024 + 64
L_OWN = 8192 + 1024 + 128
TAB_E0 = 114 << 7

SPIN_CAP = 0x40000

def gen(DA=5, DB=5, diag=False, wo_late=True, q_at=36, fin_at=20, ml_at=56, pub4=True, force_fb=False, prio=True, early=4, cut=(), gmap='hi', swz=True, WU=14, DC=0, c_at=40, b1b=True):
    A = Asm()
    COLD = []
    def stamp(k):
        if diag:
            A(f's_memrealtime s[{80+2*k}:{81+2*k}]'); A('s_waitcnt lgkmcnt(0)')
    def xstamp(k):
        if diag:
            A('s_memrealtime s[100:101]'); A('s_waitcnt lgkmcnt(0)'); A(f'v_writelane_b32 v15, s100, {16 + k}')
    def v(a, n=1): return f'v{a}' if n == 1 else f'v[{a}:{a+n-1}]'
    def rnd(*regs):
        for a in regs: A(f'v_cvt_pk_bf16_f32 v{a}, 0, v{a}')
    def lds_spin(off, target, vt, sleep=1, vaddr=13):
        l0 = A.lab('spin'); l1 = A.lab('spun')
        A('s_mov_b32 s14, 0')
        A(f'{l0}:')
        A(f'ds_read_b32 v{vt}, v{vaddr} offset:{off}'); A('s_waitcnt lgkmcnt(0)')
        A(f'v_readfirstlane_b32 s15, v{vt}')
        A(f's_cmp_ge_u32 s15, {target}'); A(f's_cbranch_scc1 {l1}')
        if sleep: A(f's_sleep {sleep}')
        A('s_add_u32 s14, s14, 1'); A(f's_cmp_lt_u32 s14, {SPIN_CAP}'); A(f's_cbranch_scc1 {l0}')
        A(f'{l1}:')
    def lds_add(off, vt, vaddr=13):
        A('s_waitcnt lgkmcnt(0)')
        A('s_mov_b64 exec, 1'); A(f'v_mov_b32 v{vt}, 1'); A(f'ds_add_u32 v{vaddr}, v{vt} offset:{off}'); A('s_mov_b64 exec, -1')
    def done_event(vt):
        l1 = A.lab('nodone')
        A('s_waitcnt vmcnt(0) lgkmcnt(0)')
        A('s_mov_b64 exec, 1'); A(f'v_mov_b32 v{vt}, 1'); A(f'ds_add_rtn_u32 v{vt}, v13, v{vt} offset:{C_DONE}')
        A('s_waitcnt lgkmcnt(0)')
        A(f'v_readfirstlane_b32 s8, v{vt}')
        A('s_cmp_lg_u32 s8, 2'); A(f's_cbranch_scc1 {l1}')
        A('s_lshl_b32 s8, s2, 2'); A(f's_add_u32 s8, s8, {WS_CLR}'); A(f'v_mov_b32 v{vt}, s46')
        A(f'buffer_store_dword v{vt}, v0, s[56:59], s8 offen sc1')
        A(f'{l1}:')
        A('s_mov_b64 exec, -1')
    def tag_gather(loads, vt, sleep=2, tagregs=(1, 3), cid=None):
        l0 = A.lab('tg'); l1 = A.lab('tgok')
        A('s_mov_b32 s14, 0')
        A(f'{l0}:')
        for d, txt in loads: A(txt)
        A('s_waitcnt vmcnt(0)')
        regs = [d + r for d, txt in loads for r in tagregs]
        A(f'v_min_u32 v{vt}, v{regs[0]}, v{regs[1]}'); A(f'v_max_u32 v{vt+1}, v{regs[0]}, v{regs[1]}')
        for k in range(2, len(regs), 2):
            A(f'v_min3_u32 v{vt}, v{regs[k]}, v{regs[k+1]}, v{vt}'); A(f'v_max3_u32 v{vt+1}, v{regs[k]}, v{regs[k+1]}, v{vt+1}')
        A(f'v_cmp_ne_u32 vcc, s46, v{vt}'); A(f'v_cmp_ne_u32 s[70:71], s46, v{vt+1}'); A('s_or_b64 vcc, vcc, s[70:71]')
        A(f's_cbranch_vccz {l1}')
        if sleep: A(f's_sleep {sleep}')
        A('s_add_u32 s14, s14, 1'); A(f's_cmp_lt_u32 s14, {SPIN_CAP}'); A(f's_cbranch_scc1 {l0}')
        A(f'{l1}:')
        if diag and cid is not None: A(f'v_writelane_b32 v15, s14, {11 + cid}')
    def xg_reduce(op, a, t):
        A(f'v_mov_b32 v{t}, v{a}'); A(f'v_permlane32_swap_b32 v{a}, v{t}'); A(f'{op} v{a}, v{a}, v{t}')
        A(f'v_mov_b32 v{t}, v{a}'); A(f'v_permlane16_swap_b32 v{a}, v{t}'); A(f'{op} v{a}, v{a}, v{t}')
    def row_reduce(op, regs):
        for sh in (8, 4, 2, 1):
            for a in regs: A(f'{op}_dpp v{a}, v{a}, v{a} row_ror:{sh} row_mask:0xf bank_mask:0xf')
    def pv(Vb, P, first, ds=range(8), O=64, T=96):
        ds = list(ds)
        def perms(d):
            for m in range(4):
                A(f'v_perm_b32 v{T+4*d+m}, v{Vb+8*m+4+(d>>1)}, v{Vb+8*m+(d>>1)}, s{60+(d&1)}')
        perms(ds[0])
        for k, d in enumerate(ds):
            if k + 1 < len(ds): perms(ds[k+1])
            c = '0' if first else v(O+4*d, 4)
            A(f'v_mfma_f32_16x16x32_bf16 {v(O+4*d,4)}, {v(T+4*d,4)}, {v(P,4)}, {c}')
    def sweep(name, n, load, dreg, acc, vt, extra=0):
        def check(k):
            d = dreg(k)
            A(f'v_max3_u32 v{vt}, v{d}, v{d+1}, v{d+2}'); A(f'v_max_u32 v{vt}, v{vt}, v{d+3}'); A(f'v_cmp_eq_u32 vcc, -1, v{vt}')
        def mf(k): A(f'v_mfma_f32_16x16x32_bf16 {v(acc,4)}, v[232:235], {v(dreg(k),4)}, {v(acc,4)}')
        A('s_mov_b32 s13, 0')
        for k in range(n):
            A(f's_waitcnt vmcnt({n-1-k+extra})')
            check(k)
            A(f's_cbranch_vccnz L_{name}_miss{k}')
            mf(k)
            A(f'L_{name}_back{k}:')
        A('s_cmp_lg_u32 s13, 0'); A(f's_cbranch_scc1 L_{name}_retry')
        A(f'L_{name}_done:')
        def cold():
            for k in range(n):
                A(f'L_{name}_miss{k}:'); A(f's_bitset1_b32 s13, {k}'); A(f's_branch L_{name}_back{k}')
            A(f'L_{name}_retry:')
            A('s_mov_b32 s14, 0')
            A(f'L_{name}_loop:')
            for k in range(n):
                A(f's_bitcmp0_b32 s13, {k}'); A(f's_cbranch_scc1 L_{name}_nl{k}')
                load(k)
                A(f'L_{name}_nl{k}:')
            A('s_waitcnt vmcnt(0)')
            for k in range(n):
                A(f's_bitcmp0_b32 s13, {k}'); A(f's_cbranch_scc1 L_{name}_nc{k}')
                check(k)
                A(f's_cbranch_vccnz L_{name}_nc{k}')
                mf(k); A(f's_bitset0_b32 s13, {k}')
                A(f'L_{name}_nc{k}:')
            A('s_cmp_eq_u32 s13, 0'); A(f's_cbranch_scc1 L_{name}_out')
            A('s_add_u32 s14, s14, 1'); A(f's_cmp_lt_u32 s14, {SPIN_CAP}'); A(f's_cbranch_scc1 L_{name}_loop')
            A(f'L_{name}_out:')
            A('s_nop 4')
            A(f's_branch L_{name}_done')
        COLD.append(cold)
    def prep(wreg):
        A('v_lshrrev_b32 v4, 4, v0'); A('v_and_b32 v5, 15, v0')
        A('v_lshlrev_b32 v244, 11, v4'); A('v_lshl_add_u32 v244, v5, 4, v244')
        A(f's_lshl_b32 s75, {wreg}, 8'); A(f's_add_u32 s75, s75, {WS_T2}')
        A('v_lshrrev_b32 v6, 3, v5'); A('v_lshlrev_b32 v6, 6, v6'); A('v_and_b32 v7, 1, v5'); A('v_lshl_add_u32 v6, v7, 5, v6')
        A('v_lshl_add_u32 v6, v4, 3, v6'); A('v_bfe_u32 v8, v5, 1, 2'); A(f's_lshl_b32 s8, {wreg}, 7'); A('v_add3_u32 v6, v6, v8, s8')
        A('v_lshrrev_b32 v9, 2, v6'); A('v_cmp_eq_u32 s[76:77], s2, v9'); A('v_add_u32 v9, 1, v9'); A('v_cmp_eq_u32 s[78:79], s2, v9')
        A('v_lshlrev_b32 v245, 3, v8'); A(f'v_add_u32 v245, {L_OWN}, v245')
        A('v_lshlrev_b32 v6, 1, v6'); A(f'v_add_u32 v6, {L_CONST}, v6')
        for a in range(4):
            for e in range(2): A(f'ds_read_u16 v{248+2*a+e}, v6 offset:{2048*a + 8*e}')
        A('v_lshrrev_b32 v246, 5, v0'); A('v_lshlrev_b32 v246, 2, v246'); A(f's_lshl_b32 s8, {wreg}, 3'); A('v_add_u32 v246, s8, v246')
        A('v_mov_b32 v247, 0')
        A('v_lshlrev_b32 v7, 4, v7'); A('v_lshlrev_b32 v7, v7, v243')
        A('v_and_b32 v8, 14, v5')
        for m in range(4):
            A(f'v_cmp_eq_u32 vcc, {4*m}, v8'); A(f'v_cndmask_b32 v{232+m}, 0, v7, vcc')
        for k in range(4): A(f'v_mov_b32 v{240+k}, 0')
        A('s_waitcnt lgkmcnt(0)')
        for k in range(8): A(f'v_lshlrev_b32 v{248+k}, 16, v{248+k}')
        A('v_add_f32 v254, 1.0, v254'); A('v_add_f32 v255, 1.0, v255'); rnd(254, 255)

    A(f'; @launch grid=(256,1,1) block=(512,1,1) lds={LDS_BYTES}')
    A('.amdgcn_target "amdgcn-amd-amdhsa--gfx950"')
    A('.text'); A(f'.globl {NAME}_kernel'); A('.p2align 8'); A(f'.type {NAME}_kernel,@function')
    A(f'{NAME}_kernel:')
    A('s_load_dwordx16 s[16:31], s[0:1], 0')
    A('s_load_dwordx8 s[32:39], s[0:1], 64')
    A('s_load_dwordx4 s[40:43], s[0:1], 96')
    A('s_load_dwordx2 s[44:45], s[0:1], 112')
    A('s_cmp_ge_u32 s2, 256'); A('s_cbranch_scc1 L_end')
    if diag: A('s_memrealtime s[80:81]')
    A('v_lshrrev_b32 v1, 6, v0'); A('v_and_b32 v0, 63, v0'); A('v_readfirstlane_b32 s3, v1')
    A('s_bfe_u32 s4, s2, 0x20001')
    A('s_lshr_b32 s5, s2, 3'); A('s_and_b32 s7, s5, 15')
    A('s_and_b32 s8, s2, 1'); A('s_lshl_b32 s8, s8, 5'); A('s_or_b32 s5, s5, s8')
    if gmap == 'hi': A('s_lshr_b32 s4, s2, 6'); A('s_and_b32 s5, s2, 63')
    if gmap == 'lo': A('s_and_b32 s4, s2, 3'); A('s_lshr_b32 s5, s2, 2')
    A('s_mov_b32 s51, 0x20000'); A('s_mov_b32 s55, 0x20000')
    A('s_cmp_ge_u32 s3, 4'); A('s_cbranch_scc1 L_service')

    A('s_getpc_b64 s[70:71]')
    A('L_pcref:')
    A('s_lshl_b32 s8, s3, 13')
    A('v_lshl_add_u32 v1, v0, 7, s8'); A('v_min_u32 v1, L_end-L_pcref, v1')
    A('global_load_dword v12, v1, s[70:71]')
    A('s_lshl_b32 s9, s5, 2'); A('s_add_u32 s9, s9, s3'); A('s_lshl_b32 s9, s9, 13')
    A('s_lshl_b32 s8, s4, 24'); A('s_add_u32 s9, s9, s8')
    A('s_lshl_b32 s12, s3, 15')
    A('v_lshrrev_b32 v13, 4, v0'); A('v_and_b32 v14, 15, v0')
    A('v_lshlrev_b32 v15, 2, v13'); A('v_xor_b32 v1, v14, v15'); A('v_lshlrev_b32 v1, 4, v1')
    A('v_lshl_add_u32 v1, v13, 8, v1')
    A('v_xor_b32 v2, 16, v1'); A('v_xor_b32 v3, 32, v1'); A('v_xor_b32 v4, 48, v1')
    A('v_lshlrev_b32 v5, 4, v0')
    if not swz:
        for r in range(1, 5): A(f'v_mov_b32 v{r}, v5')
    A('s_mov_b32 s50, 0x4000000'); A('s_mov_b32 s54, 0x4000000')
    A('s_mov_b32 s60, 0x05040100'); A('s_mov_b32 s61, 0x07060302')
    A(f's_mov_b32 s63, {f2u(128 ** -0.5):#x}'); A(f's_mov_b32 s64, {f2u(LOG2E):#x}')
    A('s_mov_b32 s58, 0x400000'); A('s_mov_b32 s59, 0x20000')
    A('v_and_b32 v6, 3, v14'); A('v_lshlrev_b32 v6, 2, v6'); A('v_lshrrev_b32 v15, 2, v14'); A('v_add_u32 v6, v6, v15')
    A('v_lshlrev_b32 v6, 8, v6'); A('v_xor_b32 v15, v13, v14'); A('v_lshl_add_u32 v6, v15, 4, v6'); A('v_add_u32 v6, s12, v6')
    A('v_xor_b32 v7, 64, v6'); A('v_xor_b32 v8, 0x80, v6'); A('v_xor_b32 v9, 0xc0, v6')
    A(f'v_mov_b32 v13, {LM}')
    A('v_mov_b32 v14, 0'); A('v_lshl_add_u32 v15, v0, 2, v13'); A('ds_write_b32 v15, v14')
    A('s_waitcnt lgkmcnt(0)')
    A('s_mov_b32 s48, s18'); A('s_mov_b32 s49, s19'); A('s_mov_b32 s52, s20'); A('s_mov_b32 s53, s21')
    A('s_mov_b32 s56, s44'); A('s_mov_b32 s57, s45')
    issued = [0]
    TS = 64 * 4 * 8192
    def kload(t, n, D):
        if n % 4 == 0:
            A(f's_add_u32 m0, s12, {(t % 4) * 8192 + (n // 4) * 4096}')
            A(f's_add_u32 s10, s9, {t * TS + (n // 4) * 4096}')
        if issued[0] >= D: A(f's_waitcnt vmcnt({D-1})')
        A(f'buffer_load_dwordx4 v{1 + n % 4}, s[48:51], s10 offen offset:{(n % 4) * 1024} nt lds')
        issued[0] += 1
    def vload(t, e, D):
        if e % 4 == 0:
            A(f's_add_u32 s10, s9, {t * TS + (e // 4) * 4096}')
        if issued[0] >= D: A(f's_waitcnt vmcnt({D-1})')
        A(f'buffer_load_dwordx4 {v(128 + 32 * (t % 4) + 4 * e, 4)}, v5, s[52:55], s10 offen offset:{(e % 4) * 1024} nt')
        issued[0] += 1
    for t in range(4):
        for n in range(8):
            if issued[0] == early:
                A('s_barrier')
                if 'svc' not in cut: lds_spin(C_GO, 1, 14)
            kload(t, n, DA)
            if issued[0] == q_at: lds_add(C_PROG, 14)
    for t in range(4):
        for e in range(8):
            vload(t, e, DA)
            if issued[0] == q_at: lds_add(C_PROG, 14)
    stamp(1)
    if not cut: lds_spin(C_Q, 3, 14)
    A('v_and_b32 v14, 7, v0'); A('v_lshlrev_b32 v14, 8, v14'); A('v_lshrrev_b32 v15, 4, v0'); A('v_lshl_add_u32 v14, v15, 4, v14')
    A(f'v_add_u32 v14, {L_Q}, v14')
    for s in range(4): A(f'ds_read_b128 {v(16+4*s,4)}, v14 offset:{64*s}')
    stamp(2)
    def qk(t):
        off = (t % 4) * 8192
        for hb in range(2):
            for s in range(4): A(f'ds_read_b128 {v(96+16*hb+4*s,4)}, v{6+s} offset:{off + hb*4096}')
        for hb in range(2):
            S = 32 + 8 * (t % 4) + 4 * hb
            for s in range(4):
                A(f's_waitcnt lgkmcnt({7 - 4*hb - s})')
                c = '0' if s == 0 else v(S, 4)
                A(f'v_mfma_f32_16x16x32_bf16 {v(S,4)}, {v(96+16*hb+4*s,4)}, {v(16+4*s,4)}, {c}')
    def rscale(t):
        S = 32 + 8 * (t % 4)
        rnd(*range(S, S + 8))
        for k in range(8): A(f'v_mul_f32 v{S+k}, s63, v{S+k}')
        rnd(*range(S, S + 8))
        if t == 0: A(f'v_max_f32 v15, v{S}, v{S+1}')
        elif t == 4: A(f'v_max3_f32 v15, v{S}, v{S+1}, v10')
        else: A(f'v_max3_f32 v15, v{S}, v{S+1}, v15')
        for k in range(1, 4): A(f'v_max3_f32 v15, v{S+2*k}, v{S+2*k+1}, v15')
    def mfin(second):
        xg_reduce('v_max_f32', 15, 14)
        if second:
            A('v_sub_f32 v14, v10, v15'); A('v_mul_f32 v14, s64, v14'); A('v_exp_f32 v14, v14')
        A('v_mov_b32 v10, v15'); A('v_mul_f32 v12, s64, v15')
        if second:
            A('v_mul_f32 v11, v11, v14')
            for k in range(32): A(f'v_mul_f32 v{64+k}, v{64+k}, v14')
    def expo(t):
        S = 32 + 8 * (t % 4)
        for k in range(8): A(f'v_fma_f32 v{S+k}, v{S+k}, s64, -v12')
        for k in range(8): A(f'v_exp_f32 v{S+k}, v{S+k}')
        A(f'v_add_f32 v96, v{S}, v{S+1}'); A(f'v_add_f32 v97, v{S+2}, v{S+3}'); A(f'v_add_f32 v98, v{S+4}, v{S+5}'); A(f'v_add_f32 v99, v{S+6}, v{S+7}')
        for k in range(4): A(f'v_cvt_pk_bf16_f32 v{S+k}, v{S+2*k}, v{S+2*k+1}')
        A('v_add_f32 v96, v96, v97'); A('v_add_f32 v98, v98, v99')
        if t == 0: A('v_add_f32 v11, v96, v98')
        else: A('v_add_f32 v96, v96, v98'); A('v_add_f32 v11, v11, v96')
    def pvt(t, half):
        pv(128 + 32 * (t % 4), 32 + 8 * (t % 4), t == 0, range(4 * half, 4 * half + 4))
    def publish_ml():
        xg_reduce('v_add_f32', 11, 14)
        A('v_lshlrev_b32 v14, 3, v0'); A('s_lshl_b32 s8, s3, 6'); A(f's_add_u32 s8, s8, {L_ML}'); A('v_add_u32 v14, s8, v14')
        A('s_mov_b64 exec, 0xff'); A('ds_write_b64 v14, v[10:11]'); A('s_mov_b64 exec, -1')
        lds_add(C_ML, 14)
    sched = {i: [] for i in range(-1, 64)}
    def put(pos, fn, landed=None): sched[pos].append((fn, landed))
    put(-1, lambda: qk(0))
    put(0, lambda: qk(1)); put(1, lambda: qk(2)); put(2, lambda: qk(3))
    for t in range(4): put(3 + t, (lambda t=t: rscale(t)))
    put(7, lambda: mfin(False))
    for t in range(4): put(8 + t, (lambda t=t: expo(t)))
    for t in range(4):
        for h in range(2): put(12 + 2 * t + h, (lambda t=t, h=h: pvt(t, h)), -1)
    pos = {4: max(20, 7 + DB), 5: max(22, 15 + DB), 6: 23 + DB, 7: 31 + DB}
    for t in range(4, 8):
        put(pos[t], (lambda t=t: qk(t)), 8 * (t - 4) + 7)
        put(pos[t] + (1 if t < 7 else 0), (lambda t=t: rscale(t)))
    b = pos[7] + 1
    assert c_at > pos[7]
    put(b, lambda: (mfin(True), expo(4)))
    put(b + 1, lambda: (expo(5), expo(6), expo(7), publish_ml()))
    DCe = DC or DB
    def Dof(L): return DCe if L >= c_at else DB
    def first_pos(m, lo):
        for L in range(lo, 64):
            if any(LL - Dof(LL) >= m for LL in range(0, L + 1)): return L
        return 63
    p4 = min(first_pos(39, b + 2), 62)
    put(p4, lambda: pvt(4, 0), 39); put(min(p4 + 1, 63), lambda: pvt(4, 1))
    p5 = min(first_pos(47, min(p4 + 2, 63)), 63)
    put(p5, lambda: pvt(5, 0), 47); put(min(p5 + 1, 63), lambda: pvt(5, 1))
    def run(posn):
        for fn, landed in sched[posn]:
            if landed is not None and not any(LL - Dof(LL) >= landed for LL in range(0, posn + 1)):
                A(f's_waitcnt vmcnt({posn - landed})')
            fn()
    run(-1)
    for L in range(64):
        if L < 32: kload(4 + L // 8, L % 8, Dof(L))
        else: vload(4 + (L - 32) // 8, L % 8, Dof(L))
        if L in (fin_at, ml_at, 63): lds_add(C_PROG, 14)
        run(L)
    stamp(3)
    A('v_lshrrev_b32 v14, 5, v0'); A('s_lshl_b32 s8, s3, 1'); A('v_add_u32 v14, s8, v14')
    A(f'v_mul_u32_u24 v20, {OSTRIDE}, v14')
    A('v_lshlrev_b32 v14, 4, v14'); A(f'v_add_u32 v14, {L_FAC}, v14')
    A('v_and_b32 v21, 31, v0'); A('v_lshl_add_u32 v20, v21, 4, v20')
    A('v_add_u32 v21, 0x10000, v20')
    A('v_and_b32 v22, 15, v0'); A(f'v_mul_u32_u24 v22, {OSTRIDE}, v22'); A('v_lshrrev_b32 v23, 4, v0'); A('v_lshl_add_u32 v22, v23, 4, v22')
    A('v_add_u32 v22, s12, v22')
    A('s_lshl_b32 s8, s4, 2'); A('s_add_u32 s8, s8, s3'); A('s_lshl_b32 s8, s8, 15'); A('s_lshl_b32 s11, s5, 9'); A('s_add_u32 s11, s11, s8')
    A(f's_add_u32 s11, s11, {WS_T1}')
    A('v_lshlrev_b32 v23, 3, v0')
    A('s_waitcnt vmcnt(8)')
    pvt(6, 0); pvt(6, 1)
    Vb = 128 + 96; P = 32 + 24
    for m in range(3):
        A(f's_waitcnt vmcnt({6 - 2*m})')
        for d in range(8): A(f'v_perm_b32 v{96+4*d+m}, v{Vb+8*m+4+(d>>1)}, v{Vb+8*m+(d>>1)}, s{60+(d&1)}')
    A('s_waitcnt vmcnt(0)')
    stamp(4)
    if cut: A('s_branch L_fin')
    for d in range(8): A(f'v_perm_b32 v{96+4*d+3}, v{Vb+28+(d>>1)}, v{Vb+24+(d>>1)}, s{60+(d&1)}')
    for d in range(8): A(f'v_mfma_f32_16x16x32_bf16 {v(64+4*d,4)}, {v(96+4*d,4)}, {v(P,4)}, {v(64+4*d,4)}')
    A('s_mov_b32 exec_lo, 0x00ff00ff'); A('s_mov_b32 exec_hi, 0x00ff00ff')
    for d in range(8): A(f'ds_write_b128 v22, {v(64+4*d,4)} offset:{64*d}')
    A('s_mov_b64 exec, -1')
    A('s_waitcnt lgkmcnt(0)')
    A('s_barrier')
    A('ds_read_b128 v[16:19], v14')
    A('ds_read_b128 v[32:35], v20'); A('ds_read_b128 v[36:39], v20 offset:32768')
    A('ds_read_b128 v[40:43], v21'); A('ds_read_b128 v[44:47], v21 offset:32768')
    for w in range(4):
        A(f's_waitcnt lgkmcnt({3-w})')
        for k in range(4):
            if w == 0: A(f'v_mul_f32 v{32+k}, v{32+k}, v16')
            else: A(f'v_fmac_f32 v{32+k}, v{32+4*w+k}, v{16+w}')
    A('v_cvt_pk_bf16_f32 v24, v32, v33'); A('v_cvt_pk_bf16_f32 v25, v34, v35')
    A('v_min_u32 v24, -2, v24'); A('v_min_u32 v25, -2, v25')
    if pub4:
        A('v_mov_b32_dpp v26, v24 quad_perm:[1,1,3,3] row_mask:0xf bank_mask:0xf')
        A('v_mov_b32_dpp v27, v25 quad_perm:[1,1,3,3] row_mask:0xf bank_mask:0xf')
        A('s_mov_b32 exec_lo, 0x55555555'); A('s_mov_b32 exec_hi, 0x55555555')
        A('buffer_store_dwordx4 v[24:27], v23, s[56:59], s11 offen sc1')
        A('s_mov_b64 exec, -1')
    else:
        A('buffer_store_dwordx2 v[24:25], v23, s[56:59], s11 offen sc1')
    if b1b: A('s_barrier')
    stamp(5)
    A('v_mov_b32 v243, 0x3f80')
    prep('s3')
    A('s_branch L_tail')

    A('L_service:')
    if 'svc' in cut: A('s_endpgm')
    A('s_sub_u32 s3, s3, 4')
    if gmap == 'lo':
        A('s_lshl_b32 s6, s4, 1'); A('s_bfe_u32 s8, s2, 0x10002'); A('s_add_u32 s6, s6, s8')
    else:
        A('s_and_b32 s6, s2, 7')
    A('s_lshl_b32 s6, s6, 1'); A('s_lshr_b32 s8, s2, 7'); A('s_add_u32 s6, s6, s8')
    A('s_mov_b32 s60, 0x05040100'); A('s_mov_b32 s61, 0x07060302'); A('s_mov_b32 s62, 0xffff0000')
    A(f's_mov_b32 s64, {f2u(LOG2E):#x}')
    A('s_mov_b32 s58, 0x400000'); A('s_mov_b32 s59, 0x20000')
    A(f'v_mov_b32 v13, {LM}')
    A('s_waitcnt lgkmcnt(0)')
    A('s_mov_b32 s56, s44'); A('s_mov_b32 s57, s45')
    A(f's_load_dword s46, s[44:45], {WS_EPOCH}')
    xstamp(0)
    A('s_mov_b32 s65, s3')
    A('s_cmp_eq_u32 s3, 0'); A('s_cbranch_scc0 L_notsw0')
    if prio: A('s_setprio 3')
    A('s_cmp_lt_u32 s2, 128'); A('s_cbranch_scc1 L_unit_p1')
    A('s_mov_b32 s65, 2')
    A('s_branch L_unit_rest')
    A('L_notsw0:')
    A('s_cmp_ge_u32 s3, 2'); A('s_cbranch_scc1 L_tabwaves')
    A('L_unit_q:')
    if prio: A('s_setprio 2')
    A('s_movk_i32 s66, 0x2000'); A('s_and_b32 s67, s2, 63'); A('s_lshr_b32 s69, s2, 6'); A('s_add_u32 s68, s67, 96')
    A('s_mov_b32 s48, s22'); A('s_mov_b32 s49, s23'); A('s_mov_b32 s70, s16'); A('s_mov_b32 s71, s17')
    A('s_branch L_unit')
    A('L_unit_rest:')
    A('s_and_b32 s67, s2, 63'); A('s_add_u32 s67, s67, 32'); A('s_lshr_b32 s69, s2, 6')
    A('s_branch L_unit_mod')
    A('L_unit_p1:')
    A('s_and_b32 s67, s2, 31'); A('s_lshr_b32 s69, s2, 5')
    A('L_unit_mod:')
    A('s_movk_i32 s66, 0x3000'); A('s_mov_b32 s68, s67')
    A('s_mov_b32 s48, s38'); A('s_mov_b32 s49, s39'); A('s_mov_b32 s70, s36'); A('s_mov_b32 s71, s37')
    A('L_unit:')
    A('s_lshl_b32 s50, s66, 10'); A('s_lshl_b32 s67, s67, 7')
    A('v_lshrrev_b32 v1, 3, v0'); A('v_lshlrev_b32 v1, 3, v1'); A('v_mul_lo_u32 v1, v1, s66')
    A('v_and_b32 v2, 7, v0'); A('v_lshl_add_u32 v1, v2, 4, v1')
    A('s_lshl_b32 s8, s69, 8'); A('s_mul_i32 s10, s8, s66'); A('s_add_u32 s10, s10, s67')
    A('s_mul_i32 s11, s66, 57')
    A('s_lshl_b32 s8, s69, 9'); A('v_lshl_add_u32 v2, v0, 2, s8')
    A('v_lshlrev_b32 v3, 5, v0')
    A('s_cmp_lg_u32 s65, 1'); A('s_cbranch_scc1 L_nob0a')
    A('s_barrier')
    A('L_nob0a:')
    xstamp(2)
    A('global_load_dword v4, v2, s[70:71]'); A('global_load_dword v5, v2, s[70:71] offset:256')
    A('global_load_dwordx4 v[16:19], v3, s[16:17]'); A('global_load_dwordx4 v[20:23], v3, s[16:17] offset:16')
    for G in range(4):
        for r in range(8):
            if WU and 8*G + r >= WU: A(f's_waitcnt vmcnt({WU-1})')
            A(f'buffer_load_dwordx4 {v(128+32*G+4*r,4)}, v1, s[48:51], s10 offen nt')
            if not (G == 3 and r == 7): A(f's_add_u32 s10, s10, {"s11" if r == 7 else "s66"}')
    A('s_lshl_b32 s68, s68, 9'); A(f's_mul_i32 s8, s69, {PSTR}'); A('s_add_u32 s68, s68, s8'); A(f's_add_u32 s68, s68, {WS_PART}')
    A('s_cmp_eq_u32 s65, 3'); A('s_cbranch_scc1 L_nob0')
    A('s_cmp_eq_u32 s65, 1'); A('s_cbranch_scc1 L_go')
    A('s_barrier')
    A('s_branch L_went')
    A('L_go:')
    lds_add(C_GO, 10)
    A('L_went:')
    A('s_waitcnt lgkmcnt(0)'); A('s_add_u32 s46, s46, 1')
    A('L_nob0:')
    xstamp(3)
    A('s_waitcnt vmcnt(32)')
    xstamp(4)
    A('v_lshlrev_b32 v6, 16, v4'); A('v_and_b32 v7, s62, v4'); A('v_lshlrev_b32 v8, 16, v5'); A('v_and_b32 v9, s62, v5')
    A('s_cmp_eq_u32 s65, 1'); A('s_cbranch_scc1 L_jobq')
    for k in range(4): A(f'v_mul_f32 v{24+k}, s64, v{6+k}')
    for k in range(4): A(f'v_exp_f32 v{24+k}, -v{24+k}')
    for k in range(4): A(f'v_add_f32 v{24+k}, 1.0, v{24+k}')
    for k in range(4): A(f'v_rcp_f32 v{24+k}, v{24+k}')
    for k in range(4): A(f'v_mul_f32 v{6+k}, v{6+k}, v{24+k}')
    A('s_branch L_jobcommon')
    A('L_jobq:')
    for k in range(8):
        A(f'v_lshlrev_b32 v{96+2*k}, 16, v{16+k}'); A(f'v_and_b32 v{97+2*k}, s62, v{16+k}')
    A('v_add_f32 v24, v96, v97')
    for k in range(2, 16): A(f'v_add_f32 v24, v24, v{96+k}')
    row_reduce('v_add_f32', [24]); xg_reduce('v_add_f32', 24, 25)
    A(f'v_mul_f32 v24, {f2u(1/1024):#x}, v24')
    for k in range(16): A(f'v_sub_f32 v{96+k}, v{96+k}, v24')
    A('v_mul_f32 v26, v96, v96')
    for k in range(1, 16): A(f'v_fmac_f32 v26, v{96+k}, v{96+k}')
    row_reduce('v_add_f32', [26]); xg_reduce('v_add_f32', 26, 25)
    A(f'v_mul_f32 v26, {f2u(1/1024):#x}, v26')
    rnd(24, 26)
    A(f'v_add_f32 v26, {f2u(1e-5):#x}, v26'); rnd(26); A('v_sqrt_f32 v26, v26'); rnd(26); A('v_rcp_f32 v26, v26')
    for k in range(4): A(f'v_sub_f32 v{6+k}, v{6+k}, v24')
    rnd(6, 7, 8, 9)
    for k in range(4): A(f'v_mul_f32 v{6+k}, v{6+k}, v26')
    rnd(6, 7, 8, 9)
    A('v_lshlrev_b32 v3, 2, v2')
    loads = []
    for a in range(2):
        for rho in range(4):
            A(f's_mov_b32 s{72 + 4*a + rho}, {WS_PART + rho * PSTR + a * 8192}')
            for k in range(2):
                d = 16 + 32*a + 16*k + 4*rho
                loads.append((d, f'buffer_load_dwordx4 {v(d,4)}, v3, s[56:59], s{72 + 4*a + rho} offen offset:{1024*k} sc1'))
    if 'p2g' not in cut: tag_gather(loads, 10, cid=0)
    lds_add(C_P2, 10)
    def sum4(b, dst):
        for j in range(2):
            A(f'v_add_f32 v{b+2*j}, v{b+2*j}, v{b+4+2*j}'); A(f'v_add_f32 v{b+8+2*j}, v{b+8+2*j}, v{b+12+2*j}')
        for j in range(2): A(f'v_add_f32 v{dst+j}, v{b+2*j}, v{b+8+2*j}')
    sum4(16, 96); sum4(32, 98); sum4(48, 100); sum4(64, 102)
    rnd(*range(96, 104))
    for k in range(4): A(f'v_add_f32 v{100+k}, 1.0, v{100+k}')
    rnd(100, 101, 102, 103)
    for k in range(4): A(f'v_mul_f32 v{6+k}, v{6+k}, v{100+k}')
    rnd(6, 7, 8, 9)
    for k in range(4): A(f'v_add_f32 v{6+k}, v{6+k}, v{96+k}')
    A('L_jobcommon:')
    A('v_cvt_pk_bf16_f32 v4, v6, v7'); A('v_cvt_pk_bf16_f32 v5, v8, v9')
    A('s_lshl_b32 s8, s3, 10'); A(f's_add_u32 s8, s8, {L_SCR}')
    A('v_lshl_add_u32 v2, v0, 2, s8')
    A('ds_write2_b32 v2, v4, v5 offset0:0 offset1:64')
    A('v_lshrrev_b32 v3, 4, v0'); A('v_lshlrev_b32 v3, 1, v3'); A('v_and_b32 v6, 1, v0'); A('v_add_u32 v3, v3, v6'); A('v_lshl_add_u32 v3, v3, 4, s8')
    A('s_waitcnt lgkmcnt(0)')
    for G in range(4): A(f'ds_read_b128 {v(32+8*G,4)}, v3 offset:{128*G}')
    A('s_waitcnt lgkmcnt(0)')
    for G in range(4):
        A(f's_waitcnt vmcnt({24 - 8*G})')
        if G in (0, 3): xstamp(5 if G == 0 else 6)
        pv(128 + 32 * G, 32 + 8 * G, G == 0)
    A('v_lshrrev_b32 v3, 5, v0'); A('v_lshlrev_b32 v3, 8, v3'); A('v_and_b32 v6, 16, v0'); A('v_add3_u32 v3, v3, v6, s8')
    A('v_and_b32 v6, 3, v0'); A('v_lshlrev_b32 v6, 6, v6'); A('v_bfe_u32 v7, v0, 2, 3'); A('v_lshl_add_u32 v6, v7, 2, v6'); A('v_add_u32 v6, s8, v6')
    A('s_mov_b32 exec_lo, 0x00010001'); A('s_mov_b32 exec_hi, 0x00020002')
    for e in range(8): A(f'ds_write_b128 v3, {v(64+4*e,4)} offset:{512 + 32*e}')
    A('s_mov_b32 exec_lo, -1'); A('s_mov_b32 exec_hi, 0')
    A('s_waitcnt lgkmcnt(0)')
    A('ds_read2_b32 v[16:17], v6 offset0:128 offset1:136'); A('ds_read2_b32 v[20:21], v6 offset0:192 offset1:200')
    A('v_lshlrev_b32 v3, 4, v0'); A('v_mov_b32 v19, s46')
    A('s_waitcnt lgkmcnt(0)')
    A('v_add_f32 v18, v17, v21'); A('v_add_f32 v16, v16, v20'); A('v_mov_b32 v17, s46')
    A('buffer_store_dwordx4 v[16:19], v3, s[56:59], s68 offen sc1')
    A('s_mov_b64 exec, -1')
    if 'second' in cut: A('s_branch L_unit_done')
    A('s_cmp_lg_u32 s65, 0'); A('s_cbranch_scc1 L_unit_done')
    xstamp(7)
    lds_spin(C_P2, 1, 6, sleep=4)
    A('s_mov_b32 s65, 3'); A('s_branch L_unit_rest')
    A('L_unit_done:')
    stamp(1)
    A('L_qgather:')
    if 'qg' in cut: A('s_endpgm')
    lds_spin(C_PROG, 4, 6, sleep=4)
    A('s_lshl_b32 s8, s4, 13'); A('s_lshl_b32 s10, s3, 12'); A('s_add_u32 s8, s8, s10')
    A('v_lshl_add_u32 v3, v0, 4, s8')
    loads = []
    for rho in range(4):
        A(f's_mov_b32 s{72 + rho}, {WS_PART + rho * PSTR + 6144 * 8}')
        for k in range(4):
            d = 16 + 16*k + 4*rho
            loads.append((d, f'buffer_load_dwordx4 {v(d,4)}, v3, s[56:59], s{72 + rho} offen offset:{1024*k} sc1'))
    tag_gather(loads, 10, sleep=6, cid=1)
    for k in range(4): sum4(16 + 16*k, 96 + 2*k)
    for k in range(4): A(f'v_cvt_pk_bf16_f32 v{96+k}, v{96+2*k}, v{97+2*k}')
    A('s_lshl_b32 s8, s3, 10'); A(f's_add_u32 s8, s8, {L_Q}'); A('v_lshl_add_u32 v2, v0, 2, s8')
    A('ds_write2_b32 v2, v96, v97 offset0:0 offset1:64'); A('ds_write2_b32 v2, v98, v99 offset0:128 offset1:192')
    lds_add(C_Q, 6)
    stamp(2)
    if 'late' in cut: A('s_endpgm')
    A('s_cmp_eq_u32 s3, 1'); A('s_cbranch_scc1 L_final_gathers')
    A('v_bfe_u32 v1, v0, 3, 2'); A(f's_mov_b32 s8, {PSTR}'); A('v_mul_lo_u32 v1, v1, s8'); A('v_and_b32 v2, 7, v0'); A('v_lshl_add_u32 v1, v2, 4, v1')
    A('s_lshl_b32 s8, s2, 7'); A(f's_add_u32 s8, s8, {WS_PART + 2048 * 8}')
    tag_gather([(16, 'buffer_load_dwordx4 v[16:19], v1, s[56:59], s8 offen sc1')], 10, sleep=10, cid=2)
    for r in (16, 18): A(f'v_add_f32_dpp v{r}, v{r}, v{r} row_ror:8 row_mask:0xf bank_mask:0xf')
    for r in (16, 18): A(f'v_mov_b32 v{r+4}, v{r}')
    for r in (16, 18): A(f'v_permlane16_swap_b32 v{r}, v{r+4}')
    for r in (16, 18): A(f'v_add_f32 v{r}, v{r}, v{r+4}')
    A('v_cvt_pk_bf16_f32 v16, v16, v18')
    A('v_lshlrev_b32 v2, 2, v2'); A('s_lshl_b32 s8, s2, 5'); A(f's_add_u32 s8, s8, {WS_MOD}')
    A('s_mov_b64 exec, 0xff'); A('buffer_store_dword v16, v2, s[56:59], s8 offen sc1'); A('s_mov_b64 exec, -1')
    done_event(6)
    lds_spin(C_ML, 4, 6, sleep=2)
    A('v_and_b32 v1, 7, v0'); A('v_lshlrev_b32 v1, 3, v1'); A(f'v_add_u32 v2, {L_ML}, v1')
    for w in range(4): A(f'ds_read_b64 {v(16+2*w,2)}, v2 offset:{64*w}')
    A('s_waitcnt lgkmcnt(0)')
    A('v_max_f32 v24, v16, v18'); A('v_max3_f32 v24, v20, v22, v24')
    for w in range(4): A(f'v_sub_f32 v{16+2*w}, v{16+2*w}, v24')
    for w in range(4): A(f'v_mul_f32 v{16+2*w}, s64, v{16+2*w}')
    for w in range(4): A(f'v_exp_f32 v{16+2*w}, v{16+2*w}')
    A('v_mul_f32 v26, v16, v17')
    for w in range(1, 4): A(f'v_fmac_f32 v26, v{16+2*w}, v{17+2*w}')
    A('v_mov_b32 v25, s46'); A('v_mov_b32 v27, s46')
    A('v_lshlrev_b32 v1, 10, v0')
    A('s_lshl_b32 s8, s4, 13'); A('s_lshl_b32 s10, s5, 4'); A('s_add_u32 s8, s8, s10'); A(f's_add_u32 s8, s8, {WS_ML}')
    A('s_mov_b64 exec, 0xff'); A('buffer_store_dwordx4 v[24:27], v1, s[56:59], s8 offen sc1')
    A('s_mov_b64 exec, -1')
    stamp(3)
    A('s_branch L_staged')
    A('L_final_gathers:')
    lds_spin(C_PROG, 8, 6, sleep=8)
    A('v_lshlrev_b32 v1, 4, v0')
    A(f's_mov_b32 s8, {WS_CLR}')
    tag_gather([(16, 'buffer_load_dwordx4 v[16:19], v1, s[56:59], s8 offen sc1')], 10, sleep=16, tagregs=(0, 1, 2, 3), cid=2)
    for base, dst in ((WS_MOD, L_CONST + 2048), (WS_TAB, L_TABLE)):
        for n in range(8):
            if n % 4 == 0:
                A(f's_mov_b32 m0, {dst + 1024*n}'); A(f's_mov_b32 s8, {base + 1024*n}')
            A(f'buffer_load_dwordx4 v1, s[56:59], s8 offen offset:{(n % 4) * 1024} sc1 lds')
    A('s_waitcnt vmcnt(0)')
    lds_add(C_STG, 6)
    stamp(3)
    A('s_branch L_staged')

    A('L_tabwaves:')
    if 'tab' in cut: A('s_endpgm')
    A('s_barrier')
    A('s_cmp_eq_u32 s3, 3'); A('s_cbranch_scc1 L_sw3')
    A('v_mov_b32 v16, -1'); A('v_mov_b32 v17, -1'); A('v_mov_b32 v18, -1'); A('v_mov_b32 v19, -1')
    A('v_lshrrev_b32 v1, 5, v0'); A('v_lshlrev_b32 v1, 15, v1'); A('v_and_b32 v2, 31, v0'); A('v_lshl_add_u32 v1, v2, 4, v1')
    A('s_lshl_b32 s8, s4, 17'); A('s_lshl_b32 s10, s5, 9'); A('s_add_u32 s8, s8, s10'); A(f's_add_u32 s8, s8, {WS_T1}'); A('s_add_u32 s10, s8, 0x10000')
    A('buffer_store_dwordx4 v[16:19], v1, s[56:59], s8 offen sc1')
    A('buffer_store_dwordx4 v[16:19], v1, s[56:59], s10 offen sc1')
    A('s_lshl_b32 s8, s6, 11'); A('s_lshl_b32 s10, s7, 7'); A('s_add_u32 s8, s8, s10'); A(f's_add_u32 s8, s8, {WS_T2}')
    A('v_lshlrev_b32 v1, 4, v0')
    A('s_mov_b64 exec, 0xff'); A('buffer_store_dwordx4 v[16:19], v1, s[56:59], s8 offen sc1'); A('s_mov_b64 exec, -1')
    A('s_branch L_tabinit')
    A('L_sw3:')
    A('v_lshlrev_b32 v2, 4, v0'); A(f's_mov_b32 m0, {L_CONST}')
    A('global_load_lds_dwordx4 v2, s[16:17]'); A('global_load_lds_dwordx4 v2, s[16:17] offset:1024')
    A('L_tabinit:')
    A('s_lshl_b32 s8, s2, 4'); A('v_add_u32 v1, s8, v0'); A('v_and_b32 v2, 0x7ff, v1'); A(f'v_add_u32 v2, {TAB_E0}, v2')
    A('v_lshrrev_b32 v1, 11, v1'); A('v_lshl_add_u32 v2, v1, 15, v2'); A('v_lshlrev_b32 v2, 16, v2')
    A('v_cmp_gt_u32 vcc, 16, v0'); A('v_cndmask_b32 v12, 0, v2, vcc')
    A('s_mov_b32 s65, 0'); A('s_mov_b32 s69, 17')
    A('L_mlp:')
    A('s_sub_u32 s8, s3, 2'); A('s_mul_i32 s8, s8, 3584'); A('v_lshl_add_u32 v1, v0, 3, s8')
    for a, ptr in enumerate(('s[28:29]', 's[30:31]', 's[32:33]')):
        for k in range(7): A(f'global_load_dwordx2 {v(192 + 14*a + 2*k, 2)}, v1, {ptr} offset:{512*k}')
    A('s_load_dword s47, s[34:35], 0')
    c0 = -2.0 * math.sqrt(2.0 / math.pi) * LOG2E; c1 = c0 * 0.044715
    A(f's_mov_b32 s66, {f2u(c1):#x}'); A(f's_mov_b32 s67, {f2u(3*c1):#x}'); A(f'v_mov_b32 v11, {f2u(c0):#x}')
    A('s_cmp_eq_u32 s65, 1'); A('s_cbranch_scc1 L_mlp_nob0')
    A('s_waitcnt vmcnt(0) lgkmcnt(0)'); A('s_add_u32 s46, s46, 1')
    A('s_cmp_eq_u32 s3, 3'); A('s_cbranch_scc1 L_sw3b')
    lds_add(C_Q, 6)
    done_event(6)
    A('s_branch L_mlp_nob0')
    A('L_sw3b:')
    lds_add(C_STG, 6)
    A('L_mlp_nob0:')
    A('s_waitcnt vmcnt(0) lgkmcnt(0)')
    xstamp(2)
    CO = 24
    A('s_mov_b32 s72, s66'); A('s_mov_b32 s73, s66'); A('s_mov_b32 s74, s67'); A('s_mov_b32 s75, s67'); A('v_mov_b32 v10, v11')
    for r in range(14):
        for a in range(3):
            A(f'v_lshlrev_b32 v{2+2*a}, 16, v{192 + 14*a + r}'); A(f'v_and_b32 v{3+2*a}, s62, v{192 + 14*a + r}')
        c = CO + 12 * r
        A('v_pk_mul_f32 v[8:9], v[2:3], v[2:3]'); A('v_pk_mul_f32 v[16:17], v[4:5], v[4:5]')
        A('v_pk_mul_f32 v[18:19], v[8:9], s[72:73]'); A('v_pk_mul_f32 v[8:9], v[8:9], s[74:75]')
        A('v_pk_fma_f32 v[20:21], v[16:17], s[74:75], v[10:11]'); A('v_pk_fma_f32 v[16:17], v[16:17], s[72:73], v[10:11]')
        A(f'v_pk_mul_f32 {v(c,2)}, v[18:19], v[2:3]'); A(f'v_pk_mul_f32 {v(c+2,2)}, v[8:9], v[4:5]')
        A(f'v_pk_mul_f32 {v(c+4,2)}, v[20:21], v[2:3]'); A(f'v_pk_mul_f32 {v(c+6,2)}, v[16:17], v[4:5]')
        A(f'v_pk_mul_f32 {v(c+8,2)}, v[2:3], v[6:7]'); A(f'v_pk_mul_f32 {v(c+10,2)}, v[4:5], v[6:7]')
    xstamp(3)
    A('s_mov_b32 s68, 0'); A('s_mov_b32 s72, 1.0'); A('s_mov_b32 s73, 1.0')
    A('.p2align 3')
    A('L_mlp_loop:')
    A('v_readlane_b32 s10, v12, s68'); A('v_readlane_b32 s11, v12, s68')
    for q in range(7):
        cs = [CO + 12 * (2*q + d) for d in range(2)]
        for d in range(2): A(f'v_pk_fma_f32 {v(2+2*d,2)}, {v(cs[d],2)}, s[10:11], {v(cs[d]+2,2)}')
        for d in range(2): A(f'v_pk_fma_f32 {v(2+2*d,2)}, {v(2+2*d,2)}, s[10:11], {v(cs[d]+4,2)}')
        for d in range(2): A(f'v_pk_fma_f32 {v(2+2*d,2)}, {v(2+2*d,2)}, s[10:11], {v(cs[d]+6,2)}')
        for d in range(4): A(f'v_exp_f32 v{2+d}, v{2+d}')
        for d in range(2): A(f'v_pk_fma_f32 {v(6+2*d,2)}, {v(cs[d]+8,2)}, s[10:11], {v(cs[d]+10,2)}')
        for d in range(2): A(f'v_pk_add_f32 {v(2+2*d,2)}, {v(2+2*d,2)}, s[72:73]')
        for d in range(4): A(f'v_rcp_f32 v{2+d}, v{2+d}')
        for d in range(2):
            A(f'v_pk_mul_f32 {v(16+2*d,2)}, {v(6+2*d,2)}, {v(2+2*d,2)}' if q == 0 else f'v_pk_fma_f32 {v(16+2*d,2)}, {v(6+2*d,2)}, {v(2+2*d,2)}, {v(16+2*d,2)}')
    A('v_add_f32 v16, v16, v17'); A('v_add_f32 v18, v18, v19'); A('v_add_f32 v16, v16, v18')
    row_reduce('v_add_f32', [16]); xg_reduce('v_add_f32', 16, 17)
    A('v_readfirstlane_b32 s10, v16')
    A('s_mov_b32 m0, s68')
    A('v_writelane_b32 v22, s10, m0')
    A('s_add_u32 s68, s68, 1'); A('s_cmp_lt_u32 s68, s69'); A('s_cbranch_scc1 L_mlp_loop')
    xstamp(4)
    A('s_lshl_b32 s8, s3, 7'); A(f's_add_u32 s8, s8, {L_TP - 256}'); A('v_and_b32 v1, 31, v0'); A('v_lshl_add_u32 v2, v1, 2, s8')
    A('s_mov_b32 exec_lo, -1'); A('s_mov_b32 exec_hi, 0'); A('ds_write_b32 v2, v22')
    A('s_waitcnt lgkmcnt(0)')
    A('s_lshl_b32 s8, s65, 2'); A('v_add_u32 v3, s8, v13')
    A('s_mov_b64 exec, 1'); A('v_mov_b32 v6, 1'); A(f'ds_add_rtn_u32 v6, v3, v6 offset:{C_TAB}'); A('s_mov_b64 exec, -1')
    A('s_waitcnt lgkmcnt(0)')
    A('v_readfirstlane_b32 s8, v6')
    A('s_cmp_eq_u32 s8, 1'); A('s_cbranch_scc1 L_mlp_last')
    A('s_cmp_eq_u32 s65, 0'); A('s_cbranch_scc1 L_staged')
    A('s_branch L_fin')
    A('L_mlp_last:')
    A(f'v_lshlrev_b32 v2, 2, v1'); A(f'v_add_u32 v2, {L_TP}, v2')
    A('ds_read2_b32 v[16:17], v2 offset0:0 offset1:32')
    A('s_lshl_b32 s47, s47, 16')
    A('s_waitcnt lgkmcnt(0)')
    A('v_add_f32 v16, v16, v17'); rnd(16); A('v_add_f32 v16, s47, v16'); rnd(16)
    A('s_cmp_eq_u32 s65, 1'); A('s_cbranch_scc1 L_output')
    A('v_mov_b32_dpp v17, v16 quad_perm:[1,1,3,3] row_mask:0xf bank_mask:0xf')
    A('v_cvt_pk_bf16_f32 v18, v16, v17')
    A('v_lshlrev_b32 v2, 1, v0'); A('s_lshl_b32 s8, s2, 5'); A(f's_add_u32 s8, s8, {WS_TAB}')
    A('s_mov_b64 exec, 0x5555'); A('buffer_store_dword v18, v2, s[56:59], s8 offen sc1')
    A('s_mov_b64 exec, 0x10000'); A(f'ds_write_b16 v13, v18 offset:{L_TABLE + 8192 - LM}')
    A('s_mov_b64 exec, -1')
    done_event(6)
    stamp(3)

    A('L_staged:')
    if prio: A('s_setprio 0')
    if cut and 'keepml' not in cut: A('s_endpgm')
    lds_spin(C_STG, 2, 6, sleep=4)
    A('s_add_u32 s9, s3, 4')
    A('v_mov_b32 v243, 0x3f80')
    prep('s9')
    for k in range(4): A(f'v_mov_b32 v{236+k}, 0')
    A('s_lshl_b32 s72, s6, 11'); A('s_lshl_b32 s10, s7, 7'); A('s_add_u32 s72, s72, s10'); A(f's_add_u32 s72, s72, {WS_T2}')
    A('s_mov_b32 s52, s24'); A('s_mov_b32 s53, s25'); A('s_mov_b32 s54, 0x800000')
    A('v_lshlrev_b32 v4, 15, v4'); A('v_lshl_add_u32 v4, v5, 3, v4')
    A('s_lshl_b32 s73, s6, 8'); A('s_lshr_b32 s8, s3, 1'); A('s_lshl_b32 s8, s8, 7'); A('s_add_u32 s73, s73, s8')
    A('s_and_b32 s8, s3, 1'); A('s_lshl_b32 s8, s8, 2'); A('s_add_u32 s73, s73, s8'); A('s_lshl_b32 s73, s73, 11')
    A('s_lshl_b32 s8, s7, 7'); A('s_add_u32 s73, s73, s8')
    A('v_lshrrev_b32 v5, 3, v0'); A('v_lshlrev_b32 v5, 9, v5'); A('v_and_b32 v2, 7, v0'); A('v_lshl_add_u32 v5, v2, 4, v5')
    A('s_lshl_b32 s74, s6, 15'); A('s_lshl_b32 s8, s3, 7'); A('s_add_u32 s74, s74, s8'); A(f's_add_u32 s74, s74, {WS_T1}')
    A('v_and_b32 v3, 48, v0'); A('s_lshl_b32 s8, s3, 8'); A(f's_add_u32 s8, s8, {L_RED2}'); A('v_add_u32 v3, s8, v3')
    def wo_loads():
        for ks in range(2):
            for m in range(4):
                for hh in range(2):
                    row = 64 * (m & 1) + 8 * hh + 2 * ks + (m >> 1)
                    A(f's_add_u32 s8, s73, {row * 2048}')
                    A(f'buffer_load_dwordx2 {v(160 + 16*ks + 4*m + 2*hh, 2)}, v4, s[52:55], s8 offen nt')
    if not wo_late: wo_loads()
    lds_spin(C_PROG, 12, 6, sleep=2)
    A('s_lshl_b32 s8, s4, 13'); A('s_lshl_b32 s10, s3, 11'); A('s_add_u32 s8, s8, s10'); A(f's_add_u32 s8, s8, {WS_ML}')
    A('v_lshlrev_b32 v1, 4, v0')
    tag_gather([(16, 'buffer_load_dwordx4 v[16:19], v1, s[56:59], s8 offen sc1'), (20, 'buffer_load_dwordx4 v[20:23], v1, s[56:59], s8 offen offset:1024 sc1')], 10, sleep=4, cid=4)
    stamp(4)
    A('v_and_b32 v1, 3, v0'); A('v_bfe_u32 v2, v0, 2, 1'); A('v_lshlrev_b32 v7, 6, v1'); A('v_lshl_add_u32 v7, v2, 3, v7')
    A('s_lshl_b32 s8, s3, 4'); A(f's_add_u32 s8, s8, {L_ML}'); A('v_add_u32 v7, s8, v7')
    A('ds_read_b32 v8, v7')
    A('v_mov_b32 v17, v16'); A('v_mov_b32 v21, v20')
    row_reduce('v_max_f32', [17, 21]); xg_reduce('v_max_f32', 17, 19); xg_reduce('v_max_f32', 21, 19)
    for r in (16, 20):
        A(f'v_sub_f32 v{r}, v{r}, v{r+1}'); A(f'v_mul_f32 v{r}, s64, v{r}'); A(f'v_exp_f32 v{r}, v{r}')
    A('v_mul_f32 v18, v16, v18'); A('v_mul_f32 v22, v20, v22')
    row_reduce('v_add_f32', [18, 22]); xg_reduce('v_add_f32', 18, 19); xg_reduce('v_add_f32', 22, 19)
    A('v_cmp_eq_u32 vcc, 1, v2'); A('v_cndmask_b32 v17, v17, v21, vcc'); A('v_cndmask_b32 v18, v18, v22, vcc')
    A('v_rcp_f32 v18, v18')
    A('s_waitcnt lgkmcnt(0)')
    A('v_sub_f32 v8, v8, v17'); A('v_mul_f32 v8, s64, v8'); A('v_exp_f32 v8, v8'); A('v_mul_f32 v8, v8, v18')
    A('s_lshl_b32 s8, s3, 5'); A(f's_add_u32 s8, s8, {L_FAC}'); A('v_lshl_add_u32 v7, v0, 2, s8')
    A('s_mov_b64 exec, 0xff'); A('ds_write_b32 v7, v8'); A('s_mov_b64 exec, -1')
    if wo_late:
        lds_spin(C_PROG, 16, 6, sleep=1)
        wo_loads()
    A('s_waitcnt lgkmcnt(0)')
    stamp(5)
    if cut: A('s_endpgm')
    A('s_barrier')
    if b1b: A('s_barrier')
    def t1_load(n):
        A(f's_add_u32 s8, s74, {4096 * n}')
        A(f'buffer_load_dwordx4 {v(128+4*n,4)}, v5, s[56:59], s8 offen sc1')
    for n in range(8): t1_load(n)
    A('s_waitcnt vmcnt(8)')
    for ks in range(2):
        for e in range(4):
            for m in range(4):
                src = 160 + 16*ks + 4*m + (e >> 1)
                A(f'v_perm_b32 v{192 + 16*ks + 4*e + m}, v{src+2}, v{src}, s{60 + (e & 1)}')
    sweep('t1', 8, t1_load, lambda k: 128 + 4*k, 236, 6)
    stamp(6)
    for e in range(2): A(f'v_add_f32_dpp v{236+e}, v{236+e}, v{236+e} row_ror:8 row_mask:0xf bank_mask:0xf')
    A('v_cvt_pk_bf16_f32 v236, v236, v237')
    for c in range(8): A(f'v_mov_b32_dpp v{224+c}, v236 row_newbcast:{c} row_mask:0xf bank_mask:0xf')
    for ks in range(2):
        for e in range(4):
            c = '0' if ks == 0 else v(64+4*e, 4)
            A(f'v_mfma_f32_16x16x32_bf16 {v(64+4*e,4)}, {v(192+16*ks+4*e,4)}, {v(224+4*ks,4)}, {c}')
    A('s_mov_b32 exec_lo, 0x00010001'); A('s_mov_b32 exec_hi, 0x00010001')
    for e in range(4): A(f'ds_write_b128 v3, {v(64+4*e,4)} offset:{64*e}')
    A('s_mov_b64 exec, -1')
    A('s_add_u32 s3, s3, 4')
    A('s_waitcnt lgkmcnt(0)')

    A('L_tail:')
    A('s_barrier')
    A('s_cmp_lg_u32 s3, 4'); A('s_cbranch_scc1 L_t2wait')
    A('v_lshlrev_b32 v1, 4, v0'); A('v_lshlrev_b32 v2, 3, v0')
    A('s_mov_b64 exec, 0xffff')
    for w in range(4): A(f'ds_read_b128 {v(16+4*w,4)}, v1 offset:{L_RED2 + 256*w}')
    A('s_waitcnt lgkmcnt(2)')
    A('v_pk_add_f32 v[16:17], v[16:17], v[20:21]'); A('v_pk_add_f32 v[18:19], v[18:19], v[22:23]')
    A('s_waitcnt lgkmcnt(0)')
    A('v_pk_add_f32 v[24:25], v[24:25], v[28:29]'); A('v_pk_add_f32 v[26:27], v[26:27], v[30:31]')
    A('v_pk_add_f32 v[16:17], v[16:17], v[24:25]'); A('v_pk_add_f32 v[18:19], v[18:19], v[26:27]')
    A('v_cvt_pk_bf16_f32 v16, v16, v17'); A('v_cvt_pk_bf16_f32 v17, v18, v19')
    A('v_min_u32 v16, -2, v16'); A('v_min_u32 v17, -2, v17')
    A('buffer_store_dwordx2 v[16:17], v2, s[56:59], s72 offen sc1')
    A('s_mov_b64 exec, -1')
    A('L_t2wait:')
    A('s_waitcnt vmcnt(0)')
    A('s_barrier')
    stamp(7)
    def t2_load(n):
        A(f's_add_u32 s8, s75, {8192 * n}')
        A(f'buffer_load_dwordx4 {v(16+4*n,4)}, v244, s[56:59], s8 offen sc1')
    for n in range(4): t2_load(n)
    A(f's_mov_b32 s66, {f2u(1/1024):#x}'); A(f's_mov_b32 s67, {f2u(1/1024):#x}')
    sweep('t2', 4, t2_load, lambda k: 16 + 4*k, 240, 6)
    stamp(8)
    rnd(240, 241)
    A('v_pk_mul_f32 v[240:241], v[250:251], v[240:241]'); rnd(240, 241)
    A('v_pk_add_f32 v[240:241], v[248:249], v[240:241]'); rnd(240, 241)
    def stats(a, b, lds_off):
        A(f'v_add_f32 v46, v{a}, v{b}'); A(f'v_mul_f32 v47, v{a}, v{a}'); A(f'v_fmac_f32 v47, v{b}, v{b}')
        A('v_permlane32_swap_b32 v46, v47'); A('v_add_f32 v46, v46, v47')
        A('v_mov_b32 v47, v46'); A('v_permlane16_swap_b32 v46, v47'); A('v_add_f32 v46, v46, v47')
        row_reduce('v_add_f32', [46])
        A('s_mov_b32 exec_lo, 1'); A('s_mov_b32 exec_hi, 1')
        A(f'ds_write_b32 v246, v46 offset:{lds_off}')
        A('s_mov_b64 exec, -1')
        A('s_waitcnt lgkmcnt(0)')
        A('s_barrier')
    def stats_read(lds_off):
        for k in range(4): A(f'ds_read_b128 {v(48+4*k,4)}, v247 offset:{lds_off + 16*k}')
    def stats_calc(pending):
        for k in range(4):
            A(f's_waitcnt lgkmcnt({3 - k + pending})'); A(f'v_pk_add_f32 {v(48+4*k,2)}, {v(48+4*k,2)}, {v(50+4*k,2)}')
        A('v_pk_add_f32 v[48:49], v[48:49], v[52:53]'); A('v_pk_add_f32 v[56:57], v[56:57], v[60:61]')
        A('v_pk_add_f32 v[46:47], v[48:49], v[56:57]')
        A('v_pk_mul_f32 v[46:47], v[46:47], s[66:67]')
        A('v_fma_f32 v47, -v46, v46, v47'); A('v_max_f32 v47, 0, v47'); rnd(47)
        A(f'v_add_f32 v47, {f2u(1e-5):#x}, v47'); rnd(47); A('v_sqrt_f32 v47, v47'); rnd(46); rnd(47); A('v_rcp_f32 v47, v47')
    stats(240, 241, L_ST1)
    stats_read(L_ST1); stats_calc(0)
    A('v_sub_f32 v42, v240, v46'); A('v_sub_f32 v43, v241, v46'); rnd(42, 43)
    A('v_mul_f32 v42, v42, v47'); A('v_mul_f32 v43, v43, v47'); rnd(42, 43)
    A('v_pk_mul_f32 v[42:43], v[42:43], v[254:255]'); rnd(42, 43)
    A('v_pk_add_f32 v[42:43], v[42:43], v[252:253]'); rnd(42, 43)
    A('s_mov_b64 exec, s[76:77]'); A('ds_write2_b32 v245, v42, v240 offset0:0 offset1:1')
    A('s_mov_b64 exec, s[78:79]'); A('ds_write2_b32 v245, v43, v241 offset0:0 offset1:1')
    A('s_mov_b64 exec, -1')
    stats(42, 43, L_ST2)
    A('s_cmp_lt_u32 s3, 6'); A('s_cbranch_scc1 L_early')
    A('v_and_b32 v1, 3, v0'); A('v_lshlrev_b32 v2, 3, v1')
    stats_read(L_ST2)
    A(f'ds_read_b32 v12, v2 offset:{L_OWN}')
    stats_calc(1)
    A('s_waitcnt lgkmcnt(0)')
    A('v_sub_f32 v12, v12, v46'); rnd(12); A('v_mul_f32 v12, v12, v47'); rnd(12)
    stamp(9)
    A('v_bfe_u32 v3, v12, 16, 15'); A('v_lshrrev_b32 v4, 31, v12'); A(f'v_subrev_u32 v5, {TAB_E0}, v3')
    A('v_cmp_eq_u32 s[70:71], 0, v3'); A('v_cmp_lt_u32 vcc, 0x7ff, v5')
    A('v_lshl_add_u32 v5, v4, 11, v5'); A('v_mov_b32 v4, 0x1000'); A('v_cndmask_b32 v5, v5, v4, s[70:71]')
    A('s_andn2_b64 vcc, vcc, s[70:71]')
    A('s_branch L_fallback' if force_fb else 's_cbranch_vccnz L_fallback')
    A('s_cmp_lg_u32 s3, 6'); A('s_cbranch_scc1 L_fin')
    A('v_lshlrev_b32 v5, 1, v5'); A(f'v_add_u32 v5, {L_TABLE}, v5')
    A('ds_read_u16 v16, v5')
    A('s_waitcnt lgkmcnt(0)')
    A('v_lshlrev_b32 v16, 16, v16')
    A('L_output:')
    A('v_and_b32 v1, 3, v0'); A('v_lshlrev_b32 v2, 3, v1'); A('s_lshl_b32 s8, s2, 3'); A('v_lshl_add_u32 v1, v1, 1, s8')
    A(f'v_add_u32 v3, {L_CONST + 8192}, v1')
    A(f'ds_read_b32 v4, v2 offset:{L_OWN + 4}'); A('ds_read_u16 v5, v3')
    A('s_waitcnt lgkmcnt(0)')
    A('v_lshlrev_b32 v5, 16, v5'); A('v_mul_f32 v16, v5, v16'); rnd(16)
    A('v_add_f32 v16, v4, v16'); A('v_cvt_pk_bf16_f32 v16, v16, v16')
    A('s_mov_b64 exec, 15')
    A('global_store_short v1, v16, s[40:41]')
    A('s_mov_b64 exec, -1')
    A('s_branch L_fin')
    A('L_fallback:')
    A('s_sub_u32 s3, s3, 4'); A('s_mov_b32 s65, 1'); A('s_mov_b32 s69, 4')
    A('s_branch L_mlp')
    for c in COLD: c()
    A('L_early:')
    A('s_cmp_lg_u32 s3, 4'); A('s_cbranch_scc1 L_fin')
    A('s_cmp_lg_u32 s2, 0'); A('s_cbranch_scc1 L_fin')
    A('s_mov_b64 exec, 1'); A('v_mov_b32 v16, s46'); A(f's_mov_b32 s8, {WS_EPOCH}')
    A('buffer_store_dword v16, v247, s[56:59], s8 offen')
    A('s_mov_b64 exec, -1')
    A('L_fin:')
    if diag:
        A('s_waitcnt vmcnt(0)')
        stamp(10)
        A('v_mov_b32 v61, v15')
        for k in range(11): A(f'v_writelane_b32 v61, s{80+2*k}, {k}')
        A('s_lshl_b32 s8, s2, 3'); A('s_add_u32 s8, s8, s3'); A('s_lshl_b32 s8, s8, 7'); A(f's_add_u32 s8, s8, {WS_STAMP}')
        A('v_lshlrev_b32 v1, 2, v0'); A('s_mov_b32 exec_lo, -1'); A('s_mov_b32 exec_hi, 0')
        A('buffer_store_dword v61, v1, s[56:59], s8 offen')
    A('L_end:')
    A('s_endpgm')
    A('.section .rodata,"a"'); A('.p2align 6'); A(f'.amdhsa_kernel {NAME}_kernel')
    A('.amdhsa_next_free_vgpr 256'); A('.amdhsa_next_free_sgpr 102'); A('.amdhsa_accum_offset 256')
    A('.amdhsa_group_segment_fixed_size 0'); A('.amdhsa_kernarg_size 120'); A('.amdhsa_user_sgpr_count 2')
    A('.amdhsa_user_sgpr_kernarg_segment_ptr 1'); A('.amdhsa_system_sgpr_workgroup_id_x 1')
    A('.amdhsa_float_denorm_mode_32 3')
    A('.end_amdhsa_kernel')
    txt, nn = A.finish()
    return txt

if __name__ == '__main__':
    kw = eval('dict(%s)' % (sys.argv[2] if len(sys.argv) > 2 else ''))
    open(sys.argv[1], 'w').write(gen(**kw))
```

```python
import sys, struct, math
from asmlib import Asm
NAME = 'adaLN_cond__gqa_block_cached__mixer_token_mlp__decode'

def f2u(x): return struct.unpack('<I', struct.pack('<f', x))[0]
LOG2E = 1.4426950408889634

WS_MOD, WS_TAB, WS_ML, WS_T2, WS_CLR, WS_EPOCH = 0x0, 0x8000, 0x10000, 0xA0000, 0x28000, 0x29000
WS_RANK, WS_PART, WS_T1, WS_STAMP = 0x30000, 0x40000, 0x100000, 0x200000
PSTR = 10240 * 8
LM = 131072
C_Q, C_ML, C_PROG, C_STG, C_TAB, C_FB, C_DONE, C_P2, C_GO, C_U0 = 4, 8, 12, 16, 20, 24, 28, 32, 36, 40
L_ML = LM + 256
L_FAC = LM + 512
L_TP = LM + 768
L_Q = LM + 1024
L_CONST = LM + 3072
NB = 20
L_TABLE = LM + 13312
L_SCR = LM + 13312 + 512 * NB + 256
LDS_BYTES = 163840
OSTRIDE = 528
L_RED2 = 8192
L_ST1 = 8192 + 2048
L_ST2 = 8192 + 2048 + 64
L_OWN = 8192 + 2048 + 128
TAB_E0 = (130 - NB) << 7

SPIN_CAP = 0x40000

def gen(DA=5, DB=5, diag=False, wo_late=True, q_at=36, fin_at=30, ml_at=54, pub4=True, force_fb=False, prio=True, early=4, cut=(), gmap='hi', swz=True, WU=14, DH=0, cps=(3, 11, 25, 33, 43, 51), thr=44, b1b=True, wo_at=63, bump=(), pf='part', lev=(4, 5, 6, 8), thrs=((16, 40, 56),), wo_mode='prog', b3=True, satom=True, rd=4, touch='', tabfirst=False, t1_delay=1, lite=False, rep8=True, wos=(1, 2, 3, 3, 4, 4, 6, 8), wothr=4, t2wait=0):
    A = Asm()
    endstamp = diag or lite
    if lite: diag = False
    COLD = []
    def stamp(k):
        if diag:
            A(f's_memrealtime s[{80+2*k}:{81+2*k}]'); A('s_waitcnt lgkmcnt(0)')
    def xstamp(k):
        if diag:
            A('s_memrealtime s[100:101]'); A('s_waitcnt lgkmcnt(0)'); A(f'v_writelane_b32 v15, s100, {16 + k}')
    def v(a, n=1): return f'v{a}' if n == 1 else f'v[{a}:{a+n-1}]'
    def rnd(*regs):
        for a in regs: A(f'v_cvt_pk_bf16_f32 v{a}, 0, v{a}')
    def lds_spin(off, target, vt, sleep=1, vaddr=13):
        l0 = A.lab('spin'); l1 = A.lab('spun')
        A('s_mov_b32 s14, 0')
        A(f'{l0}:')
        A(f'ds_read_b32 v{vt}, v{vaddr} offset:{off}'); A('s_waitcnt lgkmcnt(0)')
        A(f'v_readfirstlane_b32 s15, v{vt}')
        A(f's_cmp_ge_u32 s15, {target}'); A(f's_cbranch_scc1 {l1}')
        if sleep: A(f's_sleep {sleep}')
        A('s_add_u32 s14, s14, 1'); A(f's_cmp_lt_u32 s14, {SPIN_CAP}'); A(f's_cbranch_scc1 {l0}')
        A(f'{l1}:')
    def lds_add(off, vt, vaddr=13):
        A('s_waitcnt lgkmcnt(0)')
        A('s_mov_b64 exec, 1'); A(f'v_mov_b32 v{vt}, 1'); A(f'ds_add_u32 v{vaddr}, v{vt} offset:{off}'); A('s_mov_b64 exec, -1')
    def done_event(vt):
        l1 = A.lab('nodone')
        A('s_waitcnt vmcnt(0) lgkmcnt(0)')
        A('s_mov_b64 exec, 1'); A(f'v_mov_b32 v{vt}, 1'); A(f'ds_add_rtn_u32 v{vt}, v13, v{vt} offset:{C_DONE}')
        A('s_waitcnt lgkmcnt(0)')
        A(f'v_readfirstlane_b32 s8, v{vt}')
        A('s_cmp_lg_u32 s8, 2'); A(f's_cbranch_scc1 {l1}')
        A('s_lshl_b32 s8, s2, 2'); A(f's_add_u32 s8, s8, {WS_CLR}'); A(f'v_mov_b32 v{vt}, s46')
        A(f'buffer_store_dword v{vt}, v0, s[56:59], s8 offen sc1')
        A(f'{l1}:')
        A('s_mov_b64 exec, -1')
    def tag_gather(loads, vt, sleep=2, tagregs=(1, 3), cid=None):
        l0 = A.lab('tg'); l1 = A.lab('tgok')
        A('s_mov_b32 s14, 0')
        A(f'{l0}:')
        for d, txt in loads: A(txt)
        A('s_waitcnt vmcnt(0)')
        regs = [d + r for d, txt in loads for r in tagregs]
        A(f'v_min_u32 v{vt}, v{regs[0]}, v{regs[1]}'); A(f'v_max_u32 v{vt+1}, v{regs[0]}, v{regs[1]}')
        for k in range(2, len(regs), 2):
            A(f'v_min3_u32 v{vt}, v{regs[k]}, v{regs[k+1]}, v{vt}'); A(f'v_max3_u32 v{vt+1}, v{regs[k]}, v{regs[k+1]}, v{vt+1}')
        A(f'v_cmp_ne_u32 vcc, s46, v{vt}'); A(f'v_cmp_ne_u32 s[70:71], s46, v{vt+1}'); A('s_or_b64 vcc, vcc, s[70:71]')
        A(f's_cbranch_vccz {l1}')
        if sleep: A(f's_sleep {sleep}')
        A('s_add_u32 s14, s14, 1'); A(f's_cmp_lt_u32 s14, {SPIN_CAP}'); A(f's_cbranch_scc1 {l0}')
        A(f'{l1}:')
        if diag and cid is not None: A(f'v_writelane_b32 v15, s14, {11 + cid}')
    def xg_reduce(op, a, t):
        A(f'v_mov_b32 v{t}, v{a}'); A(f'v_permlane32_swap_b32 v{a}, v{t}'); A(f'{op} v{a}, v{a}, v{t}')
        A(f'v_mov_b32 v{t}, v{a}'); A(f'v_permlane16_swap_b32 v{a}, v{t}'); A(f'{op} v{a}, v{a}, v{t}')
    def row_reduce(op, regs):
        for sh in (8, 4, 2, 1):
            for a in regs: A(f'{op}_dpp v{a}, v{a}, v{a} row_ror:{sh} row_mask:0xf bank_mask:0xf')
    def pv(Vb, P, first, ds=range(8), O=64, T=96):
        ds = list(ds)
        def perms(d):
            for m in range(4):
                A(f'v_perm_b32 v{T+4*d+m}, v{Vb+8*m+4+(d>>1)}, v{Vb+8*m+(d>>1)}, s{60+(d&1)}')
        perms(ds[0])
        for k, d in enumerate(ds):
            if k + 1 < len(ds): perms(ds[k+1])
            c = '0' if first else v(O+4*d, 4)
            A(f'v_mfma_f32_16x16x32_bf16 {v(O+4*d,4)}, {v(T+4*d,4)}, {v(P,4)}, {c}')
    def sweep(name, n, load, dreg, acc, vt, extra=0, accfn=None):
        def check(k):
            d = dreg(k)
            A(f'v_max3_u32 v{vt}, v{d}, v{d+1}, v{d+2}'); A(f'v_max_u32 v{vt}, v{vt}, v{d+3}'); A(f'v_cmp_eq_u32 vcc, -1, v{vt}')
        def mf(k):
            if accfn: accfn(k)
            else: A(f'v_mfma_f32_16x16x32_bf16 {v(acc,4)}, v[232:235], {v(dreg(k),4)}, {v(acc,4)}')
        A('s_mov_b32 s13, 0')
        for k in range(n):
            A(f's_waitcnt vmcnt({n-1-k+extra})')
            check(k)
            A(f's_cbranch_vccnz L_{name}_miss{k}')
            mf(k)
            A(f'L_{name}_back{k}:')
        if diag:
            xstamp(10 if name == 't1' else 12); A('s_mov_b32 s14, 0'); A('s_bcnt1_i32_b32 s8, s13'); A(f'v_writelane_b32 v15, s8, {27 if name == "t1" else 29}')
        A('s_cmp_lg_u32 s13, 0'); A(f's_cbranch_scc1 L_{name}_retry')
        A(f'L_{name}_done:')
        if diag: A(f'v_writelane_b32 v15, s14, {30 if name == "t1" else 31}')
        def cold():
            for k in range(n):
                A(f'L_{name}_miss{k}:'); A(f's_bitset1_b32 s13, {k}'); A(f's_branch L_{name}_back{k}')
            A(f'L_{name}_retry:')
            A('s_mov_b32 s14, 0')
            A(f'L_{name}_loop:')
            for k in range(n):
                A(f's_bitcmp0_b32 s13, {k}'); A(f's_cbranch_scc1 L_{name}_nl{k}')
                load(k)
                A(f'L_{name}_nl{k}:')
            A('s_waitcnt vmcnt(0)')
            for k in range(n):
                A(f's_bitcmp0_b32 s13, {k}'); A(f's_cbranch_scc1 L_{name}_nc{k}')
                check(k)
                A(f's_cbranch_vccnz L_{name}_nc{k}')
                mf(k); A(f's_bitset0_b32 s13, {k}')
                A(f'L_{name}_nc{k}:')
            A('s_cmp_eq_u32 s13, 0'); A(f's_cbranch_scc1 L_{name}_out')
            A('s_add_u32 s14, s14, 1'); A(f's_cmp_lt_u32 s14, {SPIN_CAP}'); A(f's_cbranch_scc1 L_{name}_loop')
            A(f'L_{name}_out:')
            A('s_nop 4')
            A(f's_branch L_{name}_done')
        COLD.append(cold)
    def rb_calc():
        if gmap == 'lo':
            A('s_lshl_b32 s6, s4, 1'); A('s_bfe_u32 s8, s2, 0x10002'); A('s_add_u32 s6, s6, s8')
        else:
            A('s_and_b32 s6, s2, 7')
        A('s_lshl_b32 s6, s6, 1'); A('s_lshr_b32 s8, s2, 7'); A('s_add_u32 s6, s6, s8')
    def prep(wreg):
        A('v_lshrrev_b32 v4, 4, v0'); A('v_and_b32 v5, 15, v0')
        A('v_lshlrev_b32 v244, 11, v4'); A('v_lshl_add_u32 v244, v5, 4, v244')
        A(f's_lshl_b32 s75, {wreg}, 8'); A(f's_add_u32 s75, s75, {WS_T2}')
        if rep8: A('s_and_b32 s8, s2, 7'); A('s_lshl_b32 s8, s8, 15'); A('s_add_u32 s75, s75, s8')
        A('v_lshrrev_b32 v6, 3, v5'); A('v_lshlrev_b32 v6, 6, v6'); A('v_and_b32 v8, 1, v4'); A('v_lshl_add_u32 v6, v8, 5, v6')
        A('v_and_b32 v8, 4, v5'); A('v_lshl_add_u32 v6, v8, 2, v6'); A('v_and_b32 v8, 3, v5'); A('v_lshl_add_u32 v6, v8, 1, v6')
        A('v_lshrrev_b32 v9, 1, v4'); A(f's_lshl_b32 s8, {wreg}, 7'); A('v_add3_u32 v6, v6, v9, s8')
        A('v_lshrrev_b32 v9, 2, v6'); A('v_cmp_eq_u32 s[76:77], s2, v9'); A('v_add_u32 v9, 2, v9'); A('v_cmp_eq_u32 s[78:79], s2, v9')
        A('v_and_b32 v9, 3, v6'); A('v_lshlrev_b32 v245, 3, v9'); A(f'v_add_u32 v245, {L_OWN}, v245')
        A('v_lshlrev_b32 v231, 3, v8')
        A('v_lshlrev_b32 v6, 1, v6'); A(f'v_add_u32 v6, {L_CONST}, v6')
        for a in range(4):
            for e in range(2): A(f'ds_read_u16 v{248+2*a+e}, v6 offset:{2048*a + 16*e}')
        A('s_lshl_b32 s8, s2, 3'); A('v_lshl_add_u32 v238, v8, 1, s8'); A(f'v_add_u32 v9, {L_CONST + 8192}, v238')
        A('ds_read_u16 v239, v9')
        A('v_and_b32 v7, 1, v5')
        A('v_lshrrev_b32 v246, 5, v0'); A('v_lshlrev_b32 v246, 2, v246'); A(f's_lshl_b32 s8, {wreg}, 3'); A('v_add_u32 v246, s8, v246')
        A('v_mov_b32 v247, 0')
        A('v_lshlrev_b32 v7, 4, v7'); A('v_lshlrev_b32 v7, v7, v243')
        A('v_and_b32 v8, 14, v5')
        for m in range(4):
            A(f'v_cmp_eq_u32 vcc, {4*m}, v8'); A(f'v_cndmask_b32 v{232+m}, 0, v7, vcc')
        for k in range(4): A(f'v_mov_b32 v{240+k}, 0')
        A('s_waitcnt lgkmcnt(0)')
        for k in range(8): A(f'v_lshlrev_b32 v{248+k}, 16, v{248+k}')
        A('v_lshlrev_b32 v239, 16, v239')
        A('v_add_f32 v254, 1.0, v254'); A('v_add_f32 v255, 1.0, v255'); rnd(254, 255)

    A(f'; @launch grid=(256,1,1) block=(512,1,1) lds={LDS_BYTES}')
    A('.amdgcn_target "amdgcn-amd-amdhsa--gfx950"')
    A('.text'); A(f'.globl {NAME}_kernel'); A('.p2align 8'); A(f'.type {NAME}_kernel,@function')
    A(f'{NAME}_kernel:')
    A('s_cmp_ge_u32 s2, 256'); A('s_cbranch_scc1 L_end')
    A('v_lshrrev_b32 v1, 6, v0'); A('v_and_b32 v0, 63, v0'); A('v_readfirstlane_b32 s3, v1')
    A('s_cmp_lg_u32 s3, 7'); A('s_cbranch_scc1 L_noinit')
    A('v_mov_b32 v14, 0'); A('v_lshlrev_b32 v15, 2, v0'); A(f'v_add_u32 v15, {LM}, v15'); A('ds_write_b32 v15, v14')
    A('s_waitcnt lgkmcnt(0)')
    A('L_noinit:')
    A('s_load_dwordx16 s[16:31], s[0:1], 0')
    A('s_load_dwordx8 s[32:39], s[0:1], 64')
    A('s_load_dwordx4 s[40:43], s[0:1], 96')
    A('s_load_dwordx2 s[44:45], s[0:1], 112')
    if endstamp: A('s_memrealtime s[80:81]')
    A('s_bfe_u32 s4, s2, 0x20001')
    A('s_lshr_b32 s5, s2, 3'); A('s_and_b32 s7, s5, 15')
    A('s_and_b32 s8, s2, 1'); A('s_lshl_b32 s8, s8, 5'); A('s_or_b32 s5, s5, s8')
    if gmap == 'hi': A('s_lshr_b32 s4, s2, 6'); A('s_and_b32 s5, s2, 63')
    if gmap == 'lo': A('s_and_b32 s4, s2, 3'); A('s_lshr_b32 s5, s2, 2')
    A('s_mov_b32 s51, 0x20000'); A('s_mov_b32 s55, 0x20000')
    A('s_cmp_lt_u32 s3, 4'); A('s_cbranch_scc1 L_attn')
    A('s_barrier')
    A('s_branch L_service')
    A('L_attn:')

    A('s_getpc_b64 s[70:71]')
    A('L_pcref:')
    if pf == 'all':
        A('s_lshl_b32 s8, s3, 13')
        A('v_lshl_add_u32 v1, v0, 7, s8'); A('v_min_u32 v1, L_end-L_pcref, v1')
        A('global_load_dword v12, v1, s[70:71]')
    else:
        A('s_bfe_u32 s8, s2, 0x20003'); A('s_lshl_b32 s8, s8, 2'); A('s_add_u32 s8, s8, s3'); A('s_lshl_b32 s8, s8, 11')
        A('v_lshl_add_u32 v1, v0, 7, s8'); A('v_min_u32 v1, L_end-L_pcref, v1')
        A('s_mov_b64 exec, 0xffff'); A('global_load_dword v12, v1, s[70:71]'); A('s_mov_b64 exec, -1')
    A('s_barrier')
    A('s_lshl_b32 s9, s5, 2'); A('s_add_u32 s9, s9, s3'); A('s_lshl_b32 s9, s9, 13')
    A('s_lshl_b32 s8, s4, 24'); A('s_add_u32 s9, s9, s8')
    A('s_lshl_b32 s12, s3, 15')
    A('v_lshrrev_b32 v13, 4, v0'); A('v_and_b32 v14, 15, v0')
    A('v_lshlrev_b32 v15, 2, v13'); A('v_xor_b32 v1, v14, v15'); A('v_lshlrev_b32 v1, 4, v1')
    A('v_lshl_add_u32 v1, v13, 8, v1')
    A('v_xor_b32 v2, 16, v1'); A('v_xor_b32 v3, 32, v1'); A('v_xor_b32 v4, 48, v1')
    A('v_lshlrev_b32 v5, 4, v0')
    if not swz:
        for r in range(1, 5): A(f'v_mov_b32 v{r}, v5')
    A('s_mov_b32 s50, 0x4000000'); A('s_mov_b32 s54, 0x4000000')
    A('s_mov_b32 s60, 0x05040100'); A('s_mov_b32 s61, 0x07060302')
    A(f's_mov_b32 s63, {f2u(128 ** -0.5):#x}'); A(f's_mov_b32 s64, {f2u(LOG2E):#x}')
    A('s_mov_b32 s58, 0x400000'); A('s_mov_b32 s59, 0x20000')
    A('v_and_b32 v6, 3, v14'); A('v_lshlrev_b32 v6, 2, v6'); A('v_lshrrev_b32 v15, 2, v14'); A('v_add_u32 v6, v6, v15')
    A('v_lshlrev_b32 v6, 8, v6'); A('v_xor_b32 v15, v13, v14'); A('v_lshl_add_u32 v6, v15, 4, v6'); A('v_add_u32 v6, s12, v6')
    A('v_xor_b32 v7, 64, v6'); A('v_xor_b32 v8, 0x80, v6'); A('v_xor_b32 v9, 0xc0, v6')
    A(f'v_mov_b32 v13, {LM}')
    A('s_waitcnt lgkmcnt(0)')
    A('s_mov_b32 s48, s18'); A('s_mov_b32 s49, s19'); A('s_mov_b32 s52, s20'); A('s_mov_b32 s53, s21')
    A('s_mov_b32 s56, s44'); A('s_mov_b32 s57, s45'); A('s_mov_b32 s66, s24'); A('s_mov_b32 s67, s25')
    issued = [0]
    TS = 64 * 4 * 8192
    LEV = list(lev) if lev else ([DB, DH] if DH else [DB])
    def throttle(D, boost):
        for a, b_, d in bump:
            if a <= issued[0] < b_: D = d; boost = False
        if issued[0] < D: return
        if boost:
            l = A.lab('go')
            for k in range(len(LEV) - 1, -1, -1):
                A(f's_waitcnt vmcnt({LEV[k]-1})')
                if k == len(LEV) - 1: A(f's_cbranch_vccnz {l}')
                elif k > 0: A(f's_cmp_eq_u32 s13, {k}'); A(f's_cbranch_scc1 {l}')
            A(f'{l}:')
        else: A(f's_waitcnt vmcnt({D-1})')
    def kload(t, n, D, boost=False):
        if n % 4 == 0:
            A(f's_add_u32 m0, s12, {(t % 4) * 8192 + (n // 4) * 4096}')
            A(f's_add_u32 s10, s9, {t * TS + (n // 4) * 4096}')
        throttle(D, boost)
        A(f'buffer_load_dwordx4 v{1 + n % 4}, s[48:51], s10 offen offset:{(n % 4) * 1024} nt lds')
        issued[0] += 1
    def vload(t, e, D, boost=False):
        if e % 4 == 0:
            A(f's_add_u32 s10, s9, {t * TS + (e // 4) * 4096}')
        throttle(D, boost)
        A(f'buffer_load_dwordx4 {v(128 + 32 * (t % 4) + 4 * e, 4)}, v5, s[52:55], s10 offen offset:{(e % 4) * 1024} nt')
        issued[0] += 1
    for t in range(4):
        for n in range(8):
            if issued[0] == early:
                if 'svc' not in cut: lds_spin(C_GO, 1, 14)
            kload(t, n, DA)
            if issued[0] == q_at: lds_add(C_PROG, 14)
    for t in range(4):
        for e in range(8):
            vload(t, e, DA)
            if issued[0] == q_at: lds_add(C_PROG, 14)
    stamp(1)
    if not cut: lds_spin(C_Q, 3, 14)
    A('v_and_b32 v14, 7, v0'); A('v_lshlrev_b32 v14, 8, v14'); A('v_lshrrev_b32 v15, 4, v0'); A('v_lshl_add_u32 v14, v15, 4, v14')
    A(f'v_add_u32 v14, {L_Q}, v14')
    for s in range(4): A(f'ds_read_b128 {v(16+4*s,4)}, v14 offset:{64*s}')
    stamp(2)
    satom_pending = [False]
    def qk(t):
        assert not satom_pending[0], t
        off = (t % 4) * 8192
        for hb in range(2):
            for s in range(4): A(f'ds_read_b128 {v(96+16*hb+4*s,4)}, v{6+s} offset:{off + hb*4096}')
        for hb in range(2):
            S = 32 + 8 * (t % 4) + 4 * hb
            for s in range(4):
                A(f's_waitcnt lgkmcnt({7 - 4*hb - s})')
                c = '0' if s == 0 else v(S, 4)
                A(f'v_mfma_f32_16x16x32_bf16 {v(S,4)}, {v(96+16*hb+4*s,4)}, {v(16+4*s,4)}, {c}')
    def rscale(t):
        S = 32 + 8 * (t % 4)
        rnd(*range(S, S + 8))
        for k in range(8): A(f'v_mul_f32 v{S+k}, s63, v{S+k}')
        rnd(*range(S, S + 8))
        if t == 0: A(f'v_max_f32 v15, v{S}, v{S+1}')
        elif t == 4: A(f'v_max3_f32 v15, v{S}, v{S+1}, v10')
        else: A(f'v_max3_f32 v15, v{S}, v{S+1}, v15')
        for k in range(1, 4): A(f'v_max3_f32 v15, v{S+2*k}, v{S+2*k+1}, v15')
    def mfin(second):
        xg_reduce('v_max_f32', 15, 14)
        if second:
            A('v_sub_f32 v14, v10, v15'); A('v_mul_f32 v14, s64, v14'); A('v_exp_f32 v14, v14')
        A('v_mov_b32 v10, v15'); A('v_mul_f32 v12, s64, v15')
        if second:
            A('v_mul_f32 v11, v11, v14')
            for k in range(32): A(f'v_mul_f32 v{64+k}, v{64+k}, v14')
    def expo(t):
        S = 32 + 8 * (t % 4)
        for k in range(8): A(f'v_fma_f32 v{S+k}, v{S+k}, s64, -v12')
        for k in range(8): A(f'v_exp_f32 v{S+k}, v{S+k}')
        A(f'v_add_f32 v96, v{S}, v{S+1}'); A(f'v_add_f32 v97, v{S+2}, v{S+3}'); A(f'v_add_f32 v98, v{S+4}, v{S+5}'); A(f'v_add_f32 v99, v{S+6}, v{S+7}')
        for k in range(4): A(f'v_cvt_pk_bf16_f32 v{S+k}, v{S+2*k}, v{S+2*k+1}')
        A('v_add_f32 v96, v96, v97'); A('v_add_f32 v98, v98, v99')
        if t == 0: A('v_add_f32 v11, v96, v98')
        else: A('v_add_f32 v96, v96, v98'); A('v_add_f32 v11, v11, v96')
    def pvt(t, half):
        pv(128 + 32 * (t % 4), 32 + 8 * (t % 4), t == 0, range(4 * half, 4 * half + 4))
    def publish_ml():
        xg_reduce('v_add_f32', 11, 14)
        A('v_lshrrev_b32 v14, 1, v5'); A('s_lshl_b32 s8, s3, 6'); A(f's_add_u32 s8, s8, {L_ML}'); A('v_add_u32 v14, s8, v14')
        A('s_mov_b64 exec, 0xff'); A('ds_write_b64 v14, v[10:11]'); A('s_mov_b64 exec, -1')
        lds_add(C_ML, 14)
    sched = {i: [] for i in range(-1, 64)}
    def put(pos, fn, landed=None): sched[pos].append((fn, landed))
    put(-1, lambda: qk(0))
    put(0, lambda: qk(1)); put(1, lambda: qk(2)); put(2, lambda: qk(3))
    for t in range(4): put(3 + t, (lambda t=t: rscale(t)))
    put(7, lambda: mfin(False))
    for t in range(4): put(8 + t, (lambda t=t: expo(t)))
    for t in range(4):
        for h in range(2): put(12 + 2 * t + h, (lambda t=t, h=h: pvt(t, h)), -1)
    DM = max(LEV + [d for a, b_, d in bump if b_ > 64])
    CP = list(cps) if len(LEV) > 1 else []
    THR = [list(t) for t in thrs] if thrs else [[thr]] * len(CP)
    if len(THR) == 1: THR = THR * len(CP)
    def opi(L): return L + sum(1 for c in CP if c <= L) if (L >= 0 and not satom) else L
    def landed_after(posn, m_op): return posn >= 0 and opi(posn) - DM >= m_op
    def first_pos(m, lo):
        for L in range(lo, 64):
            if landed_after(L, opi(m)): return L
        return 63
    pos = {4: first_pos(7, 20), 5: first_pos(15, 22), 6: first_pos(23, 24), 7: first_pos(31, 26)}
    for t in range(4, 8):
        put(pos[t], (lambda t=t: qk(t)), 8 * (t - 4) + 7)
        put(pos[t] + (1 if t < 7 else 0), (lambda t=t: rscale(t)))
    b = pos[7] + 1
    put(b, lambda: (mfin(True), expo(4)))
    put(b + 1, lambda: (expo(5), expo(6), expo(7), publish_ml()))
    p4 = min(first_pos(39, b + 2), 62)
    put(p4, lambda: pvt(4, 0), 39); put(min(p4 + 1, 63), lambda: pvt(4, 1))
    p5 = min(first_pos(47, min(p4 + 2, 63)), 63)
    put(p5, lambda: pvt(5, 0), 47); put(min(p5 + 1, 63), lambda: pvt(5, 1))
    def endsetup():
        A('v_lshrrev_b32 v28, 5, v0'); A('s_lshl_b32 s8, s3, 1'); A('v_add_u32 v28, s8, v28')
        A(f'v_mul_u32_u24 v20, {OSTRIDE}, v28')
        A('v_lshlrev_b32 v28, 4, v28'); A(f'v_add_u32 v28, {L_FAC}, v28')
        A('v_and_b32 v21, 31, v0'); A('v_lshl_add_u32 v20, v21, 4, v20')
        A('v_add_u32 v21, 0x10000, v20')
        A('v_and_b32 v22, 15, v0'); A(f'v_mul_u32_u24 v22, {OSTRIDE}, v22'); A('v_lshrrev_b32 v23, 4, v0'); A('v_lshl_add_u32 v22, v23, 4, v22')
        A('v_add_u32 v22, s12, v22')
        A('v_lshlrev_b32 v1, 15, v23'); A('v_bfe_u32 v2, v0, 3, 1'); A('v_lshl_add_u32 v1, v2, 12, v1')
        A('v_and_b32 v4, 7, v0'); A('v_lshl_add_u32 v1, v4, 4, v1')
        A('v_lshrrev_b32 v2, 3, v0'); A('v_lshlrev_b32 v2, 9, v2'); A('v_lshl_add_u32 v2, v4, 4, v2')
        A('v_lshrrev_b32 v3, 5, v0'); A('v_lshlrev_b32 v3, 8, v3'); A('v_and_b32 v4, 16, v0'); A('s_lshl_b32 s8, s3, 9'); A(f's_add_u32 s8, s8, {L_RED2}')
        A('v_add3_u32 v3, v3, v4, s8')
        A('v_lshlrev_b32 v23, 3, v0')
        rb_calc()
        A('s_mov_b32 s48, s66'); A('s_mov_b32 s49, s67'); A('s_mov_b32 s50, 0x800000')
        A('s_lshl_b32 s73, s6, 8'); A('s_lshr_b32 s8, s3, 1'); A('s_lshl_b32 s8, s8, 7'); A('s_add_u32 s73, s73, s8')
        A('s_and_b32 s8, s3, 1'); A('s_lshl_b32 s8, s8, 2'); A('s_add_u32 s73, s73, s8'); A('s_lshl_b32 s73, s73, 11')
        A('s_lshl_b32 s8, s7, 7'); A('s_add_u32 s73, s73, s8')
        A('s_lshl_b32 s74, s6, 15'); A('s_lshl_b32 s8, s3, 7'); A('s_add_u32 s74, s74, s8'); A(f's_add_u32 s74, s74, {WS_T1}')
    put(60, endsetup)
    def t1slot():
        A('s_lshl_b32 s8, s4, 2'); A('s_add_u32 s8, s8, s3'); A('s_lshl_b32 s8, s8, 15'); A('s_lshl_b32 s11, s5, 9'); A('s_add_u32 s11, s11, s8')
        A(f's_add_u32 s11, s11, {WS_T1}')
    put(63, t1slot)
    assert satom and (not CP or max(CP) < 63)
    def run(posn):
        for fn, landed in sched[posn]:
            if landed is not None and not landed_after(posn, opi(landed)):
                A(f's_waitcnt vmcnt({opi(posn) - opi(landed)})')
            fn()
    if CP:
        A('s_mov_b64 vcc, 0'); A(f's_mov_b32 s13, {LEV.index(DB)}')
        A('s_bfe_u32 s11, s2, 0x20003'); A('s_lshl_b32 s11, s11, 2'); A('s_add_u32 s11, s11, s3'); A('s_lshl_b32 s11, s11, 7')
        A(f's_add_u32 s11, s11, {WS_RANK}')
    run(-1)
    pend = []
    for L in range(64):
        if diag and L % 8 == 0:
            A('s_memrealtime s[100:101]'); A('s_waitcnt lgkmcnt(0)'); A(f's_mov_b32 s{24 + L // 8}, s100')
        if L in CP:
            if satom:
                A('s_mov_b32 s47, 1')
                A(f's_atomic_add s47, s[44:45], s11 offset:{2048 * CP.index(L)} glc')
                pend.append((L + rd, CP.index(L))); satom_pending[0] = True
            else:
                A('s_mov_b64 exec, 1'); A('v_mov_b32 v0, 1')
                A(f'buffer_atomic_add v0, off, s[56:59], s11 offset:{2048 * (CP.index(L) & 1)} sc0')
                A('s_mov_b64 exec, -1')
                if CP.index(L) & 1: A('s_add_u32 s11, s11, 4096')
                pend.append((opi(L) - 1, CP.index(L)))
        if L < 32: kload(4 + L // 8, L % 8, DB, bool(CP))
        else: vload(4 + (L - 32) // 8, L % 8, DB, bool(CP))
        if pend and (L == pend[0][0] if satom else landed_after(L, pend[0][0])):
            th = THR[pend.pop(0)[1]]
            assert len(th) == len(LEV) - 1
            if satom: A('s_waitcnt lgkmcnt(0)'); A('s_mov_b32 s8, s47'); satom_pending[0] = False
            else: A('v_readfirstlane_b32 s8, v0'); A('v_writelane_b32 v0, 0, 0')
            if diag: A(f's_mov_b32 s{32 + len(CP) - len([c for c in CP if c > L]) - 1}, s8')
            A('s_mov_b32 s13, 0')
            for k, t_ in enumerate(th[:-1]):
                A(f's_cmp_ge_u32 s8, {t_}'); A(f's_cselect_b32 s13, {k+1}, s13')
            A(f's_cmp_ge_u32 s8, {th[-1]}'); A('s_cselect_b64 vcc, -1, 0')
        if L in (fin_at, ml_at): lds_add(C_PROG, 14)
        run(L)
    assert not pend
    stamp(3)
    NWO = [0]
    def woload():
        n = NWO[0]; m, hh = n >> 1, n & 1
        row = 64 * (m & 1) + 8 * hh + (m >> 1)
        A(f's_add_u32 s10, s73, {row * 2048}')
        A(f'buffer_load_dwordx4 {v(128 + 4*n, 4)}, v1, s[48:51], s10 offen nt')
        NWO[0] += 1; issued[0] += 1
    def wo_upto(k):
        while NWO[0] < k:
            if NWO[0] < wothr: throttle(DB, bool(CP))
            woload()
    wo_upto(wos[0])
    A(f's_waitcnt vmcnt({8 + NWO[0]})')
    pvt(6, 0); wo_upto(wos[1]); pvt(6, 1); wo_upto(wos[2])
    Vb = 128 + 96; P = 32 + 24
    for m in range(3):
        A(f's_waitcnt vmcnt({6 - 2*m + NWO[0]})')
        for d in range(8): A(f'v_perm_b32 v{96+4*d+m}, v{Vb+8*m+4+(d>>1)}, v{Vb+8*m+(d>>1)}, s{60+(d&1)}')
        wo_upto(wos[3 + m])
    A(f's_waitcnt vmcnt({NWO[0]})')
    stamp(4)
    if cut: A('s_branch L_fin')
    for d in range(8): A(f'v_perm_b32 v{96+4*d+3}, v{Vb+28+(d>>1)}, v{Vb+24+(d>>1)}, s{60+(d&1)}')
    for d in range(8): A(f'v_mfma_f32_16x16x32_bf16 {v(64+4*d,4)}, {v(96+4*d,4)}, {v(P,4)}, {v(64+4*d,4)}')
    wo_upto(wos[6])
    A('s_mov_b32 exec_lo, 0x00ff00ff'); A('s_mov_b32 exec_hi, 0x00ff00ff')
    for d in range(8): A(f'ds_write_b128 v22, {v(64+4*d,4)} offset:{64*d}')
    A('s_mov_b64 exec, -1')
    wo_upto(wos[7])
    assert NWO[0] == 8
    A('s_waitcnt lgkmcnt(0)')
    A('s_barrier')
    A('ds_read_b128 v[16:19], v28')
    A('ds_read_b128 v[32:35], v20'); A('ds_read_b128 v[36:39], v20 offset:32768')
    A('ds_read_b128 v[40:43], v21'); A('ds_read_b128 v[44:47], v21 offset:32768')
    for w in range(4):
        A(f's_waitcnt lgkmcnt({3-w})')
        for k in range(4):
            if w == 0: A(f'v_mul_f32 v{32+k}, v{32+k}, v16')
            else: A(f'v_fmac_f32 v{32+k}, v{32+4*w+k}, v{16+w}')
    A('v_cvt_pk_bf16_f32 v24, v32, v33'); A('v_cvt_pk_bf16_f32 v25, v34, v35')
    A('v_min_u32 v24, -2, v24'); A('v_min_u32 v25, -2, v25')
    if pub4:
        A('v_mov_b32_dpp v26, v24 quad_perm:[1,1,3,3] row_mask:0xf bank_mask:0xf')
        A('v_mov_b32_dpp v27, v25 quad_perm:[1,1,3,3] row_mask:0xf bank_mask:0xf')
        A('s_mov_b32 exec_lo, 0x55555555'); A('s_mov_b32 exec_hi, 0x55555555')
        A('buffer_store_dwordx4 v[24:27], v23, s[56:59], s11 offen sc1')
        A('s_mov_b64 exec, -1')
    else:
        A('buffer_store_dwordx2 v[24:25], v23, s[56:59], s11 offen sc1')
    stamp(5)
    if diag:
        for k in range(8): A(f'v_writelane_b32 v15, s{24+k}, {16+k}')
        for k in range(5): A(f'v_writelane_b32 v15, s{32+k}, {11+k}')
    def t1_load(n):
        A(f's_add_u32 s8, s74, {4096 * n}')
        A(f'buffer_load_dwordx4 {v(160+4*n,4)}, v2, s[56:59], s8 offen sc1')
    def wo_perms():
        for e in range(8):
            for m in range(4):
                A(f'v_perm_b32 v{192 + 4*e + m}, v{128 + 8*m + 4 + (e >> 1)}, v{128 + 8*m + (e >> 1)}, s{60 + (e & 1)}')
    if t1_delay == 0:
        for n in range(8): t1_load(n)
    A('v_mov_b32 v243, 0x3f80')
    prep('s3')
    for k in range(4): A(f'v_mov_b32 v{60+k}, 0')
    if t1_delay == 1:
        for n in range(8): t1_load(n)
    xstamp(8)
    if t1_delay == 2:
        A('s_waitcnt vmcnt(1)'); wo_perms()
        for n in range(8): t1_load(n)
    else:
        A('s_waitcnt vmcnt(9)'); wo_perms()
    xstamp(9)
    sweep('t1', 8, t1_load, lambda k: 160 + 4*k, 60, 6)
    stamp(6)
    for e in range(2): A(f'v_add_f32_dpp v{60+e}, v{60+e}, v{60+e} row_ror:8 row_mask:0xf bank_mask:0xf')
    A('v_cvt_pk_bf16_f32 v60, v60, v61')
    for c in range(4): A(f'v_mov_b32_dpp v{224+c}, v60 quad_perm:[{c},{c},{c},{c}] row_mask:0xf bank_mask:0xf')
    for e in range(8):
        A(f'v_mfma_f32_16x16x32_bf16 {v(64+4*e,4)}, {v(192+4*e,4)}, v[224:227], 0')
    A('s_mov_b32 exec_lo, 0x00010001'); A('s_mov_b32 exec_hi, 0x00100010')
    for e in range(8): A(f'ds_write_b128 v3, {v(64+4*e,4)} offset:{32*e}')
    A('s_mov_b64 exec, -1')
    A('s_waitcnt lgkmcnt(0)')
    A('s_branch L_tail')

    A('L_service:')
    if 'svc' in cut: A('s_endpgm')
    A('s_sub_u32 s3, s3, 4')
    rb_calc()
    A('s_mov_b32 s60, 0x05040100'); A('s_mov_b32 s61, 0x07060302'); A('s_mov_b32 s62, 0xffff0000')
    A(f's_mov_b32 s64, {f2u(LOG2E):#x}')
    A('s_mov_b32 s58, 0x400000'); A('s_mov_b32 s59, 0x20000')
    A(f'v_mov_b32 v13, {LM}')
    A('s_waitcnt lgkmcnt(0)')
    A('s_mov_b32 s56, s44'); A('s_mov_b32 s57, s45')
    A(f's_load_dword s46, s[44:45], {WS_EPOCH}')
    xstamp(0)
    A('s_mov_b32 s65, s3')
    A('s_cmp_eq_u32 s3, 0'); A('s_cbranch_scc0 L_notsw0')
    if prio: A('s_setprio 3')
    A('s_cmp_lt_u32 s2, 128'); A('s_cbranch_scc1 L_unit_p1')
    A('s_mov_b32 s65, 2')
    A('s_branch L_unit_rest')
    A('L_notsw0:')
    A('s_cmp_ge_u32 s3, 2'); A('s_cbranch_scc1 L_tabwaves')
    A('L_unit_q:')
    if prio: A('s_setprio 2')
    A('s_movk_i32 s66, 0x2000'); A('s_and_b32 s67, s2, 63'); A('s_lshr_b32 s69, s2, 6'); A('s_add_u32 s68, s67, 96')
    A('s_mov_b32 s48, s22'); A('s_mov_b32 s49, s23'); A('s_mov_b32 s70, s16'); A('s_mov_b32 s71, s17')
    A('s_branch L_unit')
    A('L_unit_rest:')
    A('s_and_b32 s67, s2, 63'); A('s_add_u32 s67, s67, 32'); A('s_lshr_b32 s69, s2, 6')
    A('s_branch L_unit_mod')
    A('L_unit_p1:')
    if DH or lev:
        A('s_lshl_b32 s8, s2, 7'); A(f's_add_u32 s8, s8, {WS_RANK}')
        A('s_mov_b64 exec, 1'); A('buffer_store_dword v0, off, s[56:59], s8 sc1'); A('s_mov_b64 exec, -1')
    A('s_and_b32 s67, s2, 31'); A('s_lshr_b32 s69, s2, 5')
    A('L_unit_mod:')
    A('s_movk_i32 s66, 0x3000'); A('s_mov_b32 s68, s67')
    A('s_mov_b32 s48, s38'); A('s_mov_b32 s49, s39'); A('s_mov_b32 s70, s36'); A('s_mov_b32 s71, s37')
    A('L_unit:')
    A('s_lshl_b32 s50, s66, 10'); A('s_lshl_b32 s67, s67, 7')
    A('v_lshrrev_b32 v1, 3, v0'); A('v_lshlrev_b32 v1, 3, v1'); A('v_mul_lo_u32 v1, v1, s66')
    A('v_and_b32 v2, 7, v0'); A('v_lshl_add_u32 v1, v2, 4, v1')
    A('s_lshl_b32 s8, s69, 8'); A('s_mul_i32 s10, s8, s66'); A('s_add_u32 s10, s10, s67')
    A('s_mul_i32 s11, s66, 57')
    A('s_lshl_b32 s8, s69, 9'); A('v_lshl_add_u32 v2, v0, 2, s8')
    A('v_lshlrev_b32 v3, 5, v0')
    A('s_cmp_lg_u32 s65, 1'); A('s_cbranch_scc1 L_nob0a')
    lds_spin(C_U0, 1, 10)
    A('L_nob0a:')
    xstamp(2)
    A('global_load_dword v4, v2, s[70:71]'); A('global_load_dword v5, v2, s[70:71] offset:256')
    A('global_load_dwordx4 v[16:19], v3, s[16:17]'); A('global_load_dwordx4 v[20:23], v3, s[16:17] offset:16')
    for G in range(4):
        for r in range(8):
            if WU and 8*G + r >= WU: A(f's_waitcnt vmcnt({WU-1})')
            A(f'buffer_load_dwordx4 {v(128+32*G+4*r,4)}, v1, s[48:51], s10 offen nt')
            if not (G == 3 and r == 7): A(f's_add_u32 s10, s10, {"s11" if r == 7 else "s66"}')
    A('s_lshl_b32 s68, s68, 9'); A(f's_mul_i32 s8, s69, {PSTR}'); A('s_add_u32 s68, s68, s8'); A(f's_add_u32 s68, s68, {WS_PART}')
    A('s_cmp_eq_u32 s65, 3'); A('s_cbranch_scc1 L_nob0')
    A('s_cmp_eq_u32 s65, 1'); A('s_cbranch_scc1 L_go')
    lds_add(C_U0, 10)
    A('s_branch L_went')
    A('L_go:')
    lds_add(C_GO, 10)
    A('L_went:')
    A('s_waitcnt lgkmcnt(0)'); A('s_add_u32 s46, s46, 1')
    A('L_nob0:')
    xstamp(3)
    A('s_waitcnt vmcnt(32)')
    xstamp(4)
    A('v_lshlrev_b32 v6, 16, v4'); A('v_and_b32 v7, s62, v4'); A('v_lshlrev_b32 v8, 16, v5'); A('v_and_b32 v9, s62, v5')
    A('s_cmp_eq_u32 s65, 1'); A('s_cbranch_scc1 L_jobq')
    for k in range(4): A(f'v_mul_f32 v{24+k}, s64, v{6+k}')
    for k in range(4): A(f'v_exp_f32 v{24+k}, -v{24+k}')
    for k in range(4): A(f'v_add_f32 v{24+k}, 1.0, v{24+k}')
    for k in range(4): A(f'v_rcp_f32 v{24+k}, v{24+k}')
    for k in range(4): A(f'v_mul_f32 v{6+k}, v{6+k}, v{24+k}')
    A('s_branch L_jobcommon')
    A('L_jobq:')
    for k in range(8):
        A(f'v_lshlrev_b32 v{96+2*k}, 16, v{16+k}'); A(f'v_and_b32 v{97+2*k}, s62, v{16+k}')
    A('v_add_f32 v24, v96, v97')
    for k in range(2, 16): A(f'v_add_f32 v24, v24, v{96+k}')
    row_reduce('v_add_f32', [24]); xg_reduce('v_add_f32', 24, 25)
    A(f'v_mul_f32 v24, {f2u(1/1024):#x}, v24')
    for k in range(16): A(f'v_sub_f32 v{96+k}, v{96+k}, v24')
    A('v_mul_f32 v26, v96, v96')
    for k in range(1, 16): A(f'v_fmac_f32 v26, v{96+k}, v{96+k}')
    row_reduce('v_add_f32', [26]); xg_reduce('v_add_f32', 26, 25)
    A(f'v_mul_f32 v26, {f2u(1/1024):#x}, v26')
    rnd(24, 26)
    A(f'v_add_f32 v26, {f2u(1e-5):#x}, v26'); rnd(26); A('v_sqrt_f32 v26, v26'); rnd(26); A('v_rcp_f32 v26, v26')
    for k in range(4): A(f'v_sub_f32 v{6+k}, v{6+k}, v24')
    rnd(6, 7, 8, 9)
    for k in range(4): A(f'v_mul_f32 v{6+k}, v{6+k}, v26')
    rnd(6, 7, 8, 9)
    A('v_lshlrev_b32 v3, 2, v2')
    loads = []
    for a in range(2):
        for rho in range(4):
            A(f's_mov_b32 s{72 + 4*a + rho}, {WS_PART + rho * PSTR + a * 8192}')
            for k in range(2):
                d = 16 + 32*a + 16*k + 4*rho
                loads.append((d, f'buffer_load_dwordx4 {v(d,4)}, v3, s[56:59], s{72 + 4*a + rho} offen offset:{1024*k} sc1'))
    if 'p2g' not in cut: tag_gather(loads, 10, cid=0)
    lds_add(C_P2, 10)
    def sum4(b, dst):
        for j in range(2):
            A(f'v_add_f32 v{b+2*j}, v{b+2*j}, v{b+4+2*j}'); A(f'v_add_f32 v{b+8+2*j}, v{b+8+2*j}, v{b+12+2*j}')
        for j in range(2): A(f'v_add_f32 v{dst+j}, v{b+2*j}, v{b+8+2*j}')
    sum4(16, 96); sum4(32, 98); sum4(48, 100); sum4(64, 102)
    rnd(*range(96, 104))
    for k in range(4): A(f'v_add_f32 v{100+k}, 1.0, v{100+k}')
    rnd(100, 101, 102, 103)
    for k in range(4): A(f'v_mul_f32 v{6+k}, v{6+k}, v{100+k}')
    rnd(6, 7, 8, 9)
    for k in range(4): A(f'v_add_f32 v{6+k}, v{6+k}, v{96+k}')
    A('L_jobcommon:')
    A('v_cvt_pk_bf16_f32 v4, v6, v7'); A('v_cvt_pk_bf16_f32 v5, v8, v9')
    A('s_lshl_b32 s8, s3, 10'); A(f's_add_u32 s8, s8, {L_SCR}')
    A('v_lshl_add_u32 v2, v0, 2, s8')
    A('ds_write2_b32 v2, v4, v5 offset0:0 offset1:64')
    A('v_lshrrev_b32 v3, 4, v0'); A('v_lshlrev_b32 v3, 1, v3'); A('v_and_b32 v6, 1, v0'); A('v_add_u32 v3, v3, v6'); A('v_lshl_add_u32 v3, v3, 4, s8')
    A('s_waitcnt lgkmcnt(0)')
    for G in range(4): A(f'ds_read_b128 {v(32+8*G,4)}, v3 offset:{128*G}')
    A('s_waitcnt lgkmcnt(0)')
    for G in range(4):
        A(f's_waitcnt vmcnt({24 - 8*G})')
        if G in (0, 3): xstamp(5 if G == 0 else 6)
        pv(128 + 32 * G, 32 + 8 * G, G == 0)
    A('v_lshrrev_b32 v3, 5, v0'); A('v_lshlrev_b32 v3, 8, v3'); A('v_and_b32 v6, 16, v0'); A('v_add3_u32 v3, v3, v6, s8')
    A('v_and_b32 v6, 3, v0'); A('v_lshlrev_b32 v6, 6, v6'); A('v_bfe_u32 v7, v0, 2, 3'); A('v_lshl_add_u32 v6, v7, 2, v6'); A('v_add_u32 v6, s8, v6')
    A('s_mov_b32 exec_lo, 0x00010001'); A('s_mov_b32 exec_hi, 0x00020002')
    for e in range(8): A(f'ds_write_b128 v3, {v(64+4*e,4)} offset:{512 + 32*e}')
    A('s_mov_b32 exec_lo, -1'); A('s_mov_b32 exec_hi, 0')
    A('s_waitcnt lgkmcnt(0)')
    A('ds_read2_b32 v[16:17], v6 offset0:128 offset1:136'); A('ds_read2_b32 v[20:21], v6 offset0:192 offset1:200')
    A('v_lshlrev_b32 v3, 4, v0'); A('v_mov_b32 v19, s46')
    A('s_waitcnt lgkmcnt(0)')
    A('v_add_f32 v18, v17, v21'); A('v_add_f32 v16, v16, v20'); A('v_mov_b32 v17, s46')
    A('buffer_store_dwordx4 v[16:19], v3, s[56:59], s68 offen sc1')
    A('s_mov_b64 exec, -1')
    if 'second' in cut: A('s_branch L_unit_done')
    A('s_cmp_lg_u32 s65, 0'); A('s_cbranch_scc1 L_unit_done')
    xstamp(7)
    lds_spin(C_P2, 1, 6, sleep=4)
    A('s_mov_b32 s65, 3'); A('s_branch L_unit_rest')
    A('L_unit_done:')
    stamp(1)
    A('L_qgather:')
    if 'qg' in cut: A('s_endpgm')
    lds_spin(C_PROG, 4, 6, sleep=4)
    A('s_lshl_b32 s8, s4, 13'); A('s_lshl_b32 s10, s3, 12'); A('s_add_u32 s8, s8, s10')
    A('v_lshl_add_u32 v3, v0, 4, s8')
    loads = []
    for rho in range(4):
        A(f's_mov_b32 s{72 + rho}, {WS_PART + rho * PSTR + 6144 * 8}')
        for k in range(4):
            d = 16 + 16*k + 4*rho
            loads.append((d, f'buffer_load_dwordx4 {v(d,4)}, v3, s[56:59], s{72 + rho} offen offset:{1024*k} sc1'))
    tag_gather(loads, 10, sleep=6, cid=1)
    for k in range(4): sum4(16 + 16*k, 96 + 2*k)
    for k in range(4): A(f'v_cvt_pk_bf16_f32 v{96+k}, v{96+2*k}, v{97+2*k}')
    A('s_lshl_b32 s8, s3, 10'); A(f's_add_u32 s8, s8, {L_Q}'); A('v_lshl_add_u32 v2, v0, 2, s8')
    A('ds_write2_b32 v2, v96, v97 offset0:0 offset1:64'); A('ds_write2_b32 v2, v98, v99 offset0:128 offset1:192')
    lds_add(C_Q, 6)
    stamp(2)
    if 'late' in cut: A('s_endpgm')
    A('s_cmp_eq_u32 s3, 1'); A('s_cbranch_scc1 L_final_gathers')
    A('v_bfe_u32 v1, v0, 3, 2'); A(f's_mov_b32 s8, {PSTR}'); A('v_mul_lo_u32 v1, v1, s8'); A('v_and_b32 v2, 7, v0'); A('v_lshl_add_u32 v1, v2, 4, v1')
    A('s_lshl_b32 s8, s2, 7'); A(f's_add_u32 s8, s8, {WS_PART + 2048 * 8}')
    tag_gather([(16, 'buffer_load_dwordx4 v[16:19], v1, s[56:59], s8 offen sc1')], 10, sleep=10, cid=2)
    for r in (16, 18): A(f'v_add_f32_dpp v{r}, v{r}, v{r} row_ror:8 row_mask:0xf bank_mask:0xf')
    for r in (16, 18): A(f'v_mov_b32 v{r+4}, v{r}')
    for r in (16, 18): A(f'v_permlane16_swap_b32 v{r}, v{r+4}')
    for r in (16, 18): A(f'v_add_f32 v{r}, v{r}, v{r+4}')
    A('v_cvt_pk_bf16_f32 v16, v16, v18')
    A('v_lshlrev_b32 v2, 2, v2'); A('s_lshl_b32 s8, s2, 5'); A(f's_add_u32 s8, s8, {WS_MOD}')
    A('s_mov_b64 exec, 0xff'); A('buffer_store_dword v16, v2, s[56:59], s8 offen sc1'); A('s_mov_b64 exec, -1')
    done_event(6)
    lds_spin(C_ML, 4, 6, sleep=2)
    A('v_and_b32 v1, 7, v0'); A('v_lshlrev_b32 v1, 3, v1'); A(f'v_add_u32 v2, {L_ML}, v1')
    for w in range(4): A(f'ds_read_b64 {v(16+2*w,2)}, v2 offset:{64*w}')
    A('s_waitcnt lgkmcnt(0)')
    A('v_max_f32 v24, v16, v18'); A('v_max3_f32 v24, v20, v22, v24')
    for w in range(4): A(f'v_sub_f32 v{28+w}, v{16+2*w}, v24')
    for w in range(4): A(f'v_mul_f32 v{28+w}, s64, v{28+w}')
    for w in range(4): A(f'v_exp_f32 v{28+w}, v{28+w}')
    A('v_mul_f32 v26, v28, v17')
    for w in range(1, 4): A(f'v_fmac_f32 v26, v{28+w}, v{17+2*w}')
    A('v_mov_b32 v25, s46'); A('v_mov_b32 v27, s46')
    A('v_lshlrev_b32 v1, 10, v0')
    A('s_lshl_b32 s8, s4, 13'); A('s_lshl_b32 s10, s5, 4'); A('s_add_u32 s8, s8, s10'); A(f's_add_u32 s8, s8, {WS_ML}')
    A('s_mov_b64 exec, 0xff'); A('buffer_store_dwordx4 v[24:27], v1, s[56:59], s8 offen sc1')
    A('s_mov_b64 exec, -1')
    stamp(3)
    A('s_branch L_staged')
    A('L_final_gathers:')
    lds_spin(C_PROG, 8, 6, sleep=8)
    A('v_lshlrev_b32 v1, 4, v0')
    A(f's_mov_b32 s8, {WS_CLR}')
    tag_gather([(16, 'buffer_load_dwordx4 v[16:19], v1, s[56:59], s8 offen sc1')], 10, sleep=16, tagregs=(0, 1, 2, 3), cid=2)
    for base, dst in ((WS_MOD, L_CONST + 2048), (WS_TAB, L_TABLE)):
        for n in range(8 if base == WS_MOD else NB // 2):
            if n % 4 == 0:
                A(f's_mov_b32 m0, {dst + 1024*n}'); A(f's_mov_b32 s8, {base + 1024*n}')
            A(f'buffer_load_dwordx4 v1, s[56:59], s8 offen offset:{(n % 4) * 1024} sc1 lds')
    A('s_waitcnt vmcnt(0)')
    lds_add(C_STG, 6)
    stamp(3)
    A('s_branch L_staged')

    A('L_tabwaves:')
    if 'tab' in cut: A('s_endpgm')
    if not tabfirst: lds_spin(C_U0, 1, 10)
    A('s_cmp_eq_u32 s3, 3'); A('s_cbranch_scc1 L_sw3')
    A('v_mov_b32 v16, -1'); A('v_mov_b32 v17, -1'); A('v_mov_b32 v18, -1'); A('v_mov_b32 v19, -1')
    A('v_lshrrev_b32 v1, 5, v0'); A('v_lshlrev_b32 v1, 15, v1'); A('v_and_b32 v2, 31, v0'); A('v_lshl_add_u32 v1, v2, 4, v1')
    A('s_lshl_b32 s8, s4, 17'); A('s_lshl_b32 s10, s5, 9'); A('s_add_u32 s8, s8, s10'); A(f's_add_u32 s8, s8, {WS_T1}'); A('s_add_u32 s10, s8, 0x10000')
    A('buffer_store_dwordx4 v[16:19], v1, s[56:59], s8 offen sc1')
    A('buffer_store_dwordx4 v[16:19], v1, s[56:59], s10 offen sc1')
    A('s_lshl_b32 s8, s6, 11'); A('s_lshl_b32 s10, s7, 7'); A('s_add_u32 s8, s8, s10'); A(f's_add_u32 s8, s8, {WS_T2}')
    A('v_lshrrev_b32 v1, 3, v0'); A('v_lshlrev_b32 v1, 15, v1'); A('v_and_b32 v2, 7, v0'); A('v_lshl_add_u32 v1, v2, 4, v1')
    A('buffer_store_dwordx4 v[16:19], v1, s[56:59], s8 offen sc1')
    A('s_branch L_tabinit')
    A('L_sw3:')
    if 'w' in touch:
        A('s_lshl_b32 s8, s6, 19'); A('s_load_dword s72, s[24:25], s8'); A('s_load_dword s73, s[40:41], 0')
    if 'k' in touch:
        A('s_bfe_u32 s8, s2, 0x50003'); A('s_lshl_b32 s8, s8, 21')
        A('s_load_dword s74, s[18:19], s8'); A('s_load_dword s75, s[20:21], s8')
    A('v_lshlrev_b32 v2, 4, v0'); A(f's_mov_b32 m0, {L_CONST}')
    A('global_load_lds_dwordx4 v2, s[16:17]'); A('global_load_lds_dwordx4 v2, s[16:17] offset:1024')
    A('L_tabinit:')
    A('s_and_b32 s8, s2, 127'); A(f's_mul_i32 s8, s8, {NB}'); A(f's_add_u32 s8, s8, {TAB_E0}')
    A('s_lshr_b32 s10, s2, 7'); A('s_lshl_b32 s10, s10, 15'); A('s_add_u32 s8, s8, s10')
    A('v_add_u32 v2, s8, v0'); A('v_lshlrev_b32 v2, 16, v2')
    A(f'v_cmp_gt_u32 vcc, {NB}, v0'); A('v_cndmask_b32 v12, 0, v2, vcc')
    A('s_mov_b32 s65, 0'); A(f's_mov_b32 s69, {NB + 1}'); A('v_mov_b32 v238, 0')
    A('L_mlp:')
    A('s_sub_u32 s8, s3, 2'); A('s_mul_i32 s8, s8, 3584'); A('v_lshl_add_u32 v1, v0, 3, s8')
    for a, ptr in enumerate(('s[28:29]', 's[30:31]', 's[32:33]')):
        for k in range(7): A(f'global_load_dwordx2 {v(192 + 14*a + 2*k, 2)}, v1, {ptr} offset:{512*k}')
    A('s_load_dword s47, s[34:35], 0')
    c0 = -2.0 * math.sqrt(2.0 / math.pi) * LOG2E; c1 = c0 * 0.044715
    A(f's_mov_b32 s66, {f2u(c1):#x}'); A(f's_mov_b32 s67, {f2u(3*c1):#x}'); A(f'v_mov_b32 v11, {f2u(c0):#x}')
    A('s_cmp_eq_u32 s65, 1'); A('s_cbranch_scc1 L_mlp_nob0')
    A('s_waitcnt vmcnt(0) lgkmcnt(0)'); A('s_add_u32 s46, s46, 1')
    A('s_cmp_eq_u32 s3, 3'); A('s_cbranch_scc1 L_sw3b')
    lds_add(C_Q, 6)
    done_event(6)
    A('s_branch L_mlp_nob0')
    A('L_sw3b:')
    lds_add(C_STG, 6)
    A('L_mlp_nob0:')
    A('s_waitcnt vmcnt(0) lgkmcnt(0)')
    xstamp(2)
    CO = 24
    A('s_mov_b32 s72, s66'); A('s_mov_b32 s73, s66'); A('s_mov_b32 s74, s67'); A('s_mov_b32 s75, s67'); A('v_mov_b32 v10, v11')
    for r in range(14):
        for a in range(3):
            A(f'v_lshlrev_b32 v{2+2*a}, 16, v{192 + 14*a + r}'); A(f'v_and_b32 v{3+2*a}, s62, v{192 + 14*a + r}')
        c = CO + 12 * r
        A('v_pk_mul_f32 v[8:9], v[2:3], v[2:3]'); A('v_pk_mul_f32 v[16:17], v[4:5], v[4:5]')
        A('v_pk_mul_f32 v[18:19], v[8:9], s[72:73]'); A('v_pk_mul_f32 v[8:9], v[8:9], s[74:75]')
        A('v_pk_fma_f32 v[20:21], v[16:17], s[74:75], v[10:11]'); A('v_pk_fma_f32 v[16:17], v[16:17], s[72:73], v[10:11]')
        A(f'v_pk_mul_f32 {v(c,2)}, v[18:19], v[2:3]'); A(f'v_pk_mul_f32 {v(c+2,2)}, v[8:9], v[4:5]')
        A(f'v_pk_mul_f32 {v(c+4,2)}, v[20:21], v[2:3]'); A(f'v_pk_mul_f32 {v(c+6,2)}, v[16:17], v[4:5]')
        A(f'v_pk_mul_f32 {v(c+8,2)}, v[2:3], v[6:7]'); A(f'v_pk_mul_f32 {v(c+10,2)}, v[4:5], v[6:7]')
    xstamp(3)
    A('s_mov_b32 s68, 0'); A('s_mov_b32 s72, 1.0'); A('s_mov_b32 s73, 1.0')
    A('.p2align 3')
    A('L_mlp_loop:')
    A('v_readlane_b32 s10, v12, s68'); A('v_readlane_b32 s11, v12, s68')
    for q in range(7):
        cs = [CO + 12 * (2*q + d) for d in range(2)]
        for d in range(2): A(f'v_pk_fma_f32 {v(2+2*d,2)}, {v(cs[d],2)}, s[10:11], {v(cs[d]+2,2)}')
        for d in range(2): A(f'v_pk_fma_f32 {v(2+2*d,2)}, {v(2+2*d,2)}, s[10:11], {v(cs[d]+4,2)}')
        for d in range(2): A(f'v_pk_fma_f32 {v(2+2*d,2)}, {v(2+2*d,2)}, s[10:11], {v(cs[d]+6,2)}')
        for d in range(4): A(f'v_exp_f32 v{2+d}, v{2+d}')
        for d in range(2): A(f'v_pk_fma_f32 {v(6+2*d,2)}, {v(cs[d]+8,2)}, s[10:11], {v(cs[d]+10,2)}')
        for d in range(2): A(f'v_pk_add_f32 {v(2+2*d,2)}, {v(2+2*d,2)}, s[72:73]')
        for d in range(4): A(f'v_rcp_f32 v{2+d}, v{2+d}')
        for d in range(2):
            A(f'v_pk_mul_f32 {v(16+2*d,2)}, {v(6+2*d,2)}, {v(2+2*d,2)}' if q == 0 else f'v_pk_fma_f32 {v(16+2*d,2)}, {v(6+2*d,2)}, {v(2+2*d,2)}, {v(16+2*d,2)}')
    A('v_add_f32 v16, v16, v17'); A('v_add_f32 v18, v18, v19'); A('v_add_f32 v16, v16, v18')
    row_reduce('v_add_f32', [16]); xg_reduce('v_add_f32', 16, 17)
    A('v_readfirstlane_b32 s10, v16')
    A('s_mov_b32 m0, s68')
    A('v_writelane_b32 v22, s10, m0')
    A('s_add_u32 s68, s68, 1'); A('s_cmp_lt_u32 s68, s69'); A('s_cbranch_scc1 L_mlp_loop')
    xstamp(4)
    A('s_lshl_b32 s8, s3, 7'); A(f's_add_u32 s8, s8, {L_TP - 256}'); A('v_and_b32 v1, 31, v0'); A('v_lshl_add_u32 v2, v1, 2, s8')
    A('s_mov_b32 exec_lo, -1'); A('s_mov_b32 exec_hi, 0'); A('ds_write_b32 v2, v22')
    A('s_waitcnt lgkmcnt(0)')
    A('s_lshl_b32 s8, s65, 2'); A('v_add_u32 v3, s8, v13')
    A('s_mov_b64 exec, 1'); A('v_mov_b32 v6, 1'); A(f'ds_add_rtn_u32 v6, v3, v6 offset:{C_TAB}'); A('s_mov_b64 exec, -1')
    A('s_waitcnt lgkmcnt(0)')
    A('v_readfirstlane_b32 s8, v6')
    A('s_cmp_eq_u32 s8, 1'); A('s_cbranch_scc1 L_mlp_last')
    A('s_cmp_eq_u32 s65, 0'); A('s_cbranch_scc1 L_staged')
    A('s_branch L_fin')
    A('L_mlp_last:')
    A(f'v_lshlrev_b32 v2, 2, v1'); A(f'v_add_u32 v2, {L_TP}, v2')
    A('ds_read2_b32 v[16:17], v2 offset0:0 offset1:32')
    A('s_lshl_b32 s47, s47, 16')
    A('s_waitcnt lgkmcnt(0)')
    A('v_add_f32 v16, v16, v17'); rnd(16); A('v_add_f32 v16, s47, v16'); rnd(16)
    A('s_cmp_eq_u32 s65, 1'); A('s_cbranch_scc1 L_output')
    A('v_mov_b32_dpp v17, v16 quad_perm:[1,1,3,3] row_mask:0xf bank_mask:0xf')
    A('v_cvt_pk_bf16_f32 v18, v16, v17')
    A('v_lshlrev_b32 v2, 1, v0'); A(f's_mul_i32 s8, s2, {2*NB}'); A(f's_add_u32 s8, s8, {WS_TAB}')
    A(f's_mov_b64 exec, {0x55555555 & ((1 << NB) - 1):#x}'); A('buffer_store_dword v18, v2, s[56:59], s8 offen sc1')
    A(f's_mov_b64 exec, {1 << NB:#x}'); A(f'ds_write_b16 v13, v18 offset:{L_TABLE + 512 * NB - LM}')
    A('s_mov_b64 exec, -1')
    done_event(6)
    stamp(3)

    A('L_staged:')
    if prio: A('s_setprio 0')
    if cut and 'keepml' not in cut: A('s_endpgm')
    lds_spin(C_STG, 2, 6, sleep=4)
    A('s_add_u32 s9, s3, 4')
    A('v_mov_b32 v243, 0x3f80')
    prep('s9')
    A('s_lshl_b32 s72, s6, 11'); A('s_lshl_b32 s10, s7, 7'); A('s_add_u32 s72, s72, s10'); A(f's_add_u32 s72, s72, {WS_T2}')
    lds_spin(C_PROG, 12, 6, sleep=2)
    A('s_lshl_b32 s8, s4, 13'); A('s_lshl_b32 s10, s3, 11'); A('s_add_u32 s8, s8, s10'); A(f's_add_u32 s8, s8, {WS_ML}')
    A('v_lshlrev_b32 v1, 4, v0')
    tag_gather([(16, 'buffer_load_dwordx4 v[16:19], v1, s[56:59], s8 offen sc1'), (20, 'buffer_load_dwordx4 v[20:23], v1, s[56:59], s8 offen offset:1024 sc1')], 10, sleep=6, cid=4)
    stamp(4)
    A('v_and_b32 v3, 3, v0'); A('v_bfe_u32 v2, v0, 2, 1'); A('v_lshlrev_b32 v7, 6, v3'); A('v_lshl_add_u32 v7, v2, 3, v7')
    A('s_lshl_b32 s8, s3, 4'); A(f's_add_u32 s8, s8, {L_ML}'); A('v_add_u32 v7, s8, v7')
    A('ds_read_b32 v8, v7')
    A('v_mov_b32 v17, v16'); A('v_mov_b32 v21, v20')
    row_reduce('v_max_f32', [17, 21]); xg_reduce('v_max_f32', 17, 19); xg_reduce('v_max_f32', 21, 19)
    for r in (16, 20):
        A(f'v_sub_f32 v{r}, v{r}, v{r+1}'); A(f'v_mul_f32 v{r}, s64, v{r}'); A(f'v_exp_f32 v{r}, v{r}')
    A('v_mul_f32 v18, v16, v18'); A('v_mul_f32 v22, v20, v22')
    row_reduce('v_add_f32', [18, 22]); xg_reduce('v_add_f32', 18, 19); xg_reduce('v_add_f32', 22, 19)
    A('v_cmp_eq_u32 vcc, 1, v2'); A('v_cndmask_b32 v17, v17, v21, vcc'); A('v_cndmask_b32 v18, v18, v22, vcc')
    A('v_rcp_f32 v18, v18')
    A('s_waitcnt lgkmcnt(0)')
    A('v_sub_f32 v8, v8, v17'); A('v_mul_f32 v8, s64, v8'); A('v_exp_f32 v8, v8'); A('v_mul_f32 v8, v8, v18')
    A('s_lshl_b32 s8, s3, 5'); A(f's_add_u32 s8, s8, {L_FAC}'); A('v_lshl_add_u32 v7, v0, 2, s8')
    A('s_mov_b64 exec, 0xff'); A('ds_write_b32 v7, v8'); A('s_mov_b64 exec, -1')
    if rep8:
        A('v_and_b32 v8, 12, v0'); A('v_lshlrev_b32 v8, 2, v8'); A('v_lshrrev_b32 v2, 5, v0'); A('v_lshl_add_u32 v8, v2, 6, v8')
        A('v_and_b32 v2, 3, v0'); A('v_lshl_add_u32 v8, v2, 15, v8'); A('v_and_b32 v2, 16, v0'); A('v_lshl_add_u32 v8, v2, 13, v8')
    else:
        A('v_and_b32 v8, 15, v0'); A('v_lshlrev_b32 v8, 2, v8'); A('v_lshrrev_b32 v2, 5, v0'); A('v_lshl_add_u32 v8, v2, 6, v8')
    A('s_add_u32 s3, s3, 4')
    A('s_waitcnt lgkmcnt(0)')
    stamp(5)
    if cut: A('s_endpgm')
    A('s_barrier')

    A('L_tail:')
    A('s_barrier')
    A('s_cmp_lg_u32 s3, 4'); A('s_cbranch_scc1 L_t2wait')
    for w in range(2): A(f'ds_read_b128 {v(16+4*w,4)}, v1 offset:{L_RED2 + 1024*w}')
    A('s_waitcnt lgkmcnt(0)')
    A('v_pk_add_f32 v[16:17], v[16:17], v[20:21]'); A('v_pk_add_f32 v[18:19], v[18:19], v[22:23]')
    for e in range(2): A(f'v_permlane32_swap_b32 v{16+e}, v{18+e}')
    A('v_pk_add_f32 v[16:17], v[16:17], v[18:19]')
    A('v_mov_b32 v18, v16'); A('v_mov_b32 v19, v17')
    for e in range(2): A(f'v_permlane16_swap_b32 v{16+e}, v{18+e}')
    A('v_pk_add_f32 v[16:17], v[16:17], v[18:19]')
    A('v_cvt_pk_bf16_f32 v16, v16, v17')
    A('v_min_u32 v16, -2, v16')
    if rep8:
        for c in range(4): A(f'v_mov_b32_dpp v{32+c}, v16 quad_perm:[{c},{c},{c},{c}] row_mask:0xf bank_mask:0xf')
        A('buffer_store_dwordx4 v[32:35], v8, s[56:59], s72 offen sc1')
    else:
        A('s_mov_b32 exec_lo, 0xffff'); A('s_mov_b32 exec_hi, 0xffff')
        A('buffer_store_dword v16, v8, s[56:59], s72 offen sc1')
        A('s_mov_b64 exec, -1')
    A('L_t2wait:')
    if b3:
        if t2wait == 0: A('s_waitcnt vmcnt(0)')
        A('s_barrier')
        if t2wait > 1: A(f's_sleep {t2wait - 1}')
    stamp(7)
    def t2_load(n):
        A(f's_add_u32 s8, s75, {8192 * n}')
        A(f'buffer_load_dwordx4 {v(16+4*n,4)}, v244, s[56:59], s8 offen sc1')
    for n in range(4): t2_load(n)
    A(f's_mov_b32 s66, {f2u(1/1024):#x}'); A(f's_mov_b32 s67, {f2u(1/1024):#x}')
    sweep('t2', 4, t2_load, lambda k: 16 + 4*k, 240, 6)
    stamp(8)
    rnd(240, 241)
    A('v_pk_mul_f32 v[240:241], v[250:251], v[240:241]'); rnd(240, 241)
    A('v_pk_add_f32 v[240:241], v[248:249], v[240:241]'); rnd(240, 241)
    def stats(a, b, lds_off):
        A(f'v_add_f32 v46, v{a}, v{b}'); A(f'v_mul_f32 v47, v{a}, v{a}'); A(f'v_fmac_f32 v47, v{b}, v{b}')
        A('v_permlane32_swap_b32 v46, v47'); A('v_add_f32 v46, v46, v47')
        A('v_mov_b32 v47, v46'); A('v_permlane16_swap_b32 v46, v47'); A('v_add_f32 v46, v46, v47')
        row_reduce('v_add_f32', [46])
        A('s_mov_b32 exec_lo, 1'); A('s_mov_b32 exec_hi, 1')
        A(f'ds_write_b32 v246, v46 offset:{lds_off}')
        A('s_mov_b64 exec, -1')
        A('s_waitcnt lgkmcnt(0)')
        A('s_barrier')
    def stats_read(lds_off):
        for k in range(4): A(f'ds_read_b128 {v(48+4*k,4)}, v247 offset:{lds_off + 16*k}')
    def stats_calc(pending):
        for k in range(4):
            A(f's_waitcnt lgkmcnt({3 - k + pending})'); A(f'v_pk_add_f32 {v(48+4*k,2)}, {v(48+4*k,2)}, {v(50+4*k,2)}')
        A('v_pk_add_f32 v[48:49], v[48:49], v[52:53]'); A('v_pk_add_f32 v[56:57], v[56:57], v[60:61]')
        A('v_pk_add_f32 v[46:47], v[48:49], v[56:57]')
        A('v_pk_mul_f32 v[46:47], v[46:47], s[66:67]')
        A('v_fma_f32 v47, -v46, v46, v47'); A('v_max_f32 v47, 0, v47'); rnd(47)
        A(f'v_add_f32 v47, {f2u(1e-5):#x}, v47'); rnd(47); A('v_sqrt_f32 v47, v47'); rnd(46); rnd(47); A('v_rcp_f32 v47, v47')
    stats(240, 241, L_ST1)
    stats_read(L_ST1); stats_calc(0)
    A('v_sub_f32 v42, v240, v46'); A('v_sub_f32 v43, v241, v46'); rnd(42, 43)
    A('v_mul_f32 v42, v42, v47'); A('v_mul_f32 v43, v43, v47'); rnd(42, 43)
    A('v_pk_mul_f32 v[42:43], v[42:43], v[254:255]'); rnd(42, 43)
    A('v_pk_add_f32 v[42:43], v[42:43], v[252:253]'); rnd(42, 43)
    A('s_mov_b64 exec, s[76:77]'); A('ds_write2_b32 v245, v42, v240 offset0:0 offset1:1')
    A('s_mov_b64 exec, s[78:79]'); A('ds_write2_b32 v245, v43, v241 offset0:0 offset1:1')
    A('s_mov_b64 exec, -1')
    stats(42, 43, L_ST2)
    A('s_cmp_lt_u32 s3, 6'); A('s_cbranch_scc1 L_early')
    stats_read(L_ST2)
    A(f'ds_read_b64 v[236:237], v231 offset:{L_OWN}')
    stats_calc(1)
    A('s_waitcnt lgkmcnt(0)')
    A('v_sub_f32 v12, v236, v46'); rnd(12); A('v_mul_f32 v12, v12, v47'); rnd(12)
    stamp(9)
    A('v_bfe_u32 v3, v12, 16, 15'); A('v_lshrrev_b32 v4, 31, v12'); A(f'v_subrev_u32 v5, {TAB_E0}, v3')
    A('v_cmp_eq_u32 s[70:71], 0, v3'); A(f'v_cmp_lt_u32 vcc, {128 * NB - 1}, v5')
    A(f'v_mul_u32_u24 v4, {128 * NB}, v4'); A('v_add_u32 v5, v4, v5'); A(f'v_mov_b32 v4, {256 * NB}'); A('v_cndmask_b32 v5, v5, v4, s[70:71]')
    A('v_lshl_add_u32 v5, v5, 1, v13')
    A(f'ds_read_u16 v16, v5 offset:{L_TABLE - LM}')
    A('s_andn2_b64 vcc, vcc, s[70:71]')
    A('s_branch L_fallback' if force_fb else 's_cbranch_vccnz L_fallback')
    A('s_cmp_lg_u32 s3, 6'); A('s_cbranch_scc1 L_fin')
    A('s_waitcnt lgkmcnt(0)')
    A('v_lshlrev_b32 v16, 16, v16')
    A('L_output:')
    A('v_mul_f32 v16, v239, v16'); rnd(16)
    A('v_add_f32 v16, v237, v16'); A('v_cvt_pk_bf16_f32 v16, v16, v16')
    A('s_mov_b64 exec, 15')
    A('global_store_short v238, v16, s[40:41]')
    A('s_mov_b64 exec, -1')
    A('s_branch L_fin')
    A('L_fallback:')
    A('s_waitcnt lgkmcnt(0)')
    A('s_sub_u32 s3, s3, 4'); A('s_mov_b32 s65, 1'); A('s_mov_b32 s69, 4')
    A('s_branch L_mlp')
    for c in COLD: c()
    A('L_early:')
    A('s_cmp_lg_u32 s3, 4'); A('s_cbranch_scc1 L_fin')
    A('s_cmp_lg_u32 s2, 0'); A('s_cbranch_scc1 L_fin')
    A('s_mov_b64 exec, 1'); A('v_mov_b32 v16, s46'); A(f's_mov_b32 s8, {WS_EPOCH}')
    A('buffer_store_dword v16, v247, s[56:59], s8 offen')
    A('s_mov_b64 exec, -1')
    A('L_fin:')
    if endstamp:
        A('s_waitcnt vmcnt(0)')
        A('s_memrealtime s[100:101]'); A('s_waitcnt lgkmcnt(0)')
        A('v_mov_b32 v61, v15')
        for k in range(11): A(f'v_writelane_b32 v61, s{80+2*k}, {k}')
        A('s_lshl_b32 s8, s2, 3'); A('s_add_u32 s8, s8, s3'); A('s_lshl_b32 s8, s8, 7'); A(f's_add_u32 s8, s8, {WS_STAMP}')
        A('v_lshlrev_b32 v1, 2, v0'); A('s_mov_b32 exec_lo, -1'); A('s_mov_b32 exec_hi, 0')
        A('buffer_store_dword v61, v1, s[56:59], s8 offen')
    A('L_end:')
    A('s_endpgm')
    A('.section .rodata,"a"'); A('.p2align 6'); A(f'.amdhsa_kernel {NAME}_kernel')
    A('.amdhsa_next_free_vgpr 256'); A('.amdhsa_next_free_sgpr 102'); A('.amdhsa_accum_offset 256')
    A('.amdhsa_group_segment_fixed_size 0'); A('.amdhsa_kernarg_size 120'); A('.amdhsa_user_sgpr_count 2')
    A('.amdhsa_user_sgpr_kernarg_segment_ptr 1'); A('.amdhsa_system_sgpr_workgroup_id_x 1')
    A('.amdhsa_float_denorm_mode_32 3')
    A('.end_amdhsa_kernel')
    txt, nn = A.finish()
    return txt

if __name__ == '__main__':
    kw = eval('dict(%s)' % (sys.argv[2] if len(sys.argv) > 2 else ''))
    open(sys.argv[1], 'w').write(gen(**kw))
```

```python
import sys, struct, math
from asmlib import Asm
NAME = 'adaLN_cond__gqa_block_cached__mixer_token_mlp__decode'

def f2u(x): return struct.unpack('<I', struct.pack('<f', x))[0]
LOG2E = 1.4426950408889634

WS_MOD, WS_TAB, WS_ML, WS_T2, WS_CLR, WS_EPOCH = 0x0, 0x8000, 0x10000, 0xA0000, 0x28000, 0x29000
WS_RANK, WS_PART, WS_T1, WS_STAMP = 0x30000, 0x40000, 0x100000, 0x200000
PSTR = 10240 * 8
LM = 131072
C_Q, C_ML, C_PROG, C_STG, C_TAB, C_FB, C_DONE, C_P2, C_GO, C_U0 = 4, 8, 12, 16, 20, 24, 28, 32, 36, 40
L_ML = LM + 256
L_FAC = LM + 512
L_TP = LM + 768
L_Q = LM + 1024
L_CONST = LM + 3072
NB = 20
L_TABLE = LM + 13312
L_SCR = LM + 13312 + 512 * NB + 256
LDS_BYTES = 163840
OSTRIDE = 528
L_RED2 = 8192
L_ST1 = 8192 + 2048
L_ST2 = 8192 + 2048 + 64
L_OWN = 8192 + 2048 + 128
TAB_E0 = (130 - NB) << 7

SPIN_CAP = 0x40000

def gen(DA=5, DB=5, diag=False, wo_late=True, q_at=36, fin_at=30, ml_at=54, pub4=True, force_fb=False, prio=True, early=4, cut=(), gmap='hi', swz=True, WU=14, DH=0, cps=(3, 11, 25, 33, 43, 51), thr=44, b1b=True, wo_at=63, bump=(), pf='part', lev=(4, 5, 6, 8), thrs=((16, 40, 56),), wo_mode='prog', b3=True, satom=True, rd=4, touch='', tabfirst=False, t1_delay=1, lite=False, rep8=True, wos=(1, 2, 3, 3, 4, 4, 6, 8), wothr=4, t2wait=0):
    A = Asm()
    endstamp = diag or lite
    if lite: diag = False
    COLD = []
    def stamp(k):
        if diag:
            A(f's_memrealtime s[{80+2*k}:{81+2*k}]'); A('s_waitcnt lgkmcnt(0)')
    def xstamp(k):
        if diag:
            A('s_memrealtime s[100:101]'); A('s_waitcnt lgkmcnt(0)'); A(f'v_writelane_b32 v15, s100, {16 + k}')
    def v(a, n=1): return f'v{a}' if n == 1 else f'v[{a}:{a+n-1}]'
    def rnd(*regs):
        for a in regs: A(f'v_cvt_pk_bf16_f32 v{a}, 0, v{a}')
    def lds_spin(off, target, vt, sleep=1, vaddr=13):
        l0 = A.lab('spin'); l1 = A.lab('spun')
        A('s_mov_b32 s14, 0')
        A(f'{l0}:')
        A(f'ds_read_b32 v{vt}, v{vaddr} offset:{off}'); A('s_waitcnt lgkmcnt(0)')
        A(f'v_readfirstlane_b32 s15, v{vt}')
        A(f's_cmp_ge_u32 s15, {target}'); A(f's_cbranch_scc1 {l1}')
        if sleep: A(f's_sleep {sleep}')
        A('s_add_u32 s14, s14, 1'); A(f's_cmp_lt_u32 s14, {SPIN_CAP}'); A(f's_cbranch_scc1 {l0}')
        A(f'{l1}:')
    def lds_add(off, vt, vaddr=13):
        A('s_waitcnt lgkmcnt(0)')
        A('s_mov_b64 exec, 1'); A(f'v_mov_b32 v{vt}, 1'); A(f'ds_add_u32 v{vaddr}, v{vt} offset:{off}'); A('s_mov_b64 exec, -1')
    def done_event(vt):
        l1 = A.lab('nodone')
        A('s_waitcnt vmcnt(0) lgkmcnt(0)')
        A('s_mov_b64 exec, 1'); A(f'v_mov_b32 v{vt}, 1'); A(f'ds_add_rtn_u32 v{vt}, v13, v{vt} offset:{C_DONE}')
        A('s_waitcnt lgkmcnt(0)')
        A(f'v_readfirstlane_b32 s8, v{vt}')
        A('s_cmp_lg_u32 s8, 2'); A(f's_cbranch_scc1 {l1}')
        A('s_lshl_b32 s8, s2, 2'); A(f's_add_u32 s8, s8, {WS_CLR}'); A(f'v_mov_b32 v{vt}, s46')
        A(f'buffer_store_dword v{vt}, v0, s[56:59], s8 offen sc1')
        A(f'{l1}:')
        A('s_mov_b64 exec, -1')
    def tag_gather(loads, vt, sleep=2, tagregs=(1, 3), cid=None):
        l0 = A.lab('tg'); l1 = A.lab('tgok')
        A('s_mov_b32 s14, 0')
        A(f'{l0}:')
        for d, txt in loads: A(txt)
        A('s_waitcnt vmcnt(0)')
        regs = [d + r for d, txt in loads for r in tagregs]
        A(f'v_min_u32 v{vt}, v{regs[0]}, v{regs[1]}'); A(f'v_max_u32 v{vt+1}, v{regs[0]}, v{regs[1]}')
        for k in range(2, len(regs), 2):
            A(f'v_min3_u32 v{vt}, v{regs[k]}, v{regs[k+1]}, v{vt}'); A(f'v_max3_u32 v{vt+1}, v{regs[k]}, v{regs[k+1]}, v{vt+1}')
        A(f'v_cmp_ne_u32 vcc, s46, v{vt}'); A(f'v_cmp_ne_u32 s[70:71], s46, v{vt+1}'); A('s_or_b64 vcc, vcc, s[70:71]')
        A(f's_cbranch_vccz {l1}')
        if sleep: A(f's_sleep {sleep}')
        A('s_add_u32 s14, s14, 1'); A(f's_cmp_lt_u32 s14, {SPIN_CAP}'); A(f's_cbranch_scc1 {l0}')
        A(f'{l1}:')
        if diag and cid is not None: A(f'v_writelane_b32 v15, s14, {11 + cid}')
    def xg_reduce(op, a, t):
        A(f'v_mov_b32 v{t}, v{a}'); A(f'v_permlane32_swap_b32 v{a}, v{t}'); A(f'{op} v{a}, v{a}, v{t}')
        A(f'v_mov_b32 v{t}, v{a}'); A(f'v_permlane16_swap_b32 v{a}, v{t}'); A(f'{op} v{a}, v{a}, v{t}')
    def row_reduce(op, regs):
        for sh in (8, 4, 2, 1):
            for a in regs: A(f'{op}_dpp v{a}, v{a}, v{a} row_ror:{sh} row_mask:0xf bank_mask:0xf')
    def pv(Vb, P, first, ds=range(8), O=64, T=96):
        ds = list(ds)
        def perms(d):
            for m in range(4):
                A(f'v_perm_b32 v{T+4*d+m}, v{Vb+8*m+4+(d>>1)}, v{Vb+8*m+(d>>1)}, s{60+(d&1)}')
        perms(ds[0])
        for k, d in enumerate(ds):
            if k + 1 < len(ds): perms(ds[k+1])
            c = '0' if first else v(O+4*d, 4)
            A(f'v_mfma_f32_16x16x32_bf16 {v(O+4*d,4)}, {v(T+4*d,4)}, {v(P,4)}, {c}')
    def sweep(name, n, load, dreg, acc, vt, extra=0, accfn=None):
        def check(k):
            d = dreg(k)
            A(f'v_max3_u32 v{vt}, v{d}, v{d+1}, v{d+2}'); A(f'v_max_u32 v{vt}, v{vt}, v{d+3}'); A(f'v_cmp_eq_u32 vcc, -1, v{vt}')
        def mf(k):
            if accfn: accfn(k)
            else: A(f'v_mfma_f32_16x16x32_bf16 {v(acc,4)}, v[232:235], {v(dreg(k),4)}, {v(acc,4)}')
        A('s_mov_b32 s13, 0')
        for k in range(n):
            A(f's_waitcnt vmcnt({n-1-k+extra})')
            check(k)
            A(f's_cbranch_vccnz L_{name}_miss{k}')
            mf(k)
            A(f'L_{name}_back{k}:')
        if diag:
            xstamp(10 if name == 't1' else 12); A('s_mov_b32 s14, 0'); A('s_bcnt1_i32_b32 s8, s13'); A(f'v_writelane_b32 v15, s8, {27 if name == "t1" else 29}')
        A('s_cmp_lg_u32 s13, 0'); A(f's_cbranch_scc1 L_{name}_retry')
        A(f'L_{name}_done:')
        if diag: A(f'v_writelane_b32 v15, s14, {30 if name == "t1" else 31}')
        def cold():
            for k in range(n):
                A(f'L_{name}_miss{k}:'); A(f's_bitset1_b32 s13, {k}'); A(f's_branch L_{name}_back{k}')
            A(f'L_{name}_retry:')
            A('s_mov_b32 s14, 0')
            A(f'L_{name}_loop:')
            for k in range(n):
                A(f's_bitcmp0_b32 s13, {k}'); A(f's_cbranch_scc1 L_{name}_nl{k}')
                load(k)
                A(f'L_{name}_nl{k}:')
            A('s_waitcnt vmcnt(0)')
            for k in range(n):
                A(f's_bitcmp0_b32 s13, {k}'); A(f's_cbranch_scc1 L_{name}_nc{k}')
                check(k)
                A(f's_cbranch_vccnz L_{name}_nc{k}')
                mf(k); A(f's_bitset0_b32 s13, {k}')
                A(f'L_{name}_nc{k}:')
            A('s_cmp_eq_u32 s13, 0'); A(f's_cbranch_scc1 L_{name}_out')
            A('s_add_u32 s14, s14, 1'); A(f's_cmp_lt_u32 s14, {SPIN_CAP}'); A(f's_cbranch_scc1 L_{name}_loop')
            A(f'L_{name}_out:')
            A('s_nop 4')
            A(f's_branch L_{name}_done')
        COLD.append(cold)
    def rb_calc():
        if gmap == 'lo':
            A('s_lshl_b32 s6, s4, 1'); A('s_bfe_u32 s8, s2, 0x10002'); A('s_add_u32 s6, s6, s8')
        else:
            A('s_and_b32 s6, s2, 7')
        A('s_lshl_b32 s6, s6, 1'); A('s_lshr_b32 s8, s2, 7'); A('s_add_u32 s6, s6, s8')
    def prep(wreg):
        A('v_lshrrev_b32 v4, 4, v0'); A('v_and_b32 v5, 15, v0')
        A('v_lshlrev_b32 v244, 11, v4'); A('v_lshl_add_u32 v244, v5, 4, v244')
        A(f's_lshl_b32 s75, {wreg}, 8'); A(f's_add_u32 s75, s75, {WS_T2}')
        if rep8: A('s_and_b32 s8, s2, 7'); A('s_lshl_b32 s8, s8, 15'); A('s_add_u32 s75, s75, s8')
        A('v_lshrrev_b32 v6, 3, v5'); A('v_lshlrev_b32 v6, 6, v6'); A('v_and_b32 v8, 1, v4'); A('v_lshl_add_u32 v6, v8, 5, v6')
        A('v_and_b32 v8, 4, v5'); A('v_lshl_add_u32 v6, v8, 2, v6'); A('v_and_b32 v8, 3, v5'); A('v_lshl_add_u32 v6, v8, 1, v6')
        A('v_lshrrev_b32 v9, 1, v4'); A(f's_lshl_b32 s8, {wreg}, 7'); A('v_add3_u32 v6, v6, v9, s8')
        A('v_lshrrev_b32 v9, 2, v6'); A('v_cmp_eq_u32 s[76:77], s2, v9'); A('v_add_u32 v9, 2, v9'); A('v_cmp_eq_u32 s[78:79], s2, v9')
        A('v_and_b32 v9, 3, v6'); A('v_lshlrev_b32 v245, 3, v9'); A(f'v_add_u32 v245, {L_OWN}, v245')
        A('v_lshlrev_b32 v231, 3, v8')
        A('v_lshlrev_b32 v6, 1, v6'); A(f'v_add_u32 v6, {L_CONST}, v6')
        for a in range(4):
            for e in range(2): A(f'ds_read_u16 v{248+2*a+e}, v6 offset:{2048*a + 16*e}')
        A('s_lshl_b32 s8, s2, 3'); A('v_lshl_add_u32 v238, v8, 1, s8'); A(f'v_add_u32 v9, {L_CONST + 8192}, v238')
        A('ds_read_u16 v239, v9')
        A('v_and_b32 v7, 1, v5')
        A('v_lshrrev_b32 v246, 5, v0'); A('v_lshlrev_b32 v246, 2, v246'); A(f's_lshl_b32 s8, {wreg}, 3'); A('v_add_u32 v246, s8, v246')
        A('v_mov_b32 v247, 0')
        A('v_lshlrev_b32 v7, 4, v7'); A('v_lshlrev_b32 v7, v7, v243')
        A('v_and_b32 v8, 14, v5')
        for m in range(4):
            A(f'v_cmp_eq_u32 vcc, {4*m}, v8'); A(f'v_cndmask_b32 v{232+m}, 0, v7, vcc')
        for k in range(4): A(f'v_mov_b32 v{240+k}, 0')
        A('s_waitcnt lgkmcnt(0)')
        for k in range(8): A(f'v_lshlrev_b32 v{248+k}, 16, v{248+k}')
        A('v_lshlrev_b32 v239, 16, v239')
        A('v_add_f32 v254, 1.0, v254'); A('v_add_f32 v255, 1.0, v255'); rnd(254, 255)

    A(f'; @launch grid=(256,1,1) block=(512,1,1) lds={LDS_BYTES}')
    A('.amdgcn_target "amdgcn-amd-amdhsa--gfx950"')
    A('.text'); A(f'.globl {NAME}_kernel'); A('.p2align 8'); A(f'.type {NAME}_kernel,@function')
    A(f'{NAME}_kernel:')
    A('s_cmp_ge_u32 s2, 256'); A('s_cbranch_scc1 L_end')
    A('v_lshrrev_b32 v1, 6, v0'); A('v_and_b32 v0, 63, v0'); A('v_readfirstlane_b32 s3, v1')
    A('s_cmp_lg_u32 s3, 7'); A('s_cbranch_scc1 L_noinit')
    A('v_mov_b32 v14, 0'); A('v_lshlrev_b32 v15, 2, v0'); A(f'v_add_u32 v15, {LM}, v15'); A('ds_write_b32 v15, v14')
    A('s_waitcnt lgkmcnt(0)')
    A('L_noinit:')
    A('s_load_dwordx16 s[16:31], s[0:1], 0')
    A('s_load_dwordx8 s[32:39], s[0:1], 64')
    A('s_load_dwordx4 s[40:43], s[0:1], 96')
    A('s_load_dwordx2 s[44:45], s[0:1], 112')
    if endstamp: A('s_memrealtime s[80:81]')
    A('s_bfe_u32 s4, s2, 0x20001')
    A('s_lshr_b32 s5, s2, 3'); A('s_and_b32 s7, s5, 15')
    A('s_and_b32 s8, s2, 1'); A('s_lshl_b32 s8, s8, 5'); A('s_or_b32 s5, s5, s8')
    if gmap == 'hi': A('s_lshr_b32 s4, s2, 6'); A('s_and_b32 s5, s2, 63')
    if gmap == 'lo': A('s_and_b32 s4, s2, 3'); A('s_lshr_b32 s5, s2, 2')
    A('s_mov_b32 s51, 0x20000'); A('s_mov_b32 s55, 0x20000')
    A('s_cmp_lt_u32 s3, 4'); A('s_cbranch_scc1 L_attn')
    A('s_barrier')
    A('s_branch L_service')
    A('L_attn:')

    A('s_getpc_b64 s[70:71]')
    A('L_pcref:')
    if pf == 'all':
        A('s_lshl_b32 s8, s3, 13')
        A('v_lshl_add_u32 v1, v0, 7, s8'); A('v_min_u32 v1, L_end-L_pcref, v1')
        A('global_load_dword v12, v1, s[70:71]')
    else:
        A('s_bfe_u32 s8, s2, 0x20003'); A('s_lshl_b32 s8, s8, 2'); A('s_add_u32 s8, s8, s3'); A('s_lshl_b32 s8, s8, 11')
        A('v_lshl_add_u32 v1, v0, 7, s8'); A('v_min_u32 v1, L_end-L_pcref, v1')
        A('s_mov_b64 exec, 0xffff'); A('global_load_dword v12, v1, s[70:71]'); A('s_mov_b64 exec, -1')
    A('s_barrier')
    A('s_lshl_b32 s9, s5, 2'); A('s_add_u32 s9, s9, s3'); A('s_lshl_b32 s9, s9, 13')
    A('s_lshl_b32 s8, s4, 24'); A('s_add_u32 s9, s9, s8')
    A('s_lshl_b32 s12, s3, 15')
    A('v_lshrrev_b32 v13, 4, v0'); A('v_and_b32 v14, 15, v0')
    A('v_lshlrev_b32 v15, 2, v13'); A('v_xor_b32 v1, v14, v15'); A('v_lshlrev_b32 v1, 4, v1')
    A('v_lshl_add_u32 v1, v13, 8, v1')
    A('v_xor_b32 v2, 16, v1'); A('v_xor_b32 v3, 32, v1'); A('v_xor_b32 v4, 48, v1')
    A('v_lshlrev_b32 v5, 4, v0')
    if not swz:
        for r in range(1, 5): A(f'v_mov_b32 v{r}, v5')
    A('s_mov_b32 s50, 0x4000000'); A('s_mov_b32 s54, 0x4000000')
    A('s_mov_b32 s60, 0x05040100'); A('s_mov_b32 s61, 0x07060302')
    A(f's_mov_b32 s63, {f2u(128 ** -0.5):#x}'); A(f's_mov_b32 s64, {f2u(LOG2E):#x}')
    A('s_mov_b32 s58, 0x400000'); A('s_mov_b32 s59, 0x20000')
    A('v_and_b32 v6, 3, v14'); A('v_lshlrev_b32 v6, 2, v6'); A('v_lshrrev_b32 v15, 2, v14'); A('v_add_u32 v6, v6, v15')
    A('v_lshlrev_b32 v6, 8, v6'); A('v_xor_b32 v15, v13, v14'); A('v_lshl_add_u32 v6, v15, 4, v6'); A('v_add_u32 v6, s12, v6')
    A('v_xor_b32 v7, 64, v6'); A('v_xor_b32 v8, 0x80, v6'); A('v_xor_b32 v9, 0xc0, v6')
    A(f'v_mov_b32 v13, {LM}')
    A('s_waitcnt lgkmcnt(0)')
    A('s_mov_b32 s48, s18'); A('s_mov_b32 s49, s19'); A('s_mov_b32 s52, s20'); A('s_mov_b32 s53, s21')
    A('s_mov_b32 s56, s44'); A('s_mov_b32 s57, s45'); A('s_mov_b32 s66, s24'); A('s_mov_b32 s67, s25')
    def touches():
        A('s_bfe_u32 s8, s2, 0x50003'); A('s_lshl_b32 s10, s8, 21'); A('s_and_b32 s11, s10, 0x600000')
        A('s_cmp_ge_u32 s3, 2'); A('s_cbranch_scc1 L_touch23')
        A('s_cmp_eq_u32 s3, 1'); A('s_cbranch_scc1 L_touch1')
        A('s_mul_i32 s10, s8, 0x60000')
        A('s_load_dword s72, s[38:39], s10'); A('s_load_dword s73, s[36:37], 0'); A('s_load_dword s74, s[16:17], 0')
        A('s_branch L_touched')
        A('L_touch1:')
        A('s_load_dword s72, s[22:23], s11'); A(f's_load_dword s73, s[44:45], {WS_EPOCH}'); A('s_load_dword s74, s[24:25], s11')
        A('s_branch L_touched')
        A('L_touch23:')
        A('s_cmp_eq_u32 s3, 3'); A('s_cbranch_scc1 L_touch3')
        A('s_load_dword s72, s[28:29], 0'); A('s_load_dword s73, s[30:31], 0'); A('s_load_dword s74, s[32:33], 0'); A('s_load_dword s75, s[34:35], 0')
        A('s_branch L_touched')
        A('L_touch3:')
        A('s_load_dword s72, s[20:21], s10'); A('s_load_dword s73, s[40:41], 0')
        if 'k' in touch: A('s_load_dword s74, s[18:19], s10')
        A('L_touched:')
    if 'a' in touch: touches()
    issued = [0]
    TS = 64 * 4 * 8192
    LEV = list(lev) if lev else ([DB, DH] if DH else [DB])
    def throttle(D, boost):
        for a, b_, d in bump:
            if a <= issued[0] < b_: D = d; boost = False
        if issued[0] < D: return
        if boost:
            l = A.lab('go')
            for k in range(len(LEV) - 1, -1, -1):
                A(f's_waitcnt vmcnt({LEV[k]-1})')
                if k == len(LEV) - 1: A(f's_cbranch_vccnz {l}')
                elif k > 0: A(f's_cmp_eq_u32 s13, {k}'); A(f's_cbranch_scc1 {l}')
            A(f'{l}:')
        else: A(f's_waitcnt vmcnt({D-1})')
    def kload(t, n, D, boost=False):
        if n % 4 == 0:
            A(f's_add_u32 m0, s12, {(t % 4) * 8192 + (n // 4) * 4096}')
            A(f's_add_u32 s10, s9, {t * TS + (n // 4) * 4096}')
        throttle(D, boost)
        A(f'buffer_load_dwordx4 v{1 + n % 4}, s[48:51], s10 offen offset:{(n % 4) * 1024} nt lds')
        issued[0] += 1
    def vload(t, e, D, boost=False):
        if e % 4 == 0:
            A(f's_add_u32 s10, s9, {t * TS + (e // 4) * 4096}')
        throttle(D, boost)
        A(f'buffer_load_dwordx4 {v(128 + 32 * (t % 4) + 4 * e, 4)}, v5, s[52:55], s10 offen offset:{(e % 4) * 1024} nt')
        issued[0] += 1
    for t in range(4):
        for n in range(8):
            if issued[0] == early:
                if 'b' in touch: touches(); A(f's_add_u32 s10, s9, {t * TS + (n // 4) * 4096}')
                if 'svc' not in cut: lds_spin(C_GO, 1, 14)
            kload(t, n, DA)
            if issued[0] == q_at: lds_add(C_PROG, 14)
    for t in range(4):
        for e in range(8):
            vload(t, e, DA)
            if issued[0] == q_at: lds_add(C_PROG, 14)
    stamp(1)
    if not cut: lds_spin(C_Q, 3, 14)
    A('v_and_b32 v14, 7, v0'); A('v_lshlrev_b32 v14, 8, v14'); A('v_lshrrev_b32 v15, 4, v0'); A('v_lshl_add_u32 v14, v15, 4, v14')
    A(f'v_add_u32 v14, {L_Q}, v14')
    for s in range(4): A(f'ds_read_b128 {v(16+4*s,4)}, v14 offset:{64*s}')
    stamp(2)
    satom_pending = [False]
    def qk(t):
        assert not satom_pending[0], t
        off = (t % 4) * 8192
        for hb in range(2):
            for s in range(4): A(f'ds_read_b128 {v(96+16*hb+4*s,4)}, v{6+s} offset:{off + hb*4096}')
        for hb in range(2):
            S = 32 + 8 * (t % 4) + 4 * hb
            for s in range(4):
                A(f's_waitcnt lgkmcnt({7 - 4*hb - s})')
                c = '0' if s == 0 else v(S, 4)
                A(f'v_mfma_f32_16x16x32_bf16 {v(S,4)}, {v(96+16*hb+4*s,4)}, {v(16+4*s,4)}, {c}')
    def rscale(t):
        S = 32 + 8 * (t % 4)
        rnd(*range(S, S + 8))
        for k in range(8): A(f'v_mul_f32 v{S+k}, s63, v{S+k}')
        rnd(*range(S, S + 8))
        if t == 0: A(f'v_max_f32 v15, v{S}, v{S+1}')
        elif t == 4: A(f'v_max3_f32 v15, v{S}, v{S+1}, v10')
        else: A(f'v_max3_f32 v15, v{S}, v{S+1}, v15')
        for k in range(1, 4): A(f'v_max3_f32 v15, v{S+2*k}, v{S+2*k+1}, v15')
    def mfin(second):
        xg_reduce('v_max_f32', 15, 14)
        if second:
            A('v_sub_f32 v14, v10, v15'); A('v_mul_f32 v14, s64, v14'); A('v_exp_f32 v14, v14')
        A('v_mov_b32 v10, v15'); A('v_mul_f32 v12, s64, v15')
        if second:
            A('v_mul_f32 v11, v11, v14')
            for k in range(32): A(f'v_mul_f32 v{64+k}, v{64+k}, v14')
    def expo(t):
        S = 32 + 8 * (t % 4)
        for k in range(8): A(f'v_fma_f32 v{S+k}, v{S+k}, s64, -v12')
        for k in range(8): A(f'v_exp_f32 v{S+k}, v{S+k}')
        A(f'v_add_f32 v96, v{S}, v{S+1}'); A(f'v_add_f32 v97, v{S+2}, v{S+3}'); A(f'v_add_f32 v98, v{S+4}, v{S+5}'); A(f'v_add_f32 v99, v{S+6}, v{S+7}')
        for k in range(4): A(f'v_cvt_pk_bf16_f32 v{S+k}, v{S+2*k}, v{S+2*k+1}')
        A('v_add_f32 v96, v96, v97'); A('v_add_f32 v98, v98, v99')
        if t == 0: A('v_add_f32 v11, v96, v98')
        else: A('v_add_f32 v96, v96, v98'); A('v_add_f32 v11, v11, v96')
    def pvt(t, half):
        pv(128 + 32 * (t % 4), 32 + 8 * (t % 4), t == 0, range(4 * half, 4 * half + 4))
    def publish_ml():
        xg_reduce('v_add_f32', 11, 14)
        A('v_lshrrev_b32 v14, 1, v5'); A('s_lshl_b32 s8, s3, 6'); A(f's_add_u32 s8, s8, {L_ML}'); A('v_add_u32 v14, s8, v14')
        A('s_mov_b64 exec, 0xff'); A('ds_write_b64 v14, v[10:11]'); A('s_mov_b64 exec, -1')
        lds_add(C_ML, 14)
    sched = {i: [] for i in range(-1, 64)}
    def put(pos, fn, landed=None): sched[pos].append((fn, landed))
    put(-1, lambda: qk(0))
    put(0, lambda: qk(1)); put(1, lambda: qk(2)); put(2, lambda: qk(3))
    for t in range(4): put(3 + t, (lambda t=t: rscale(t)))
    put(7, lambda: mfin(False))
    for t in range(4): put(8 + t, (lambda t=t: expo(t)))
    for t in range(4):
        for h in range(2): put(12 + 2 * t + h, (lambda t=t, h=h: pvt(t, h)), -1)
    DM = max(LEV + [d for a, b_, d in bump if b_ > 64])
    CP = list(cps) if len(LEV) > 1 else []
    THR = [list(t) for t in thrs] if thrs else [[thr]] * len(CP)
    if len(THR) == 1: THR = THR * len(CP)
    def opi(L): return L + sum(1 for c in CP if c <= L) if (L >= 0 and not satom) else L
    def landed_after(posn, m_op): return posn >= 0 and opi(posn) - DM >= m_op
    def first_pos(m, lo):
        for L in range(lo, 64):
            if landed_after(L, opi(m)): return L
        return 63
    pos = {4: first_pos(7, 20), 5: first_pos(15, 22), 6: first_pos(23, 24), 7: first_pos(31, 26)}
    for t in range(4, 8):
        put(pos[t], (lambda t=t: qk(t)), 8 * (t - 4) + 7)
        put(pos[t] + (1 if t < 7 else 0), (lambda t=t: rscale(t)))
    b = pos[7] + 1
    put(b, lambda: (mfin(True), expo(4)))
    put(b + 1, lambda: (expo(5), expo(6), expo(7), publish_ml()))
    p4 = min(first_pos(39, b + 2), 62)
    put(p4, lambda: pvt(4, 0), 39); put(min(p4 + 1, 63), lambda: pvt(4, 1))
    p5 = min(first_pos(47, min(p4 + 2, 63)), 63)
    put(p5, lambda: pvt(5, 0), 47); put(min(p5 + 1, 63), lambda: pvt(5, 1))
    def endsetup():
        A('v_lshrrev_b32 v28, 5, v0'); A('s_lshl_b32 s8, s3, 1'); A('v_add_u32 v28, s8, v28')
        A(f'v_mul_u32_u24 v20, {OSTRIDE}, v28')
        A('v_lshlrev_b32 v28, 4, v28'); A(f'v_add_u32 v28, {L_FAC}, v28')
        A('v_and_b32 v21, 31, v0'); A('v_lshl_add_u32 v20, v21, 4, v20')
        A('v_add_u32 v21, 0x10000, v20')
        A('v_and_b32 v22, 15, v0'); A(f'v_mul_u32_u24 v22, {OSTRIDE}, v22'); A('v_lshrrev_b32 v23, 4, v0'); A('v_lshl_add_u32 v22, v23, 4, v22')
        A('v_add_u32 v22, s12, v22')
        A('v_lshlrev_b32 v1, 15, v23'); A('v_bfe_u32 v2, v0, 3, 1'); A('v_lshl_add_u32 v1, v2, 12, v1')
        A('v_and_b32 v4, 7, v0'); A('v_lshl_add_u32 v1, v4, 4, v1')
        A('v_lshrrev_b32 v2, 3, v0'); A('v_lshlrev_b32 v2, 9, v2'); A('v_lshl_add_u32 v2, v4, 4, v2')
        A('v_lshrrev_b32 v3, 5, v0'); A('v_lshlrev_b32 v3, 8, v3'); A('v_and_b32 v4, 16, v0'); A('s_lshl_b32 s8, s3, 9'); A(f's_add_u32 s8, s8, {L_RED2}')
        A('v_add3_u32 v3, v3, v4, s8')
        A('v_lshlrev_b32 v23, 3, v0')
        rb_calc()
        A('s_mov_b32 s48, s66'); A('s_mov_b32 s49, s67'); A('s_mov_b32 s50, 0x800000')
        A('s_lshl_b32 s73, s6, 8'); A('s_lshr_b32 s8, s3, 1'); A('s_lshl_b32 s8, s8, 7'); A('s_add_u32 s73, s73, s8')
        A('s_and_b32 s8, s3, 1'); A('s_lshl_b32 s8, s8, 2'); A('s_add_u32 s73, s73, s8'); A('s_lshl_b32 s73, s73, 11')
        A('s_lshl_b32 s8, s7, 7'); A('s_add_u32 s73, s73, s8')
        A('s_lshl_b32 s74, s6, 15'); A('s_lshl_b32 s8, s3, 7'); A('s_add_u32 s74, s74, s8'); A(f's_add_u32 s74, s74, {WS_T1}')
    put(60, endsetup)
    def t1slot():
        A('s_lshl_b32 s8, s4, 2'); A('s_add_u32 s8, s8, s3'); A('s_lshl_b32 s8, s8, 15'); A('s_lshl_b32 s11, s5, 9'); A('s_add_u32 s11, s11, s8')
        A(f's_add_u32 s11, s11, {WS_T1}')
    put(63, t1slot)
    assert satom and (not CP or max(CP) < 63)
    def run(posn):
        for fn, landed in sched[posn]:
            if landed is not None and not landed_after(posn, opi(landed)):
                A(f's_waitcnt vmcnt({opi(posn) - opi(landed)})')
            fn()
    if CP:
        A('s_mov_b64 vcc, 0'); A(f's_mov_b32 s13, {LEV.index(DB)}')
        A('s_bfe_u32 s11, s2, 0x20003'); A('s_lshl_b32 s11, s11, 2'); A('s_add_u32 s11, s11, s3'); A('s_lshl_b32 s11, s11, 7')
        A(f's_add_u32 s11, s11, {WS_RANK}')
    run(-1)
    pend = []
    for L in range(64):
        if diag and L % 8 == 0:
            A('s_memrealtime s[100:101]'); A('s_waitcnt lgkmcnt(0)'); A(f's_mov_b32 s{24 + L // 8}, s100')
        if L in CP:
            if satom:
                A('s_mov_b32 s47, 1')
                A(f's_atomic_add s47, s[44:45], s11 offset:{2048 * CP.index(L)} glc')
                pend.append((L + rd, CP.index(L))); satom_pending[0] = True
            else:
                A('s_mov_b64 exec, 1'); A('v_mov_b32 v0, 1')
                A(f'buffer_atomic_add v0, off, s[56:59], s11 offset:{2048 * (CP.index(L) & 1)} sc0')
                A('s_mov_b64 exec, -1')
                if CP.index(L) & 1: A('s_add_u32 s11, s11, 4096')
                pend.append((opi(L) - 1, CP.index(L)))
        if L < 32: kload(4 + L // 8, L % 8, DB, bool(CP))
        else: vload(4 + (L - 32) // 8, L % 8, DB, bool(CP))
        if pend and (L == pend[0][0] if satom else landed_after(L, pend[0][0])):
            th = THR[pend.pop(0)[1]]
            assert len(th) == len(LEV) - 1
            if satom: A('s_waitcnt lgkmcnt(0)'); A('s_mov_b32 s8, s47'); satom_pending[0] = False
            else: A('v_readfirstlane_b32 s8, v0'); A('v_writelane_b32 v0, 0, 0')
            if diag: A(f's_mov_b32 s{32 + len(CP) - len([c for c in CP if c > L]) - 1}, s8')
            A('s_mov_b32 s13, 0')
            for k, t_ in enumerate(th[:-1]):
                A(f's_cmp_ge_u32 s8, {t_}'); A(f's_cselect_b32 s13, {k+1}, s13')
            A(f's_cmp_ge_u32 s8, {th[-1]}'); A('s_cselect_b64 vcc, -1, 0')
        if L in (fin_at, ml_at): lds_add(C_PROG, 14)
        run(L)
    assert not pend
    stamp(3)
    NWO = [0]
    def woload():
        n = NWO[0]; m, hh = n >> 1, n & 1
        row = 64 * (m & 1) + 8 * hh + (m >> 1)
        A(f's_add_u32 s10, s73, {row * 2048}')
        A(f'buffer_load_dwordx4 {v(128 + 4*n, 4)}, v1, s[48:51], s10 offen nt')
        NWO[0] += 1; issued[0] += 1
    def wo_upto(k):
        while NWO[0] < k:
            if NWO[0] < wothr: throttle(DB, bool(CP))
            woload()
    wo_upto(wos[0])
    A(f's_waitcnt vmcnt({8 + NWO[0]})')
    pvt(6, 0); wo_upto(wos[1]); pvt(6, 1); wo_upto(wos[2])
    Vb = 128 + 96; P = 32 + 24
    for m in range(3):
        A(f's_waitcnt vmcnt({6 - 2*m + NWO[0]})')
        for d in range(8): A(f'v_perm_b32 v{96+4*d+m}, v{Vb+8*m+4+(d>>1)}, v{Vb+8*m+(d>>1)}, s{60+(d&1)}')
        wo_upto(wos[3 + m])
    A(f's_waitcnt vmcnt({NWO[0]})')
    stamp(4)
    if cut: A('s_branch L_fin')
    for d in range(8): A(f'v_perm_b32 v{96+4*d+3}, v{Vb+28+(d>>1)}, v{Vb+24+(d>>1)}, s{60+(d&1)}')
    for d in range(8): A(f'v_mfma_f32_16x16x32_bf16 {v(64+4*d,4)}, {v(96+4*d,4)}, {v(P,4)}, {v(64+4*d,4)}')
    wo_upto(wos[6])
    A('s_mov_b32 exec_lo, 0x00ff00ff'); A('s_mov_b32 exec_hi, 0x00ff00ff')
    for d in range(8): A(f'ds_write_b128 v22, {v(64+4*d,4)} offset:{64*d}')
    A('s_mov_b64 exec, -1')
    wo_upto(wos[7])
    assert NWO[0] == 8
    A('s_waitcnt lgkmcnt(0)')
    A('s_barrier')
    A('ds_read_b128 v[16:19], v28')
    A('ds_read_b128 v[32:35], v20'); A('ds_read_b128 v[36:39], v20 offset:32768')
    A('ds_read_b128 v[40:43], v21'); A('ds_read_b128 v[44:47], v21 offset:32768')
    for w in range(4):
        A(f's_waitcnt lgkmcnt({3-w})')
        for k in range(4):
            if w == 0: A(f'v_mul_f32 v{32+k}, v{32+k}, v16')
            else: A(f'v_fmac_f32 v{32+k}, v{32+4*w+k}, v{16+w}')
    A('v_cvt_pk_bf16_f32 v24, v32, v33'); A('v_cvt_pk_bf16_f32 v25, v34, v35')
    A('v_min_u32 v24, -2, v24'); A('v_min_u32 v25, -2, v25')
    if pub4:
        A('v_mov_b32_dpp v26, v24 quad_perm:[1,1,3,3] row_mask:0xf bank_mask:0xf')
        A('v_mov_b32_dpp v27, v25 quad_perm:[1,1,3,3] row_mask:0xf bank_mask:0xf')
        A('s_mov_b32 exec_lo, 0x55555555'); A('s_mov_b32 exec_hi, 0x55555555')
        A('buffer_store_dwordx4 v[24:27], v23, s[56:59], s11 offen sc1')
        A('s_mov_b64 exec, -1')
    else:
        A('buffer_store_dwordx2 v[24:25], v23, s[56:59], s11 offen sc1')
    stamp(5)
    if diag:
        for k in range(8): A(f'v_writelane_b32 v15, s{24+k}, {16+k}')
        for k in range(5): A(f'v_writelane_b32 v15, s{32+k}, {11+k}')
    def t1_load(n):
        A(f's_add_u32 s8, s74, {4096 * n}')
        A(f'buffer_load_dwordx4 {v(160+4*n,4)}, v2, s[56:59], s8 offen sc1')
    def wo_perms():
        for e in range(8):
            for m in range(4):
                A(f'v_perm_b32 v{192 + 4*e + m}, v{128 + 8*m + 4 + (e >> 1)}, v{128 + 8*m + (e >> 1)}, s{60 + (e & 1)}')
    if t1_delay == 0:
        for n in range(8): t1_load(n)
    A('v_mov_b32 v243, 0x3f80')
    prep('s3')
    for k in range(4): A(f'v_mov_b32 v{60+k}, 0')
    if t1_delay == 1:
        for n in range(8): t1_load(n)
    xstamp(8)
    if t1_delay == 2:
        A('s_waitcnt vmcnt(1)'); wo_perms()
        for n in range(8): t1_load(n)
    else:
        A('s_waitcnt vmcnt(9)'); wo_perms()
    xstamp(9)
    sweep('t1', 8, t1_load, lambda k: 160 + 4*k, 60, 6)
    stamp(6)
    for e in range(2): A(f'v_add_f32_dpp v{60+e}, v{60+e}, v{60+e} row_ror:8 row_mask:0xf bank_mask:0xf')
    A('v_cvt_pk_bf16_f32 v60, v60, v61')
    for c in range(4): A(f'v_mov_b32_dpp v{224+c}, v60 quad_perm:[{c},{c},{c},{c}] row_mask:0xf bank_mask:0xf')
    for e in range(8):
        A(f'v_mfma_f32_16x16x32_bf16 {v(64+4*e,4)}, {v(192+4*e,4)}, v[224:227], 0')
    A('s_mov_b32 exec_lo, 0x00010001'); A('s_mov_b32 exec_hi, 0x00100010')
    for e in range(8): A(f'ds_write_b128 v3, {v(64+4*e,4)} offset:{32*e}')
    A('s_mov_b64 exec, -1')
    A('s_waitcnt lgkmcnt(0)')
    A('s_branch L_tail')

    A('L_service:')
    if 'svc' in cut: A('s_endpgm')
    A('s_sub_u32 s3, s3, 4')
    rb_calc()
    A('s_mov_b32 s60, 0x05040100'); A('s_mov_b32 s61, 0x07060302'); A('s_mov_b32 s62, 0xffff0000')
    A(f's_mov_b32 s64, {f2u(LOG2E):#x}')
    A('s_mov_b32 s58, 0x400000'); A('s_mov_b32 s59, 0x20000')
    A(f'v_mov_b32 v13, {LM}')
    A('s_waitcnt lgkmcnt(0)')
    A('s_mov_b32 s56, s44'); A('s_mov_b32 s57, s45')
    xstamp(0)
    A(f's_load_dword s46, s[44:45], {WS_EPOCH}')
    A('s_mov_b32 s65, s3')
    A('s_cmp_eq_u32 s3, 0'); A('s_cbranch_scc0 L_notsw0')
    if prio: A('s_setprio 3')
    A('s_cmp_lt_u32 s2, 128'); A('s_cbranch_scc1 L_unit_p1')
    A('s_mov_b32 s65, 2')
    A('s_branch L_unit_rest')
    A('L_notsw0:')
    A('s_cmp_ge_u32 s3, 2'); A('s_cbranch_scc1 L_tabwaves')
    A('L_unit_q:')
    if prio: A('s_setprio 2')
    A('s_movk_i32 s66, 0x2000'); A('s_and_b32 s67, s2, 63'); A('s_lshr_b32 s69, s2, 6'); A('s_add_u32 s68, s67, 96')
    A('s_mov_b32 s48, s22'); A('s_mov_b32 s49, s23'); A('s_mov_b32 s70, s16'); A('s_mov_b32 s71, s17')
    A('s_branch L_unit')
    A('L_unit_rest:')
    A('s_and_b32 s67, s2, 63'); A('s_add_u32 s67, s67, 32'); A('s_lshr_b32 s69, s2, 6')
    A('s_branch L_unit_mod')
    A('L_unit_p1:')
    if DH or lev:
        A('s_lshl_b32 s8, s2, 7'); A(f's_add_u32 s8, s8, {WS_RANK}')
        A('s_mov_b64 exec, 1'); A('buffer_store_dword v0, off, s[56:59], s8 sc1'); A('s_mov_b64 exec, -1')
    A('s_and_b32 s67, s2, 31'); A('s_lshr_b32 s69, s2, 5')
    A('L_unit_mod:')
    A('s_movk_i32 s66, 0x3000'); A('s_mov_b32 s68, s67')
    A('s_mov_b32 s48, s38'); A('s_mov_b32 s49, s39'); A('s_mov_b32 s70, s36'); A('s_mov_b32 s71, s37')
    A('L_unit:')
    A('s_lshl_b32 s50, s66, 10'); A('s_lshl_b32 s67, s67, 7')
    A('v_lshrrev_b32 v1, 3, v0'); A('v_lshlrev_b32 v1, 3, v1'); A('v_mul_lo_u32 v1, v1, s66')
    A('v_and_b32 v2, 7, v0'); A('v_lshl_add_u32 v1, v2, 4, v1')
    A('s_lshl_b32 s8, s69, 8'); A('s_mul_i32 s10, s8, s66'); A('s_add_u32 s10, s10, s67')
    A('s_mul_i32 s11, s66, 57')
    A('s_lshl_b32 s8, s69, 9'); A('v_lshl_add_u32 v2, v0, 2, s8')
    A('v_lshlrev_b32 v3, 5, v0')
    A('s_cmp_lg_u32 s65, 1'); A('s_cbranch_scc1 L_nob0a')
    lds_spin(C_U0, 1, 10)
    A('L_nob0a:')
    A('global_load_dword v4, v2, s[70:71]'); A('global_load_dword v5, v2, s[70:71] offset:256')
    A('global_load_dwordx4 v[16:19], v3, s[16:17]'); A('global_load_dwordx4 v[20:23], v3, s[16:17] offset:16')
    for G in range(4):
        for r in range(8):
            if WU and 8*G + r >= WU: A(f's_waitcnt vmcnt({WU-1})')
            A(f'buffer_load_dwordx4 {v(128+32*G+4*r,4)}, v1, s[48:51], s10 offen nt')
            if not (G == 3 and r == 7): A(f's_add_u32 s10, s10, {"s11" if r == 7 else "s66"}')
    A('s_lshl_b32 s68, s68, 9'); A(f's_mul_i32 s8, s69, {PSTR}'); A('s_add_u32 s68, s68, s8'); A(f's_add_u32 s68, s68, {WS_PART}')
    A('s_cmp_eq_u32 s65, 3'); A('s_cbranch_scc1 L_nob0')
    A('s_cmp_eq_u32 s65, 1'); A('s_cbranch_scc1 L_go')
    lds_add(C_U0, 10)
    A('s_branch L_went')
    A('L_go:')
    lds_add(C_GO, 10)
    A('L_went:')
    A('s_waitcnt lgkmcnt(0)'); A('s_add_u32 s46, s46, 1')
    A('L_nob0:')
    xstamp(3)
    A('s_waitcnt vmcnt(32)')
    xstamp(4)
    A('v_lshlrev_b32 v6, 16, v4'); A('v_and_b32 v7, s62, v4'); A('v_lshlrev_b32 v8, 16, v5'); A('v_and_b32 v9, s62, v5')
    A('s_cmp_eq_u32 s65, 1'); A('s_cbranch_scc1 L_jobq')
    for k in range(4): A(f'v_mul_f32 v{24+k}, s64, v{6+k}')
    for k in range(4): A(f'v_exp_f32 v{24+k}, -v{24+k}')
    for k in range(4): A(f'v_add_f32 v{24+k}, 1.0, v{24+k}')
    for k in range(4): A(f'v_rcp_f32 v{24+k}, v{24+k}')
    for k in range(4): A(f'v_mul_f32 v{6+k}, v{6+k}, v{24+k}')
    A('s_branch L_jobcommon')
    A('L_jobq:')
    for k in range(8):
        A(f'v_lshlrev_b32 v{96+2*k}, 16, v{16+k}'); A(f'v_and_b32 v{97+2*k}, s62, v{16+k}')
    A('v_add_f32 v24, v96, v97')
    for k in range(2, 16): A(f'v_add_f32 v24, v24, v{96+k}')
    row_reduce('v_add_f32', [24]); xg_reduce('v_add_f32', 24, 25)
    A(f'v_mul_f32 v24, {f2u(1/1024):#x}, v24')
    for k in range(16): A(f'v_sub_f32 v{96+k}, v{96+k}, v24')
    A('v_mul_f32 v26, v96, v96')
    for k in range(1, 16): A(f'v_fmac_f32 v26, v{96+k}, v{96+k}')
    row_reduce('v_add_f32', [26]); xg_reduce('v_add_f32', 26, 25)
    A(f'v_mul_f32 v26, {f2u(1/1024):#x}, v26')
    rnd(24, 26)
    A(f'v_add_f32 v26, {f2u(1e-5):#x}, v26'); rnd(26); A('v_sqrt_f32 v26, v26'); rnd(26); A('v_rcp_f32 v26, v26')
    for k in range(4): A(f'v_sub_f32 v{6+k}, v{6+k}, v24')
    rnd(6, 7, 8, 9)
    for k in range(4): A(f'v_mul_f32 v{6+k}, v{6+k}, v26')
    rnd(6, 7, 8, 9)
    A('v_lshlrev_b32 v3, 2, v2')
    loads = []
    for a in range(2):
        for rho in range(4):
            A(f's_mov_b32 s{72 + 4*a + rho}, {WS_PART + rho * PSTR + a * 8192}')
            for k in range(2):
                d = 16 + 32*a + 16*k + 4*rho
                loads.append((d, f'buffer_load_dwordx4 {v(d,4)}, v3, s[56:59], s{72 + 4*a + rho} offen offset:{1024*k} sc1'))
    if 'p2g' not in cut: tag_gather(loads, 10, cid=0)
    lds_add(C_P2, 10)
    def sum4(b, dst):
        for j in range(2):
            A(f'v_add_f32 v{b+2*j}, v{b+2*j}, v{b+4+2*j}'); A(f'v_add_f32 v{b+8+2*j}, v{b+8+2*j}, v{b+12+2*j}')
        for j in range(2): A(f'v_add_f32 v{dst+j}, v{b+2*j}, v{b+8+2*j}')
    sum4(16, 96); sum4(32, 98); sum4(48, 100); sum4(64, 102)
    rnd(*range(96, 104))
    for k in range(4): A(f'v_add_f32 v{100+k}, 1.0, v{100+k}')
    rnd(100, 101, 102, 103)
    for k in range(4): A(f'v_mul_f32 v{6+k}, v{6+k}, v{100+k}')
    rnd(6, 7, 8, 9)
    for k in range(4): A(f'v_add_f32 v{6+k}, v{6+k}, v{96+k}')
    A('L_jobcommon:')
    A('v_cvt_pk_bf16_f32 v4, v6, v7'); A('v_cvt_pk_bf16_f32 v5, v8, v9')
    A('s_lshl_b32 s8, s3, 10'); A(f's_add_u32 s8, s8, {L_SCR}')
    A('v_lshl_add_u32 v2, v0, 2, s8')
    A('ds_write2_b32 v2, v4, v5 offset0:0 offset1:64')
    A('v_lshrrev_b32 v3, 4, v0'); A('v_lshlrev_b32 v3, 1, v3'); A('v_and_b32 v6, 1, v0'); A('v_add_u32 v3, v3, v6'); A('v_lshl_add_u32 v3, v3, 4, s8')
    A('s_waitcnt lgkmcnt(0)')
    for G in range(4): A(f'ds_read_b128 {v(32+8*G,4)}, v3 offset:{128*G}')
    A('s_waitcnt lgkmcnt(0)')
    for G in range(4):
        A(f's_waitcnt vmcnt({24 - 8*G})')
        if G in (0, 3): xstamp(5 if G == 0 else 6)
        pv(128 + 32 * G, 32 + 8 * G, G == 0)
    A('v_lshrrev_b32 v3, 5, v0'); A('v_lshlrev_b32 v3, 8, v3'); A('v_and_b32 v6, 16, v0'); A('v_add3_u32 v3, v3, v6, s8')
    A('v_and_b32 v6, 3, v0'); A('v_lshlrev_b32 v6, 6, v6'); A('v_bfe_u32 v7, v0, 2, 3'); A('v_lshl_add_u32 v6, v7, 2, v6'); A('v_add_u32 v6, s8, v6')
    A('s_mov_b32 exec_lo, 0x00010001'); A('s_mov_b32 exec_hi, 0x00020002')
    for e in range(8): A(f'ds_write_b128 v3, {v(64+4*e,4)} offset:{512 + 32*e}')
    A('s_mov_b32 exec_lo, -1'); A('s_mov_b32 exec_hi, 0')
    A('s_waitcnt lgkmcnt(0)')
    A('ds_read2_b32 v[16:17], v6 offset0:128 offset1:136'); A('ds_read2_b32 v[20:21], v6 offset0:192 offset1:200')
    A('v_lshlrev_b32 v3, 4, v0'); A('v_mov_b32 v19, s46')
    A('s_waitcnt lgkmcnt(0)')
    A('v_add_f32 v18, v17, v21'); A('v_add_f32 v16, v16, v20'); A('v_mov_b32 v17, s46')
    A('buffer_store_dwordx4 v[16:19], v3, s[56:59], s68 offen sc1')
    A('s_mov_b64 exec, -1')
    if 'second' in cut: A('s_branch L_unit_done')
    A('s_cmp_lg_u32 s65, 0'); A('s_cbranch_scc1 L_unit_done')
    xstamp(7)
    lds_spin(C_P2, 1, 6, sleep=4)
    A('s_mov_b32 s65, 3'); A('s_branch L_unit_rest')
    A('L_unit_done:')
    stamp(1)
    A('L_qgather:')
    if 'qg' in cut: A('s_endpgm')
    lds_spin(C_PROG, 4, 6, sleep=4)
    A('s_lshl_b32 s8, s4, 13'); A('s_lshl_b32 s10, s3, 12'); A('s_add_u32 s8, s8, s10')
    A('v_lshl_add_u32 v3, v0, 4, s8')
    loads = []
    for rho in range(4):
        A(f's_mov_b32 s{72 + rho}, {WS_PART + rho * PSTR + 6144 * 8}')
        for k in range(4):
            d = 16 + 16*k + 4*rho
            loads.append((d, f'buffer_load_dwordx4 {v(d,4)}, v3, s[56:59], s{72 + rho} offen offset:{1024*k} sc1'))
    tag_gather(loads, 10, sleep=6, cid=1)
    for k in range(4): sum4(16 + 16*k, 96 + 2*k)
    for k in range(4): A(f'v_cvt_pk_bf16_f32 v{96+k}, v{96+2*k}, v{97+2*k}')
    A('s_lshl_b32 s8, s3, 10'); A(f's_add_u32 s8, s8, {L_Q}'); A('v_lshl_add_u32 v2, v0, 2, s8')
    A('ds_write2_b32 v2, v96, v97 offset0:0 offset1:64'); A('ds_write2_b32 v2, v98, v99 offset0:128 offset1:192')
    lds_add(C_Q, 6)
    stamp(2)
    if 'late' in cut: A('s_endpgm')
    A('s_cmp_eq_u32 s3, 1'); A('s_cbranch_scc1 L_final_gathers')
    A('v_bfe_u32 v1, v0, 3, 2'); A(f's_mov_b32 s8, {PSTR}'); A('v_mul_lo_u32 v1, v1, s8'); A('v_and_b32 v2, 7, v0'); A('v_lshl_add_u32 v1, v2, 4, v1')
    A('s_lshl_b32 s8, s2, 7'); A(f's_add_u32 s8, s8, {WS_PART + 2048 * 8}')
    tag_gather([(16, 'buffer_load_dwordx4 v[16:19], v1, s[56:59], s8 offen sc1')], 10, sleep=10, cid=2)
    for r in (16, 18): A(f'v_add_f32_dpp v{r}, v{r}, v{r} row_ror:8 row_mask:0xf bank_mask:0xf')
    for r in (16, 18): A(f'v_mov_b32 v{r+4}, v{r}')
    for r in (16, 18): A(f'v_permlane16_swap_b32 v{r}, v{r+4}')
    for r in (16, 18): A(f'v_add_f32 v{r}, v{r}, v{r+4}')
    A('v_cvt_pk_bf16_f32 v16, v16, v18')
    A('v_lshlrev_b32 v2, 2, v2'); A('s_lshl_b32 s8, s2, 5'); A(f's_add_u32 s8, s8, {WS_MOD}')
    A('s_mov_b64 exec, 0xff'); A('buffer_store_dword v16, v2, s[56:59], s8 offen sc1'); A('s_mov_b64 exec, -1')
    done_event(6)
    lds_spin(C_ML, 4, 6, sleep=2)
    A('v_and_b32 v1, 7, v0'); A('v_lshlrev_b32 v1, 3, v1'); A(f'v_add_u32 v2, {L_ML}, v1')
    for w in range(4): A(f'ds_read_b64 {v(16+2*w,2)}, v2 offset:{64*w}')
    A('s_waitcnt lgkmcnt(0)')
    A('v_max_f32 v24, v16, v18'); A('v_max3_f32 v24, v20, v22, v24')
    for w in range(4): A(f'v_sub_f32 v{28+w}, v{16+2*w}, v24')
    for w in range(4): A(f'v_mul_f32 v{28+w}, s64, v{28+w}')
    for w in range(4): A(f'v_exp_f32 v{28+w}, v{28+w}')
    A('v_mul_f32 v26, v28, v17')
    for w in range(1, 4): A(f'v_fmac_f32 v26, v{28+w}, v{17+2*w}')
    A('v_mov_b32 v25, s46'); A('v_mov_b32 v27, s46')
    A('v_lshlrev_b32 v1, 10, v0')
    A('s_lshl_b32 s8, s4, 13'); A('s_lshl_b32 s10, s5, 4'); A('s_add_u32 s8, s8, s10'); A(f's_add_u32 s8, s8, {WS_ML}')
    A('s_mov_b64 exec, 0xff'); A('buffer_store_dwordx4 v[24:27], v1, s[56:59], s8 offen sc1')
    A('s_mov_b64 exec, -1')
    stamp(3)
    A('s_branch L_staged')
    A('L_final_gathers:')
    lds_spin(C_PROG, 8, 6, sleep=8)
    A('v_lshlrev_b32 v1, 4, v0')
    A(f's_mov_b32 s8, {WS_CLR}')
    tag_gather([(16, 'buffer_load_dwordx4 v[16:19], v1, s[56:59], s8 offen sc1')], 10, sleep=16, tagregs=(0, 1, 2, 3), cid=2)
    for base, dst in ((WS_MOD, L_CONST + 2048), (WS_TAB, L_TABLE)):
        for n in range(8 if base == WS_MOD else NB // 2):
            if n % 4 == 0:
                A(f's_mov_b32 m0, {dst + 1024*n}'); A(f's_mov_b32 s8, {base + 1024*n}')
            A(f'buffer_load_dwordx4 v1, s[56:59], s8 offen offset:{(n % 4) * 1024} sc1 lds')
    A('s_waitcnt vmcnt(0)')
    lds_add(C_STG, 6)
    stamp(3)
    A('s_branch L_staged')

    A('L_tabwaves:')
    if 'tab' in cut: A('s_endpgm')
    if not tabfirst: lds_spin(C_U0, 1, 10)
    A('s_cmp_eq_u32 s3, 3'); A('s_cbranch_scc1 L_sw3')
    A('v_mov_b32 v16, -1'); A('v_mov_b32 v17, -1'); A('v_mov_b32 v18, -1'); A('v_mov_b32 v19, -1')
    A('v_lshrrev_b32 v1, 5, v0'); A('v_lshlrev_b32 v1, 15, v1'); A('v_and_b32 v2, 31, v0'); A('v_lshl_add_u32 v1, v2, 4, v1')
    A('s_lshl_b32 s8, s4, 17'); A('s_lshl_b32 s10, s5, 9'); A('s_add_u32 s8, s8, s10'); A(f's_add_u32 s8, s8, {WS_T1}'); A('s_add_u32 s10, s8, 0x10000')
    A('buffer_store_dwordx4 v[16:19], v1, s[56:59], s8 offen sc1')
    A('buffer_store_dwordx4 v[16:19], v1, s[56:59], s10 offen sc1')
    A('s_lshl_b32 s8, s6, 11'); A('s_lshl_b32 s10, s7, 7'); A('s_add_u32 s8, s8, s10'); A(f's_add_u32 s8, s8, {WS_T2}')
    A('v_lshrrev_b32 v1, 3, v0'); A('v_lshlrev_b32 v1, 15, v1'); A('v_and_b32 v2, 7, v0'); A('v_lshl_add_u32 v1, v2, 4, v1')
    A('buffer_store_dwordx4 v[16:19], v1, s[56:59], s8 offen sc1')
    A('s_branch L_tabinit')
    A('L_sw3:')
    A('v_lshlrev_b32 v2, 4, v0'); A(f's_mov_b32 m0, {L_CONST}')
    A('global_load_lds_dwordx4 v2, s[16:17]'); A('global_load_lds_dwordx4 v2, s[16:17] offset:1024')
    A('L_tabinit:')
    A('s_and_b32 s8, s2, 127'); A(f's_mul_i32 s8, s8, {NB}'); A(f's_add_u32 s8, s8, {TAB_E0}')
    A('s_lshr_b32 s10, s2, 7'); A('s_lshl_b32 s10, s10, 15'); A('s_add_u32 s8, s8, s10')
    A('v_add_u32 v2, s8, v0'); A('v_lshlrev_b32 v2, 16, v2')
    A(f'v_cmp_gt_u32 vcc, {NB}, v0'); A('v_cndmask_b32 v12, 0, v2, vcc')
    A('s_mov_b32 s65, 0'); A(f's_mov_b32 s69, {NB + 1}'); A('v_mov_b32 v238, 0')
    A('L_mlp:')
    A('s_sub_u32 s8, s3, 2'); A('s_mul_i32 s8, s8, 3584'); A('v_lshl_add_u32 v1, v0, 3, s8')
    for a, ptr in enumerate(('s[28:29]', 's[30:31]', 's[32:33]')):
        for k in range(7): A(f'global_load_dwordx2 {v(192 + 14*a + 2*k, 2)}, v1, {ptr} offset:{512*k}')
    A('s_load_dword s47, s[34:35], 0')
    c0 = -2.0 * math.sqrt(2.0 / math.pi) * LOG2E; c1 = c0 * 0.044715
    A(f's_mov_b32 s66, {f2u(c1):#x}'); A(f's_mov_b32 s67, {f2u(3*c1):#x}'); A(f'v_mov_b32 v11, {f2u(c0):#x}')
    A('s_cmp_eq_u32 s65, 1'); A('s_cbranch_scc1 L_mlp_nob0')
    A('s_waitcnt vmcnt(0) lgkmcnt(0)'); A('s_add_u32 s46, s46, 1')
    A('s_cmp_eq_u32 s3, 3'); A('s_cbranch_scc1 L_sw3b')
    lds_add(C_Q, 6)
    done_event(6)
    A('s_branch L_mlp_nob0')
    A('L_sw3b:')
    lds_add(C_STG, 6)
    A('L_mlp_nob0:')
    A('s_waitcnt vmcnt(0) lgkmcnt(0)')
    xstamp(2)
    CO = 24
    A('s_mov_b32 s72, s66'); A('s_mov_b32 s73, s66'); A('s_mov_b32 s74, s67'); A('s_mov_b32 s75, s67'); A('v_mov_b32 v10, v11')
    for r in range(14):
        for a in range(3):
            A(f'v_lshlrev_b32 v{2+2*a}, 16, v{192 + 14*a + r}'); A(f'v_and_b32 v{3+2*a}, s62, v{192 + 14*a + r}')
        c = CO + 12 * r
        A('v_pk_mul_f32 v[8:9], v[2:3], v[2:3]'); A('v_pk_mul_f32 v[16:17], v[4:5], v[4:5]')
        A('v_pk_mul_f32 v[18:19], v[8:9], s[72:73]'); A('v_pk_mul_f32 v[8:9], v[8:9], s[74:75]')
        A('v_pk_fma_f32 v[20:21], v[16:17], s[74:75], v[10:11]'); A('v_pk_fma_f32 v[16:17], v[16:17], s[72:73], v[10:11]')
        A(f'v_pk_mul_f32 {v(c,2)}, v[18:19], v[2:3]'); A(f'v_pk_mul_f32 {v(c+2,2)}, v[8:9], v[4:5]')
        A(f'v_pk_mul_f32 {v(c+4,2)}, v[20:21], v[2:3]'); A(f'v_pk_mul_f32 {v(c+6,2)}, v[16:17], v[4:5]')
        A(f'v_pk_mul_f32 {v(c+8,2)}, v[2:3], v[6:7]'); A(f'v_pk_mul_f32 {v(c+10,2)}, v[4:5], v[6:7]')
    xstamp(3)
    A('s_mov_b32 s68, 0'); A('s_mov_b32 s72, 1.0'); A('s_mov_b32 s73, 1.0')
    A('.p2align 3')
    A('L_mlp_loop:')
    A('v_readlane_b32 s10, v12, s68'); A('v_readlane_b32 s11, v12, s68')
    for q in range(7):
        cs = [CO + 12 * (2*q + d) for d in range(2)]
        for d in range(2): A(f'v_pk_fma_f32 {v(2+2*d,2)}, {v(cs[d],2)}, s[10:11], {v(cs[d]+2,2)}')
        for d in range(2): A(f'v_pk_fma_f32 {v(2+2*d,2)}, {v(2+2*d,2)}, s[10:11], {v(cs[d]+4,2)}')
        for d in range(2): A(f'v_pk_fma_f32 {v(2+2*d,2)}, {v(2+2*d,2)}, s[10:11], {v(cs[d]+6,2)}')
        for d in range(4): A(f'v_exp_f32 v{2+d}, v{2+d}')
        for d in range(2): A(f'v_pk_fma_f32 {v(6+2*d,2)}, {v(cs[d]+8,2)}, s[10:11], {v(cs[d]+10,2)}')
        for d in range(2): A(f'v_pk_add_f32 {v(2+2*d,2)}, {v(2+2*d,2)}, s[72:73]')
        for d in range(4): A(f'v_rcp_f32 v{2+d}, v{2+d}')
        for d in range(2):
            A(f'v_pk_mul_f32 {v(16+2*d,2)}, {v(6+2*d,2)}, {v(2+2*d,2)}' if q == 0 else f'v_pk_fma_f32 {v(16+2*d,2)}, {v(6+2*d,2)}, {v(2+2*d,2)}, {v(16+2*d,2)}')
    A('v_add_f32 v16, v16, v17'); A('v_add_f32 v18, v18, v19'); A('v_add_f32 v16, v16, v18')
    row_reduce('v_add_f32', [16]); xg_reduce('v_add_f32', 16, 17)
    A('v_readfirstlane_b32 s10, v16')
    A('s_mov_b32 m0, s68')
    A('v_writelane_b32 v22, s10, m0')
    A('s_add_u32 s68, s68, 1'); A('s_cmp_lt_u32 s68, s69'); A('s_cbranch_scc1 L_mlp_loop')
    xstamp(4)
    A('s_lshl_b32 s8, s3, 7'); A(f's_add_u32 s8, s8, {L_TP - 256}'); A('v_and_b32 v1, 31, v0'); A('v_lshl_add_u32 v2, v1, 2, s8')
    A('s_mov_b32 exec_lo, -1'); A('s_mov_b32 exec_hi, 0'); A('ds_write_b32 v2, v22')
    A('s_waitcnt lgkmcnt(0)')
    A('s_lshl_b32 s8, s65, 2'); A('v_add_u32 v3, s8, v13')
    A('s_mov_b64 exec, 1'); A('v_mov_b32 v6, 1'); A(f'ds_add_rtn_u32 v6, v3, v6 offset:{C_TAB}'); A('s_mov_b64 exec, -1')
    A('s_waitcnt lgkmcnt(0)')
    A('v_readfirstlane_b32 s8, v6')
    A('s_cmp_eq_u32 s8, 1'); A('s_cbranch_scc1 L_mlp_last')
    A('s_cmp_eq_u32 s65, 0'); A('s_cbranch_scc1 L_staged')
    A('s_branch L_fin')
    A('L_mlp_last:')
    A(f'v_lshlrev_b32 v2, 2, v1'); A(f'v_add_u32 v2, {L_TP}, v2')
    A('ds_read2_b32 v[16:17], v2 offset0:0 offset1:32')
    A('s_lshl_b32 s47, s47, 16')
    A('s_waitcnt lgkmcnt(0)')
    A('v_add_f32 v16, v16, v17'); rnd(16); A('v_add_f32 v16, s47, v16'); rnd(16)
    A('s_cmp_eq_u32 s65, 1'); A('s_cbranch_scc1 L_output')
    A('v_mov_b32_dpp v17, v16 quad_perm:[1,1,3,3] row_mask:0xf bank_mask:0xf')
    A('v_cvt_pk_bf16_f32 v18, v16, v17')
    A('v_lshlrev_b32 v2, 1, v0'); A(f's_mul_i32 s8, s2, {2*NB}'); A(f's_add_u32 s8, s8, {WS_TAB}')
    A(f's_mov_b64 exec, {0x55555555 & ((1 << NB) - 1):#x}'); A('buffer_store_dword v18, v2, s[56:59], s8 offen sc1')
    A(f's_mov_b64 exec, {1 << NB:#x}'); A(f'ds_write_b16 v13, v18 offset:{L_TABLE + 512 * NB - LM}')
    A('s_mov_b64 exec, -1')
    done_event(6)
    stamp(3)

    A('L_staged:')
    if prio: A('s_setprio 0')
    if cut and 'keepml' not in cut: A('s_endpgm')
    lds_spin(C_STG, 2, 6, sleep=4)
    A('s_add_u32 s9, s3, 4')
    A('v_mov_b32 v243, 0x3f80')
    prep('s9')
    A('s_lshl_b32 s72, s6, 11'); A('s_lshl_b32 s10, s7, 7'); A('s_add_u32 s72, s72, s10'); A(f's_add_u32 s72, s72, {WS_T2}')
    lds_spin(C_PROG, 12, 6, sleep=2)
    A('s_lshl_b32 s8, s4, 13'); A('s_lshl_b32 s10, s3, 11'); A('s_add_u32 s8, s8, s10'); A(f's_add_u32 s8, s8, {WS_ML}')
    A('v_lshlrev_b32 v1, 4, v0')
    tag_gather([(16, 'buffer_load_dwordx4 v[16:19], v1, s[56:59], s8 offen sc1'), (20, 'buffer_load_dwordx4 v[20:23], v1, s[56:59], s8 offen offset:1024 sc1')], 10, sleep=6, cid=4)
    stamp(4)
    A('v_and_b32 v3, 3, v0'); A('v_bfe_u32 v2, v0, 2, 1'); A('v_lshlrev_b32 v7, 6, v3'); A('v_lshl_add_u32 v7, v2, 3, v7')
    A('s_lshl_b32 s8, s3, 4'); A(f's_add_u32 s8, s8, {L_ML}'); A('v_add_u32 v7, s8, v7')
    A('ds_read_b32 v8, v7')
    A('v_mov_b32 v17, v16'); A('v_mov_b32 v21, v20')
    row_reduce('v_max_f32', [17, 21]); xg_reduce('v_max_f32', 17, 19); xg_reduce('v_max_f32', 21, 19)
    for r in (16, 20):
        A(f'v_sub_f32 v{r}, v{r}, v{r+1}'); A(f'v_mul_f32 v{r}, s64, v{r}'); A(f'v_exp_f32 v{r}, v{r}')
    A('v_mul_f32 v18, v16, v18'); A('v_mul_f32 v22, v20, v22')
    row_reduce('v_add_f32', [18, 22]); xg_reduce('v_add_f32', 18, 19); xg_reduce('v_add_f32', 22, 19)
    A('v_cmp_eq_u32 vcc, 1, v2'); A('v_cndmask_b32 v17, v17, v21, vcc'); A('v_cndmask_b32 v18, v18, v22, vcc')
    A('v_rcp_f32 v18, v18')
    A('s_waitcnt lgkmcnt(0)')
    A('v_sub_f32 v8, v8, v17'); A('v_mul_f32 v8, s64, v8'); A('v_exp_f32 v8, v8'); A('v_mul_f32 v8, v8, v18')
    A('s_lshl_b32 s8, s3, 5'); A(f's_add_u32 s8, s8, {L_FAC}'); A('v_lshl_add_u32 v7, v0, 2, s8')
    A('s_mov_b64 exec, 0xff'); A('ds_write_b32 v7, v8'); A('s_mov_b64 exec, -1')
    if rep8:
        A('v_and_b32 v8, 12, v0'); A('v_lshlrev_b32 v8, 2, v8'); A('v_lshrrev_b32 v2, 5, v0'); A('v_lshl_add_u32 v8, v2, 6, v8')
        A('v_and_b32 v2, 3, v0'); A('v_lshl_add_u32 v8, v2, 15, v8'); A('v_and_b32 v2, 16, v0'); A('v_lshl_add_u32 v8, v2, 13, v8')
    else:
        A('v_and_b32 v8, 15, v0'); A('v_lshlrev_b32 v8, 2, v8'); A('v_lshrrev_b32 v2, 5, v0'); A('v_lshl_add_u32 v8, v2, 6, v8')
    A('s_add_u32 s3, s3, 4')
    A('s_waitcnt lgkmcnt(0)')
    stamp(5)
    if cut: A('s_endpgm')
    A('s_barrier')

    A('L_tail:')
    A('s_barrier')
    A('s_cmp_lg_u32 s3, 4'); A('s_cbranch_scc1 L_t2wait')
    for w in range(2): A(f'ds_read_b128 {v(16+4*w,4)}, v1 offset:{L_RED2 + 1024*w}')
    A('s_waitcnt lgkmcnt(0)')
    A('v_pk_add_f32 v[16:17], v[16:17], v[20:21]'); A('v_pk_add_f32 v[18:19], v[18:19], v[22:23]')
    for e in range(2): A(f'v_permlane32_swap_b32 v{16+e}, v{18+e}')
    A('v_pk_add_f32 v[16:17], v[16:17], v[18:19]')
    A('v_mov_b32 v18, v16'); A('v_mov_b32 v19, v17')
    for e in range(2): A(f'v_permlane16_swap_b32 v{16+e}, v{18+e}')
    A('v_pk_add_f32 v[16:17], v[16:17], v[18:19]')
    A('v_cvt_pk_bf16_f32 v16, v16, v17')
    A('v_min_u32 v16, -2, v16')
    if rep8:
        for c in range(4): A(f'v_mov_b32_dpp v{32+c}, v16 quad_perm:[{c},{c},{c},{c}] row_mask:0xf bank_mask:0xf')
        A('buffer_store_dwordx4 v[32:35], v8, s[56:59], s72 offen sc1')
    else:
        A('s_mov_b32 exec_lo, 0xffff'); A('s_mov_b32 exec_hi, 0xffff')
        A('buffer_store_dword v16, v8, s[56:59], s72 offen sc1')
        A('s_mov_b64 exec, -1')
    A('L_t2wait:')
    if b3:
        if t2wait == 0: A('s_waitcnt vmcnt(0)')
        A('s_barrier')
        if t2wait > 1: A(f's_sleep {t2wait - 1}')
    stamp(7)
    def t2_load(n):
        A(f's_add_u32 s8, s75, {8192 * n}')
        A(f'buffer_load_dwordx4 {v(16+4*n,4)}, v244, s[56:59], s8 offen sc1')
    for n in range(4): t2_load(n)
    A(f's_mov_b32 s66, {f2u(1/1024):#x}'); A(f's_mov_b32 s67, {f2u(1/1024):#x}')
    sweep('t2', 4, t2_load, lambda k: 16 + 4*k, 240, 6)
    stamp(8)
    rnd(240, 241)
    A('v_pk_mul_f32 v[240:241], v[250:251], v[240:241]'); rnd(240, 241)
    A('v_pk_add_f32 v[240:241], v[248:249], v[240:241]'); rnd(240, 241)
    def stats(a, b, lds_off):
        A(f'v_add_f32 v46, v{a}, v{b}'); A(f'v_mul_f32 v47, v{a}, v{a}'); A(f'v_fmac_f32 v47, v{b}, v{b}')
        A('v_permlane32_swap_b32 v46, v47'); A('v_add_f32 v46, v46, v47')
        A('v_mov_b32 v47, v46'); A('v_permlane16_swap_b32 v46, v47'); A('v_add_f32 v46, v46, v47')
        row_reduce('v_add_f32', [46])
        A('s_mov_b32 exec_lo, 1'); A('s_mov_b32 exec_hi, 1')
        A(f'ds_write_b32 v246, v46 offset:{lds_off}')
        A('s_mov_b64 exec, -1')
        A('s_waitcnt lgkmcnt(0)')
        A('s_barrier')
    def stats_read(lds_off):
        for k in range(4): A(f'ds_read_b128 {v(48+4*k,4)}, v247 offset:{lds_off + 16*k}')
    def stats_calc(pending):
        for k in range(4):
            A(f's_waitcnt lgkmcnt({3 - k + pending})'); A(f'v_pk_add_f32 {v(48+4*k,2)}, {v(48+4*k,2)}, {v(50+4*k,2)}')
        A('v_pk_add_f32 v[48:49], v[48:49], v[52:53]'); A('v_pk_add_f32 v[56:57], v[56:57], v[60:61]')
        A('v_pk_add_f32 v[46:47], v[48:49], v[56:57]')
        A('v_pk_mul_f32 v[46:47], v[46:47], s[66:67]')
        A('v_fma_f32 v47, -v46, v46, v47'); A('v_max_f32 v47, 0, v47'); rnd(47)
        A(f'v_add_f32 v47, {f2u(1e-5):#x}, v47'); rnd(47); A('v_sqrt_f32 v47, v47'); rnd(46); rnd(47); A('v_rcp_f32 v47, v47')
    stats(240, 241, L_ST1)
    stats_read(L_ST1); stats_calc(0)
    A('v_sub_f32 v42, v240, v46'); A('v_sub_f32 v43, v241, v46'); rnd(42, 43)
    A('v_mul_f32 v42, v42, v47'); A('v_mul_f32 v43, v43, v47'); rnd(42, 43)
    A('v_pk_mul_f32 v[42:43], v[42:43], v[254:255]'); rnd(42, 43)
    A('v_pk_add_f32 v[42:43], v[42:43], v[252:253]'); rnd(42, 43)
    A('s_mov_b64 exec, s[76:77]'); A('ds_write2_b32 v245, v42, v240 offset0:0 offset1:1')
    A('s_mov_b64 exec, s[78:79]'); A('ds_write2_b32 v245, v43, v241 offset0:0 offset1:1')
    A('s_mov_b64 exec, -1')
    stats(42, 43, L_ST2)
    A('s_cmp_lt_u32 s3, 6'); A('s_cbranch_scc1 L_early')
    stats_read(L_ST2)
    A(f'ds_read_b64 v[236:237], v231 offset:{L_OWN}')
    stats_calc(1)
    A('s_waitcnt lgkmcnt(0)')
    A('v_sub_f32 v12, v236, v46'); rnd(12); A('v_mul_f32 v12, v12, v47'); rnd(12)
    stamp(9)
    A('v_bfe_u32 v3, v12, 16, 15'); A('v_lshrrev_b32 v4, 31, v12'); A(f'v_subrev_u32 v5, {TAB_E0}, v3')
    A('v_cmp_eq_u32 s[70:71], 0, v3'); A(f'v_cmp_lt_u32 vcc, {128 * NB - 1}, v5')
    A(f'v_mul_u32_u24 v4, {128 * NB}, v4'); A('v_add_u32 v5, v4, v5'); A(f'v_mov_b32 v4, {256 * NB}'); A('v_cndmask_b32 v5, v5, v4, s[70:71]')
    A('v_lshl_add_u32 v5, v5, 1, v13')
    A(f'ds_read_u16 v16, v5 offset:{L_TABLE - LM}')
    A('s_andn2_b64 vcc, vcc, s[70:71]')
    A('s_branch L_fallback' if force_fb else 's_cbranch_vccnz L_fallback')
    A('s_cmp_lg_u32 s3, 6'); A('s_cbranch_scc1 L_fin')
    A('s_waitcnt lgkmcnt(0)')
    A('v_lshlrev_b32 v16, 16, v16')
    A('L_output:')
    A('v_mul_f32 v16, v239, v16'); rnd(16)
    A('v_add_f32 v16, v237, v16'); A('v_cvt_pk_bf16_f32 v16, v16, v16')
    A('s_mov_b64 exec, 15')
    A('global_store_short v238, v16, s[40:41]')
    A('s_mov_b64 exec, -1')
    A('s_branch L_fin')
    A('L_fallback:')
    A('s_waitcnt lgkmcnt(0)')
    A('s_sub_u32 s3, s3, 4'); A('s_mov_b32 s65, 1'); A('s_mov_b32 s69, 4')
    A('s_branch L_mlp')
    for c in COLD: c()
    A('L_early:')
    A('s_cmp_lg_u32 s3, 4'); A('s_cbranch_scc1 L_fin')
    A('s_cmp_lg_u32 s2, 0'); A('s_cbranch_scc1 L_fin')
    A('s_mov_b64 exec, 1'); A('v_mov_b32 v16, s46'); A(f's_mov_b32 s8, {WS_EPOCH}')
    A('buffer_store_dword v16, v247, s[56:59], s8 offen')
    A('s_mov_b64 exec, -1')
    A('L_fin:')
    if endstamp:
        A('s_waitcnt vmcnt(0)')
        A('s_memrealtime s[100:101]'); A('s_waitcnt lgkmcnt(0)')
        A('v_mov_b32 v61, v15')
        for k in range(11): A(f'v_writelane_b32 v61, s{80+2*k}, {k}')
        A('s_lshl_b32 s8, s2, 3'); A('s_add_u32 s8, s8, s3'); A('s_lshl_b32 s8, s8, 7'); A(f's_add_u32 s8, s8, {WS_STAMP}')
        A('v_lshlrev_b32 v1, 2, v0'); A('s_mov_b32 exec_lo, -1'); A('s_mov_b32 exec_hi, 0')
        A('buffer_store_dword v61, v1, s[56:59], s8 offen')
    A('L_end:')
    A('s_endpgm')
    A('.section .rodata,"a"'); A('.p2align 6'); A(f'.amdhsa_kernel {NAME}_kernel')
    A('.amdhsa_next_free_vgpr 256'); A('.amdhsa_next_free_sgpr 102'); A('.amdhsa_accum_offset 256')
    A('.amdhsa_group_segment_fixed_size 0'); A('.amdhsa_kernarg_size 120'); A('.amdhsa_user_sgpr_count 2')
    A('.amdhsa_user_sgpr_kernarg_segment_ptr 1'); A('.amdhsa_system_sgpr_workgroup_id_x 1')
    A('.amdhsa_float_denorm_mode_32 3')
    A('.end_amdhsa_kernel')
    txt, nn = A.finish()
    return txt

if __name__ == '__main__':
    kw = eval('dict(%s)' % (sys.argv[2] if len(sys.argv) > 2 else ''))
    open(sys.argv[1], 'w').write(gen(**kw))
```

```python
import sys, struct, math
from asmlib import Asm
NAME = 'adaLN_cond__gqa_block_cached__mixer_token_mlp__decode'

def f2u(x): return struct.unpack('<I', struct.pack('<f', x))[0]
LOG2E = 1.4426950408889634

WS_Q = 0x20000
WS_TS = 0x2A000
WS_MOD, WS_TAB, WS_ML, WS_T2, WS_CLR, WS_EPOCH = 0x0, 0x8000, 0x10000, 0xC0000, 0x28000, 0x29000
WS_RANK, WS_PART, WS_T1, WS_STAMP = 0x280000, 0x40000, 0x100000, 0x200000
PSTR = 10240 * 8
LM = 131072
C_Q, C_ML, C_PROG, C_STG, C_TAB, C_FB, C_DONE, C_P2, C_GO, C_U0, C_LEV = 4, 8, 12, 16, 20, 24, 28, 32, 36, 40, 44
L_ML = LM + 256
L_FAC = LM + 512
L_TP = LM + 768
L_Q = LM + 1024
L_CONST = LM + 3072
NB = 20
L_TABLE = LM + 13312
L_SCR = LM + 13312 + 512 * NB + 256
LDS_BYTES = 163840
OSTRIDE = 528
L_RED2 = 8192
L_ST1 = 8192 + 2048
L_ST2 = 8192 + 2048 + 64
L_OWN = 8192 + 2048 + 128
TAB_E0 = (130 - NB) << 7

SPIN_CAP = 0x40000

def gen(DA=5, DB=5, diag=False, wo_late=True, q_at=46, fin_at=38, ml_at=54, pub4=True, force_fb=False, prio=True, early=3, cut=(), gmap='hi', swz=True, WU=20, DH=0, cps=(3, 23, 42), thr=44, b1b=True, wo_at=63, bump=(), pf='part', lev=(4, 5, 6, 8), thrs=((16, 40, 56),), wo_mode='prog', b3=True, satom=True, rd=4, touch='', tabfirst=False, t1_delay=3, lite=False, rep8=True, wos=(1, 2, 3, 3, 4, 4, 6, 8), wothr=4, t2wait=0, rstr=1152, DS=5, trajA=False, hu=16, hg=14, p2w=0, t2x=0, psl=(0, 0), l2_at=30, clrfirst=False, sec_late=True, r2_at=0, p2_at=12, lin=0, lagb=(-2.5, 1.5, 4.0), lastt=60, percu=False, nshb=2, rr=(2, 5), wsh=2, smooth=1, wo_after=0, tb=0, tgain=0.42, tbias=0, tlo=0, tslow=0, half=True, gswap=True, allrep=True, t1x=0, fcp=0, fa=48, fsh=0):
    A = Asm()
    endstamp = diag or lite
    if lite: diag = False
    COLD = []
    def stamp(k):
        if diag:
            A(f's_memrealtime s[{80+2*k}:{81+2*k}]'); A('s_waitcnt lgkmcnt(0)')
    def xstamp(k):
        if diag:
            A('s_memrealtime s[100:101]'); A('s_waitcnt lgkmcnt(0)'); A(f'v_writelane_b32 v15, s100, {16 + k}')
    def v(a, n=1): return f'v{a}' if n == 1 else f'v[{a}:{a+n-1}]'
    def rnd(*regs):
        for a in regs: A(f'v_cvt_pk_bf16_f32 v{a}, 0, v{a}')
    def lds_spin(off, target, vt, sleep=1, vaddr=13):
        l0 = A.lab('spin'); l1 = A.lab('spun')
        A('s_mov_b32 s14, 0')
        A(f'{l0}:')
        A(f'ds_read_b32 v{vt}, v{vaddr} offset:{off}'); A('s_waitcnt lgkmcnt(0)')
        A(f'v_readfirstlane_b32 s15, v{vt}')
        A(f's_cmp_ge_u32 s15, {target}'); A(f's_cbranch_scc1 {l1}')
        if sleep: A(f's_sleep {sleep}')
        A('s_add_u32 s14, s14, 1'); A(f's_cmp_lt_u32 s14, {SPIN_CAP}'); A(f's_cbranch_scc1 {l0}')
        A(f'{l1}:')
    def lds_add(off, vt, vaddr=13):
        A('s_waitcnt lgkmcnt(0)')
        A('s_mov_b64 exec, 1'); A(f'v_mov_b32 v{vt}, 1'); A(f'ds_add_u32 v{vaddr}, v{vt} offset:{off}'); A('s_mov_b64 exec, -1')
    def done_event(vt):
        l1 = A.lab('nodone')
        A('s_waitcnt vmcnt(0) lgkmcnt(0)')
        A('s_mov_b64 exec, 1'); A(f'v_mov_b32 v{vt}, 1'); A(f'ds_add_rtn_u32 v{vt}, v13, v{vt} offset:{C_DONE}')
        A('s_waitcnt lgkmcnt(0)')
        A(f'v_readfirstlane_b32 s8, v{vt}')
        A('s_cmp_lg_u32 s8, 2'); A(f's_cbranch_scc1 {l1}')
        A('s_lshl_b32 s8, s2, 2'); A(f's_add_u32 s8, s8, {WS_CLR}'); A(f'v_mov_b32 v{vt}, s46')
        A(f'buffer_store_dword v{vt}, v0, s[56:59], s8 offen sc1')
        A(f'{l1}:')
        A('s_mov_b64 exec, -1')
    def tag_gather(loads, vt, sleep=2, tagregs=(1, 3), cid=None):
        l0 = A.lab('tg'); l1 = A.lab('tgok')
        A('s_mov_b32 s14, 0')
        A(f'{l0}:')
        for d, txt in loads: A(txt)
        A('s_waitcnt vmcnt(0)')
        regs = [d + r for d, txt in loads for r in tagregs]
        A(f'v_min_u32 v{vt}, v{regs[0]}, v{regs[1]}'); A(f'v_max_u32 v{vt+1}, v{regs[0]}, v{regs[1]}')
        for k in range(2, len(regs), 2):
            A(f'v_min3_u32 v{vt}, v{regs[k]}, v{regs[k+1]}, v{vt}'); A(f'v_max3_u32 v{vt+1}, v{regs[k]}, v{regs[k+1]}, v{vt+1}')
        A(f'v_cmp_ne_u32 vcc, s46, v{vt}'); A(f'v_cmp_ne_u32 s[70:71], s46, v{vt+1}'); A('s_or_b64 vcc, vcc, s[70:71]')
        A(f's_cbranch_vccz {l1}')
        if sleep: A(f's_sleep {sleep}')
        A('s_add_u32 s14, s14, 1'); A(f's_cmp_lt_u32 s14, {SPIN_CAP}'); A(f's_cbranch_scc1 {l0}')
        A(f'{l1}:')
        if diag and cid is not None: A(f'v_writelane_b32 v15, s14, {11 + cid}')
    def xg_reduce(op, a, t):
        A(f'v_mov_b32 v{t}, v{a}'); A(f'v_permlane32_swap_b32 v{a}, v{t}'); A(f'{op} v{a}, v{a}, v{t}')
        A(f'v_mov_b32 v{t}, v{a}'); A(f'v_permlane16_swap_b32 v{a}, v{t}'); A(f'{op} v{a}, v{a}, v{t}')
    def row_reduce(op, regs):
        for sh in (8, 4, 2, 1):
            for a in regs: A(f'{op}_dpp v{a}, v{a}, v{a} row_ror:{sh} row_mask:0xf bank_mask:0xf')
    def pv(Vb, P, first, ds=range(8), O=64, T=96):
        ds = list(ds)
        def perms(d):
            for m in range(4):
                A(f'v_perm_b32 v{T+4*d+m}, v{Vb+8*m+4+(d>>1)}, v{Vb+8*m+(d>>1)}, s{60+(d&1)}')
        perms(ds[0])
        for k, d in enumerate(ds):
            if k + 1 < len(ds): perms(ds[k+1])
            c = '0' if first else v(O+4*d, 4)
            A(f'v_mfma_f32_16x16x32_bf16 {v(O+4*d,4)}, {v(T+4*d,4)}, {v(P,4)}, {c}')
    def sweep(name, n, load, dreg, acc, vt, extra=0, accfn=None, mid=None):
        def check(k):
            d = dreg(k)
            A(f'v_max3_u32 v{vt}, v{d}, v{d+1}, v{d+2}'); A(f'v_max_u32 v{vt}, v{vt}, v{d+3}'); A(f'v_cmp_eq_u32 vcc, -1, v{vt}')
        def mf(k):
            if accfn: accfn(k)
            else: A(f'v_mfma_f32_16x16x32_bf16 {v(acc,4)}, v[232:235], {v(dreg(k),4)}, {v(acc,4)}')
        A('s_mov_b32 s13, 0')
        for k in range(n):
            A(f's_waitcnt vmcnt({n-1-k+extra})')
            check(k)
            A(f's_cbranch_vccnz L_{name}_miss{k}')
            mf(k)
            A(f'L_{name}_back{k}:')
        if mid: mid()
        if diag:
            xstamp(10 if name == 't1' else 12); A('s_mov_b32 s14, 0'); A('s_bcnt1_i32_b32 s8, s13'); A(f'v_writelane_b32 v15, s8, {27 if name == "t1" else 29}')
        A('s_cmp_lg_u32 s13, 0'); A(f's_cbranch_scc1 L_{name}_retry')
        A(f'L_{name}_done:')
        if diag: A(f'v_writelane_b32 v15, s14, {30 if name == "t1" else 31}')
        def cold():
            for k in range(n):
                A(f'L_{name}_miss{k}:'); A(f's_bitset1_b32 s13, {k}'); A(f's_branch L_{name}_back{k}')
            A(f'L_{name}_retry:')
            A('s_mov_b32 s14, 0')
            A(f'L_{name}_loop:')
            if psl[name == 't2']: A(f's_sleep {psl[name == "t2"]}')
            for k in range(n):
                A(f's_bitcmp0_b32 s13, {k}'); A(f's_cbranch_scc1 L_{name}_nl{k}')
                load(k)
                A(f'L_{name}_nl{k}:')
            A('s_waitcnt vmcnt(0)')
            for k in range(n):
                A(f's_bitcmp0_b32 s13, {k}'); A(f's_cbranch_scc1 L_{name}_nc{k}')
                check(k)
                A(f's_cbranch_vccnz L_{name}_nc{k}')
                mf(k); A(f's_bitset0_b32 s13, {k}')
                A(f'L_{name}_nc{k}:')
            A('s_cmp_eq_u32 s13, 0'); A(f's_cbranch_scc1 L_{name}_out')
            A('s_add_u32 s14, s14, 1'); A(f's_cmp_lt_u32 s14, {SPIN_CAP}'); A(f's_cbranch_scc1 L_{name}_loop')
            A(f'L_{name}_out:')
            A('s_nop 4')
            A(f's_branch L_{name}_done')
        COLD.append(cold)
    def rb_calc():
        if gmap == 'lo':
            A('s_lshl_b32 s6, s4, 1'); A('s_bfe_u32 s8, s2, 0x10002'); A('s_add_u32 s6, s6, s8')
        else:
            A('s_and_b32 s6, s2, 7')
        A('s_lshl_b32 s6, s6, 1'); A('s_lshr_b32 s8, s2, 7'); A('s_add_u32 s6, s6, s8')
    def prep(wreg):
        A('v_lshrrev_b32 v4, 4, v0'); A('v_and_b32 v5, 15, v0')
        A('v_lshlrev_b32 v244, 11, v4'); A('v_lshl_add_u32 v244, v5, 4, v244')
        A(f's_lshl_b32 s75, {wreg}, 8'); A(f's_add_u32 s75, s75, {WS_T2}')
        if rep8: A('s_and_b32 s8, s2, 7'); A('s_lshl_b32 s8, s8, 15'); A('s_add_u32 s75, s75, s8')
        A('v_lshrrev_b32 v6, 3, v5'); A('v_lshlrev_b32 v6, 6, v6'); A('v_and_b32 v8, 1, v4'); A('v_lshl_add_u32 v6, v8, 5, v6')
        A('v_and_b32 v8, 4, v5'); A('v_lshl_add_u32 v6, v8, 2, v6'); A('v_and_b32 v8, 3, v5'); A('v_lshl_add_u32 v6, v8, 1, v6')
        A('v_lshrrev_b32 v9, 1, v4'); A(f's_lshl_b32 s8, {wreg}, 7'); A('v_add3_u32 v6, v6, v9, s8')
        A('v_lshrrev_b32 v9, 2, v6'); A('v_cmp_eq_u32 s[76:77], s2, v9'); A('v_add_u32 v9, 2, v9'); A('v_cmp_eq_u32 s[78:79], s2, v9')
        A('v_and_b32 v9, 3, v6'); A('v_lshlrev_b32 v245, 3, v9'); A(f'v_add_u32 v245, {L_OWN}, v245')
        A('v_lshlrev_b32 v231, 3, v8')
        A('v_lshlrev_b32 v6, 1, v6'); A(f'v_add_u32 v6, {L_CONST}, v6')
        for a in range(4):
            for e in range(2): A(f'ds_read_u16 v{248+2*a+e}, v6 offset:{2048*a + 16*e}')
        A('s_lshl_b32 s8, s2, 3'); A('v_lshl_add_u32 v238, v8, 1, s8'); A(f'v_add_u32 v9, {L_CONST + 8192}, v238')
        A('ds_read_u16 v239, v9')
        A('v_and_b32 v7, 1, v5')
        A('v_lshrrev_b32 v246, 5, v0'); A('v_lshlrev_b32 v246, 2, v246'); A(f's_lshl_b32 s8, {wreg}, 3'); A('v_add_u32 v246, s8, v246')
        A('v_mov_b32 v247, 0')
        if allrep:
            A('v_lshlrev_b32 v229, 4, v0')
            A('v_lshlrev_b32 v230, 2, v5'); A('v_lshrrev_b32 v9, 5, v0'); A('v_lshl_add_u32 v230, v9, 6, v230')
            A('s_lshl_b32 s72, s6, 11'); A('s_lshl_b32 s8, s7, 7'); A('s_add_u32 s72, s72, s8'); A(f's_lshl_b32 s8, {wreg}, 15'); A('s_add_u32 s72, s72, s8')
            A(f's_add_u32 s72, s72, {WS_T2}')
        A('v_lshlrev_b32 v7, 4, v7'); A('v_lshlrev_b32 v7, v7, v243')
        A('v_and_b32 v8, 14, v5')
        for m in range(4):
            A(f'v_cmp_eq_u32 vcc, {4*m}, v8'); A(f'v_cndmask_b32 v{232+m}, 0, v7, vcc')
        for k in range(4): A(f'v_mov_b32 v{240+k}, 0')
        A('s_waitcnt lgkmcnt(0)')
        for k in range(8): A(f'v_lshlrev_b32 v{248+k}, 16, v{248+k}')
        A('v_lshlrev_b32 v239, 16, v239')
        A('v_add_f32 v254, 1.0, v254'); A('v_add_f32 v255, 1.0, v255'); rnd(254, 255)

    A(f'; @launch grid=(256,1,1) block=(512,1,1) lds={LDS_BYTES}')
    A('.amdgcn_target "amdgcn-amd-amdhsa--gfx950"')
    A('.text'); A(f'.globl {NAME}_kernel'); A('.p2align 8'); A(f'.type {NAME}_kernel,@function')
    A(f'{NAME}_kernel:')
    A('s_cmp_ge_u32 s2, 256'); A('s_cbranch_scc1 L_end')
    A('v_lshrrev_b32 v1, 6, v0'); A('v_and_b32 v0, 63, v0'); A('v_readfirstlane_b32 s3, v1')
    A('s_cmp_lg_u32 s3, 7'); A('s_cbranch_scc1 L_noinit')
    A('v_mov_b32 v14, 0'); A('v_lshlrev_b32 v15, 2, v0'); A(f'v_add_u32 v15, {LM}, v15'); A('ds_write_b32 v15, v14')
    A('s_waitcnt lgkmcnt(0)')
    A('L_noinit:')
    A('s_load_dwordx16 s[16:31], s[0:1], 0')
    A('s_load_dwordx8 s[32:39], s[0:1], 64')
    A('s_load_dwordx4 s[40:43], s[0:1], 96')
    A('s_load_dwordx2 s[44:45], s[0:1], 112')
    if endstamp: A('s_memrealtime s[80:81]')
    A('s_bfe_u32 s4, s2, 0x20001')
    A('s_lshr_b32 s5, s2, 3'); A('s_and_b32 s7, s5, 15')
    A('s_and_b32 s8, s2, 1'); A('s_lshl_b32 s8, s8, 5'); A('s_or_b32 s5, s5, s8')
    if gmap == 'hi': A('s_lshr_b32 s4, s2, 6'); A('s_and_b32 s5, s2, 63')
    if gmap == 'lo': A('s_and_b32 s4, s2, 3'); A('s_lshr_b32 s5, s2, 2')
    A('s_mov_b32 s51, 0x20000'); A('s_mov_b32 s55, 0x20000')
    A('s_cmp_lt_u32 s3, 4'); A('s_cbranch_scc1 L_attn')
    A('s_barrier')
    A('s_branch L_service')
    A('L_attn:')

    A('s_getpc_b64 s[70:71]')
    A('L_pcref:')
    if pf == 'all':
        A('s_lshl_b32 s8, s3, 13')
        A('v_lshl_add_u32 v1, v0, 7, s8'); A('v_min_u32 v1, L_end-L_pcref, v1')
        A('global_load_dword v12, v1, s[70:71]')
    else:
        A('s_lshl_b32 s8, s7, 2'); A('s_add_u32 s8, s8, s3'); A('s_lshl_b32 s8, s8, 9')
        A('v_lshl_add_u32 v1, v0, 7, s8'); A('v_min_u32 v1, L_end-L_pcref, v1')
        A('s_mov_b64 exec, 15'); A('global_load_dword v12, v1, s[70:71]'); A('s_mov_b64 exec, -1')
    A('s_barrier')
    A('s_lshl_b32 s9, s5, 2'); A('s_add_u32 s9, s9, s3'); A('s_lshl_b32 s9, s9, 13')
    A('s_lshl_b32 s8, s4, 24'); A('s_add_u32 s9, s9, s8')
    A('s_lshl_b32 s12, s3, 15')
    A('v_lshrrev_b32 v13, 4, v0'); A('v_and_b32 v14, 15, v0')
    A('v_lshlrev_b32 v15, 2, v13'); A('v_xor_b32 v1, v14, v15'); A('v_lshlrev_b32 v1, 4, v1')
    A('v_lshl_add_u32 v1, v13, 8, v1')
    A('v_xor_b32 v2, 16, v1'); A('v_xor_b32 v3, 32, v1'); A('v_xor_b32 v4, 48, v1')
    A('v_lshlrev_b32 v5, 4, v0')
    if not swz:
        for r in range(1, 5): A(f'v_mov_b32 v{r}, v5')
    A('s_mov_b32 s50, 0x4000000'); A('s_mov_b32 s54, 0x4000000')
    A('s_mov_b32 s60, 0x05040100'); A('s_mov_b32 s61, 0x07060302')
    A(f's_mov_b32 s63, {f2u(128 ** -0.5):#x}'); A(f's_mov_b32 s64, {f2u(LOG2E):#x}')
    A('s_mov_b32 s58, 0x400000'); A('s_mov_b32 s59, 0x20000')
    A('v_and_b32 v6, 3, v14'); A('v_lshlrev_b32 v6, 2, v6'); A('v_lshrrev_b32 v15, 2, v14'); A('v_add_u32 v6, v6, v15')
    A('v_lshlrev_b32 v6, 8, v6'); A('v_xor_b32 v15, v13, v14'); A('v_lshl_add_u32 v6, v15, 4, v6'); A('v_add_u32 v6, s12, v6')
    A('v_xor_b32 v7, 64, v6'); A('v_xor_b32 v8, 0x80, v6'); A('v_xor_b32 v9, 0xc0, v6')
    A(f'v_mov_b32 v13, {LM}')
    A('s_waitcnt lgkmcnt(0)')
    A('s_mov_b32 s48, s18'); A('s_mov_b32 s49, s19'); A('s_mov_b32 s52, s20'); A('s_mov_b32 s53, s21')
    A('s_mov_b32 s56, s44'); A('s_mov_b32 s57, s45'); A('s_mov_b32 s66, s24'); A('s_mov_b32 s67, s25')
    def touches():
        A('s_bfe_u32 s8, s2, 0x50003'); A('s_lshl_b32 s10, s8, 21'); A('s_and_b32 s11, s10, 0x600000')
        A('s_cmp_ge_u32 s3, 2'); A('s_cbranch_scc1 L_touch23')
        A('s_cmp_eq_u32 s3, 1'); A('s_cbranch_scc1 L_touch1')
        A('s_mul_i32 s10, s8, 0x60000')
        A('s_load_dword s72, s[38:39], s10'); A('s_load_dword s73, s[36:37], 0'); A('s_load_dword s74, s[16:17], 0')
        A('s_branch L_touched')
        A('L_touch1:')
        A('s_load_dword s72, s[22:23], s11'); A(f's_load_dword s73, s[44:45], {WS_EPOCH}'); A('s_load_dword s74, s[24:25], s11')
        A('s_branch L_touched')
        A('L_touch23:')
        A('s_cmp_eq_u32 s3, 3'); A('s_cbranch_scc1 L_touch3')
        A('s_load_dword s72, s[28:29], 0'); A('s_load_dword s73, s[30:31], 0'); A('s_load_dword s74, s[32:33], 0'); A('s_load_dword s75, s[34:35], 0')
        A('s_branch L_touched')
        A('L_touch3:')
        A('s_load_dword s72, s[20:21], s10'); A('s_load_dword s73, s[40:41], 0')
        if 'k' in touch: A('s_load_dword s74, s[18:19], s10')
        A('L_touched:')
    if 'a' in touch: touches()
    issued = [0]
    TS = 64 * 4 * 8192
    if tb: lev = None
    LEV = list(lev) if lev else ([DB, DH] if DH else [DB])
    def throttle(D, boost):
        for a, b_, d in bump:
            if a <= issued[0] < b_: D = d; boost = False
        if issued[0] < D: return
        if boost and tb:
            l = A.lab('go'); L_ = issued[0] - 64
            A(f's_waitcnt vmcnt({tb-1})'); A(f's_cmp_gt_i32 s13, {L_}'); A(f's_cbranch_scc1 {l}'); A(f's_waitcnt vmcnt({D-1})')
            if tslow: A(f's_cmp_ge_i32 s13, {-tslow - L_}'); A(f's_cbranch_scc1 {l}'); A(f's_waitcnt vmcnt({D-2})')
            A(f'{l}:')
        elif boost:
            l = A.lab('go')
            for k in range(len(LEV) - 1, -1, -1):
                A(f's_waitcnt vmcnt({LEV[k]-1})')
                if k == len(LEV) - 1: A(f's_cbranch_vccnz {l}')
                elif k > 0: A(f's_cmp_eq_u32 s13, {k}'); A(f's_cbranch_scc1 {l}')
            A(f'{l}:')
        else: A(f's_waitcnt vmcnt({D-1})')
    def kload(t, n, D, boost=False):
        if n % 4 == 0:
            A(f's_add_u32 m0, s12, {(t % 4) * 8192 + (n // 4) * 4096}')
            A(f's_add_u32 s10, s9, {t * TS + (n // 4) * 4096}')
        throttle(D, boost)
        A(f'buffer_load_dwordx4 v{1 + n % 4}, s[48:51], s10 offen offset:{(n % 4) * 1024} nt lds')
        issued[0] += 1
    def vload(t, e, D, boost=False):
        if e % 4 == 0:
            A(f's_add_u32 s10, s9, {t * TS + (e // 4) * 4096}')
        throttle(D, boost)
        A(f'buffer_load_dwordx4 {v(128 + 32 * (t % 4) + 4 * e, 4)}, v5, s[52:55], s10 offen offset:{(e % 4) * 1024} nt')
        issued[0] += 1
    for t in range(4):
        for n in range(8):
            if issued[0] == early:
                if 'b' in touch: touches(); A(f's_add_u32 s10, s9, {t * TS + (n // 4) * 4096}')
                if 'svc' not in cut: lds_spin(C_GO, 1, 14)
            if diag and trajA and (issued[0] % 8 == 0 or issued[0] == early) and issued[0] >= early:
                A('s_memrealtime s[100:101]'); A('s_waitcnt lgkmcnt(0)'); A(f's_mov_b32 s{24 + issued[0] // 8}, s100')
            kload(t, n, DA)
            if issued[0] in (p2_at, q_at): lds_add(C_PROG, 14)
    for t in range(4):
        for e in range(8):
            if diag and trajA and issued[0] % 8 == 0:
                A('s_memrealtime s[100:101]'); A('s_waitcnt lgkmcnt(0)'); A(f's_mov_b32 s{24 + issued[0] // 8}, s100')
            vload(t, e, DA)
            if issued[0] in (p2_at, q_at): lds_add(C_PROG, 14)
    stamp(1)
    if not cut: lds_spin(C_Q, 2, 14)
    A('v_and_b32 v14, 7, v0'); A('v_lshlrev_b32 v14, 8, v14'); A('v_lshrrev_b32 v15, 4, v0'); A('v_lshl_add_u32 v14, v15, 4, v14')
    A(f'v_add_u32 v14, {L_Q}, v14')
    if tb:
        A(f'ds_read_b32 v15, v13 offset:{C_LEV}'); A('s_waitcnt lgkmcnt(0)'); A('v_readfirstlane_b32 s13, v15')
        if diag: A('s_mov_b32 s32, s13')
    for s in range(4): A(f'ds_read_b128 {v(16+4*s,4)}, v14 offset:{64*s}')
    stamp(2)
    satom_pending = [False]
    def qk(t):
        assert not satom_pending[0], t
        off = (t % 4) * 8192
        for hb in range(2):
            for s in range(4): A(f'ds_read_b128 {v(96+16*hb+4*s,4)}, v{6+s} offset:{off + hb*4096}')
        for hb in range(2):
            S = 32 + 8 * (t % 4) + 4 * hb
            for s in range(4):
                A(f's_waitcnt lgkmcnt({7 - 4*hb - s})')
                c = '0' if s == 0 else v(S, 4)
                A(f'v_mfma_f32_16x16x32_bf16 {v(S,4)}, {v(96+16*hb+4*s,4)}, {v(16+4*s,4)}, {c}')
    def rscale(t):
        S = 32 + 8 * (t % 4)
        rnd(*range(S, S + 8))
        for k in range(8): A(f'v_mul_f32 v{S+k}, s63, v{S+k}')
        rnd(*range(S, S + 8))
        if t == 0: A(f'v_max_f32 v15, v{S}, v{S+1}')
        elif t == 4: A(f'v_max3_f32 v15, v{S}, v{S+1}, v10')
        else: A(f'v_max3_f32 v15, v{S}, v{S+1}, v15')
        for k in range(1, 4): A(f'v_max3_f32 v15, v{S+2*k}, v{S+2*k+1}, v15')
    def rescale_o():
        A('v_mov_b32 v17, v16')
        for k in range(16): A(f'v_pk_mul_f32 {v(64+2*k,2)}, {v(64+2*k,2)}, v[16:17]')
    def mfin(second, now=True):
        xg_reduce('v_max_f32', 15, 14)
        if second:
            A('v_sub_f32 v16, v10, v15'); A('v_mul_f32 v16, s64, v16'); A('v_exp_f32 v16, v16')
        A('v_mov_b32 v10, v15'); A('v_mul_f32 v12, s64, v15')
        if second:
            A('v_mul_f32 v11, v11, v16')
            if now: rescale_o()
    def expo(t):
        S = 32 + 8 * (t % 4)
        for k in range(8): A(f'v_fma_f32 v{S+k}, v{S+k}, s64, -v12')
        for k in range(8): A(f'v_exp_f32 v{S+k}, v{S+k}')
        A(f'v_add_f32 v96, v{S}, v{S+1}'); A(f'v_add_f32 v97, v{S+2}, v{S+3}'); A(f'v_add_f32 v98, v{S+4}, v{S+5}'); A(f'v_add_f32 v99, v{S+6}, v{S+7}')
        for k in range(4): A(f'v_cvt_pk_bf16_f32 v{S+k}, v{S+2*k}, v{S+2*k+1}')
        A('v_add_f32 v96, v96, v97'); A('v_add_f32 v98, v98, v99')
        if t == 0: A('v_add_f32 v11, v96, v98')
        else: A('v_add_f32 v96, v96, v98'); A('v_add_f32 v11, v11, v96')
    def pvt(t, half):
        pv(128 + 32 * (t % 4), 32 + 8 * (t % 4), t == 0, range(4 * half, 4 * half + 4))
    def publish_ml():
        xg_reduce('v_add_f32', 11, 14)
        A('v_lshrrev_b32 v14, 1, v5'); A('s_lshl_b32 s8, s3, 6'); A(f's_add_u32 s8, s8, {L_ML}'); A('v_add_u32 v14, s8, v14')
        A('s_mov_b64 exec, 0xff'); A('ds_write_b64 v14, v[10:11]'); A('s_mov_b64 exec, -1')
        lds_add(C_ML, 14)
    sched = {i: [] for i in range(-1, 64)}
    def put(pos, fn, landed=None): sched[pos].append((fn, landed))
    put(-1, lambda: qk(0))
    put(0, lambda: qk(1)); put(1, lambda: qk(2)); put(2, lambda: qk(3))
    for t in range(4): put(3 + t, (lambda t=t: rscale(t)))
    put(7, lambda: mfin(False))
    for t in range(4): put(8 + t, (lambda t=t: expo(t)))
    for t in range(4):
        for h in range(2): put(12 + 2 * t + h, (lambda t=t, h=h: pvt(t, h)), -1)
    DM = max(LEV + [tb] + [d for a, b_, d in bump if b_ > 64])
    CP = list(cps) if len(LEV) > 1 else []
    THR = [list(t) for t in thrs] if thrs else [[thr]] * len(CP)
    if len(THR) == 1: THR = THR * len(CP)
    def opi(L): return L + sum(1 for c in CP if c <= L) if (L >= 0 and not satom) else L
    def landed_after(posn, m_op): return posn >= 0 and opi(posn) - DM >= m_op
    def first_pos(m, lo):
        for L in range(lo, 64):
            if opi(L) - (DS or DM) >= opi(m): return L
        return 63
    pos = {4: first_pos(7, 20), 5: first_pos(15, 22), 6: first_pos(23, 24), 7: first_pos(31, 26)}
    for t in range(4, 8):
        put(pos[t], (lambda t=t: qk(t)), 8 * (t - 4) + 7)
        put(pos[t] + (1 if (t < 7 or smooth) else 0), (lambda t=t: rscale(t)))
    if smooth:
        b = pos[7] + 1
        put(b, lambda: mfin(True, False))
        put(b + 1, lambda: (expo(4), expo(5)))
        put(b + 2, lambda: (expo(6), expo(7)))
        put(b + 3, publish_ml)
        put(b + 4, rescale_o)
        b += 3
    else:
        b = pos[7] + 1
        put(b, lambda: (mfin(True), expo(4)))
        put(b + 1, lambda: (expo(5), expo(6), expo(7), publish_ml()))
    p4 = min(first_pos(39, b + 2), 62)
    put(p4, lambda: pvt(4, 0), 39); put(min(p4 + 1, 63), lambda: pvt(4, 1))
    p5 = min(first_pos(47, min(p4 + 2, 63)), 63)
    put(p5, lambda: pvt(5, 0), 47); put(min(p5 + 1, 63), lambda: pvt(5, 1))
    def endsetup():
        A('v_lshrrev_b32 v28, 5, v0'); A('s_lshl_b32 s8, s3, 1'); A('v_add_u32 v28, s8, v28')
        A(f'v_mul_u32_u24 v20, {OSTRIDE}, v28')
        A('v_lshlrev_b32 v28, 4, v28'); A(f'v_add_u32 v28, {L_FAC}, v28')
        A('v_and_b32 v21, 31, v0'); A('v_lshl_add_u32 v20, v21, 4, v20')
        A('v_add_u32 v21, 0x10000, v20')
        A('v_and_b32 v22, 15, v0'); A(f'v_mul_u32_u24 v22, {OSTRIDE}, v22'); A('v_lshrrev_b32 v23, 4, v0'); A('v_lshl_add_u32 v22, v23, 4, v22')
        A('v_add_u32 v22, s12, v22')
        A('v_lshlrev_b32 v1, 15, v23'); A('v_bfe_u32 v2, v0, 3, 1'); A('v_lshl_add_u32 v1, v2, 12, v1')
        A('v_and_b32 v4, 7, v0'); A('v_lshl_add_u32 v1, v4, 4, v1')
        A('v_lshrrev_b32 v2, 3, v0'); A('v_lshlrev_b32 v2, 9, v2'); A('v_lshl_add_u32 v2, v4, 4, v2')
        if gswap: A('v_and_b32 v3, 16, v0'); A('v_lshlrev_b32 v3, 4, v3'); A('v_lshlrev_b32 v4, 2, v4')
        else: A('v_lshrrev_b32 v3, 5, v0'); A('v_lshlrev_b32 v3, 8, v3'); A('v_and_b32 v4, 16, v0')
        A('s_lshl_b32 s8, s3, 9'); A(f's_add_u32 s8, s8, {L_RED2}')
        A('v_add3_u32 v3, v3, v4, s8')
        A('v_lshlrev_b32 v23, 3, v0')
        rb_calc()
        A('s_mov_b32 s48, s66'); A('s_mov_b32 s49, s67'); A('s_mov_b32 s50, 0x800000')
        A('s_lshl_b32 s73, s6, 8'); A('s_lshr_b32 s8, s3, 1'); A('s_lshl_b32 s8, s8, 7'); A('s_add_u32 s73, s73, s8')
        A('s_and_b32 s8, s3, 1'); A('s_lshl_b32 s8, s8, 2'); A('s_add_u32 s73, s73, s8'); A('s_lshl_b32 s73, s73, 11')
        A('s_lshl_b32 s8, s7, 7'); A('s_add_u32 s73, s73, s8')
        A('s_lshl_b32 s74, s6, 15'); A('s_lshl_b32 s8, s3, 7'); A('s_add_u32 s74, s74, s8'); A(f's_add_u32 s74, s74, {WS_T1}')
    put(60, endsetup)
    def t1slot():
        A('s_lshl_b32 s8, s4, 2'); A('s_add_u32 s8, s8, s3'); A('s_lshl_b32 s8, s8, 15'); A('s_lshl_b32 s11, s5, 9'); A('s_add_u32 s11, s11, s8')
        A(f's_add_u32 s11, s11, {WS_T1}')
    put(63, t1slot)
    assert satom and (not CP or max(CP) < 63)
    def run(posn):
        for fn, landed in sched[posn]:
            if landed is not None and not landed_after(posn, opi(landed)):
                A(f's_waitcnt vmcnt({opi(posn) - opi(landed)})')
            fn()
    if CP:
        A('s_mov_b64 vcc, 0'); A(f's_mov_b32 s13, {LEV.index(DB)}')
        A(f's_bfe_u32 s11, s2, {(wsh << 16) | 3:#x}'); A('s_lshl_b32 s11, s11, 2'); A('s_add_u32 s11, s11, s3'); A(f's_mul_i32 s11, s11, {rstr}')
        if percu:
            if nshb: A(f's_bfe_u32 s11, s2, {(nshb << 16) | 3:#x}'); A(f's_mul_i32 s11, s11, {rstr}')
            else: A('s_mov_b32 s11, 0')
        A(f's_add_u32 s11, s11, {WS_RANK}')
    if lin:
        CP = []
        step = lin // 8
        ticks = [L for L in range(0, lastt + 1) if L % step == 0]
        A('s_lshr_b32 s68, s2, 5'); A('s_add_u32 s68, s68, s2'); A('s_and_b32 s68, s68, 7')
    ctl = bool(CP) or bool(lin) or bool(tb)
    run(-1)
    pend = []; reads = set()
    for L in range(64):
        if lin and L in ticks:
            l = A.lab('nt')
            A(f's_cmp_lg_u32 s68, {(L // step) % 8}'); A(f's_cbranch_scc1 {l}')
            A('s_mov_b32 s47, 1'); A('s_atomic_add s47, s[44:45], s11 glc')
            A(f'{l}:')
        if diag and not trajA and L % 8 == 0:
            A('s_memrealtime s[100:101]'); A('s_waitcnt lgkmcnt(0)'); A(f's_mov_b32 s{24 + L // 8}, s100')
        if fcp and L == fcp:
            A('s_mov_b32 s69, 1'); A(f's_atomic_add s69, s[44:45], s11 offset:{64 * rstr * len(CP)} glc')
        if L in CP:
            if satom:
                if percu: l = A.lab('w0'); A('s_cmp_lg_u32 s3, 0'); A(f's_cbranch_scc1 {l}')
                A('s_mov_b32 s47, 1')
                A(f's_atomic_add s47, s[44:45], s11 offset:{64 * rstr * CP.index(L)} glc')
                if percu: A(f'{l}:')
                pend.append((L + rd, CP.index(L))); satom_pending[0] = True
            else:
                A('s_mov_b64 exec, 1'); A('v_mov_b32 v0, 1')
                A(f'buffer_atomic_add v0, off, s[56:59], s11 offset:{2048 * (CP.index(L) & 1)} sc0')
                A('s_mov_b64 exec, -1')
                if CP.index(L) & 1: A('s_add_u32 s11, s11, 4096')
                pend.append((opi(L) - 1, CP.index(L)))
        if L < 32: kload(4 + L // 8, L % 8, DB, ctl)
        else: vload(4 + (L - 32) // 8, L % 8, DB, ctl)
        if lin and (L - rd) in ticks:
            T = L - rd; l = A.lab('nr')
            sync = 8 * ticks.index(T) + 4; smax = 8 * len(ticks); slope = 8.0 / step
            th = [int(min(max(round(sync + slope * b_), 2 + 2 * k), smax - 2 - 3 * (len(lagb) - 1 - k))) for k, b_ in enumerate(lagb)]
            assert len(th) == len(LEV) - 1
            A(f's_cmp_lg_u32 s68, {(T // step) % 8}'); A(f's_cbranch_scc1 {l}')
            A('s_waitcnt lgkmcnt(0)')
            A('s_mov_b32 s13, 0')
            for k, t_ in enumerate(th[:-1]):
                A(f's_cmp_ge_u32 s47, {t_}'); A(f's_cselect_b32 s13, {k+1}, s13')
            A(f's_cmp_ge_u32 s47, {th[-1]}'); A('s_cselect_b64 vcc, -1, 0')
            A(f'{l}:')
        if pend and (L == pend[0][0] if satom else landed_after(L, pend[0][0])):
            th = THR[pend.pop(0)[1]]
            assert len(th) == len(LEV) - 1
            if percu:
                satom_pending[0] = False
                sc = (256 >> nshb) / 64.0
                l = A.lab('w0'); A('s_cmp_lg_u32 s3, 0'); A(f's_cbranch_scc1 {l}')
                A('s_waitcnt lgkmcnt(0)')
                A(f's_mov_b32 s8, {-LEV.index(DB)}')
                for k, t_ in enumerate(th):
                    A(f's_cmp_ge_u32 s47, {int(t_ * sc)}'); A(f's_cselect_b32 s8, {k + 1 - LEV.index(DB)}, s8')
                A('v_mov_b32 v14, s8'); A(f'ds_write_b32 v13, v14 offset:{C_LEV}')
                A(f'{l}:')
                for r_ in rr: reads.add(L + r_)
            else:
                if satom: A('s_waitcnt lgkmcnt(0)'); A('s_mov_b32 s8, s47'); satom_pending[0] = False
                else: A('v_readfirstlane_b32 s8, v0'); A('v_writelane_b32 v0, 0, 0')
                if diag: A(f's_mov_b32 s{32 + len(CP) - len([c for c in CP if c > L]) - 1}, s8')
                th = [int(round(t_ * (256 >> wsh) / 64.0)) for t_ in th]
                A('s_mov_b32 s13, 0')
                for k, t_ in enumerate(th[:-1]):
                    A(f's_cmp_ge_u32 s8, {t_}'); A(f's_cselect_b32 s13, {k+1}, s13')
                A(f's_cmp_ge_u32 s8, {th[-1]}'); A('s_cselect_b64 vcc, -1, 0')
        if L in reads:
            A(f'ds_read_b32 v14, v13 offset:{C_LEV}'); A('s_waitcnt lgkmcnt(0)')
            A('v_readfirstlane_b32 s13, v14'); A(f's_add_u32 s13, s13, {LEV.index(DB)}')
            A(f's_cmp_eq_u32 s13, {len(LEV) - 1}'); A('s_cselect_b64 vcc, -1, 0')
        if L in (r2_at, fin_at, ml_at): lds_add(C_PROG, 14)
        run(L)
    assert not pend and (not lin or lastt + rd <= 63)
    stamp(3)
    NWO = [0]
    def woload():
        n = NWO[0]; m, hh = n >> 1, n & 1
        row = 64 * (m & 1) + 8 * hh + (m >> 1)
        A(f's_add_u32 s10, s73, {row * 2048}')
        A(f'buffer_load_dwordx4 {v(128 + 4*n, 4)}, v1, s[48:51], s10 offen nt')
        NWO[0] += 1; issued[0] += 1
    def wo_upto(k):
        while NWO[0] < k:
            if NWO[0] < wothr: throttle(DB, ctl)
            woload()
    wo_upto(wos[0])
    A(f's_waitcnt vmcnt({8 + NWO[0]})')
    pvt(6, 0); wo_upto(wos[1]); pvt(6, 1); wo_upto(wos[2])
    Vb = 128 + 96; P = 32 + 24
    for m in range(3):
        A(f's_waitcnt vmcnt({6 - 2*m + NWO[0]})')
        for d in range(8): A(f'v_perm_b32 v{96+4*d+m}, v{Vb+8*m+4+(d>>1)}, v{Vb+8*m+(d>>1)}, s{60+(d&1)}')
        wo_upto(wos[3 + m])
    A(f's_waitcnt vmcnt({NWO[0]})')
    stamp(4)
    if cut:
        for k in range(8): A(f'v_writelane_b32 v15, s{24+k}, {16+k}')
        A('s_branch L_fin')
    for d in range(8): A(f'v_perm_b32 v{96+4*d+3}, v{Vb+28+(d>>1)}, v{Vb+24+(d>>1)}, s{60+(d&1)}')
    for d in range(8): A(f'v_mfma_f32_16x16x32_bf16 {v(64+4*d,4)}, {v(96+4*d,4)}, {v(P,4)}, {v(64+4*d,4)}')
    wo_upto(wos[6])
    A('s_mov_b32 exec_lo, 0x00ff00ff'); A('s_mov_b32 exec_hi, 0x00ff00ff')
    for d in range(8): A(f'ds_write_b128 v22, {v(64+4*d,4)} offset:{64*d}')
    A('s_mov_b64 exec, -1')
    wo_upto(wos[7])
    assert NWO[0] == 8 - wo_after
    A('s_waitcnt lgkmcnt(0)')
    A('s_barrier')
    A('ds_read_b128 v[16:19], v28')
    A('ds_read_b128 v[32:35], v20'); A('ds_read_b128 v[36:39], v20 offset:32768')
    A('ds_read_b128 v[40:43], v21'); A('ds_read_b128 v[44:47], v21 offset:32768')
    for w in range(4):
        A(f's_waitcnt lgkmcnt({3-w})')
        for k in range(4):
            if w == 0: A(f'v_mul_f32 v{32+k}, v{32+k}, v16')
            else: A(f'v_fmac_f32 v{32+k}, v{32+4*w+k}, v{16+w}')
    A('v_cvt_pk_bf16_f32 v24, v32, v33'); A('v_cvt_pk_bf16_f32 v25, v34, v35')
    A('v_min_u32 v24, -2, v24'); A('v_min_u32 v25, -2, v25')
    if pub4:
        A('v_mov_b32_dpp v26, v24 quad_perm:[1,1,3,3] row_mask:0xf bank_mask:0xf')
        A('v_mov_b32_dpp v27, v25 quad_perm:[1,1,3,3] row_mask:0xf bank_mask:0xf')
        A('s_mov_b32 exec_lo, 0x55555555'); A('s_mov_b32 exec_hi, 0x55555555')
        A('buffer_store_dwordx4 v[24:27], v23, s[56:59], s11 offen sc1')
        A('s_mov_b64 exec, -1')
    else:
        A('buffer_store_dwordx2 v[24:25], v23, s[56:59], s11 offen sc1')
    stamp(5)
    if diag:
        for k in range(8): A(f'v_writelane_b32 v15, s{24+k}, {16+k}')
        for k in range(5): A(f'v_writelane_b32 v15, s{32+k}, {11+k}')
        A('s_load_dwordx16 s[16:31], s[0:1], 0'); A('s_load_dwordx8 s[32:39], s[0:1], 64'); A('s_waitcnt lgkmcnt(0)')
    def t1_load(n):
        A(f's_add_u32 s8, s74, {4096 * n}')
        A(f'buffer_load_dwordx4 {v(160+4*n,4)}, v2, s[56:59], s8 offen sc1')
    def wo_perms(ms=range(4)):
        for e in range(8):
            for m in ms:
                A(f'v_perm_b32 v{192 + 4*e + m}, v{128 + 8*m + 4 + (e >> 1)}, v{128 + 8*m + (e >> 1)}, s{60 + (e & 1)}')
    if wo_after:
        if t1_delay == 0:
            for n in range(8): t1_load(n)
            wo_upto(8)
        A('v_mov_b32 v243, 0x3f80')
        prep('s3')
        for k in range(4): A(f'v_mov_b32 v{60+k}, 0')
        if t1_delay == 1:
            for n in range(8): t1_load(n)
            wo_upto(8)
        xstamp(8)
        mdone = (8 - wo_after) // 2
        A(f's_waitcnt vmcnt({9 + wo_after})'); wo_perms(range(mdone))
        xstamp(9)
        sweep('t1', 8, t1_load, lambda k: 160 + 4*k, 60, 6, extra=wo_after, mid=lambda: (A('s_waitcnt vmcnt(0)'), wo_perms(range(mdone, 4))))
    else:
        if t1_delay == 0:
            for n in range(8): t1_load(n)
        A('v_mov_b32 v243, 0x3f80')
        prep('s3')
        for k in range(4): A(f'v_mov_b32 v{60+k}, 0')
        if t1_delay == 1:
            for n in range(8): t1_load(n)
        xstamp(8)
        if t1_delay >= 2:
            A('s_waitcnt vmcnt(1)'); wo_perms()
            if t1_delay == 3: A('s_waitcnt vmcnt(0)')
            if t1x: A(f's_sleep {t1x}')
            if fcp:
                A(f's_sub_i32 s69, {fa}, s69')
                if fsh: A(f's_ashr_i32 s8, s69, {fsh}'); A('s_sub_i32 s69, s69, s8')
                A('L_bk:'); A('s_cmp_le_i32 s69, 0'); A('s_cbranch_scc1 L_bkd'); A('s_sleep 1'); A('s_sub_i32 s69, s69, 1'); A('s_branch L_bk')
                A('L_bkd:')
            for n in range(8): t1_load(n)
        else:
            A('s_waitcnt vmcnt(9)'); wo_perms()
        xstamp(9)
        sweep('t1', 8, t1_load, lambda k: 160 + 4*k, 60, 6)
    stamp(6)
    for e in range(2): A(f'v_add_f32_dpp v{60+e}, v{60+e}, v{60+e} row_ror:8 row_mask:0xf bank_mask:0xf')
    A('v_cvt_pk_bf16_f32 v60, v60, v61')
    for c in range(4): A(f'v_mov_b32_dpp v{224+c}, v60 quad_perm:[{c},{c},{c},{c}] row_mask:0xf bank_mask:0xf')
    if gswap:
        for e in range(8):
            A(f'v_mfma_f32_16x16x32_bf16 {v(64+4*e,4)}, v[224:227], {v(192+4*e,4)}, 0')
        A('s_mov_b32 exec_lo, 0xff0000ff'); A('s_mov_b32 exec_hi, 0')
        for e in range(0, 8, 2): A(f'ds_write2_b32 v3, v{64+4*e}, v{68+4*e} offset0:{8*e} offset1:{8*e+8}')
    else:
        for e in range(8):
            A(f'v_mfma_f32_16x16x32_bf16 {v(64+4*e,4)}, {v(192+4*e,4)}, v[224:227], 0')
        A('s_mov_b32 exec_lo, 0x00010001'); A('s_mov_b32 exec_hi, 0x00100010')
        for e in range(8): A(f'ds_write_b128 v3, {v(64+4*e,4)} offset:{32*e}')
    A('s_mov_b64 exec, -1')
    A('s_waitcnt lgkmcnt(0)')
    A('s_branch L_tail')

    A('L_service:')
    if 'svc' in cut: A('s_endpgm')
    A('s_sub_u32 s3, s3, 4')
    rb_calc()
    A('s_mov_b32 s60, 0x05040100'); A('s_mov_b32 s61, 0x07060302'); A('s_mov_b32 s62, 0xffff0000')
    A(f's_mov_b32 s64, {f2u(LOG2E):#x}')
    A('s_mov_b32 s58, 0x400000'); A('s_mov_b32 s59, 0x20000')
    A(f'v_mov_b32 v13, {LM}')
    A('s_waitcnt lgkmcnt(0)')
    A('s_mov_b32 s56, s44'); A('s_mov_b32 s57, s45')
    xstamp(0)
    A(f's_load_dword s46, s[44:45], {WS_EPOCH}')
    A('s_mov_b32 s65, s3')
    A('s_cmp_eq_u32 s3, 0'); A('s_cbranch_scc0 L_notsw0')
    if prio: A('s_setprio 3')
    A('s_cmp_lt_u32 s2, 128'); A('s_cbranch_scc1 L_unit_p1')
    A('s_mov_b32 s65, 2')
    A('s_branch L_unit_rest')
    A('L_notsw0:')
    A('s_cmp_ge_u32 s3, 2'); A('s_cbranch_scc1 L_tabwaves')
    A('L_unit_q:')
    if prio: A('s_setprio 2')
    A('s_movk_i32 s66, 0x2000'); A('s_and_b32 s67, s2, 63'); A('s_lshr_b32 s69, s2, 6'); A('s_add_u32 s68, s67, 96')
    A('s_mov_b32 s48, s22'); A('s_mov_b32 s49, s23'); A('s_mov_b32 s70, s16'); A('s_mov_b32 s71, s17')
    A('s_branch L_unit')
    A('L_unit_rest:')
    A('s_and_b32 s67, s2, 63'); A('s_add_u32 s67, s67, 32'); A('s_lshr_b32 s69, s2, 6')
    A('s_branch L_unit_mod')
    A('L_unit_p1:')
    if DH or lev:
        A(f's_mul_i32 s8, s2, {4 * rstr}'); A(f's_add_u32 s8, s8, {WS_RANK}')
        A(f'v_mul_u32_u24 v1, {rstr}, v0'); A('v_mov_b32 v2, 0')
        A('s_mov_b64 exec, 15'); A('buffer_store_dword v2, v1, s[56:59], s8 offen sc1'); A('s_mov_b64 exec, -1')
    A('s_and_b32 s67, s2, 31'); A('s_lshr_b32 s69, s2, 5')
    A('L_unit_mod:')
    A('s_movk_i32 s66, 0x3000'); A('s_mov_b32 s68, s67')
    A('s_mov_b32 s48, s38'); A('s_mov_b32 s49, s39'); A('s_mov_b32 s70, s36'); A('s_mov_b32 s71, s37')
    A('L_unit:')
    A('s_lshl_b32 s50, s66, 10'); A('s_lshl_b32 s67, s67, 7')
    A('v_lshrrev_b32 v1, 3, v0'); A('v_lshlrev_b32 v1, 3, v1'); A('v_mul_lo_u32 v1, v1, s66')
    A('v_and_b32 v2, 7, v0'); A('v_lshl_add_u32 v1, v2, 4, v1')
    A('s_lshl_b32 s54, s69, 8')
    if half:
        A('s_lshl_b32 s8, s69, 7'); A('s_and_b32 s10, s69, 2'); A('s_add_u32 s10, s10, s69')
        A('s_cmp_eq_u32 s65, 3'); A('s_cselect_b32 s54, s8, s54'); A('s_cselect_b32 s69, s10, s69')
    A('s_mul_i32 s10, s54, s66'); A('s_add_u32 s10, s10, s67')
    A('s_mul_i32 s11, s66, 57')
    A('s_lshl_b32 s8, s54, 1'); A('v_lshl_add_u32 v2, v0, 2, s8')
    A('v_lshlrev_b32 v3, 5, v0')
    A('s_cmp_lg_u32 s65, 1'); A('s_cbranch_scc1 L_nob0a')
    lds_spin(C_U0, 1, 10)
    A('global_load_dwordx4 v[16:19], v3, s[16:17]'); A('global_load_dwordx4 v[20:23], v3, s[16:17] offset:16')
    A('L_nob0a:')
    A('global_load_dword v4, v2, s[70:71]'); A('global_load_dword v5, v2, s[70:71] offset:256')
    for G in range(4):
        if half and G == 2: A('s_cmp_eq_u32 s65, 3'); A('s_cbranch_scc1 L_halfl')
        for r in range(8):
            if WU and 8*G + r >= WU: A(f's_waitcnt vmcnt({WU-1})')
            A(f'buffer_load_dwordx4 {v(128+32*G+4*r,4)}, v1, s[48:51], s10 offen nt')
            if not (G == 3 and r == 7): A(f's_add_u32 s10, s10, {"s11" if r == 7 else "s66"}')
    if half:
        A('s_branch L_fulll')
        A('L_halfl:'); A('s_waitcnt vmcnt(0)')
        A('L_fulll:')
    A('s_lshl_b32 s68, s68, 9'); A(f's_mul_i32 s8, s69, {PSTR}'); A('s_add_u32 s68, s68, s8'); A(f's_add_u32 s68, s68, {WS_PART}')
    A('s_cmp_eq_u32 s65, 3'); A('s_cbranch_scc1 L_nob0')
    A('s_cmp_eq_u32 s65, 1'); A('s_cbranch_scc1 L_go')
    if hu < 36: A(f's_waitcnt vmcnt({hu})')
    lds_add(C_U0, 10)
    A('s_branch L_went')
    A('L_go:')
    if hg < 36: A(f's_waitcnt vmcnt({hg})')
    lds_add(C_GO, 10)
    A('L_went:')
    A('s_waitcnt lgkmcnt(0)'); A('s_add_u32 s46, s46, 1')
    A('L_nob0:')
    xstamp(3)
    A('s_waitcnt vmcnt(32)')
    xstamp(4)
    A('v_lshlrev_b32 v6, 16, v4'); A('v_and_b32 v7, s62, v4'); A('v_lshlrev_b32 v8, 16, v5'); A('v_and_b32 v9, s62, v5')
    A('s_cmp_eq_u32 s65, 1'); A('s_cbranch_scc1 L_jobq')
    for k in range(4): A(f'v_mul_f32 v{24+k}, s64, v{6+k}')
    for k in range(4): A(f'v_exp_f32 v{24+k}, -v{24+k}')
    for k in range(4): A(f'v_add_f32 v{24+k}, 1.0, v{24+k}')
    for k in range(4): A(f'v_rcp_f32 v{24+k}, v{24+k}')
    for k in range(4): A(f'v_mul_f32 v{6+k}, v{6+k}, v{24+k}')
    A('s_branch L_jobcommon')
    A('L_jobq:')
    for k in range(8):
        A(f'v_lshlrev_b32 v{96+2*k}, 16, v{16+k}'); A(f'v_and_b32 v{97+2*k}, s62, v{16+k}')
    A('v_add_f32 v24, v96, v97')
    for k in range(2, 16): A(f'v_add_f32 v24, v24, v{96+k}')
    row_reduce('v_add_f32', [24]); xg_reduce('v_add_f32', 24, 25)
    A(f'v_mul_f32 v24, {f2u(1/1024):#x}, v24')
    for k in range(16): A(f'v_sub_f32 v{96+k}, v{96+k}, v24')
    A('v_mul_f32 v26, v96, v96')
    for k in range(1, 16): A(f'v_fmac_f32 v26, v{96+k}, v{96+k}')
    row_reduce('v_add_f32', [26]); xg_reduce('v_add_f32', 26, 25)
    A(f'v_mul_f32 v26, {f2u(1/1024):#x}, v26')
    rnd(24, 26)
    A(f'v_add_f32 v26, {f2u(1e-5):#x}, v26'); rnd(26); A('v_sqrt_f32 v26, v26'); rnd(26); A('v_rcp_f32 v26, v26')
    for k in range(4): A(f'v_sub_f32 v{6+k}, v{6+k}, v24')
    rnd(6, 7, 8, 9)
    for k in range(4): A(f'v_mul_f32 v{6+k}, v{6+k}, v26')
    rnd(6, 7, 8, 9)
    A('v_lshlrev_b32 v3, 2, v2')
    loads = []
    for a in range(2):
        for rho in range(4):
            A(f's_mov_b32 s{72 + 4*a + rho}, {WS_PART + rho * PSTR + a * 8192}')
            for k in range(2):
                d = 16 + 32*a + 16*k + 4*rho
                loads.append((d, f'buffer_load_dwordx4 {v(d,4)}, v3, s[56:59], s{72 + 4*a + rho} offen offset:{1024*k} sc1'))
    if p2w is not None: A(f's_waitcnt vmcnt({p2w})')
    lds_spin(C_PROG, 4, 10, sleep=1)
    if tb: A('s_memrealtime s[52:53]')
    if 'p2g' not in cut: tag_gather(loads, 10, cid=0)
    if not sec_late: lds_add(C_P2, 10)
    def sum4(b, dst):
        for j in range(2):
            A(f'v_add_f32 v{b+2*j}, v{b+2*j}, v{b+4+2*j}'); A(f'v_add_f32 v{b+8+2*j}, v{b+8+2*j}, v{b+12+2*j}')
        for j in range(2): A(f'v_add_f32 v{dst+j}, v{b+2*j}, v{b+8+2*j}')
    sum4(16, 96); sum4(32, 98); sum4(48, 100); sum4(64, 102)
    rnd(*range(96, 104))
    for k in range(4): A(f'v_add_f32 v{100+k}, 1.0, v{100+k}')
    rnd(100, 101, 102, 103)
    for k in range(4): A(f'v_mul_f32 v{6+k}, v{6+k}, v{100+k}')
    rnd(6, 7, 8, 9)
    for k in range(4): A(f'v_add_f32 v{6+k}, v{6+k}, v{96+k}')
    A('L_jobcommon:')
    A('v_cvt_pk_bf16_f32 v4, v6, v7'); A('v_cvt_pk_bf16_f32 v5, v8, v9')
    A('s_lshl_b32 s8, s3, 10'); A(f's_add_u32 s8, s8, {L_SCR}')
    A('v_lshl_add_u32 v2, v0, 2, s8')
    A('ds_write2_b32 v2, v4, v5 offset0:0 offset1:64')
    A('v_lshrrev_b32 v3, 4, v0'); A('v_lshlrev_b32 v3, 1, v3'); A('v_and_b32 v6, 1, v0'); A('v_add_u32 v3, v3, v6'); A('v_lshl_add_u32 v3, v3, 4, s8')
    A('s_waitcnt lgkmcnt(0)')
    for G in range(4): A(f'ds_read_b128 {v(32+8*G,4)}, v3 offset:{128*G}')
    A('s_waitcnt lgkmcnt(0)')
    for G in range(4):
        if half and G == 2: A('s_cmp_eq_u32 s65, 3'); A('s_cbranch_scc1 L_halfg')
        A(f's_waitcnt vmcnt({24 - 8*G})')
        if G in (0, 3): xstamp(5 if G == 0 else 6)
        pv(128 + 32 * G, 32 + 8 * G, G == 0)
    if half: A('L_halfg:')
    A('v_lshrrev_b32 v3, 5, v0'); A('v_lshlrev_b32 v3, 8, v3'); A('v_and_b32 v6, 16, v0'); A('v_add3_u32 v3, v3, v6, s8')
    A('v_and_b32 v6, 3, v0'); A('v_lshlrev_b32 v6, 6, v6'); A('v_bfe_u32 v7, v0, 2, 3'); A('v_lshl_add_u32 v6, v7, 2, v6'); A('v_add_u32 v6, s8, v6')
    A('s_mov_b32 exec_lo, 0x00010001'); A('s_mov_b32 exec_hi, 0x00020002')
    for e in range(8): A(f'ds_write_b128 v3, {v(64+4*e,4)} offset:{512 + 32*e}')
    A('s_mov_b32 exec_lo, -1'); A('s_mov_b32 exec_hi, 0')
    A('s_waitcnt lgkmcnt(0)')
    A('ds_read2_b32 v[16:17], v6 offset0:128 offset1:136'); A('ds_read2_b32 v[20:21], v6 offset0:192 offset1:200')
    A('v_lshlrev_b32 v3, 4, v0'); A('v_mov_b32 v19, s46')
    A('s_waitcnt lgkmcnt(0)')
    A('v_add_f32 v18, v17, v21'); A('v_add_f32 v16, v16, v20'); A('v_mov_b32 v17, s46')
    A('buffer_store_dwordx4 v[16:19], v3, s[56:59], s68 offen sc1')
    A('s_mov_b64 exec, -1')
    if 'second' in cut: A('s_branch L_unit_done')
    if half: A('s_bitcmp1_b32 s65, 0')
    else: A('s_cmp_lg_u32 s65, 0')
    A('s_cbranch_scc1 L_unit_done')
    xstamp(7)
    lds_spin(C_P2, 1, 6, sleep=4)
    A('s_mov_b32 s65, 3'); A('s_branch L_unit_rest')
    A('L_unit_done:')
    stamp(1)
    A('L_qgather:')
    if 'qg' in cut: A('s_endpgm')
    def level2(col0, cid):
        six = half and col0 == 2048
        if six: A('v_lshrrev_b32 v1, 3, v0'); A('v_min_u32 v1, 5, v1')
        else: A('v_bfe_u32 v1, v0, 3, 2')
        A(f's_mov_b32 s8, {PSTR}'); A('v_mul_lo_u32 v1, v1, s8'); A('v_and_b32 v2, 7, v0'); A('v_lshl_add_u32 v1, v2, 4, v1')
        A('s_lshl_b32 s8, s2, 7'); A(f's_add_u32 s8, s8, {WS_PART + col0 * 8}')
        tag_gather([(16, 'buffer_load_dwordx4 v[16:19], v1, s[56:59], s8 offen sc1')], 10, sleep=6, cid=cid)
        if six:
            A('v_cmp_gt_u32 vcc, 48, v0')
            for r in (16, 18): A(f'v_cndmask_b32 v{r}, 0, v{r}, vcc')
        for r in (16, 18): A(f'v_add_f32_dpp v{r}, v{r}, v{r} row_ror:8 row_mask:0xf bank_mask:0xf')
        for sw_ in (16, 32) if six else (16,):
            for r in (16, 18): A(f'v_mov_b32 v{r+4}, v{r}')
            for r in (16, 18): A(f'v_permlane{sw_}_swap_b32 v{r}, v{r+4}')
            for r in (16, 18): A(f'v_add_f32 v{r}, v{r}, v{r+4}')
        A('v_cvt_pk_bf16_f32 v16, v16, v18')
    A('s_cmp_eq_u32 s3, 0'); A('s_cbranch_scc1 L_rest2')
    A('s_waitcnt vmcnt(0)')
    level2(6144, 3)
    A('v_lshlrev_b32 v2, 3, v2'); A('s_lshl_b32 s8, s2, 6'); A(f's_add_u32 s8, s8, {WS_Q}')
    A('s_mov_b64 exec, 0xff'); A('buffer_store_dwordx2 v[16:17], v2, s[56:59], s8 offen sc1'); A('s_mov_b64 exec, -1')
    if tb:
        A('v_mov_b32 v18, s52'); A('v_mov_b32 v19, s46'); A('s_lshl_b32 s8, s2, 3'); A(f's_add_u32 s8, s8, {WS_TS}')
        A('s_mov_b64 exec, 1'); A('buffer_store_dwordx2 v[18:19], off, s[56:59], s8 sc1'); A('s_mov_b64 exec, -1')
    if sec_late: lds_add(C_P2, 10)
    xstamp(7)
    lds_spin(C_PROG, 8, 6, sleep=4)
    A('s_lshl_b32 s8, s4, 12'); A(f's_add_u32 s8, s8, {WS_Q}'); A('v_lshlrev_b32 v1, 4, v0')
    ql = [(20+4*n, f'buffer_load_dwordx4 {v(20+4*n,4)}, v1, s[56:59], s8 offen offset:{1024*n} sc1') for n in range(4)]
    if tb:
        A('v_and_b32 v3, 31, v0'); A('v_lshlrev_b32 v3, 4, v3'); A('s_lshl_b32 s10, s4, 9'); A(f's_add_u32 s10, s10, {WS_TS}')
        ql.append((36, 'buffer_load_dwordx4 v[36:39], v3, s[56:59], s10 offen sc1'))
    tag_gather(ql, 10, sleep=6, cid=1)
    if tb:
        A('v_sub_u32 v36, s52, v36'); A('v_sub_u32 v38, s52, v38'); A('v_add_u32 v36, v36, v38'); A('v_cvt_f32_i32 v36, v36')
        row_reduce('v_add_f32', [36]); xg_reduce('v_add_f32', 36, 37)
        A('s_cmp_lt_u32 s2, 128'); A(f's_cselect_b32 s10, {f2u(tbias + tgain * tlo):#x}, s53'); A('s_cmp_ge_u32 s2, 128'); A(f's_cselect_b32 s10, {f2u(tbias - tgain * tlo):#x}, s10')
        A(f'v_mul_f32 v36, {f2u(tgain / 128.0):#x}, v36'); A('v_add_f32 v36, s10, v36'); A('v_cvt_i32_f32 v36, v36')
        A(f'ds_write_b32 v13, v36 offset:{C_LEV}')
    A('v_lshrrev_b32 v2, 1, v1'); A(f'v_add_u32 v2, {L_Q}, v2')
    for n in range(4):
        A(f'v_mov_b32 v{21+4*n}, v{22+4*n}'); A(f'ds_write_b64 v2, {v(20+4*n,2)} offset:{512*n}')
    lds_add(C_Q, 6)
    stamp(2)
    if 'late' in cut: A('s_endpgm')
    A('s_branch L_final_gathers')
    A('L_rest2:')
    if 'late' in cut: A('s_endpgm')
    lds_spin(C_PROG, 12, 6, sleep=8)
    level2(2048, 2)
    A('v_lshlrev_b32 v2, 2, v2'); A('s_lshl_b32 s8, s2, 5'); A(f's_add_u32 s8, s8, {WS_MOD}')
    A('s_mov_b64 exec, 0xff'); A('buffer_store_dword v16, v2, s[56:59], s8 offen sc1'); A('s_mov_b64 exec, -1')
    done_event(6)
    stamp(2)
    if 'nomlp' in cut: A('s_endpgm')
    lds_spin(C_ML, 4, 6, sleep=2)
    A('v_and_b32 v1, 7, v0'); A('v_lshlrev_b32 v1, 3, v1'); A(f'v_add_u32 v2, {L_ML}, v1')
    for w in range(4): A(f'ds_read_b64 {v(16+2*w,2)}, v2 offset:{64*w}')
    A('s_waitcnt lgkmcnt(0)')
    A('v_max_f32 v24, v16, v18'); A('v_max3_f32 v24, v20, v22, v24')
    for w in range(4): A(f'v_sub_f32 v{28+w}, v{16+2*w}, v24')
    for w in range(4): A(f'v_mul_f32 v{28+w}, s64, v{28+w}')
    for w in range(4): A(f'v_exp_f32 v{28+w}, v{28+w}')
    A('v_mul_f32 v26, v28, v17')
    for w in range(1, 4): A(f'v_fmac_f32 v26, v{28+w}, v{17+2*w}')
    A('v_mov_b32_dpp v28, v24 quad_perm:[1,1,3,3] row_mask:0xf bank_mask:0xf')
    A('v_mov_b32 v25, v26'); A('v_mov_b32 v27, s46')
    A('v_mov_b32_dpp v26, v25 quad_perm:[1,1,3,3] row_mask:0xf bank_mask:0xf')
    A('v_cvt_pk_bf16_f32 v24, v24, v28')
    A('v_lshlrev_b32 v1, 9, v0')
    A('s_lshl_b32 s8, s4, 12'); A('s_lshl_b32 s10, s5, 4'); A('s_add_u32 s8, s8, s10'); A(f's_add_u32 s8, s8, {WS_ML}')
    A('s_mov_b64 exec, 0x55'); A('buffer_store_dwordx4 v[24:27], v1, s[56:59], s8 offen sc1')
    A('s_mov_b64 exec, -1')
    stamp(3)
    A('s_branch L_staged')
    A('L_final_gathers:')
    if 'nofin' in cut: A('s_endpgm')
    lds_spin(C_PROG, 16, 6, sleep=8)
    A('v_lshlrev_b32 v1, 4, v0')
    A(f's_mov_b32 s8, {WS_CLR}')
    tag_gather([(16, 'buffer_load_dwordx4 v[16:19], v1, s[56:59], s8 offen sc1')], 10, sleep=16, tagregs=(0, 1, 2, 3), cid=2)
    if 'nodma' in cut: A('s_endpgm')
    def dma(base, dst, cnt):
        for n in range(cnt):
            if n % 4 == 0:
                A(f's_mov_b32 m0, {dst + 1024*n}'); A(f's_mov_b32 s8, {base + 1024*n}')
            A(f'buffer_load_dwordx4 v1, s[56:59], s8 offen offset:{(n % 4) * 1024} sc1 lds')
    dma(WS_MOD, L_CONST + 2048, 6)
    A('s_lshl_b32 s10, s2, 3'); A(f's_add_u32 m0, s10, {L_CONST + 8192}'); A(f's_add_u32 s8, s10, {WS_MOD + 6144}'); A('v_lshlrev_b32 v2, 2, v0')
    A('s_mov_b64 exec, 3'); A('buffer_load_dword v2, s[56:59], s8 offen sc1 lds'); A('s_mov_b64 exec, -1')
    A('s_waitcnt vmcnt(0)')
    lds_add(C_STG, 6)
    stamp(3)
    A('s_branch L_staged')

    A('L_tabwaves:')
    if 'tab' in cut: A('s_endpgm')
    if not tabfirst and not clrfirst: lds_spin(C_U0, 1, 10)
    A('s_cmp_eq_u32 s3, 3'); A('s_cbranch_scc1 L_sw3')
    A('v_mov_b32 v16, -1'); A('v_mov_b32 v17, -1'); A('v_mov_b32 v18, -1'); A('v_mov_b32 v19, -1')
    A('v_lshrrev_b32 v1, 5, v0'); A('v_lshlrev_b32 v1, 15, v1'); A('v_and_b32 v2, 31, v0'); A('v_lshl_add_u32 v1, v2, 4, v1')
    A('s_lshl_b32 s8, s4, 17'); A('s_lshl_b32 s10, s5, 9'); A('s_add_u32 s8, s8, s10'); A(f's_add_u32 s8, s8, {WS_T1}'); A('s_add_u32 s10, s8, 0x10000')
    if 'noclr' in cut: A('s_branch L_tabinit')
    A('buffer_store_dwordx4 v[16:19], v1, s[56:59], s8 offen sc1')
    A('buffer_store_dwordx4 v[16:19], v1, s[56:59], s10 offen sc1')
    A('s_lshl_b32 s8, s6, 11'); A('s_lshl_b32 s10, s7, 7'); A('s_add_u32 s8, s8, s10'); A(f's_add_u32 s8, s8, {WS_T2}')
    A('v_lshrrev_b32 v1, 3, v0'); A('v_lshlrev_b32 v1, 15, v1'); A('v_and_b32 v2, 7, v0'); A('v_lshl_add_u32 v1, v2, 4, v1')
    A('buffer_store_dwordx4 v[16:19], v1, s[56:59], s8 offen sc1')
    A('s_branch L_tabinit')
    A('L_sw3:')
    A('v_lshlrev_b32 v2, 4, v0'); A(f's_mov_b32 m0, {L_CONST}')
    A('global_load_lds_dwordx4 v2, s[16:17]'); A('global_load_lds_dwordx4 v2, s[16:17] offset:1024')
    A('L_tabinit:')
    if clrfirst and not tabfirst: lds_spin(C_U0, 1, 10)
    A('s_and_b32 s8, s2, 127'); A(f's_mul_i32 s8, s8, {NB}'); A(f's_add_u32 s8, s8, {TAB_E0}')
    A('s_lshr_b32 s10, s2, 7'); A('s_lshl_b32 s10, s10, 15'); A('s_add_u32 s8, s8, s10')
    A('v_add_u32 v2, s8, v0'); A('v_lshlrev_b32 v2, 16, v2')
    A(f'v_cmp_gt_u32 vcc, {NB}, v0'); A('v_cndmask_b32 v12, 0, v2, vcc')
    A('s_mov_b32 s65, 0'); A(f's_mov_b32 s69, {1 if "tabc" in cut else NB + 1}'); A('v_mov_b32 v238, 0')
    A('L_mlp:')
    A('s_sub_u32 s8, s3, 2'); A('s_mul_i32 s8, s8, 3584'); A('v_lshl_add_u32 v1, v0, 3, s8')
    for a, ptr in enumerate(('s[28:29]', 's[30:31]', 's[32:33]')):
        for k in range(7):
            if 'tabl' not in cut: A(f'global_load_dwordx2 {v(192 + 14*a + 2*k, 2)}, v1, {ptr} offset:{512*k}')
    A('s_load_dword s47, s[34:35], 0')
    c0 = -2.0 * math.sqrt(2.0 / math.pi) * LOG2E; c1 = c0 * 0.044715
    A(f's_mov_b32 s66, {f2u(c1):#x}'); A(f's_mov_b32 s67, {f2u(3*c1):#x}'); A(f'v_mov_b32 v11, {f2u(c0):#x}')
    A('s_cmp_eq_u32 s65, 1'); A('s_cbranch_scc1 L_mlp_nob0')
    A('s_waitcnt vmcnt(0) lgkmcnt(0)'); A('s_add_u32 s46, s46, 1')
    A('s_cmp_eq_u32 s3, 3'); A('s_cbranch_scc1 L_sw3b')
    lds_add(C_Q, 6)
    done_event(6)
    A('s_branch L_mlp_nob0')
    A('L_sw3b:')
    lds_add(C_STG, 6)
    A('L_mlp_nob0:')
    A('s_waitcnt vmcnt(0) lgkmcnt(0)')
    xstamp(2)
    CO = 24
    A('s_mov_b32 s72, s66'); A('s_mov_b32 s73, s66'); A('s_mov_b32 s74, s67'); A('s_mov_b32 s75, s67'); A('v_mov_b32 v10, v11')
    for r in range(14):
        for a in range(3):
            A(f'v_lshlrev_b32 v{2+2*a}, 16, v{192 + 14*a + r}'); A(f'v_and_b32 v{3+2*a}, s62, v{192 + 14*a + r}')
        c = CO + 12 * r
        A('v_pk_mul_f32 v[8:9], v[2:3], v[2:3]'); A('v_pk_mul_f32 v[16:17], v[4:5], v[4:5]')
        A('v_pk_mul_f32 v[18:19], v[8:9], s[72:73]'); A('v_pk_mul_f32 v[8:9], v[8:9], s[74:75]')
        A('v_pk_fma_f32 v[20:21], v[16:17], s[74:75], v[10:11]'); A('v_pk_fma_f32 v[16:17], v[16:17], s[72:73], v[10:11]')
        A(f'v_pk_mul_f32 {v(c,2)}, v[18:19], v[2:3]'); A(f'v_pk_mul_f32 {v(c+2,2)}, v[8:9], v[4:5]')
        A(f'v_pk_mul_f32 {v(c+4,2)}, v[20:21], v[2:3]'); A(f'v_pk_mul_f32 {v(c+6,2)}, v[16:17], v[4:5]')
        A(f'v_pk_mul_f32 {v(c+8,2)}, v[2:3], v[6:7]'); A(f'v_pk_mul_f32 {v(c+10,2)}, v[4:5], v[6:7]')
    xstamp(3)
    A('s_mov_b32 s68, 0'); A('s_mov_b32 s72, 1.0'); A('s_mov_b32 s73, 1.0')
    A('.p2align 3')
    A('L_mlp_loop:')
    A('v_readlane_b32 s10, v12, s68'); A('v_readlane_b32 s11, v12, s68')
    for q in range(7):
        cs = [CO + 12 * (2*q + d) for d in range(2)]
        for d in range(2): A(f'v_pk_fma_f32 {v(2+2*d,2)}, {v(cs[d],2)}, s[10:11], {v(cs[d]+2,2)}')
        for d in range(2): A(f'v_pk_fma_f32 {v(2+2*d,2)}, {v(2+2*d,2)}, s[10:11], {v(cs[d]+4,2)}')
        for d in range(2): A(f'v_pk_fma_f32 {v(2+2*d,2)}, {v(2+2*d,2)}, s[10:11], {v(cs[d]+6,2)}')
        for d in range(4): A(f'v_exp_f32 v{2+d}, v{2+d}')
        for d in range(2): A(f'v_pk_fma_f32 {v(6+2*d,2)}, {v(cs[d]+8,2)}, s[10:11], {v(cs[d]+10,2)}')
        for d in range(2): A(f'v_pk_add_f32 {v(2+2*d,2)}, {v(2+2*d,2)}, s[72:73]')
        for d in range(4): A(f'v_rcp_f32 v{2+d}, v{2+d}')
        for d in range(2):
            A(f'v_pk_mul_f32 {v(16+2*d,2)}, {v(6+2*d,2)}, {v(2+2*d,2)}' if q == 0 else f'v_pk_fma_f32 {v(16+2*d,2)}, {v(6+2*d,2)}, {v(2+2*d,2)}, {v(16+2*d,2)}')
    A('v_add_f32 v16, v16, v17'); A('v_add_f32 v18, v18, v19'); A('v_add_f32 v16, v16, v18')
    row_reduce('v_add_f32', [16]); xg_reduce('v_add_f32', 16, 17)
    A('v_readfirstlane_b32 s10, v16')
    A('s_mov_b32 m0, s68')
    A('v_writelane_b32 v22, s10, m0')
    A('s_add_u32 s68, s68, 1'); A('s_cmp_lt_u32 s68, s69'); A('s_cbranch_scc1 L_mlp_loop')
    xstamp(4)
    A('s_lshl_b32 s8, s3, 7'); A(f's_add_u32 s8, s8, {L_TP - 256}'); A('v_and_b32 v1, 31, v0'); A('v_lshl_add_u32 v2, v1, 2, s8')
    A('s_mov_b32 exec_lo, -1'); A('s_mov_b32 exec_hi, 0'); A('ds_write_b32 v2, v22')
    A('s_waitcnt lgkmcnt(0)')
    A('s_lshl_b32 s8, s65, 2'); A('v_add_u32 v3, s8, v13')
    A('s_mov_b64 exec, 1'); A('v_mov_b32 v6, 1'); A(f'ds_add_rtn_u32 v6, v3, v6 offset:{C_TAB}'); A('s_mov_b64 exec, -1')
    A('s_waitcnt lgkmcnt(0)')
    A('v_readfirstlane_b32 s8, v6')
    A('s_cmp_eq_u32 s8, 1'); A('s_cbranch_scc1 L_mlp_last')
    A('s_cmp_eq_u32 s65, 0'); A('s_cbranch_scc1 L_staged')
    A('s_branch L_fin')
    A('L_mlp_last:')
    A(f'v_lshlrev_b32 v2, 2, v1'); A(f'v_add_u32 v2, {L_TP}, v2')
    A('ds_read2_b32 v[16:17], v2 offset0:0 offset1:32')
    A('s_lshl_b32 s47, s47, 16')
    A('s_waitcnt lgkmcnt(0)')
    A('v_add_f32 v16, v16, v17'); rnd(16); A('v_add_f32 v16, s47, v16'); rnd(16)
    A('s_cmp_eq_u32 s65, 1'); A('s_cbranch_scc1 L_output')
    A('v_mov_b32_dpp v17, v16 quad_perm:[1,1,3,3] row_mask:0xf bank_mask:0xf')
    A('v_cvt_pk_bf16_f32 v18, v16, v17')
    A('v_lshlrev_b32 v2, 1, v0'); A(f's_mul_i32 s8, s2, {2*NB}'); A(f's_add_u32 s8, s8, {WS_TAB}')
    A(f's_mov_b64 exec, {0x55555555 & ((1 << NB) - 1):#x}'); A('buffer_store_dword v18, v2, s[56:59], s8 offen sc1')
    A(f's_mov_b64 exec, {1 << NB:#x}'); A(f'ds_write_b16 v13, v18 offset:{L_TABLE + 512 * NB - LM}')
    A('s_mov_b64 exec, -1')
    done_event(6)
    stamp(3)

    A('L_staged:')
    if prio: A('s_setprio 0')
    if cut and 'keepml' not in cut: A('s_endpgm')
    lds_spin(C_STG, 2, 6, sleep=4)
    A('s_add_u32 s9, s3, 4')
    A('v_mov_b32 v243, 0x3f80')
    prep('s9')
    if not allrep: A('s_lshl_b32 s72, s6, 11'); A('s_lshl_b32 s10, s7, 7'); A('s_add_u32 s72, s72, s10'); A(f's_add_u32 s72, s72, {WS_T2}')
    lds_spin(C_PROG, 20, 6, sleep=2)
    A('s_lshl_b32 s8, s4, 12'); A('s_lshl_b32 s10, s3, 10'); A('s_add_u32 s8, s8, s10'); A(f's_add_u32 s8, s8, {WS_ML}')
    A('v_lshlrev_b32 v1, 4, v0')
    tag_gather([(24, 'buffer_load_dwordx4 v[24:27], v1, s[56:59], s8 offen sc1')], 10, sleep=6, cid=4, tagregs=(3, 3))
    A('v_lshlrev_b32 v16, 16, v24'); A('v_and_b32 v20, s62, v24'); A('v_mov_b32 v18, v25'); A('v_mov_b32 v22, v26')
    stamp(4)
    A('v_and_b32 v3, 3, v0'); A('v_bfe_u32 v2, v0, 2, 1'); A('v_lshlrev_b32 v7, 6, v3'); A('v_lshl_add_u32 v7, v2, 3, v7')
    A('s_lshl_b32 s8, s3, 4'); A(f's_add_u32 s8, s8, {L_ML}'); A('v_add_u32 v7, s8, v7')
    A('ds_read_b32 v8, v7')
    A('v_mov_b32 v17, v16'); A('v_mov_b32 v21, v20')
    row_reduce('v_max_f32', [17, 21]); xg_reduce('v_max_f32', 17, 19); xg_reduce('v_max_f32', 21, 19)
    for r in (16, 20):
        A(f'v_sub_f32 v{r}, v{r}, v{r+1}'); A(f'v_mul_f32 v{r}, s64, v{r}'); A(f'v_exp_f32 v{r}, v{r}')
    A('v_mul_f32 v18, v16, v18'); A('v_mul_f32 v22, v20, v22')
    row_reduce('v_add_f32', [18, 22]); xg_reduce('v_add_f32', 18, 19); xg_reduce('v_add_f32', 22, 19)
    A('v_cmp_eq_u32 vcc, 1, v2'); A('v_cndmask_b32 v17, v17, v21, vcc'); A('v_cndmask_b32 v18, v18, v22, vcc')
    A('v_rcp_f32 v18, v18')
    A('s_waitcnt lgkmcnt(0)')
    A('v_sub_f32 v8, v8, v17'); A('v_mul_f32 v8, s64, v8'); A('v_exp_f32 v8, v8'); A('v_mul_f32 v8, v8, v18')
    A('s_lshl_b32 s8, s3, 5'); A(f's_add_u32 s8, s8, {L_FAC}'); A('v_lshl_add_u32 v7, v0, 2, s8')
    A('s_mov_b64 exec, 0xff'); A('ds_write_b32 v7, v8'); A('s_mov_b64 exec, -1')
    if rep8:
        A('v_and_b32 v8, 12, v0'); A('v_lshlrev_b32 v8, 2, v8'); A('v_lshrrev_b32 v2, 5, v0'); A('v_lshl_add_u32 v8, v2, 6, v8')
        A('v_and_b32 v2, 3, v0'); A('v_lshl_add_u32 v8, v2, 15, v8'); A('v_and_b32 v2, 16, v0'); A('v_lshl_add_u32 v8, v2, 13, v8')
    else:
        A('v_and_b32 v8, 15, v0'); A('v_lshlrev_b32 v8, 2, v8'); A('v_lshrrev_b32 v2, 5, v0'); A('v_lshl_add_u32 v8, v2, 6, v8')
    A('s_add_u32 s3, s3, 4')
    A('s_waitcnt lgkmcnt(0)')
    stamp(5)
    if cut: A('s_endpgm')
    A('s_barrier')

    A('L_tail:')
    A('s_barrier')
    if not allrep: A('s_cmp_lg_u32 s3, 4'); A('s_cbranch_scc1 L_notw4')
    for w in range(2): A(f'ds_read_b128 {v(16+4*w,4)}, {"v229" if allrep else "v1"} offset:{L_RED2 + 1024*w}')
    A('s_waitcnt lgkmcnt(0)')
    A('v_pk_add_f32 v[16:17], v[16:17], v[20:21]'); A('v_pk_add_f32 v[18:19], v[18:19], v[22:23]')
    for e in range(2): A(f'v_permlane32_swap_b32 v{16+e}, v{18+e}')
    A('v_pk_add_f32 v[16:17], v[16:17], v[18:19]')
    A('v_mov_b32 v18, v16'); A('v_mov_b32 v19, v17')
    for e in range(2): A(f'v_permlane16_swap_b32 v{16+e}, v{18+e}')
    A('v_pk_add_f32 v[16:17], v[16:17], v[18:19]')
    A('v_cvt_pk_bf16_f32 v16, v16, v17')
    A('v_min_u32 v16, -2, v16')
    if allrep:
        A('s_mov_b32 exec_lo, 0xffff'); A('s_mov_b32 exec_hi, 0xffff')
        A('buffer_store_dword v16, v230, s[56:59], s72 offen sc1')
        A('s_mov_b64 exec, -1')
        A('s_cmp_eq_u32 s3, 5'); A('s_cbranch_scc1 L_notw4')
    elif rep8:
        for c in range(4): A(f'v_mov_b32_dpp v{32+c}, v16 quad_perm:[{c},{c},{c},{c}] row_mask:0xf bank_mask:0xf')
        A('buffer_store_dwordx4 v[32:35], v8, s[56:59], s72 offen sc1')
    else:
        A('s_mov_b32 exec_lo, 0xffff'); A('s_mov_b32 exec_hi, 0xffff')
        A('buffer_store_dword v16, v8, s[56:59], s72 offen sc1')
        A('s_mov_b64 exec, -1')
    if t2wait == 0: A('s_waitcnt vmcnt(0)')
    def tab_cold():
        A('L_notw4:')
        A('s_cmp_lg_u32 s3, 5'); A('s_cbranch_scc1 L_t2wait')
        dma(WS_TAB, L_TABLE, NB // 2)
        A('s_branch L_t2wait')
    COLD.append(tab_cold)
    A('L_t2wait:')
    if b3:
        A('s_barrier')
        if t2wait > 1: A(f's_sleep {t2wait - 1}')
        if t2x: A(f's_sleep {t2x}')
    stamp(7)
    def t2_load(n):
        A(f's_add_u32 s8, s75, {8192 * n}')
        A(f'buffer_load_dwordx4 {v(16+4*n,4)}, v244, s[56:59], s8 offen sc1')
    for n in range(4): t2_load(n)
    A(f's_mov_b32 s66, {f2u(1/1024):#x}'); A(f's_mov_b32 s67, {f2u(1/1024):#x}')
    sweep('t2', 4, t2_load, lambda k: 16 + 4*k, 240, 6)
    stamp(8)
    rnd(240, 241)
    A('v_pk_mul_f32 v[240:241], v[250:251], v[240:241]'); rnd(240, 241)
    A('v_pk_add_f32 v[240:241], v[248:249], v[240:241]'); rnd(240, 241)
    def stats(a, b, lds_off):
        A(f'v_add_f32 v46, v{a}, v{b}'); A(f'v_mul_f32 v47, v{a}, v{a}'); A(f'v_fmac_f32 v47, v{b}, v{b}')
        A('v_permlane32_swap_b32 v46, v47'); A('v_add_f32 v46, v46, v47')
        A('v_mov_b32 v47, v46'); A('v_permlane16_swap_b32 v46, v47'); A('v_add_f32 v46, v46, v47')
        row_reduce('v_add_f32', [46])
        A('s_mov_b32 exec_lo, 1'); A('s_mov_b32 exec_hi, 1')
        A(f'ds_write_b32 v246, v46 offset:{lds_off}')
        A('s_mov_b64 exec, -1')
        A('s_waitcnt lgkmcnt(0)')
        A('s_barrier')
    def stats_read(lds_off):
        for k in range(4): A(f'ds_read_b128 {v(48+4*k,4)}, v247 offset:{lds_off + 16*k}')
    def stats_calc(pending):
        for k in range(4):
            A(f's_waitcnt lgkmcnt({3 - k + pending})'); A(f'v_pk_add_f32 {v(48+4*k,2)}, {v(48+4*k,2)}, {v(50+4*k,2)}')
        A('v_pk_add_f32 v[48:49], v[48:49], v[52:53]'); A('v_pk_add_f32 v[56:57], v[56:57], v[60:61]')
        A('v_pk_add_f32 v[46:47], v[48:49], v[56:57]')
        A('v_pk_mul_f32 v[46:47], v[46:47], s[66:67]')
        A('v_fma_f32 v47, -v46, v46, v47'); A('v_max_f32 v47, 0, v47'); rnd(47)
        A(f'v_add_f32 v47, {f2u(1e-5):#x}, v47'); rnd(47); A('v_sqrt_f32 v47, v47'); rnd(46); rnd(47); A('v_rcp_f32 v47, v47')
    stats(240, 241, L_ST1)
    stats_read(L_ST1); stats_calc(0)
    A('v_sub_f32 v42, v240, v46'); A('v_sub_f32 v43, v241, v46'); rnd(42, 43)
    A('v_mul_f32 v42, v42, v47'); A('v_mul_f32 v43, v43, v47'); rnd(42, 43)
    A('v_pk_mul_f32 v[42:43], v[42:43], v[254:255]'); rnd(42, 43)
    A('v_pk_add_f32 v[42:43], v[42:43], v[252:253]'); rnd(42, 43)
    A('s_mov_b64 exec, s[76:77]'); A('ds_write2_b32 v245, v42, v240 offset0:0 offset1:1')
    A('s_mov_b64 exec, s[78:79]'); A('ds_write2_b32 v245, v43, v241 offset0:0 offset1:1')
    A('s_mov_b64 exec, -1')
    stats(42, 43, L_ST2)
    A('s_cmp_lt_u32 s3, 6'); A('s_cbranch_scc1 L_early')
    stats_read(L_ST2)
    A(f'ds_read_b64 v[236:237], v231 offset:{L_OWN}')
    stats_calc(1)
    A('s_waitcnt lgkmcnt(0)')
    A('v_sub_f32 v12, v236, v46'); rnd(12); A('v_mul_f32 v12, v12, v47'); rnd(12)
    stamp(9)
    A('v_bfe_u32 v3, v12, 16, 15'); A('v_lshrrev_b32 v4, 31, v12'); A(f'v_subrev_u32 v5, {TAB_E0}, v3')
    A('v_cmp_eq_u32 s[70:71], 0, v3'); A(f'v_cmp_lt_u32 vcc, {128 * NB - 1}, v5')
    A(f'v_mul_u32_u24 v4, {128 * NB}, v4'); A('v_add_u32 v5, v4, v5'); A(f'v_mov_b32 v4, {256 * NB}'); A('v_cndmask_b32 v5, v5, v4, s[70:71]')
    A('v_lshl_add_u32 v5, v5, 1, v13')
    A(f'ds_read_u16 v16, v5 offset:{L_TABLE - LM}')
    A('s_andn2_b64 vcc, vcc, s[70:71]')
    A('s_branch L_fallback' if force_fb else 's_cbranch_vccnz L_fallback')
    A('s_cmp_lg_u32 s3, 6'); A('s_cbranch_scc1 L_fin')
    A('s_waitcnt lgkmcnt(0)')
    A('v_lshlrev_b32 v16, 16, v16')
    A('L_output:')
    A('v_mul_f32 v16, v239, v16'); rnd(16)
    A('v_add_f32 v16, v237, v16'); A('v_cvt_pk_bf16_f32 v16, v16, v16')
    A('s_mov_b64 exec, 15')
    A('global_store_short v238, v16, s[40:41]')
    A('s_mov_b64 exec, -1')
    A('s_branch L_fin')
    A('L_fallback:')
    A('s_waitcnt lgkmcnt(0)')
    A('s_sub_u32 s3, s3, 4'); A('s_mov_b32 s65, 1'); A('s_mov_b32 s69, 4')
    A('s_branch L_mlp')
    for c in COLD: c()
    A('L_early:')
    A('s_cmp_lg_u32 s3, 4'); A('s_cbranch_scc1 L_fin')
    A('s_cmp_lg_u32 s2, 0'); A('s_cbranch_scc1 L_fin')
    A('s_mov_b64 exec, 1'); A('v_mov_b32 v16, s46'); A(f's_mov_b32 s8, {WS_EPOCH}')
    A('buffer_store_dword v16, v247, s[56:59], s8 offen')
    A('s_mov_b64 exec, -1')
    A('L_fin:')
    if endstamp:
        A('s_waitcnt vmcnt(0)')
        A('s_memrealtime s[100:101]'); A('s_waitcnt lgkmcnt(0)')
        A('v_mov_b32 v61, v15')
        for k in range(11): A(f'v_writelane_b32 v61, s{80+2*k}, {k}')
        A('s_lshl_b32 s8, s2, 3'); A('s_add_u32 s8, s8, s3'); A('s_lshl_b32 s8, s8, 7'); A(f's_add_u32 s8, s8, {WS_STAMP}')
        A('v_lshlrev_b32 v1, 2, v0'); A('s_mov_b32 exec_lo, -1'); A('s_mov_b32 exec_hi, 0')
        A('buffer_store_dword v61, v1, s[56:59], s8 offen')
    A('L_end:')
    A('s_endpgm')
    A('.section .rodata,"a"'); A('.p2align 6'); A(f'.amdhsa_kernel {NAME}_kernel')
    A('.amdhsa_next_free_vgpr 256'); A('.amdhsa_next_free_sgpr 102'); A('.amdhsa_accum_offset 256')
    A('.amdhsa_group_segment_fixed_size 0'); A('.amdhsa_kernarg_size 120'); A('.amdhsa_user_sgpr_count 2')
    A('.amdhsa_user_sgpr_kernarg_segment_ptr 1'); A('.amdhsa_system_sgpr_workgroup_id_x 1')
    A('.amdhsa_float_denorm_mode_32 3')
    A('.end_amdhsa_kernel')
    txt, nn = A.finish()
    return txt

if __name__ == '__main__':
    kw = eval('dict(%s)' % (sys.argv[2] if len(sys.argv) > 2 else ''))
    open(sys.argv[1], 'w').write(gen(**kw))
```

```python
import sys, struct, math
from asmlib import Asm
NAME = 'adaLN_cond__gqa_block_cached__mixer_token_mlp__decode'

def f2u(x): return struct.unpack('<I', struct.pack('<f', x))[0]
LOG2E = 1.4426950408889634

WS_Q = 0x20000
WS_TS = 0x2A000
WS_MOD, WS_TAB, WS_ML, WS_T2, WS_CLR, WS_EPOCH = 0x0, 0x8000, 0x10000, 0xC0000, 0x28000, 0x29000
WS_RANK, WS_PART, WS_T1, WS_STAMP = 0x280000, 0x40000, 0x100000, 0x200000
PSTR = 10240 * 8
LM = 131072
C_Q, C_ML, C_PROG, C_STG, C_TAB, C_FB, C_DONE, C_P2, C_GO, C_U0, C_LEV = 4, 8, 12, 16, 20, 24, 28, 32, 36, 40, 44
L_ML = LM + 256
L_FAC = LM + 512
L_TP = LM + 768
L_Q = LM + 1024
L_CONST = LM + 3072
NB = 20
L_TABLE = LM + 13312
L_SCR = LM + 13312 + 512 * NB + 256
LDS_BYTES = 163840
OSTRIDE = 528
L_RED2 = 8192
L_ST1 = 8192 + 2048
L_ST2 = 8192 + 2048 + 64
L_OWN = 8192 + 2048 + 128
TAB_E0 = (130 - NB) << 7

SPIN_CAP = 0x40000

def gen(DA=5, DB=5, diag=False, wo_late=True, q_at=46, fin_at=38, ml_at=54, pub4=True, force_fb=False, prio=True, early=3, cut=(), gmap='hi', swz=True, WU=20, DH=0, cps=(3, 23, 42), thr=44, b1b=True, wo_at=63, bump=(), pf='part', lev=(4, 5, 6, 8), thrs=((16, 40, 56),), wo_mode='prog', b3=True, satom=True, rd=4, touch='', tabfirst=False, t1_delay=3, lite=False, rep8=True, wos=(1, 2, 3, 3, 4, 4, 6, 8), wothr=4, t2wait=0, rstr=1152, DS=5, trajA=False, hu=16, hg=14, p2w=0, t2x=0, psl=(0, 0), l2_at=30, clrfirst=False, sec_late=True, r2_at=0, p2_at=12, lin=0, lagb=(-2.5, 1.5, 4.0), lastt=60, percu=False, nshb=2, rr=(2, 5), wsh=2, smooth=1, wo_after=0, tb=0, tgain=0.42, tbias=0, tlo=0, tslow=0, half=True, gswap=True, allrep=True, t1x=0, fcp=0, fa=48, fsh=0, probe=None):
    A = Asm()
    endstamp = diag or lite
    if lite: diag = False
    COLD = []
    def stamp(k):
        if diag:
            A(f's_memrealtime s[{80+2*k}:{81+2*k}]'); A('s_waitcnt lgkmcnt(0)')
    def xstamp(k):
        if diag:
            A('s_memrealtime s[100:101]'); A('s_waitcnt lgkmcnt(0)'); A(f'v_writelane_b32 v15, s100, {16 + k}')
    def v(a, n=1): return f'v{a}' if n == 1 else f'v[{a}:{a+n-1}]'
    def rnd(*regs):
        for a in regs: A(f'v_cvt_pk_bf16_f32 v{a}, 0, v{a}')
    def lds_spin(off, target, vt, sleep=1, vaddr=13):
        l0 = A.lab('spin'); l1 = A.lab('spun')
        A('s_mov_b32 s14, 0')
        A(f'{l0}:')
        A(f'ds_read_b32 v{vt}, v{vaddr} offset:{off}'); A('s_waitcnt lgkmcnt(0)')
        A(f'v_readfirstlane_b32 s15, v{vt}')
        A(f's_cmp_ge_u32 s15, {target}'); A(f's_cbranch_scc1 {l1}')
        if sleep: A(f's_sleep {sleep}')
        A('s_add_u32 s14, s14, 1'); A(f's_cmp_lt_u32 s14, {SPIN_CAP}'); A(f's_cbranch_scc1 {l0}')
        A(f'{l1}:')
    def lds_add(off, vt, vaddr=13):
        A('s_waitcnt lgkmcnt(0)')
        A('s_mov_b64 exec, 1'); A(f'v_mov_b32 v{vt}, 1'); A(f'ds_add_u32 v{vaddr}, v{vt} offset:{off}'); A('s_mov_b64 exec, -1')
    def done_event(vt):
        l1 = A.lab('nodone')
        A('s_waitcnt vmcnt(0) lgkmcnt(0)')
        A('s_mov_b64 exec, 1'); A(f'v_mov_b32 v{vt}, 1'); A(f'ds_add_rtn_u32 v{vt}, v13, v{vt} offset:{C_DONE}')
        A('s_waitcnt lgkmcnt(0)')
        A(f'v_readfirstlane_b32 s8, v{vt}')
        A('s_cmp_lg_u32 s8, 2'); A(f's_cbranch_scc1 {l1}')
        A('s_lshl_b32 s8, s2, 2'); A(f's_add_u32 s8, s8, {WS_CLR}'); A(f'v_mov_b32 v{vt}, s46')
        A(f'buffer_store_dword v{vt}, v0, s[56:59], s8 offen sc1')
        A(f'{l1}:')
        A('s_mov_b64 exec, -1')
    def tag_gather(loads, vt, sleep=2, tagregs=(1, 3), cid=None):
        l0 = A.lab('tg'); l1 = A.lab('tgok')
        A('s_mov_b32 s14, 0')
        A(f'{l0}:')
        for d, txt in loads: A(txt)
        A('s_waitcnt vmcnt(0)')
        regs = [d + r for d, txt in loads for r in tagregs]
        A(f'v_min_u32 v{vt}, v{regs[0]}, v{regs[1]}'); A(f'v_max_u32 v{vt+1}, v{regs[0]}, v{regs[1]}')
        for k in range(2, len(regs), 2):
            A(f'v_min3_u32 v{vt}, v{regs[k]}, v{regs[k+1]}, v{vt}'); A(f'v_max3_u32 v{vt+1}, v{regs[k]}, v{regs[k+1]}, v{vt+1}')
        A(f'v_cmp_ne_u32 vcc, s46, v{vt}'); A(f'v_cmp_ne_u32 s[70:71], s46, v{vt+1}'); A('s_or_b64 vcc, vcc, s[70:71]')
        A(f's_cbranch_vccz {l1}')
        if sleep: A(f's_sleep {sleep}')
        A('s_add_u32 s14, s14, 1'); A(f's_cmp_lt_u32 s14, {SPIN_CAP}'); A(f's_cbranch_scc1 {l0}')
        A(f'{l1}:')
        if diag and cid is not None: A(f'v_writelane_b32 v15, s14, {11 + cid}')
    def xg_reduce(op, a, t):
        A(f'v_mov_b32 v{t}, v{a}'); A(f'v_permlane32_swap_b32 v{a}, v{t}'); A(f'{op} v{a}, v{a}, v{t}')
        A(f'v_mov_b32 v{t}, v{a}'); A(f'v_permlane16_swap_b32 v{a}, v{t}'); A(f'{op} v{a}, v{a}, v{t}')
    def row_reduce(op, regs):
        for sh in (8, 4, 2, 1):
            for a in regs: A(f'{op}_dpp v{a}, v{a}, v{a} row_ror:{sh} row_mask:0xf bank_mask:0xf')
    def pv(Vb, P, first, ds=range(8), O=64, T=96):
        ds = list(ds)
        def perms(d):
            for m in range(4):
                A(f'v_perm_b32 v{T+4*d+m}, v{Vb+8*m+4+(d>>1)}, v{Vb+8*m+(d>>1)}, s{60+(d&1)}')
        perms(ds[0])
        for k, d in enumerate(ds):
            if k + 1 < len(ds): perms(ds[k+1])
            c = '0' if first else v(O+4*d, 4)
            A(f'v_mfma_f32_16x16x32_bf16 {v(O+4*d,4)}, {v(T+4*d,4)}, {v(P,4)}, {c}')
    def sweep(name, n, load, dreg, acc, vt, extra=0, accfn=None, mid=None):
        def check(k):
            d = dreg(k)
            A(f'v_max3_u32 v{vt}, v{d}, v{d+1}, v{d+2}'); A(f'v_max_u32 v{vt}, v{vt}, v{d+3}'); A(f'v_cmp_eq_u32 vcc, -1, v{vt}')
        def mf(k):
            if accfn: accfn(k)
            else: A(f'v_mfma_f32_16x16x32_bf16 {v(acc,4)}, v[232:235], {v(dreg(k),4)}, {v(acc,4)}')
        A('s_mov_b32 s13, 0')
        for k in range(n):
            A(f's_waitcnt vmcnt({n-1-k+extra})')
            check(k)
            A(f's_cbranch_vccnz L_{name}_miss{k}')
            mf(k)
            A(f'L_{name}_back{k}:')
        if mid: mid()
        if diag:
            xstamp(10 if name == 't1' else 12); A('s_mov_b32 s14, 0'); A('s_bcnt1_i32_b32 s8, s13'); A(f'v_writelane_b32 v15, s8, {27 if name == "t1" else 29}')
        A('s_cmp_lg_u32 s13, 0'); A(f's_cbranch_scc1 L_{name}_retry')
        A(f'L_{name}_done:')
        if diag: A(f'v_writelane_b32 v15, s14, {30 if name == "t1" else 31}')
        def cold():
            for k in range(n):
                A(f'L_{name}_miss{k}:'); A(f's_bitset1_b32 s13, {k}'); A(f's_branch L_{name}_back{k}')
            A(f'L_{name}_retry:')
            A('s_mov_b32 s14, 0')
            A(f'L_{name}_loop:')
            if psl[name == 't2']: A(f's_sleep {psl[name == "t2"]}')
            for k in range(n):
                A(f's_bitcmp0_b32 s13, {k}'); A(f's_cbranch_scc1 L_{name}_nl{k}')
                load(k)
                A(f'L_{name}_nl{k}:')
            A('s_waitcnt vmcnt(0)')
            for k in range(n):
                A(f's_bitcmp0_b32 s13, {k}'); A(f's_cbranch_scc1 L_{name}_nc{k}')
                check(k)
                A(f's_cbranch_vccnz L_{name}_nc{k}')
                mf(k); A(f's_bitset0_b32 s13, {k}')
                A(f'L_{name}_nc{k}:')
            A('s_cmp_eq_u32 s13, 0'); A(f's_cbranch_scc1 L_{name}_out')
            A('s_add_u32 s14, s14, 1'); A(f's_cmp_lt_u32 s14, {SPIN_CAP}'); A(f's_cbranch_scc1 L_{name}_loop')
            A(f'L_{name}_out:')
            A('s_nop 4')
            A(f's_branch L_{name}_done')
        COLD.append(cold)
    def rb_calc():
        if gmap == 'lo':
            A('s_lshl_b32 s6, s4, 1'); A('s_bfe_u32 s8, s2, 0x10002'); A('s_add_u32 s6, s6, s8')
        else:
            A('s_and_b32 s6, s2, 7')
        A('s_lshl_b32 s6, s6, 1'); A('s_lshr_b32 s8, s2, 7'); A('s_add_u32 s6, s6, s8')
    def prep(wreg):
        A('v_lshrrev_b32 v4, 4, v0'); A('v_and_b32 v5, 15, v0')
        A('v_lshlrev_b32 v244, 11, v4'); A('v_lshl_add_u32 v244, v5, 4, v244')
        A(f's_lshl_b32 s75, {wreg}, 8'); A(f's_add_u32 s75, s75, {WS_T2}')
        if rep8: A('s_and_b32 s8, s2, 7'); A('s_lshl_b32 s8, s8, 15'); A('s_add_u32 s75, s75, s8')
        A('v_lshrrev_b32 v6, 3, v5'); A('v_lshlrev_b32 v6, 6, v6'); A('v_and_b32 v8, 1, v4'); A('v_lshl_add_u32 v6, v8, 5, v6')
        A('v_and_b32 v8, 4, v5'); A('v_lshl_add_u32 v6, v8, 2, v6'); A('v_and_b32 v8, 3, v5'); A('v_lshl_add_u32 v6, v8, 1, v6')
        A('v_lshrrev_b32 v9, 1, v4'); A(f's_lshl_b32 s8, {wreg}, 7'); A('v_add3_u32 v6, v6, v9, s8')
        A('v_lshrrev_b32 v9, 2, v6'); A('v_cmp_eq_u32 s[76:77], s2, v9'); A('v_add_u32 v9, 2, v9'); A('v_cmp_eq_u32 s[78:79], s2, v9')
        A('v_and_b32 v9, 3, v6'); A('v_lshlrev_b32 v245, 3, v9'); A(f'v_add_u32 v245, {L_OWN}, v245')
        A('v_lshlrev_b32 v231, 3, v8')
        A('v_lshlrev_b32 v6, 1, v6'); A(f'v_add_u32 v6, {L_CONST}, v6')
        for a in range(4):
            for e in range(2): A(f'ds_read_u16 v{248+2*a+e}, v6 offset:{2048*a + 16*e}')
        A('s_lshl_b32 s8, s2, 3'); A('v_lshl_add_u32 v238, v8, 1, s8'); A(f'v_add_u32 v9, {L_CONST + 8192}, v238')
        A('ds_read_u16 v239, v9')
        A('v_and_b32 v7, 1, v5')
        A('v_lshrrev_b32 v246, 5, v0'); A('v_lshlrev_b32 v246, 2, v246'); A(f's_lshl_b32 s8, {wreg}, 3'); A('v_add_u32 v246, s8, v246')
        A('v_mov_b32 v247, 0')
        if allrep:
            A('v_lshlrev_b32 v229, 4, v0')
            A('v_lshlrev_b32 v230, 2, v5'); A('v_lshrrev_b32 v9, 5, v0'); A('v_lshl_add_u32 v230, v9, 6, v230')
            A('s_lshl_b32 s72, s6, 11'); A('s_lshl_b32 s8, s7, 7'); A('s_add_u32 s72, s72, s8'); A(f's_lshl_b32 s8, {wreg}, 15'); A('s_add_u32 s72, s72, s8')
            A(f's_add_u32 s72, s72, {WS_T2}')
        A('v_lshlrev_b32 v7, 4, v7'); A('v_lshlrev_b32 v7, v7, v243')
        A('v_and_b32 v8, 14, v5')
        for m in range(4):
            A(f'v_cmp_eq_u32 vcc, {4*m}, v8'); A(f'v_cndmask_b32 v{232+m}, 0, v7, vcc')
        for k in range(4): A(f'v_mov_b32 v{240+k}, 0')
        A('s_waitcnt lgkmcnt(0)')
        for k in range(8): A(f'v_lshlrev_b32 v{248+k}, 16, v{248+k}')
        A('v_lshlrev_b32 v239, 16, v239')
        A('v_add_f32 v254, 1.0, v254'); A('v_add_f32 v255, 1.0, v255'); rnd(254, 255)

    A(f'; @launch grid=(256,1,1) block=(512,1,1) lds={LDS_BYTES}')
    A('.amdgcn_target "amdgcn-amd-amdhsa--gfx950"')
    A('.text'); A(f'.globl {NAME}_kernel'); A('.p2align 8'); A(f'.type {NAME}_kernel,@function')
    A(f'{NAME}_kernel:')
    A('s_cmp_ge_u32 s2, 256'); A('s_cbranch_scc1 L_end')
    A('v_lshrrev_b32 v1, 6, v0'); A('v_and_b32 v0, 63, v0'); A('v_readfirstlane_b32 s3, v1')
    A('s_cmp_lg_u32 s3, 7'); A('s_cbranch_scc1 L_noinit')
    A('v_mov_b32 v14, 0'); A('v_lshlrev_b32 v15, 2, v0'); A(f'v_add_u32 v15, {LM}, v15'); A('ds_write_b32 v15, v14')
    A('s_waitcnt lgkmcnt(0)')
    A('L_noinit:')
    A('s_load_dwordx16 s[16:31], s[0:1], 0')
    A('s_load_dwordx8 s[32:39], s[0:1], 64')
    A('s_load_dwordx4 s[40:43], s[0:1], 96')
    A('s_load_dwordx2 s[44:45], s[0:1], 112')
    if endstamp: A('s_memrealtime s[80:81]')
    A('s_bfe_u32 s4, s2, 0x20001')
    A('s_lshr_b32 s5, s2, 3'); A('s_and_b32 s7, s5, 15')
    A('s_and_b32 s8, s2, 1'); A('s_lshl_b32 s8, s8, 5'); A('s_or_b32 s5, s5, s8')
    if gmap == 'hi': A('s_lshr_b32 s4, s2, 6'); A('s_and_b32 s5, s2, 63')
    if gmap == 'lo': A('s_and_b32 s4, s2, 3'); A('s_lshr_b32 s5, s2, 2')
    A('s_mov_b32 s51, 0x20000'); A('s_mov_b32 s55, 0x20000')
    A('s_cmp_lt_u32 s3, 4'); A('s_cbranch_scc1 L_attn')
    A('s_barrier')
    A('s_branch L_service')
    A('L_attn:')

    A('s_getpc_b64 s[70:71]')
    A('L_pcref:')
    if pf == 'all':
        A('s_lshl_b32 s8, s3, 13')
        A('v_lshl_add_u32 v1, v0, 7, s8'); A('v_min_u32 v1, L_end-L_pcref, v1')
        A('global_load_dword v12, v1, s[70:71]')
    else:
        A('s_lshl_b32 s8, s7, 2'); A('s_add_u32 s8, s8, s3'); A('s_lshl_b32 s8, s8, 9')
        A('v_lshl_add_u32 v1, v0, 7, s8'); A('v_min_u32 v1, L_end-L_pcref, v1')
        A('s_mov_b64 exec, 15'); A('global_load_dword v12, v1, s[70:71]'); A('s_mov_b64 exec, -1')
    A('s_barrier')
    A('s_lshl_b32 s9, s5, 2'); A('s_add_u32 s9, s9, s3'); A('s_lshl_b32 s9, s9, 13')
    A('s_lshl_b32 s8, s4, 24'); A('s_add_u32 s9, s9, s8')
    A('s_lshl_b32 s12, s3, 15')
    A('v_lshrrev_b32 v13, 4, v0'); A('v_and_b32 v14, 15, v0')
    A('v_lshlrev_b32 v15, 2, v13'); A('v_xor_b32 v1, v14, v15'); A('v_lshlrev_b32 v1, 4, v1')
    A('v_lshl_add_u32 v1, v13, 8, v1')
    A('v_xor_b32 v2, 16, v1'); A('v_xor_b32 v3, 32, v1'); A('v_xor_b32 v4, 48, v1')
    A('v_lshlrev_b32 v5, 4, v0')
    if not swz:
        for r in range(1, 5): A(f'v_mov_b32 v{r}, v5')
    A('s_mov_b32 s50, 0x4000000'); A('s_mov_b32 s54, 0x4000000')
    A('s_mov_b32 s60, 0x05040100'); A('s_mov_b32 s61, 0x07060302')
    A(f's_mov_b32 s63, {f2u(128 ** -0.5):#x}'); A(f's_mov_b32 s64, {f2u(LOG2E):#x}')
    A('s_mov_b32 s58, 0x400000'); A('s_mov_b32 s59, 0x20000')
    A('v_and_b32 v6, 3, v14'); A('v_lshlrev_b32 v6, 2, v6'); A('v_lshrrev_b32 v15, 2, v14'); A('v_add_u32 v6, v6, v15')
    A('v_lshlrev_b32 v6, 8, v6'); A('v_xor_b32 v15, v13, v14'); A('v_lshl_add_u32 v6, v15, 4, v6'); A('v_add_u32 v6, s12, v6')
    A('v_xor_b32 v7, 64, v6'); A('v_xor_b32 v8, 0x80, v6'); A('v_xor_b32 v9, 0xc0, v6')
    A(f'v_mov_b32 v13, {LM}')
    A('s_waitcnt lgkmcnt(0)')
    A('s_mov_b32 s48, s18'); A('s_mov_b32 s49, s19'); A('s_mov_b32 s52, s20'); A('s_mov_b32 s53, s21')
    A('s_mov_b32 s56, s44'); A('s_mov_b32 s57, s45'); A('s_mov_b32 s66, s24'); A('s_mov_b32 s67, s25')
    def touches():
        A('s_bfe_u32 s8, s2, 0x50003'); A('s_lshl_b32 s10, s8, 21'); A('s_and_b32 s11, s10, 0x600000')
        A('s_cmp_ge_u32 s3, 2'); A('s_cbranch_scc1 L_touch23')
        A('s_cmp_eq_u32 s3, 1'); A('s_cbranch_scc1 L_touch1')
        A('s_mul_i32 s10, s8, 0x60000')
        A('s_load_dword s72, s[38:39], s10'); A('s_load_dword s73, s[36:37], 0'); A('s_load_dword s74, s[16:17], 0')
        A('s_branch L_touched')
        A('L_touch1:')
        A('s_load_dword s72, s[22:23], s11'); A(f's_load_dword s73, s[44:45], {WS_EPOCH}'); A('s_load_dword s74, s[24:25], s11')
        A('s_branch L_touched')
        A('L_touch23:')
        A('s_cmp_eq_u32 s3, 3'); A('s_cbranch_scc1 L_touch3')
        A('s_load_dword s72, s[28:29], 0'); A('s_load_dword s73, s[30:31], 0'); A('s_load_dword s74, s[32:33], 0'); A('s_load_dword s75, s[34:35], 0')
        A('s_branch L_touched')
        A('L_touch3:')
        A('s_load_dword s72, s[20:21], s10'); A('s_load_dword s73, s[40:41], 0')
        if 'k' in touch: A('s_load_dword s74, s[18:19], s10')
        A('L_touched:')
    if 'a' in touch: touches()
    issued = [0]
    TS = 64 * 4 * 8192
    if tb: lev = None
    LEV = list(lev) if lev else ([DB, DH] if DH else [DB])
    def throttle(D, boost):
        for a, b_, d in bump:
            if a <= issued[0] < b_: D = d; boost = False
        if issued[0] < D: return
        if boost and tb:
            l = A.lab('go'); L_ = issued[0] - 64
            A(f's_waitcnt vmcnt({tb-1})'); A(f's_cmp_gt_i32 s13, {L_}'); A(f's_cbranch_scc1 {l}'); A(f's_waitcnt vmcnt({D-1})')
            if tslow: A(f's_cmp_ge_i32 s13, {-tslow - L_}'); A(f's_cbranch_scc1 {l}'); A(f's_waitcnt vmcnt({D-2})')
            A(f'{l}:')
        elif boost:
            l = A.lab('go')
            for k in range(len(LEV) - 1, -1, -1):
                A(f's_waitcnt vmcnt({LEV[k]-1})')
                if k == len(LEV) - 1: A(f's_cbranch_vccnz {l}')
                elif k > 0: A(f's_cmp_eq_u32 s13, {k}'); A(f's_cbranch_scc1 {l}')
            A(f'{l}:')
        else: A(f's_waitcnt vmcnt({D-1})')
    def kload(t, n, D, boost=False):
        if n % 4 == 0:
            A(f's_add_u32 m0, s12, {(t % 4) * 8192 + (n // 4) * 4096}')
            A(f's_add_u32 s10, s9, {t * TS + (n // 4) * 4096}')
        throttle(D, boost)
        A(f'buffer_load_dwordx4 v{1 + n % 4}, s[48:51], s10 offen offset:{(n % 4) * 1024} nt lds')
        issued[0] += 1
    def vload(t, e, D, boost=False):
        if e % 4 == 0:
            A(f's_add_u32 s10, s9, {t * TS + (e // 4) * 4096}')
        throttle(D, boost)
        A(f'buffer_load_dwordx4 {v(128 + 32 * (t % 4) + 4 * e, 4)}, v5, s[52:55], s10 offen offset:{(e % 4) * 1024} nt')
        issued[0] += 1
    for t in range(4):
        for n in range(8):
            if issued[0] == early:
                if 'b' in touch: touches(); A(f's_add_u32 s10, s9, {t * TS + (n // 4) * 4096}')
                if 'svc' not in cut: lds_spin(C_GO, 1, 14)
            if diag and trajA and (issued[0] % 8 == 0 or issued[0] == early) and issued[0] >= early:
                A('s_memrealtime s[100:101]'); A('s_waitcnt lgkmcnt(0)'); A(f's_mov_b32 s{24 + issued[0] // 8}, s100')
            kload(t, n, DA)
            if issued[0] in (p2_at, q_at): lds_add(C_PROG, 14)
    for t in range(4):
        for e in range(8):
            if diag and trajA and issued[0] % 8 == 0:
                A('s_memrealtime s[100:101]'); A('s_waitcnt lgkmcnt(0)'); A(f's_mov_b32 s{24 + issued[0] // 8}, s100')
            vload(t, e, DA)
            if issued[0] in (p2_at, q_at): lds_add(C_PROG, 14)
    stamp(1)
    if not cut: lds_spin(C_Q, 2, 14)
    A('v_and_b32 v14, 7, v0'); A('v_lshlrev_b32 v14, 8, v14'); A('v_lshrrev_b32 v15, 4, v0'); A('v_lshl_add_u32 v14, v15, 4, v14')
    A(f'v_add_u32 v14, {L_Q}, v14')
    if tb:
        A(f'ds_read_b32 v15, v13 offset:{C_LEV}'); A('s_waitcnt lgkmcnt(0)'); A('v_readfirstlane_b32 s13, v15')
        if diag: A('s_mov_b32 s32, s13')
    for s in range(4): A(f'ds_read_b128 {v(16+4*s,4)}, v14 offset:{64*s}')
    stamp(2)
    satom_pending = [False]
    def qk(t):
        assert not satom_pending[0], t
        off = (t % 4) * 8192
        for hb in range(2):
            for s in range(4): A(f'ds_read_b128 {v(96+16*hb+4*s,4)}, v{6+s} offset:{off + hb*4096}')
        for hb in range(2):
            S = 32 + 8 * (t % 4) + 4 * hb
            for s in range(4):
                A(f's_waitcnt lgkmcnt({7 - 4*hb - s})')
                c = '0' if s == 0 else v(S, 4)
                A(f'v_mfma_f32_16x16x32_bf16 {v(S,4)}, {v(96+16*hb+4*s,4)}, {v(16+4*s,4)}, {c}')
    def rscale(t):
        S = 32 + 8 * (t % 4)
        rnd(*range(S, S + 8))
        for k in range(8): A(f'v_mul_f32 v{S+k}, s63, v{S+k}')
        rnd(*range(S, S + 8))
        if t == 0: A(f'v_max_f32 v15, v{S}, v{S+1}')
        elif t == 4: A(f'v_max3_f32 v15, v{S}, v{S+1}, v10')
        else: A(f'v_max3_f32 v15, v{S}, v{S+1}, v15')
        for k in range(1, 4): A(f'v_max3_f32 v15, v{S+2*k}, v{S+2*k+1}, v15')
    def rescale_o():
        A('v_mov_b32 v17, v16')
        for k in range(16): A(f'v_pk_mul_f32 {v(64+2*k,2)}, {v(64+2*k,2)}, v[16:17]')
    def mfin(second, now=True):
        xg_reduce('v_max_f32', 15, 14)
        if second:
            A('v_sub_f32 v16, v10, v15'); A('v_mul_f32 v16, s64, v16'); A('v_exp_f32 v16, v16')
        A('v_mov_b32 v10, v15'); A('v_mul_f32 v12, s64, v15')
        if second:
            A('v_mul_f32 v11, v11, v16')
            if now: rescale_o()
    def expo(t):
        S = 32 + 8 * (t % 4)
        for k in range(8): A(f'v_fma_f32 v{S+k}, v{S+k}, s64, -v12')
        for k in range(8): A(f'v_exp_f32 v{S+k}, v{S+k}')
        A(f'v_add_f32 v96, v{S}, v{S+1}'); A(f'v_add_f32 v97, v{S+2}, v{S+3}'); A(f'v_add_f32 v98, v{S+4}, v{S+5}'); A(f'v_add_f32 v99, v{S+6}, v{S+7}')
        for k in range(4): A(f'v_cvt_pk_bf16_f32 v{S+k}, v{S+2*k}, v{S+2*k+1}')
        A('v_add_f32 v96, v96, v97'); A('v_add_f32 v98, v98, v99')
        if t == 0: A('v_add_f32 v11, v96, v98')
        else: A('v_add_f32 v96, v96, v98'); A('v_add_f32 v11, v11, v96')
    def pvt(t, half):
        pv(128 + 32 * (t % 4), 32 + 8 * (t % 4), t == 0, range(4 * half, 4 * half + 4))
    def publish_ml():
        xg_reduce('v_add_f32', 11, 14)
        A('v_lshrrev_b32 v14, 1, v5'); A('s_lshl_b32 s8, s3, 6'); A(f's_add_u32 s8, s8, {L_ML}'); A('v_add_u32 v14, s8, v14')
        A('s_mov_b64 exec, 0xff'); A('ds_write_b64 v14, v[10:11]'); A('s_mov_b64 exec, -1')
        lds_add(C_ML, 14)
    sched = {i: [] for i in range(-1, 64)}
    def put(pos, fn, landed=None): sched[pos].append((fn, landed))
    put(-1, lambda: qk(0))
    put(0, lambda: qk(1)); put(1, lambda: qk(2)); put(2, lambda: qk(3))
    for t in range(4): put(3 + t, (lambda t=t: rscale(t)))
    put(7, lambda: mfin(False))
    for t in range(4): put(8 + t, (lambda t=t: expo(t)))
    for t in range(4):
        for h in range(2): put(12 + 2 * t + h, (lambda t=t, h=h: pvt(t, h)), -1)
    DM = max(LEV + [tb] + [d for a, b_, d in bump if b_ > 64])
    CP = list(cps) if len(LEV) > 1 else []
    THR = [list(t) for t in thrs] if thrs else [[thr]] * len(CP)
    if len(THR) == 1: THR = THR * len(CP)
    def opi(L): return L + sum(1 for c in CP if c <= L) if (L >= 0 and not satom) else L
    def landed_after(posn, m_op): return posn >= 0 and opi(posn) - DM >= m_op
    def first_pos(m, lo):
        for L in range(lo, 64):
            if opi(L) - (DS or DM) >= opi(m): return L
        return 63
    pos = {4: first_pos(7, 20), 5: first_pos(15, 22), 6: first_pos(23, 24), 7: first_pos(31, 26)}
    for t in range(4, 8):
        put(pos[t], (lambda t=t: qk(t)), 8 * (t - 4) + 7)
        put(pos[t] + (1 if (t < 7 or smooth) else 0), (lambda t=t: rscale(t)))
    if smooth:
        b = pos[7] + 1
        put(b, lambda: mfin(True, False))
        put(b + 1, lambda: (expo(4), expo(5)))
        put(b + 2, lambda: (expo(6), expo(7)))
        put(b + 3, publish_ml)
        put(b + 4, rescale_o)
        b += 3
    else:
        b = pos[7] + 1
        put(b, lambda: (mfin(True), expo(4)))
        put(b + 1, lambda: (expo(5), expo(6), expo(7), publish_ml()))
    p4 = min(first_pos(39, b + 2), 62)
    put(p4, lambda: pvt(4, 0), 39); put(min(p4 + 1, 63), lambda: pvt(4, 1))
    p5 = min(first_pos(47, min(p4 + 2, 63)), 63)
    put(p5, lambda: pvt(5, 0), 47); put(min(p5 + 1, 63), lambda: pvt(5, 1))
    def endsetup():
        A('v_lshrrev_b32 v28, 5, v0'); A('s_lshl_b32 s8, s3, 1'); A('v_add_u32 v28, s8, v28')
        A(f'v_mul_u32_u24 v20, {OSTRIDE}, v28')
        A('v_lshlrev_b32 v28, 4, v28'); A(f'v_add_u32 v28, {L_FAC}, v28')
        A('v_and_b32 v21, 31, v0'); A('v_lshl_add_u32 v20, v21, 4, v20')
        A('v_add_u32 v21, 0x10000, v20')
        A('v_and_b32 v22, 15, v0'); A(f'v_mul_u32_u24 v22, {OSTRIDE}, v22'); A('v_lshrrev_b32 v23, 4, v0'); A('v_lshl_add_u32 v22, v23, 4, v22')
        A('v_add_u32 v22, s12, v22')
        A('v_lshlrev_b32 v1, 15, v23'); A('v_bfe_u32 v2, v0, 3, 1'); A('v_lshl_add_u32 v1, v2, 12, v1')
        A('v_and_b32 v4, 7, v0'); A('v_lshl_add_u32 v1, v4, 4, v1')
        A('v_lshrrev_b32 v2, 3, v0'); A('v_lshlrev_b32 v2, 9, v2'); A('v_lshl_add_u32 v2, v4, 4, v2')
        if gswap: A('v_and_b32 v3, 16, v0'); A('v_lshlrev_b32 v3, 4, v3'); A('v_lshlrev_b32 v4, 2, v4')
        else: A('v_lshrrev_b32 v3, 5, v0'); A('v_lshlrev_b32 v3, 8, v3'); A('v_and_b32 v4, 16, v0')
        A('s_lshl_b32 s8, s3, 9'); A(f's_add_u32 s8, s8, {L_RED2}')
        A('v_add3_u32 v3, v3, v4, s8')
        A('v_lshlrev_b32 v23, 3, v0')
        rb_calc()
        A('s_mov_b32 s48, s66'); A('s_mov_b32 s49, s67'); A('s_mov_b32 s50, 0x800000')
        A('s_lshl_b32 s73, s6, 8'); A('s_lshr_b32 s8, s3, 1'); A('s_lshl_b32 s8, s8, 7'); A('s_add_u32 s73, s73, s8')
        A('s_and_b32 s8, s3, 1'); A('s_lshl_b32 s8, s8, 2'); A('s_add_u32 s73, s73, s8'); A('s_lshl_b32 s73, s73, 11')
        A('s_lshl_b32 s8, s7, 7'); A('s_add_u32 s73, s73, s8')
        A('s_lshl_b32 s74, s6, 15'); A('s_lshl_b32 s8, s3, 7'); A('s_add_u32 s74, s74, s8'); A(f's_add_u32 s74, s74, {WS_T1}')
    put(60, endsetup)
    def t1slot():
        A('s_lshl_b32 s8, s4, 2'); A('s_add_u32 s8, s8, s3'); A('s_lshl_b32 s8, s8, 15'); A('s_lshl_b32 s11, s5, 9'); A('s_add_u32 s11, s11, s8')
        A(f's_add_u32 s11, s11, {WS_T1}')
    put(63, t1slot)
    assert satom and (not CP or max(CP) < 63)
    def run(posn):
        for fn, landed in sched[posn]:
            if landed is not None and not landed_after(posn, opi(landed)):
                A(f's_waitcnt vmcnt({opi(posn) - opi(landed)})')
            fn()
    if CP:
        A('s_mov_b64 vcc, 0'); A(f's_mov_b32 s13, {LEV.index(DB)}')
        A(f's_bfe_u32 s11, s2, {(wsh << 16) | 3:#x}'); A('s_lshl_b32 s11, s11, 2'); A('s_add_u32 s11, s11, s3'); A(f's_mul_i32 s11, s11, {rstr}')
        if percu:
            if nshb: A(f's_bfe_u32 s11, s2, {(nshb << 16) | 3:#x}'); A(f's_mul_i32 s11, s11, {rstr}')
            else: A('s_mov_b32 s11, 0')
        A(f's_add_u32 s11, s11, {WS_RANK}')
    if lin:
        CP = []
        step = lin // 8
        ticks = [L for L in range(0, lastt + 1) if L % step == 0]
        A('s_lshr_b32 s68, s2, 5'); A('s_add_u32 s68, s68, s2'); A('s_and_b32 s68, s68, 7')
    ctl = bool(CP) or bool(lin) or bool(tb)
    run(-1)
    pend = []; reads = set()
    for L in range(64):
        if lin and L in ticks:
            l = A.lab('nt')
            A(f's_cmp_lg_u32 s68, {(L // step) % 8}'); A(f's_cbranch_scc1 {l}')
            A('s_mov_b32 s47, 1'); A('s_atomic_add s47, s[44:45], s11 glc')
            A(f'{l}:')
        if diag and not trajA and L % 8 == 0:
            A('s_memrealtime s[100:101]'); A('s_waitcnt lgkmcnt(0)'); A(f's_mov_b32 s{24 + L // 8}, s100')
        if fcp and L == fcp:
            A('s_mov_b32 s69, 1'); A(f's_atomic_add s69, s[44:45], s11 offset:{64 * rstr * len(CP)} glc')
        if L in CP:
            if satom:
                if percu: l = A.lab('w0'); A('s_cmp_lg_u32 s3, 0'); A(f's_cbranch_scc1 {l}')
                A('s_mov_b32 s47, 1')
                A(f's_atomic_add s47, s[44:45], s11 offset:{64 * rstr * CP.index(L)} glc')
                if percu: A(f'{l}:')
                pend.append((L + rd, CP.index(L))); satom_pending[0] = True
            else:
                A('s_mov_b64 exec, 1'); A('v_mov_b32 v0, 1')
                A(f'buffer_atomic_add v0, off, s[56:59], s11 offset:{2048 * (CP.index(L) & 1)} sc0')
                A('s_mov_b64 exec, -1')
                if CP.index(L) & 1: A('s_add_u32 s11, s11, 4096')
                pend.append((opi(L) - 1, CP.index(L)))
        if L < 32: kload(4 + L // 8, L % 8, DB, ctl)
        else: vload(4 + (L - 32) // 8, L % 8, DB, ctl)
        if lin and (L - rd) in ticks:
            T = L - rd; l = A.lab('nr')
            sync = 8 * ticks.index(T) + 4; smax = 8 * len(ticks); slope = 8.0 / step
            th = [int(min(max(round(sync + slope * b_), 2 + 2 * k), smax - 2 - 3 * (len(lagb) - 1 - k))) for k, b_ in enumerate(lagb)]
            assert len(th) == len(LEV) - 1
            A(f's_cmp_lg_u32 s68, {(T // step) % 8}'); A(f's_cbranch_scc1 {l}')
            A('s_waitcnt lgkmcnt(0)')
            A('s_mov_b32 s13, 0')
            for k, t_ in enumerate(th[:-1]):
                A(f's_cmp_ge_u32 s47, {t_}'); A(f's_cselect_b32 s13, {k+1}, s13')
            A(f's_cmp_ge_u32 s47, {th[-1]}'); A('s_cselect_b64 vcc, -1, 0')
            A(f'{l}:')
        if pend and (L == pend[0][0] if satom else landed_after(L, pend[0][0])):
            th = THR[pend.pop(0)[1]]
            assert len(th) == len(LEV) - 1
            if percu:
                satom_pending[0] = False
                sc = (256 >> nshb) / 64.0
                l = A.lab('w0'); A('s_cmp_lg_u32 s3, 0'); A(f's_cbranch_scc1 {l}')
                A('s_waitcnt lgkmcnt(0)')
                A(f's_mov_b32 s8, {-LEV.index(DB)}')
                for k, t_ in enumerate(th):
                    A(f's_cmp_ge_u32 s47, {int(t_ * sc)}'); A(f's_cselect_b32 s8, {k + 1 - LEV.index(DB)}, s8')
                A('v_mov_b32 v14, s8'); A(f'ds_write_b32 v13, v14 offset:{C_LEV}')
                A(f'{l}:')
                for r_ in rr: reads.add(L + r_)
            else:
                if satom: A('s_waitcnt lgkmcnt(0)'); A('s_mov_b32 s8, s47'); satom_pending[0] = False
                else: A('v_readfirstlane_b32 s8, v0'); A('v_writelane_b32 v0, 0, 0')
                if diag: A(f's_mov_b32 s{32 + len(CP) - len([c for c in CP if c > L]) - 1}, s8')
                th = [int(round(t_ * (256 >> wsh) / 64.0)) for t_ in th]
                A('s_mov_b32 s13, 0')
                for k, t_ in enumerate(th[:-1]):
                    A(f's_cmp_ge_u32 s8, {t_}'); A(f's_cselect_b32 s13, {k+1}, s13')
                A(f's_cmp_ge_u32 s8, {th[-1]}'); A('s_cselect_b64 vcc, -1, 0')
        if L in reads:
            A(f'ds_read_b32 v14, v13 offset:{C_LEV}'); A('s_waitcnt lgkmcnt(0)')
            A('v_readfirstlane_b32 s13, v14'); A(f's_add_u32 s13, s13, {LEV.index(DB)}')
            A(f's_cmp_eq_u32 s13, {len(LEV) - 1}'); A('s_cselect_b64 vcc, -1, 0')
        if L in (r2_at, fin_at, ml_at): lds_add(C_PROG, 14)
        run(L)
    assert not pend and (not lin or lastt + rd <= 63)
    stamp(3)
    NWO = [0]
    def woload():
        n = NWO[0]; m, hh = n >> 1, n & 1
        row = 64 * (m & 1) + 8 * hh + (m >> 1)
        A(f's_add_u32 s10, s73, {row * 2048}')
        A(f'buffer_load_dwordx4 {v(128 + 4*n, 4)}, v1, s[48:51], s10 offen nt')
        NWO[0] += 1; issued[0] += 1
    def wo_upto(k):
        while NWO[0] < k:
            if NWO[0] < wothr: throttle(DB, ctl)
            woload()
    wo_upto(wos[0])
    A(f's_waitcnt vmcnt({8 + NWO[0]})')
    pvt(6, 0); wo_upto(wos[1]); pvt(6, 1); wo_upto(wos[2])
    Vb = 128 + 96; P = 32 + 24
    for m in range(3):
        A(f's_waitcnt vmcnt({6 - 2*m + NWO[0]})')
        for d in range(8): A(f'v_perm_b32 v{96+4*d+m}, v{Vb+8*m+4+(d>>1)}, v{Vb+8*m+(d>>1)}, s{60+(d&1)}')
        wo_upto(wos[3 + m])
    A(f's_waitcnt vmcnt({NWO[0]})')
    stamp(4)
    if cut:
        for k in range(8): A(f'v_writelane_b32 v15, s{24+k}, {16+k}')
        A('s_branch L_fin')
    for d in range(8): A(f'v_perm_b32 v{96+4*d+3}, v{Vb+28+(d>>1)}, v{Vb+24+(d>>1)}, s{60+(d&1)}')
    for d in range(8): A(f'v_mfma_f32_16x16x32_bf16 {v(64+4*d,4)}, {v(96+4*d,4)}, {v(P,4)}, {v(64+4*d,4)}')
    wo_upto(wos[6])
    A('s_mov_b32 exec_lo, 0x00ff00ff'); A('s_mov_b32 exec_hi, 0x00ff00ff')
    for d in range(8): A(f'ds_write_b128 v22, {v(64+4*d,4)} offset:{64*d}')
    A('s_mov_b64 exec, -1')
    wo_upto(wos[7])
    assert NWO[0] == 8 - wo_after
    A('s_waitcnt lgkmcnt(0)')
    A('s_barrier')
    A('ds_read_b128 v[16:19], v28')
    A('ds_read_b128 v[32:35], v20'); A('ds_read_b128 v[36:39], v20 offset:32768')
    A('ds_read_b128 v[40:43], v21'); A('ds_read_b128 v[44:47], v21 offset:32768')
    for w in range(4):
        A(f's_waitcnt lgkmcnt({3-w})')
        for k in range(4):
            if w == 0: A(f'v_mul_f32 v{32+k}, v{32+k}, v16')
            else: A(f'v_fmac_f32 v{32+k}, v{32+4*w+k}, v{16+w}')
    A('v_cvt_pk_bf16_f32 v24, v32, v33'); A('v_cvt_pk_bf16_f32 v25, v34, v35')
    A('v_min_u32 v24, -2, v24'); A('v_min_u32 v25, -2, v25')
    if pub4:
        A('v_mov_b32_dpp v26, v24 quad_perm:[1,1,3,3] row_mask:0xf bank_mask:0xf')
        A('v_mov_b32_dpp v27, v25 quad_perm:[1,1,3,3] row_mask:0xf bank_mask:0xf')
        A('s_mov_b32 exec_lo, 0x55555555'); A('s_mov_b32 exec_hi, 0x55555555')
        A('buffer_store_dwordx4 v[24:27], v23, s[56:59], s11 offen sc1')
        A('s_mov_b64 exec, -1')
    else:
        A('buffer_store_dwordx2 v[24:25], v23, s[56:59], s11 offen sc1')
    stamp(5)
    if diag:
        for k in range(8): A(f'v_writelane_b32 v15, s{24+k}, {16+k}')
        for k in range(5): A(f'v_writelane_b32 v15, s{32+k}, {11+k}')
        A('s_load_dwordx16 s[16:31], s[0:1], 0'); A('s_load_dwordx8 s[32:39], s[0:1], 64'); A('s_waitcnt lgkmcnt(0)')
    def t1_load(n):
        A(f's_add_u32 s8, s74, {4096 * n}')
        A(f'buffer_load_dwordx4 {v(160+4*n,4)}, v2, s[56:59], s8 offen sc1')
    def wo_perms(ms=range(4)):
        for e in range(8):
            for m in ms:
                A(f'v_perm_b32 v{192 + 4*e + m}, v{128 + 8*m + 4 + (e >> 1)}, v{128 + 8*m + (e >> 1)}, s{60 + (e & 1)}')
    if wo_after:
        if t1_delay == 0:
            for n in range(8): t1_load(n)
            wo_upto(8)
        A('v_mov_b32 v243, 0x3f80')
        prep('s3')
        for k in range(4): A(f'v_mov_b32 v{60+k}, 0')
        if t1_delay == 1:
            for n in range(8): t1_load(n)
            wo_upto(8)
        xstamp(8)
        mdone = (8 - wo_after) // 2
        A(f's_waitcnt vmcnt({9 + wo_after})'); wo_perms(range(mdone))
        xstamp(9)
        sweep('t1', 8, t1_load, lambda k: 160 + 4*k, 60, 6, extra=wo_after, mid=lambda: (A('s_waitcnt vmcnt(0)'), wo_perms(range(mdone, 4))))
    else:
        if t1_delay == 0:
            for n in range(8): t1_load(n)
        A('v_mov_b32 v243, 0x3f80')
        prep('s3')
        for k in range(4): A(f'v_mov_b32 v{60+k}, 0')
        if t1_delay == 1:
            for n in range(8): t1_load(n)
        xstamp(8)
        if t1_delay >= 2:
            A('s_waitcnt vmcnt(1)'); wo_perms()
            if t1_delay == 3: A('s_waitcnt vmcnt(0)')
            if t1x: A(f's_sleep {t1x}')
            if fcp:
                A(f's_sub_i32 s69, {fa}, s69')
                if fsh: A(f's_ashr_i32 s8, s69, {fsh}'); A('s_sub_i32 s69, s69, s8')
                A('L_bk:'); A('s_cmp_le_i32 s69, 0'); A('s_cbranch_scc1 L_bkd'); A('s_sleep 1'); A('s_sub_i32 s69, s69, 1'); A('s_branch L_bk')
                A('L_bkd:')
            for n in range(8): t1_load(n)
        else:
            A('s_waitcnt vmcnt(9)'); wo_perms()
        xstamp(9)
        sweep('t1', 8, t1_load, lambda k: 160 + 4*k, 60, 6)
    stamp(6)
    for e in range(2): A(f'v_add_f32_dpp v{60+e}, v{60+e}, v{60+e} row_ror:8 row_mask:0xf bank_mask:0xf')
    A('v_cvt_pk_bf16_f32 v60, v60, v61')
    for c in range(4): A(f'v_mov_b32_dpp v{224+c}, v60 quad_perm:[{c},{c},{c},{c}] row_mask:0xf bank_mask:0xf')
    if gswap:
        for e in range(8):
            A(f'v_mfma_f32_16x16x32_bf16 {v(64+4*e,4)}, v[224:227], {v(192+4*e,4)}, 0')
        A('s_mov_b32 exec_lo, 0xff0000ff'); A('s_mov_b32 exec_hi, 0')
        for e in range(0, 8, 2): A(f'ds_write2_b32 v3, v{64+4*e}, v{68+4*e} offset0:{8*e} offset1:{8*e+8}')
    else:
        for e in range(8):
            A(f'v_mfma_f32_16x16x32_bf16 {v(64+4*e,4)}, {v(192+4*e,4)}, v[224:227], 0')
        A('s_mov_b32 exec_lo, 0x00010001'); A('s_mov_b32 exec_hi, 0x00100010')
        for e in range(8): A(f'ds_write_b128 v3, {v(64+4*e,4)} offset:{32*e}')
    A('s_mov_b64 exec, -1')
    A('s_waitcnt lgkmcnt(0)')
    A('s_branch L_tail')

    A('L_service:')
    if 'svc' in cut: A('s_endpgm')
    A('s_sub_u32 s3, s3, 4')
    rb_calc()
    A('s_mov_b32 s60, 0x05040100'); A('s_mov_b32 s61, 0x07060302'); A('s_mov_b32 s62, 0xffff0000')
    A(f's_mov_b32 s64, {f2u(LOG2E):#x}')
    A('s_mov_b32 s58, 0x400000'); A('s_mov_b32 s59, 0x20000')
    A(f'v_mov_b32 v13, {LM}')
    A('s_waitcnt lgkmcnt(0)')
    A('s_mov_b32 s56, s44'); A('s_mov_b32 s57, s45')
    xstamp(0)
    A(f's_load_dword s46, s[44:45], {WS_EPOCH}')
    A('s_mov_b32 s65, s3')
    A('s_cmp_eq_u32 s3, 0'); A('s_cbranch_scc0 L_notsw0')
    if prio: A('s_setprio 3')
    A('s_cmp_lt_u32 s2, 128'); A('s_cbranch_scc1 L_unit_p1')
    A('s_mov_b32 s65, 2')
    A('s_branch L_unit_rest')
    A('L_notsw0:')
    A('s_cmp_ge_u32 s3, 2'); A('s_cbranch_scc1 L_tabwaves')
    A('L_unit_q:')
    if prio: A('s_setprio 2')
    A('s_movk_i32 s66, 0x2000'); A('s_and_b32 s67, s2, 63'); A('s_lshr_b32 s69, s2, 6'); A('s_add_u32 s68, s67, 96')
    A('s_mov_b32 s48, s22'); A('s_mov_b32 s49, s23'); A('s_mov_b32 s70, s16'); A('s_mov_b32 s71, s17')
    A('s_branch L_unit')
    A('L_unit_rest:')
    A('s_and_b32 s67, s2, 63'); A('s_add_u32 s67, s67, 32'); A('s_lshr_b32 s69, s2, 6')
    A('s_branch L_unit_mod')
    A('L_unit_p1:')
    if DH or lev:
        A(f's_mul_i32 s8, s2, {4 * rstr}'); A(f's_add_u32 s8, s8, {WS_RANK}')
        A(f'v_mul_u32_u24 v1, {rstr}, v0'); A('v_mov_b32 v2, 0')
        A('s_mov_b64 exec, 15'); A('buffer_store_dword v2, v1, s[56:59], s8 offen sc1'); A('s_mov_b64 exec, -1')
    A('s_and_b32 s67, s2, 31'); A('s_lshr_b32 s69, s2, 5')
    A('L_unit_mod:')
    A('s_movk_i32 s66, 0x3000'); A('s_mov_b32 s68, s67')
    A('s_mov_b32 s48, s38'); A('s_mov_b32 s49, s39'); A('s_mov_b32 s70, s36'); A('s_mov_b32 s71, s37')
    A('L_unit:')
    A('s_lshl_b32 s50, s66, 10'); A('s_lshl_b32 s67, s67, 7')
    A('v_lshrrev_b32 v1, 3, v0'); A('v_lshlrev_b32 v1, 3, v1'); A('v_mul_lo_u32 v1, v1, s66')
    A('v_and_b32 v2, 7, v0'); A('v_lshl_add_u32 v1, v2, 4, v1')
    A('s_lshl_b32 s54, s69, 8')
    if half:
        A('s_lshl_b32 s8, s69, 7'); A('s_and_b32 s10, s69, 2'); A('s_add_u32 s10, s10, s69')
        A('s_cmp_eq_u32 s65, 3'); A('s_cselect_b32 s54, s8, s54'); A('s_cselect_b32 s69, s10, s69')
    A('s_mul_i32 s10, s54, s66'); A('s_add_u32 s10, s10, s67')
    A('s_mul_i32 s11, s66, 57')
    A('s_lshl_b32 s8, s54, 1'); A('v_lshl_add_u32 v2, v0, 2, s8')
    A('v_lshlrev_b32 v3, 5, v0')
    A('s_cmp_lg_u32 s65, 1'); A('s_cbranch_scc1 L_nob0a')
    lds_spin(C_U0, 1, 10)
    A('global_load_dwordx4 v[16:19], v3, s[16:17]'); A('global_load_dwordx4 v[20:23], v3, s[16:17] offset:16')
    A('L_nob0a:')
    A('global_load_dword v4, v2, s[70:71]'); A('global_load_dword v5, v2, s[70:71] offset:256')
    for G in range(4):
        if half and G == 2: A('s_cmp_eq_u32 s65, 3'); A('s_cbranch_scc1 L_halfl')
        for r in range(8):
            if WU and 8*G + r >= WU: A(f's_waitcnt vmcnt({WU-1})')
            A(f'buffer_load_dwordx4 {v(128+32*G+4*r,4)}, v1, s[48:51], s10 offen nt')
            if not (G == 3 and r == 7): A(f's_add_u32 s10, s10, {"s11" if r == 7 else "s66"}')
    if half:
        A('s_branch L_fulll')
        A('L_halfl:'); A('s_waitcnt vmcnt(0)')
        A('L_fulll:')
    A('s_lshl_b32 s68, s68, 9'); A(f's_mul_i32 s8, s69, {PSTR}'); A('s_add_u32 s68, s68, s8'); A(f's_add_u32 s68, s68, {WS_PART}')
    A('s_cmp_eq_u32 s65, 3'); A('s_cbranch_scc1 L_nob0')
    A('s_cmp_eq_u32 s65, 1'); A('s_cbranch_scc1 L_go')
    if hu < 36: A(f's_waitcnt vmcnt({hu})')
    lds_add(C_U0, 10)
    A('s_branch L_went')
    A('L_go:')
    if hg < 36: A(f's_waitcnt vmcnt({hg})')
    lds_add(C_GO, 10)
    A('L_went:')
    A('s_waitcnt lgkmcnt(0)'); A('s_add_u32 s46, s46, 1')
    A('L_nob0:')
    xstamp(3)
    A('s_waitcnt vmcnt(32)')
    xstamp(4)
    A('v_lshlrev_b32 v6, 16, v4'); A('v_and_b32 v7, s62, v4'); A('v_lshlrev_b32 v8, 16, v5'); A('v_and_b32 v9, s62, v5')
    A('s_cmp_eq_u32 s65, 1'); A('s_cbranch_scc1 L_jobq')
    for k in range(4): A(f'v_mul_f32 v{24+k}, s64, v{6+k}')
    for k in range(4): A(f'v_exp_f32 v{24+k}, -v{24+k}')
    for k in range(4): A(f'v_add_f32 v{24+k}, 1.0, v{24+k}')
    for k in range(4): A(f'v_rcp_f32 v{24+k}, v{24+k}')
    for k in range(4): A(f'v_mul_f32 v{6+k}, v{6+k}, v{24+k}')
    A('s_branch L_jobcommon')
    A('L_jobq:')
    for k in range(8):
        A(f'v_lshlrev_b32 v{96+2*k}, 16, v{16+k}'); A(f'v_and_b32 v{97+2*k}, s62, v{16+k}')
    A('v_add_f32 v24, v96, v97')
    for k in range(2, 16): A(f'v_add_f32 v24, v24, v{96+k}')
    row_reduce('v_add_f32', [24]); xg_reduce('v_add_f32', 24, 25)
    A(f'v_mul_f32 v24, {f2u(1/1024):#x}, v24')
    for k in range(16): A(f'v_sub_f32 v{96+k}, v{96+k}, v24')
    A('v_mul_f32 v26, v96, v96')
    for k in range(1, 16): A(f'v_fmac_f32 v26, v{96+k}, v{96+k}')
    row_reduce('v_add_f32', [26]); xg_reduce('v_add_f32', 26, 25)
    A(f'v_mul_f32 v26, {f2u(1/1024):#x}, v26')
    rnd(24, 26)
    A(f'v_add_f32 v26, {f2u(1e-5):#x}, v26'); rnd(26); A('v_sqrt_f32 v26, v26'); rnd(26); A('v_rcp_f32 v26, v26')
    for k in range(4): A(f'v_sub_f32 v{6+k}, v{6+k}, v24')
    rnd(6, 7, 8, 9)
    for k in range(4): A(f'v_mul_f32 v{6+k}, v{6+k}, v26')
    rnd(6, 7, 8, 9)
    A('v_lshlrev_b32 v3, 2, v2')
    loads = []
    for a in range(2):
        for rho in range(4):
            A(f's_mov_b32 s{72 + 4*a + rho}, {WS_PART + rho * PSTR + a * 8192}')
            for k in range(2):
                d = 16 + 32*a + 16*k + 4*rho
                loads.append((d, f'buffer_load_dwordx4 {v(d,4)}, v3, s[56:59], s{72 + 4*a + rho} offen offset:{1024*k} sc1'))
    if p2w is not None: A(f's_waitcnt vmcnt({p2w})')
    lds_spin(C_PROG, 4, 10, sleep=1)
    if tb: A('s_memrealtime s[52:53]')
    if 'p2g' not in cut: tag_gather(loads, 10, cid=0)
    if not sec_late: lds_add(C_P2, 10)
    def sum4(b, dst):
        for j in range(2):
            A(f'v_add_f32 v{b+2*j}, v{b+2*j}, v{b+4+2*j}'); A(f'v_add_f32 v{b+8+2*j}, v{b+8+2*j}, v{b+12+2*j}')
        for j in range(2): A(f'v_add_f32 v{dst+j}, v{b+2*j}, v{b+8+2*j}')
    sum4(16, 96); sum4(32, 98); sum4(48, 100); sum4(64, 102)
    rnd(*range(96, 104))
    for k in range(4): A(f'v_add_f32 v{100+k}, 1.0, v{100+k}')
    rnd(100, 101, 102, 103)
    for k in range(4): A(f'v_mul_f32 v{6+k}, v{6+k}, v{100+k}')
    rnd(6, 7, 8, 9)
    for k in range(4): A(f'v_add_f32 v{6+k}, v{6+k}, v{96+k}')
    A('L_jobcommon:')
    A('v_cvt_pk_bf16_f32 v4, v6, v7'); A('v_cvt_pk_bf16_f32 v5, v8, v9')
    A('s_lshl_b32 s8, s3, 10'); A(f's_add_u32 s8, s8, {L_SCR}')
    A('v_lshl_add_u32 v2, v0, 2, s8')
    A('ds_write2_b32 v2, v4, v5 offset0:0 offset1:64')
    A('v_lshrrev_b32 v3, 4, v0'); A('v_lshlrev_b32 v3, 1, v3'); A('v_and_b32 v6, 1, v0'); A('v_add_u32 v3, v3, v6'); A('v_lshl_add_u32 v3, v3, 4, s8')
    A('s_waitcnt lgkmcnt(0)')
    for G in range(4): A(f'ds_read_b128 {v(32+8*G,4)}, v3 offset:{128*G}')
    A('s_waitcnt lgkmcnt(0)')
    for G in range(4):
        if half and G == 2: A('s_cmp_eq_u32 s65, 3'); A('s_cbranch_scc1 L_halfg')
        A(f's_waitcnt vmcnt({24 - 8*G})')
        if G in (0, 3): xstamp(5 if G == 0 else 6)
        pv(128 + 32 * G, 32 + 8 * G, G == 0)
    if half: A('L_halfg:')
    A('v_lshrrev_b32 v3, 5, v0'); A('v_lshlrev_b32 v3, 8, v3'); A('v_and_b32 v6, 16, v0'); A('v_add3_u32 v3, v3, v6, s8')
    A('v_and_b32 v6, 3, v0'); A('v_lshlrev_b32 v6, 6, v6'); A('v_bfe_u32 v7, v0, 2, 3'); A('v_lshl_add_u32 v6, v7, 2, v6'); A('v_add_u32 v6, s8, v6')
    A('s_mov_b32 exec_lo, 0x00010001'); A('s_mov_b32 exec_hi, 0x00020002')
    for e in range(8): A(f'ds_write_b128 v3, {v(64+4*e,4)} offset:{512 + 32*e}')
    A('s_mov_b32 exec_lo, -1'); A('s_mov_b32 exec_hi, 0')
    A('s_waitcnt lgkmcnt(0)')
    A('ds_read2_b32 v[16:17], v6 offset0:128 offset1:136'); A('ds_read2_b32 v[20:21], v6 offset0:192 offset1:200')
    A('v_lshlrev_b32 v3, 4, v0'); A('v_mov_b32 v19, s46')
    A('s_waitcnt lgkmcnt(0)')
    A('v_add_f32 v18, v17, v21'); A('v_add_f32 v16, v16, v20'); A('v_mov_b32 v17, s46')
    A('buffer_store_dwordx4 v[16:19], v3, s[56:59], s68 offen sc1')
    A('s_mov_b64 exec, -1')
    if 'second' in cut: A('s_branch L_unit_done')
    if half: A('s_bitcmp1_b32 s65, 0')
    else: A('s_cmp_lg_u32 s65, 0')
    A('s_cbranch_scc1 L_unit_done')
    xstamp(7)
    lds_spin(C_P2, 1, 6, sleep=4)
    A('s_mov_b32 s65, 3'); A('s_branch L_unit_rest')
    A('L_unit_done:')
    stamp(1)
    A('L_qgather:')
    if 'qg' in cut: A('s_endpgm')
    def level2(col0, cid):
        six = half and col0 == 2048
        if six: A('v_lshrrev_b32 v1, 3, v0'); A('v_min_u32 v1, 5, v1')
        else: A('v_bfe_u32 v1, v0, 3, 2')
        A(f's_mov_b32 s8, {PSTR}'); A('v_mul_lo_u32 v1, v1, s8'); A('v_and_b32 v2, 7, v0'); A('v_lshl_add_u32 v1, v2, 4, v1')
        A('s_lshl_b32 s8, s2, 7'); A(f's_add_u32 s8, s8, {WS_PART + col0 * 8}')
        tag_gather([(16, 'buffer_load_dwordx4 v[16:19], v1, s[56:59], s8 offen sc1')], 10, sleep=6, cid=cid)
        if six:
            A('v_cmp_gt_u32 vcc, 48, v0')
            for r in (16, 18): A(f'v_cndmask_b32 v{r}, 0, v{r}, vcc')
        for r in (16, 18): A(f'v_add_f32_dpp v{r}, v{r}, v{r} row_ror:8 row_mask:0xf bank_mask:0xf')
        for sw_ in (16, 32) if six else (16,):
            for r in (16, 18): A(f'v_mov_b32 v{r+4}, v{r}')
            for r in (16, 18): A(f'v_permlane{sw_}_swap_b32 v{r}, v{r+4}')
            for r in (16, 18): A(f'v_add_f32 v{r}, v{r}, v{r+4}')
        A('v_cvt_pk_bf16_f32 v16, v16, v18')
    A('s_cmp_eq_u32 s3, 0'); A('s_cbranch_scc1 L_rest2')
    A('s_waitcnt vmcnt(0)')
    level2(6144, 3)
    A('v_lshlrev_b32 v2, 3, v2'); A('s_lshl_b32 s8, s2, 6'); A(f's_add_u32 s8, s8, {WS_Q}')
    A('s_mov_b64 exec, 0xff'); A('buffer_store_dwordx2 v[16:17], v2, s[56:59], s8 offen sc1'); A('s_mov_b64 exec, -1')
    if tb:
        A('v_mov_b32 v18, s52'); A('v_mov_b32 v19, s46'); A('s_lshl_b32 s8, s2, 3'); A(f's_add_u32 s8, s8, {WS_TS}')
        A('s_mov_b64 exec, 1'); A('buffer_store_dwordx2 v[18:19], off, s[56:59], s8 sc1'); A('s_mov_b64 exec, -1')
    if sec_late: lds_add(C_P2, 10)
    xstamp(7)
    lds_spin(C_PROG, 8, 6, sleep=4)
    A('s_lshl_b32 s8, s4, 12'); A(f's_add_u32 s8, s8, {WS_Q}'); A('v_lshlrev_b32 v1, 4, v0')
    ql = [(20+4*n, f'buffer_load_dwordx4 {v(20+4*n,4)}, v1, s[56:59], s8 offen offset:{1024*n} sc1') for n in range(4)]
    if tb:
        A('v_and_b32 v3, 31, v0'); A('v_lshlrev_b32 v3, 4, v3'); A('s_lshl_b32 s10, s4, 9'); A(f's_add_u32 s10, s10, {WS_TS}')
        ql.append((36, 'buffer_load_dwordx4 v[36:39], v3, s[56:59], s10 offen sc1'))
    tag_gather(ql, 10, sleep=6, cid=1)
    if tb:
        A('v_sub_u32 v36, s52, v36'); A('v_sub_u32 v38, s52, v38'); A('v_add_u32 v36, v36, v38'); A('v_cvt_f32_i32 v36, v36')
        row_reduce('v_add_f32', [36]); xg_reduce('v_add_f32', 36, 37)
        A('s_cmp_lt_u32 s2, 128'); A(f's_cselect_b32 s10, {f2u(tbias + tgain * tlo):#x}, s53'); A('s_cmp_ge_u32 s2, 128'); A(f's_cselect_b32 s10, {f2u(tbias - tgain * tlo):#x}, s10')
        A(f'v_mul_f32 v36, {f2u(tgain / 128.0):#x}, v36'); A('v_add_f32 v36, s10, v36'); A('v_cvt_i32_f32 v36, v36')
        A(f'ds_write_b32 v13, v36 offset:{C_LEV}')
    A('v_lshrrev_b32 v2, 1, v1'); A(f'v_add_u32 v2, {L_Q}, v2')
    for n in range(4):
        A(f'v_mov_b32 v{21+4*n}, v{22+4*n}'); A(f'ds_write_b64 v2, {v(20+4*n,2)} offset:{512*n}')
    lds_add(C_Q, 6)
    stamp(2)
    if 'late' in cut: A('s_endpgm')
    A('s_branch L_final_gathers')
    A('L_rest2:')
    if 'late' in cut: A('s_endpgm')
    lds_spin(C_PROG, 12, 6, sleep=8)
    level2(2048, 2)
    A('v_lshlrev_b32 v2, 2, v2'); A('s_lshl_b32 s8, s2, 5'); A(f's_add_u32 s8, s8, {WS_MOD}')
    A('s_mov_b64 exec, 0xff'); A('buffer_store_dword v16, v2, s[56:59], s8 offen sc1'); A('s_mov_b64 exec, -1')
    done_event(6)
    stamp(2)
    if 'nomlp' in cut: A('s_endpgm')
    lds_spin(C_ML, 4, 6, sleep=2)
    A('v_and_b32 v1, 7, v0'); A('v_lshlrev_b32 v1, 3, v1'); A(f'v_add_u32 v2, {L_ML}, v1')
    for w in range(4): A(f'ds_read_b64 {v(16+2*w,2)}, v2 offset:{64*w}')
    A('s_waitcnt lgkmcnt(0)')
    A('v_max_f32 v24, v16, v18'); A('v_max3_f32 v24, v20, v22, v24')
    for w in range(4): A(f'v_sub_f32 v{28+w}, v{16+2*w}, v24')
    for w in range(4): A(f'v_mul_f32 v{28+w}, s64, v{28+w}')
    for w in range(4): A(f'v_exp_f32 v{28+w}, v{28+w}')
    A('v_mul_f32 v26, v28, v17')
    for w in range(1, 4): A(f'v_fmac_f32 v26, v{28+w}, v{17+2*w}')
    A('v_mov_b32_dpp v28, v24 quad_perm:[1,1,3,3] row_mask:0xf bank_mask:0xf')
    A('v_mov_b32 v25, v26'); A('v_mov_b32 v27, s46')
    A('v_mov_b32_dpp v26, v25 quad_perm:[1,1,3,3] row_mask:0xf bank_mask:0xf')
    A('v_cvt_pk_bf16_f32 v24, v24, v28')
    A('v_lshlrev_b32 v1, 9, v0')
    A('s_lshl_b32 s8, s4, 12'); A('s_lshl_b32 s10, s5, 4'); A('s_add_u32 s8, s8, s10'); A(f's_add_u32 s8, s8, {WS_ML}')
    A('s_mov_b64 exec, 0x55'); A('buffer_store_dwordx4 v[24:27], v1, s[56:59], s8 offen sc1')
    A('s_mov_b64 exec, -1')
    stamp(3)
    A('s_branch L_staged')
    A('L_final_gathers:')
    if 'nofin' in cut: A('s_endpgm')
    lds_spin(C_PROG, 16, 6, sleep=8)
    A('v_lshlrev_b32 v1, 4, v0')
    A(f's_mov_b32 s8, {WS_CLR}')
    tag_gather([(16, 'buffer_load_dwordx4 v[16:19], v1, s[56:59], s8 offen sc1')], 10, sleep=16, tagregs=(0, 1, 2, 3), cid=2)
    if 'nodma' in cut: A('s_endpgm')
    def dma(base, dst, cnt):
        for n in range(cnt):
            if n % 4 == 0:
                A(f's_mov_b32 m0, {dst + 1024*n}'); A(f's_mov_b32 s8, {base + 1024*n}')
            A(f'buffer_load_dwordx4 v1, s[56:59], s8 offen offset:{(n % 4) * 1024} sc1 lds')
    dma(WS_MOD, L_CONST + 2048, 6)
    A('s_lshl_b32 s10, s2, 3'); A(f's_add_u32 m0, s10, {L_CONST + 8192}'); A(f's_add_u32 s8, s10, {WS_MOD + 6144}'); A('v_lshlrev_b32 v2, 2, v0')
    A('s_mov_b64 exec, 3'); A('buffer_load_dword v2, s[56:59], s8 offen sc1 lds'); A('s_mov_b64 exec, -1')
    A('s_waitcnt vmcnt(0)')
    lds_add(C_STG, 6)
    stamp(3)
    A('s_branch L_staged')

    A('L_tabwaves:')
    if 'tab' in cut: A('s_endpgm')
    if not tabfirst and not clrfirst: lds_spin(C_U0, 1, 10)
    A('s_cmp_eq_u32 s3, 3'); A('s_cbranch_scc1 L_sw3')
    A('v_mov_b32 v16, -1'); A('v_mov_b32 v17, -1'); A('v_mov_b32 v18, -1'); A('v_mov_b32 v19, -1')
    A('v_lshrrev_b32 v1, 5, v0'); A('v_lshlrev_b32 v1, 15, v1'); A('v_and_b32 v2, 31, v0'); A('v_lshl_add_u32 v1, v2, 4, v1')
    A('s_lshl_b32 s8, s4, 17'); A('s_lshl_b32 s10, s5, 9'); A('s_add_u32 s8, s8, s10'); A(f's_add_u32 s8, s8, {WS_T1}'); A('s_add_u32 s10, s8, 0x10000')
    if 'noclr' in cut: A('s_branch L_tabinit')
    A('buffer_store_dwordx4 v[16:19], v1, s[56:59], s8 offen sc1')
    A('buffer_store_dwordx4 v[16:19], v1, s[56:59], s10 offen sc1')
    A('s_lshl_b32 s8, s6, 11'); A('s_lshl_b32 s10, s7, 7'); A('s_add_u32 s8, s8, s10'); A(f's_add_u32 s8, s8, {WS_T2}')
    A('v_lshrrev_b32 v1, 3, v0'); A('v_lshlrev_b32 v1, 15, v1'); A('v_and_b32 v2, 7, v0'); A('v_lshl_add_u32 v1, v2, 4, v1')
    A('buffer_store_dwordx4 v[16:19], v1, s[56:59], s8 offen sc1')
    A('s_branch L_tabinit')
    A('L_sw3:')
    A('v_lshlrev_b32 v2, 4, v0'); A(f's_mov_b32 m0, {L_CONST}')
    A('global_load_lds_dwordx4 v2, s[16:17]'); A('global_load_lds_dwordx4 v2, s[16:17] offset:1024')
    A('L_tabinit:')
    if clrfirst and not tabfirst: lds_spin(C_U0, 1, 10)
    A('s_and_b32 s8, s2, 127'); A(f's_mul_i32 s8, s8, {NB}'); A(f's_add_u32 s8, s8, {TAB_E0}')
    A('s_lshr_b32 s10, s2, 7'); A('s_lshl_b32 s10, s10, 15'); A('s_add_u32 s8, s8, s10')
    A('v_add_u32 v2, s8, v0'); A('v_lshlrev_b32 v2, 16, v2')
    A(f'v_cmp_gt_u32 vcc, {NB}, v0'); A('v_cndmask_b32 v12, 0, v2, vcc')
    A('s_mov_b32 s65, 0'); A(f's_mov_b32 s69, {1 if "tabc" in cut else NB + 1}'); A('v_mov_b32 v238, 0')
    A('L_mlp:')
    A('s_sub_u32 s8, s3, 2'); A('s_mul_i32 s8, s8, 3584'); A('v_lshl_add_u32 v1, v0, 3, s8')
    for a, ptr in enumerate(('s[28:29]', 's[30:31]', 's[32:33]')):
        for k in range(7):
            if 'tabl' not in cut: A(f'global_load_dwordx2 {v(192 + 14*a + 2*k, 2)}, v1, {ptr} offset:{512*k}')
    A('s_load_dword s47, s[34:35], 0')
    c0 = -2.0 * math.sqrt(2.0 / math.pi) * LOG2E; c1 = c0 * 0.044715
    A(f's_mov_b32 s66, {f2u(c1):#x}'); A(f's_mov_b32 s67, {f2u(3*c1):#x}'); A(f'v_mov_b32 v11, {f2u(c0):#x}')
    A('s_cmp_eq_u32 s65, 1'); A('s_cbranch_scc1 L_mlp_nob0')
    A('s_waitcnt vmcnt(0) lgkmcnt(0)'); A('s_add_u32 s46, s46, 1')
    A('s_cmp_eq_u32 s3, 3'); A('s_cbranch_scc1 L_sw3b')
    lds_add(C_Q, 6)
    done_event(6)
    A('s_branch L_mlp_nob0')
    A('L_sw3b:')
    lds_add(C_STG, 6)
    A('L_mlp_nob0:')
    A('s_waitcnt vmcnt(0) lgkmcnt(0)')
    xstamp(2)
    CO = 24
    A('s_mov_b32 s72, s66'); A('s_mov_b32 s73, s66'); A('s_mov_b32 s74, s67'); A('s_mov_b32 s75, s67'); A('v_mov_b32 v10, v11')
    for r in range(14):
        for a in range(3):
            A(f'v_lshlrev_b32 v{2+2*a}, 16, v{192 + 14*a + r}'); A(f'v_and_b32 v{3+2*a}, s62, v{192 + 14*a + r}')
        c = CO + 12 * r
        A('v_pk_mul_f32 v[8:9], v[2:3], v[2:3]'); A('v_pk_mul_f32 v[16:17], v[4:5], v[4:5]')
        A('v_pk_mul_f32 v[18:19], v[8:9], s[72:73]'); A('v_pk_mul_f32 v[8:9], v[8:9], s[74:75]')
        A('v_pk_fma_f32 v[20:21], v[16:17], s[74:75], v[10:11]'); A('v_pk_fma_f32 v[16:17], v[16:17], s[72:73], v[10:11]')
        A(f'v_pk_mul_f32 {v(c,2)}, v[18:19], v[2:3]'); A(f'v_pk_mul_f32 {v(c+2,2)}, v[8:9], v[4:5]')
        A(f'v_pk_mul_f32 {v(c+4,2)}, v[20:21], v[2:3]'); A(f'v_pk_mul_f32 {v(c+6,2)}, v[16:17], v[4:5]')
        A(f'v_pk_mul_f32 {v(c+8,2)}, v[2:3], v[6:7]'); A(f'v_pk_mul_f32 {v(c+10,2)}, v[4:5], v[6:7]')
    xstamp(3)
    A('s_mov_b32 s68, 0'); A('s_mov_b32 s72, 1.0'); A('s_mov_b32 s73, 1.0')
    A('.p2align 3')
    A('L_mlp_loop:')
    A('v_readlane_b32 s10, v12, s68'); A('v_readlane_b32 s11, v12, s68')
    for q in range(7):
        cs = [CO + 12 * (2*q + d) for d in range(2)]
        for d in range(2): A(f'v_pk_fma_f32 {v(2+2*d,2)}, {v(cs[d],2)}, s[10:11], {v(cs[d]+2,2)}')
        for d in range(2): A(f'v_pk_fma_f32 {v(2+2*d,2)}, {v(2+2*d,2)}, s[10:11], {v(cs[d]+4,2)}')
        for d in range(2): A(f'v_pk_fma_f32 {v(2+2*d,2)}, {v(2+2*d,2)}, s[10:11], {v(cs[d]+6,2)}')
        for d in range(4): A(f'v_exp_f32 v{2+d}, v{2+d}')
        for d in range(2): A(f'v_pk_fma_f32 {v(6+2*d,2)}, {v(cs[d]+8,2)}, s[10:11], {v(cs[d]+10,2)}')
        for d in range(2): A(f'v_pk_add_f32 {v(2+2*d,2)}, {v(2+2*d,2)}, s[72:73]')
        for d in range(4): A(f'v_rcp_f32 v{2+d}, v{2+d}')
        for d in range(2):
            A(f'v_pk_mul_f32 {v(16+2*d,2)}, {v(6+2*d,2)}, {v(2+2*d,2)}' if q == 0 else f'v_pk_fma_f32 {v(16+2*d,2)}, {v(6+2*d,2)}, {v(2+2*d,2)}, {v(16+2*d,2)}')
    A('v_add_f32 v16, v16, v17'); A('v_add_f32 v18, v18, v19'); A('v_add_f32 v16, v16, v18')
    row_reduce('v_add_f32', [16]); xg_reduce('v_add_f32', 16, 17)
    A('v_readfirstlane_b32 s10, v16')
    A('s_mov_b32 m0, s68')
    A('v_writelane_b32 v22, s10, m0')
    A('s_add_u32 s68, s68, 1'); A('s_cmp_lt_u32 s68, s69'); A('s_cbranch_scc1 L_mlp_loop')
    xstamp(4)
    A('s_lshl_b32 s8, s3, 7'); A(f's_add_u32 s8, s8, {L_TP - 256}'); A('v_and_b32 v1, 31, v0'); A('v_lshl_add_u32 v2, v1, 2, s8')
    A('s_mov_b32 exec_lo, -1'); A('s_mov_b32 exec_hi, 0'); A('ds_write_b32 v2, v22')
    A('s_waitcnt lgkmcnt(0)')
    A('s_lshl_b32 s8, s65, 2'); A('v_add_u32 v3, s8, v13')
    A('s_mov_b64 exec, 1'); A('v_mov_b32 v6, 1'); A(f'ds_add_rtn_u32 v6, v3, v6 offset:{C_TAB}'); A('s_mov_b64 exec, -1')
    A('s_waitcnt lgkmcnt(0)')
    A('v_readfirstlane_b32 s8, v6')
    A('s_cmp_eq_u32 s8, 1'); A('s_cbranch_scc1 L_mlp_last')
    A('s_cmp_eq_u32 s65, 0'); A('s_cbranch_scc1 L_staged')
    A('s_branch L_fin')
    A('L_mlp_last:')
    A(f'v_lshlrev_b32 v2, 2, v1'); A(f'v_add_u32 v2, {L_TP}, v2')
    A('ds_read2_b32 v[16:17], v2 offset0:0 offset1:32')
    A('s_lshl_b32 s47, s47, 16')
    A('s_waitcnt lgkmcnt(0)')
    A('v_add_f32 v16, v16, v17'); rnd(16); A('v_add_f32 v16, s47, v16'); rnd(16)
    A('s_cmp_eq_u32 s65, 1'); A('s_cbranch_scc1 L_output')
    A('v_mov_b32_dpp v17, v16 quad_perm:[1,1,3,3] row_mask:0xf bank_mask:0xf')
    A('v_cvt_pk_bf16_f32 v18, v16, v17')
    A('v_lshlrev_b32 v2, 1, v0'); A(f's_mul_i32 s8, s2, {2*NB}'); A(f's_add_u32 s8, s8, {WS_TAB}')
    A(f's_mov_b64 exec, {0x55555555 & ((1 << NB) - 1):#x}'); A('buffer_store_dword v18, v2, s[56:59], s8 offen sc1')
    A(f's_mov_b64 exec, {1 << NB:#x}'); A(f'ds_write_b16 v13, v18 offset:{L_TABLE + 512 * NB - LM}')
    A('s_mov_b64 exec, -1')
    done_event(6)
    stamp(3)

    A('L_staged:')
    if prio: A('s_setprio 0')
    if cut and 'keepml' not in cut: A('s_endpgm')
    lds_spin(C_STG, 2, 6, sleep=4)
    A('s_add_u32 s9, s3, 4')
    A('v_mov_b32 v243, 0x3f80')
    prep('s9')
    if not allrep: A('s_lshl_b32 s72, s6, 11'); A('s_lshl_b32 s10, s7, 7'); A('s_add_u32 s72, s72, s10'); A(f's_add_u32 s72, s72, {WS_T2}')
    lds_spin(C_PROG, 20, 6, sleep=2)
    A('s_lshl_b32 s8, s4, 12'); A('s_lshl_b32 s10, s3, 10'); A('s_add_u32 s8, s8, s10'); A(f's_add_u32 s8, s8, {WS_ML}')
    A('v_lshlrev_b32 v1, 4, v0')
    tag_gather([(24, 'buffer_load_dwordx4 v[24:27], v1, s[56:59], s8 offen sc1')], 10, sleep=6, cid=4, tagregs=(3, 3))
    A('v_lshlrev_b32 v16, 16, v24'); A('v_and_b32 v20, s62, v24'); A('v_mov_b32 v18, v25'); A('v_mov_b32 v22, v26')
    stamp(4)
    A('v_and_b32 v3, 3, v0'); A('v_bfe_u32 v2, v0, 2, 1'); A('v_lshlrev_b32 v7, 6, v3'); A('v_lshl_add_u32 v7, v2, 3, v7')
    A('s_lshl_b32 s8, s3, 4'); A(f's_add_u32 s8, s8, {L_ML}'); A('v_add_u32 v7, s8, v7')
    A('ds_read_b32 v8, v7')
    A('v_mov_b32 v17, v16'); A('v_mov_b32 v21, v20')
    row_reduce('v_max_f32', [17, 21]); xg_reduce('v_max_f32', 17, 19); xg_reduce('v_max_f32', 21, 19)
    for r in (16, 20):
        A(f'v_sub_f32 v{r}, v{r}, v{r+1}'); A(f'v_mul_f32 v{r}, s64, v{r}'); A(f'v_exp_f32 v{r}, v{r}')
    A('v_mul_f32 v18, v16, v18'); A('v_mul_f32 v22, v20, v22')
    row_reduce('v_add_f32', [18, 22]); xg_reduce('v_add_f32', 18, 19); xg_reduce('v_add_f32', 22, 19)
    A('v_cmp_eq_u32 vcc, 1, v2'); A('v_cndmask_b32 v17, v17, v21, vcc'); A('v_cndmask_b32 v18, v18, v22, vcc')
    A('v_rcp_f32 v18, v18')
    A('s_waitcnt lgkmcnt(0)')
    A('v_sub_f32 v8, v8, v17'); A('v_mul_f32 v8, s64, v8'); A('v_exp_f32 v8, v8'); A('v_mul_f32 v8, v8, v18')
    A('s_lshl_b32 s8, s3, 5'); A(f's_add_u32 s8, s8, {L_FAC}'); A('v_lshl_add_u32 v7, v0, 2, s8')
    A('s_mov_b64 exec, 0xff'); A('ds_write_b32 v7, v8'); A('s_mov_b64 exec, -1')
    if rep8:
        A('v_and_b32 v8, 12, v0'); A('v_lshlrev_b32 v8, 2, v8'); A('v_lshrrev_b32 v2, 5, v0'); A('v_lshl_add_u32 v8, v2, 6, v8')
        A('v_and_b32 v2, 3, v0'); A('v_lshl_add_u32 v8, v2, 15, v8'); A('v_and_b32 v2, 16, v0'); A('v_lshl_add_u32 v8, v2, 13, v8')
    else:
        A('v_and_b32 v8, 15, v0'); A('v_lshlrev_b32 v8, 2, v8'); A('v_lshrrev_b32 v2, 5, v0'); A('v_lshl_add_u32 v8, v2, 6, v8')
    A('s_add_u32 s3, s3, 4')
    A('s_waitcnt lgkmcnt(0)')
    stamp(5)
    if cut: A('s_endpgm')
    A('s_barrier')

    A('L_tail:')
    A('s_barrier')
    if not allrep: A('s_cmp_lg_u32 s3, 4'); A('s_cbranch_scc1 L_notw4')
    for w in range(2): A(f'ds_read_b128 {v(16+4*w,4)}, {"v229" if allrep else "v1"} offset:{L_RED2 + 1024*w}')
    A('s_waitcnt lgkmcnt(0)')
    A('v_pk_add_f32 v[16:17], v[16:17], v[20:21]'); A('v_pk_add_f32 v[18:19], v[18:19], v[22:23]')
    for e in range(2): A(f'v_permlane32_swap_b32 v{16+e}, v{18+e}')
    A('v_pk_add_f32 v[16:17], v[16:17], v[18:19]')
    A('v_mov_b32 v18, v16'); A('v_mov_b32 v19, v17')
    for e in range(2): A(f'v_permlane16_swap_b32 v{16+e}, v{18+e}')
    A('v_pk_add_f32 v[16:17], v[16:17], v[18:19]')
    A('v_cvt_pk_bf16_f32 v16, v16, v17')
    A('v_min_u32 v16, -2, v16')
    if allrep:
        A('s_mov_b32 exec_lo, 0xffff'); A('s_mov_b32 exec_hi, 0xffff')
        A('buffer_store_dword v16, v230, s[56:59], s72 offen sc1')
        A('s_mov_b64 exec, -1')
        A('s_cmp_eq_u32 s3, 5'); A('s_cbranch_scc1 L_notw4')
    elif rep8:
        for c in range(4): A(f'v_mov_b32_dpp v{32+c}, v16 quad_perm:[{c},{c},{c},{c}] row_mask:0xf bank_mask:0xf')
        A('buffer_store_dwordx4 v[32:35], v8, s[56:59], s72 offen sc1')
    else:
        A('s_mov_b32 exec_lo, 0xffff'); A('s_mov_b32 exec_hi, 0xffff')
        A('buffer_store_dword v16, v8, s[56:59], s72 offen sc1')
        A('s_mov_b64 exec, -1')
    if t2wait == 0: A('s_waitcnt vmcnt(0)')
    def tab_cold():
        A('L_notw4:')
        A('s_cmp_lg_u32 s3, 5'); A('s_cbranch_scc1 L_t2wait')
        dma(WS_TAB, L_TABLE, NB // 2)
        A('s_branch L_t2wait')
    COLD.append(tab_cold)
    A('L_t2wait:')
    if b3:
        A('s_barrier')
        if t2wait > 1: A(f's_sleep {t2wait - 1}')
        if t2x: A(f's_sleep {t2x}')
    stamp(7)
    def t2_load(n):
        A(f's_add_u32 s8, s75, {8192 * n}')
        A(f'buffer_load_dwordx4 {v(16+4*n,4)}, v244, s[56:59], s8 offen sc1')
    for n in range(4): t2_load(n)
    A(f's_mov_b32 s66, {f2u(1/1024):#x}'); A(f's_mov_b32 s67, {f2u(1/1024):#x}')
    sweep('t2', 4, t2_load, lambda k: 16 + 4*k, 240, 6)
    stamp(8)
    rnd(240, 241)
    A('v_pk_mul_f32 v[240:241], v[250:251], v[240:241]'); rnd(240, 241)
    A('v_pk_add_f32 v[240:241], v[248:249], v[240:241]'); rnd(240, 241)
    def stats(a, b, lds_off):
        A(f'v_add_f32 v46, v{a}, v{b}'); A(f'v_mul_f32 v47, v{a}, v{a}'); A(f'v_fmac_f32 v47, v{b}, v{b}')
        A('v_permlane32_swap_b32 v46, v47'); A('v_add_f32 v46, v46, v47')
        A('v_mov_b32 v47, v46'); A('v_permlane16_swap_b32 v46, v47'); A('v_add_f32 v46, v46, v47')
        row_reduce('v_add_f32', [46])
        A('s_mov_b32 exec_lo, 1'); A('s_mov_b32 exec_hi, 1')
        A(f'ds_write_b32 v246, v46 offset:{lds_off}')
        A('s_mov_b64 exec, -1')
        A('s_waitcnt lgkmcnt(0)')
        A('s_barrier')
    def stats_read(lds_off):
        for k in range(4): A(f'ds_read_b128 {v(48+4*k,4)}, v247 offset:{lds_off + 16*k}')
    def stats_calc(pending):
        for k in range(4):
            A(f's_waitcnt lgkmcnt({3 - k + pending})'); A(f'v_pk_add_f32 {v(48+4*k,2)}, {v(48+4*k,2)}, {v(50+4*k,2)}')
        A('v_pk_add_f32 v[48:49], v[48:49], v[52:53]'); A('v_pk_add_f32 v[56:57], v[56:57], v[60:61]')
        A('v_pk_add_f32 v[46:47], v[48:49], v[56:57]')
        A('v_pk_mul_f32 v[46:47], v[46:47], s[66:67]')
        A('v_fma_f32 v47, -v46, v46, v47'); A('v_max_f32 v47, 0, v47'); rnd(47)
        A(f'v_add_f32 v47, {f2u(1e-5):#x}, v47'); rnd(47); A('v_sqrt_f32 v47, v47'); rnd(46); rnd(47); A('v_rcp_f32 v47, v47')
    stats(240, 241, L_ST1)
    stats_read(L_ST1); stats_calc(0)
    A('v_sub_f32 v42, v240, v46'); A('v_sub_f32 v43, v241, v46'); rnd(42, 43)
    A('v_mul_f32 v42, v42, v47'); A('v_mul_f32 v43, v43, v47'); rnd(42, 43)
    A('v_pk_mul_f32 v[42:43], v[42:43], v[254:255]'); rnd(42, 43)
    A('v_pk_add_f32 v[42:43], v[42:43], v[252:253]'); rnd(42, 43)
    A('s_mov_b64 exec, s[76:77]'); A('ds_write2_b32 v245, v42, v240 offset0:0 offset1:1')
    A('s_mov_b64 exec, s[78:79]'); A('ds_write2_b32 v245, v43, v241 offset0:0 offset1:1')
    A('s_mov_b64 exec, -1')
    stats(42, 43, L_ST2)
    A('s_cmp_lt_u32 s3, 6'); A('s_cbranch_scc1 L_early')
    stats_read(L_ST2)
    A(f'ds_read_b64 v[236:237], v231 offset:{L_OWN}')
    stats_calc(1)
    A('s_waitcnt lgkmcnt(0)')
    A('v_sub_f32 v12, v236, v46'); rnd(12); A('v_mul_f32 v12, v12, v47'); rnd(12)
    stamp(9)
    A('v_bfe_u32 v3, v12, 16, 15'); A('v_lshrrev_b32 v4, 31, v12'); A(f'v_subrev_u32 v5, {TAB_E0}, v3')
    A('v_cmp_eq_u32 s[70:71], 0, v3'); A(f'v_cmp_lt_u32 vcc, {128 * NB - 1}, v5')
    A(f'v_mul_u32_u24 v4, {128 * NB}, v4'); A('v_add_u32 v5, v4, v5'); A(f'v_mov_b32 v4, {256 * NB}'); A('v_cndmask_b32 v5, v5, v4, s[70:71]')
    A('v_lshl_add_u32 v5, v5, 1, v13')
    A(f'ds_read_u16 v16, v5 offset:{L_TABLE - LM}')
    A('s_andn2_b64 vcc, vcc, s[70:71]')
    A('s_branch L_fallback' if force_fb else 's_cbranch_vccnz L_fallback')
    A('s_cmp_lg_u32 s3, 6'); A('s_cbranch_scc1 L_fin')
    A('s_waitcnt lgkmcnt(0)')
    A('v_lshlrev_b32 v16, 16, v16')
    A('L_output:')
    A('v_mul_f32 v16, v239, v16'); rnd(16)
    A('v_add_f32 v16, v237, v16'); A('v_cvt_pk_bf16_f32 v16, v16, v16')
    A('s_mov_b64 exec, 15')
    A('global_store_short v238, v16, s[40:41]')
    A('s_mov_b64 exec, -1')
    A('s_branch L_fin')
    A('L_fallback:')
    A('s_waitcnt lgkmcnt(0)')
    A('s_sub_u32 s3, s3, 4'); A('s_mov_b32 s65, 1'); A('s_mov_b32 s69, 4')
    A('s_branch L_mlp')
    for c in COLD: c()
    A('L_early:')
    A('s_cmp_lg_u32 s3, 4'); A('s_cbranch_scc1 L_fin')
    A('s_cmp_lg_u32 s2, 0'); A('s_cbranch_scc1 L_fin')
    A('s_mov_b64 exec, 1'); A('v_mov_b32 v16, s46'); A(f's_mov_b32 s8, {WS_EPOCH}')
    A('buffer_store_dword v16, v247, s[56:59], s8 offen')
    A('s_mov_b64 exec, -1')
    A('L_fin:')
    if endstamp:
        A('s_waitcnt vmcnt(0)')
        A('s_memrealtime s[100:101]'); A('s_waitcnt lgkmcnt(0)')
        A('v_mov_b32 v61, v15')
        for k in range(11): A(f'v_writelane_b32 v61, s{80+2*k}, {k}')
        A('s_lshl_b32 s8, s2, 3'); A('s_add_u32 s8, s8, s3'); A('s_lshl_b32 s8, s8, 7'); A(f's_add_u32 s8, s8, {WS_STAMP}')
        A('v_lshlrev_b32 v1, 2, v0'); A('s_mov_b32 exec_lo, -1'); A('s_mov_b32 exec_hi, 0')
        A('buffer_store_dword v61, v1, s[56:59], s8 offen')
    if probe:
        k_, wlo, whi, op = probe
        A('s_sleep 127'); A('s_sleep 127')
        A('s_mov_b64 exec, 1')
        A('s_not_b32 s8, s80'); A('v_mov_b32 v1, s8'); A('v_mov_b32 v2, 0')
        A('global_atomic_umax v2, v1, s[42:43] sc1')
        A(f's_cmp_lt_u32 s3, {wlo}'); A('s_cbranch_scc1 L_pskip'); A(f's_cmp_gt_u32 s3, {whi}'); A('s_cbranch_scc1 L_pskip')
        A(f'v_readlane_b32 s8, v61, {k_}')
        if op == 'min': A('s_not_b32 s8, s8')
        if op == 'sum': A('s_sub_u32 s8, s8, s80')
        A('v_mov_b32 v1, s8')
        A(f'global_atomic_{"add" if op in ("sum", "cnt") else "umax"} v2, v1, s[42:43] offset:128 sc1')
        A('L_pskip:')
        A('s_waitcnt vmcnt(0)')
        A('s_cmp_lg_u32 s2, 0'); A('s_cbranch_scc1 L_end'); A('s_cmp_lg_u32 s3, 0'); A('s_cbranch_scc1 L_end')
        A('s_add_u32 s10, s80, 9000')
        A('L_ph1:'); A('s_memrealtime s[100:101]'); A('s_waitcnt lgkmcnt(0)'); A('s_sub_u32 s8, s100, s10'); A('s_cmp_lt_i32 s8, 0'); A('s_cbranch_scc1 L_ph1')
        A('global_load_dword v3, v2, s[42:43] sc1'); A('global_load_dword v4, v2, s[42:43] offset:128 sc1'); A('s_waitcnt vmcnt(0)')
        A('v_readfirstlane_b32 s10, v3'); A('v_readfirstlane_b32 s11, v4')
        A('s_not_b32 s10, s10')
        if op == 'min': A('s_not_b32 s11, s11')
        if op in ('min', 'max'): A('s_sub_u32 s11, s11, s10')
        if op == 'sum': A(f's_lshr_b32 s11, s11, {(256 * (whi - wlo + 1)).bit_length() - 1}')
        if op == 'zero': A('s_mov_b32 s11, 0')
        A('s_min_u32 s11, s11, 6000'); A('s_mul_i32 s11, s11, 10')
        A('s_add_u32 s10, s10, 10000'); A('s_add_u32 s10, s10, s11')
        A('L_ph2:'); A('s_memrealtime s[100:101]'); A('s_waitcnt lgkmcnt(0)'); A('s_sub_u32 s8, s100, s10'); A('s_cmp_lt_i32 s8, 0'); A('s_cbranch_scc1 L_ph2')
    A('L_end:')
    A('s_endpgm')
    A('.section .rodata,"a"'); A('.p2align 6'); A(f'.amdhsa_kernel {NAME}_kernel')
    A('.amdhsa_next_free_vgpr 256'); A('.amdhsa_next_free_sgpr 102'); A('.amdhsa_accum_offset 256')
    A('.amdhsa_group_segment_fixed_size 0'); A('.amdhsa_kernarg_size 120'); A('.amdhsa_user_sgpr_count 2')
    A('.amdhsa_user_sgpr_kernarg_segment_ptr 1'); A('.amdhsa_system_sgpr_workgroup_id_x 1')
    A('.amdhsa_float_denorm_mode_32 3')
    A('.end_amdhsa_kernel')
    txt, nn = A.finish()
    return txt

if __name__ == '__main__':
    kw = eval('dict(%s)' % (sys.argv[2] if len(sys.argv) > 2 else ''))
    open(sys.argv[1], 'w').write(gen(**kw))
```

```python
import sys, struct, math
from asmlib import Asm
NAME = 'adaLN_cond__gqa_block_cached__mixer_token_mlp__decode'

def f2u(x): return struct.unpack('<I', struct.pack('<f', x))[0]
LOG2E = 1.4426950408889634

WS_MOD, WS_TAB, WS_ML, WS_Q, WS_CLR, WS_EPOCH, WS_RANK = 0x0, 0x8000, 0x10000, 0x20000, 0x28000, 0x29000, 0x30000
WS_PART, WS_T2, WS_T1, WS_STAMP = 0x40000, 0xC0000, 0x100000, 0x200000
PSTR = 10240 * 8
RSTR = 256
LM = 131072
C_Q, C_ML, C_PROG, C_TAB, C_FB, C_DONE, C_P2, C_GO, C_RK, C_LEV = 4, 8, 12, 16, 20, 24, 28, 32, 36, 40
L_ST1, L_ST2 = 128, 192
L_ML = LM + 256
L_FAC = LM + 512
L_TP = LM + 768
L_Q = LM + 1024
L_CONST = LM + 3072
NB = 20
L_TABLE = LM + 13312
L_SCR = LM + 13312 + 512 * NB + 256
L_RED2 = L_SCR + 2048
L_OWN = L_RED2 + 2048
LDS_BYTES = 163840
assert L_OWN + 32 <= LDS_BYTES
OSTRIDE = 528
TAB_E0 = (130 - NB) << 7
SPIN_CAP = 0x40000

def gen(DA=6, DB=5, early=3, WU=20, hu=16, hg=14, p2_at=13, q_at=52, r2_at=0, fin_at=40, ml_at=54,
        cps=(3, 23, 42), lev=(4, 5, 6, 8), thrs=((16, 40, 56),), wsh=2, rd=4, DS=5, wos=(1, 2, 3, 3, 4, 4, 6, 8), wothr=4,
        skipown=True, sc=None, scr=(4, 7), nshb=3, sc_split=99, tab2=True, tb0='early', diag=False, lite=False, probe=None, force_fb=False, cut=(), trajA=False, header=''):
    A = Asm()
    endstamp = diag or lite
    if lite: diag = False
    COLD = []
    def stamp(k):
        if diag: A(f's_memrealtime s[{80+2*k}:{81+2*k}]'); A('s_waitcnt lgkmcnt(0)')
    def xstamp(k):
        if diag: A('s_memrealtime s[100:101]'); A('s_waitcnt lgkmcnt(0)'); A(f'v_writelane_b32 v15, s100, {16 + k}')
    def sstamp(r):
        A('s_memrealtime s[100:101]'); A('s_waitcnt lgkmcnt(0)'); A(f's_mov_b32 s{r}, s100')
    def v(a, n=1): return f'v{a}' if n == 1 else f'v[{a}:{a+n-1}]'
    def rnd(*regs):
        for a in regs: A(f'v_cvt_pk_bf16_f32 v{a}, 0, v{a}')
    def lds_spin(off, target, vt, sleep=1):
        l0 = A.lab('spin'); l1 = A.lab('spun')
        A('s_mov_b32 s14, 0')
        A(f'{l0}:')
        A(f'ds_read_b32 v{vt}, v13 offset:{off}'); A('s_waitcnt lgkmcnt(0)')
        A(f'v_readfirstlane_b32 s15, v{vt}')
        A(f's_cmp_ge_u32 s15, {target}'); A(f's_cbranch_scc1 {l1}')
        A(f's_sleep {sleep}')
        A('s_add_u32 s14, s14, 1'); A(f's_cmp_lt_u32 s14, {SPIN_CAP}'); A(f's_cbranch_scc1 {l0}')
        A(f'{l1}:')
    def lds_add(off, vt):
        A('s_waitcnt lgkmcnt(0)')
        A('s_mov_b64 exec, 1'); A(f'v_mov_b32 v{vt}, 1'); A(f'ds_add_u32 v13, v{vt} offset:{off}'); A('s_mov_b64 exec, -1')
    def done_event(vt):
        l1 = A.lab('nodone')
        A('s_waitcnt vmcnt(0) lgkmcnt(0)')
        A('s_mov_b64 exec, 1'); A(f'v_mov_b32 v{vt}, 1'); A(f'ds_add_rtn_u32 v{vt}, v13, v{vt} offset:{C_DONE}')
        A('s_waitcnt lgkmcnt(0)')
        A(f'v_readfirstlane_b32 s8, v{vt}')
        A('s_cmp_lg_u32 s8, 1'); A(f's_cbranch_scc1 {l1}')
        A('s_lshl_b32 s8, s2, 2'); A(f's_add_u32 s8, s8, {WS_CLR}'); A(f'v_mov_b32 v{vt}, s46')
        A(f'buffer_store_dword v{vt}, off, s[56:59], s8 sc1')
        A(f'{l1}:')
        A('s_mov_b64 exec, -1')
    def tag_gather(loads, vt, sleep=2, tagregs=(1, 3), cid=None):
        l0 = A.lab('tg'); l1 = A.lab('tgok')
        A('s_mov_b32 s14, 0')
        A(f'{l0}:')
        for d, txt in loads: A(txt)
        A('s_waitcnt vmcnt(0)')
        regs = [d + r for d, txt in loads for r in tagregs]
        A(f'v_min_u32 v{vt}, v{regs[0]}, v{regs[1]}'); A(f'v_max_u32 v{vt+1}, v{regs[0]}, v{regs[1]}')
        for k in range(2, len(regs), 2):
            A(f'v_min3_u32 v{vt}, v{regs[k]}, v{regs[k+1]}, v{vt}'); A(f'v_max3_u32 v{vt+1}, v{regs[k]}, v{regs[k+1]}, v{vt+1}')
        A(f'v_cmp_ne_u32 vcc, s46, v{vt}'); A(f'v_cmp_ne_u32 s[70:71], s46, v{vt+1}'); A('s_or_b64 vcc, vcc, s[70:71]')
        A(f's_cbranch_vccz {l1}')
        A(f's_sleep {sleep}')
        A('s_add_u32 s14, s14, 1'); A(f's_cmp_lt_u32 s14, {SPIN_CAP}'); A(f's_cbranch_scc1 {l0}')
        A(f'{l1}:')
        if diag and cid is not None: A(f'v_writelane_b32 v15, s14, {11 + cid}')
    def xg_reduce(op, regs, t):
        for sw_ in (32, 16):
            for k, a in enumerate(regs): A(f'v_mov_b32 v{t+k}, v{a}')
            for k, a in enumerate(regs): A(f'v_permlane{sw_}_swap_b32 v{a}, v{t+k}')
            for k, a in enumerate(regs): A(f'{op} v{a}, v{a}, v{t+k}')
    def row_reduce(op, regs, steps=(8, 4, 2, 1)):
        for sh in steps:
            for a in regs: A(f'{op}_dpp v{a}, v{a}, v{a} row_ror:{sh} row_mask:0xf bank_mask:0xf')
    def perm(dst, base, m, d):
        A(f'v_perm_b32 v{dst}, v{base+8*m+4+(d>>1)}, v{base+8*m+(d>>1)}, s{60+(d&1)}')
    MREG = [16, 18, 20, 22, 24, 26, 36, 38]
    def sweep(name, n, load, dreg, acc, vt):
        A('s_mov_b32 s14, 0')
        A(f'L_{name}_chk:')
        for k in range(n):
            d = dreg(k); m = MREG[k]
            A(f's_waitcnt vmcnt({n-1-k})')
            A(f'v_max3_u32 v{vt}, v{d}, v{d+1}, v{d+2}'); A(f'v_max_u32 v{vt}, v{vt}, v{d+3}')
            A(f'v_mfma_f32_16x16x32_bf16 {v(acc,4)}, v[232:235], {v(d,4)}, {0 if k == 0 else v(acc,4)}')
            A(f'v_cmp_eq_u32 s[{m}:{m+1}], -1, v{vt}')
            if k == 2: A(f's_or_b64 vcc, s[{MREG[0]}:{MREG[0]+1}], s[{MREG[1]}:{MREG[1]+1}]')
            elif k > 2: A(f's_or_b64 vcc, vcc, s[{MREG[k-1]}:{MREG[k-1]+1}]')
        A(f's_or_b64 vcc, vcc, s[{MREG[n-1]}:{MREG[n-1]+1}]')
        A(f's_cbranch_scc1 L_{name}_retry')
        A(f'L_{name}_done:')
        if diag: A(f'v_writelane_b32 v15, s14, {30 if name == "t1" else 31}')
        def cold():
            A(f'L_{name}_retry:')
            for k in range(n):
                A(f's_mov_b64 exec, s[{MREG[k]}:{MREG[k]+1}]'); load(k)
            A('s_mov_b64 exec, -1')
            A('s_add_u32 s14, s14, 1'); A(f's_cmp_lt_u32 s14, {SPIN_CAP}'); A(f's_cbranch_scc1 L_{name}_chk')
            A('s_waitcnt vmcnt(0)')
            A(f's_branch L_{name}_done')
        COLD.append(cold)
    def rb_calc():
        A('s_and_b32 s6, s2, 7'); A('s_lshr_b32 s8, s2, 7'); A('s_lshl1_add_u32 s6, s6, s8')
    def svc_setup():
        A(f's_load_dword s9, s[44:45], {WS_EPOCH}')
        A('s_bfe_u32 s7, s2, 0x40003')
        rb_calc()
        A('s_mov_b32 s60, 0x05040100'); A('s_mov_b32 s61, 0x07060302'); A('s_mov_b32 s62, 0xffff0000')
        A(f's_mov_b32 s64, {f2u(LOG2E):#x}')
        A('s_mov_b64 s[56:57], s[44:45]'); A('s_mov_b32 s58, 0x400000'); A('s_mov_b32 s59, 0x20000')
        A(f'v_mov_b32 v13, {LM}')
    def prep():
        A('v_lshrrev_b32 v4, 4, v0'); A('v_and_b32 v5, 15, v0')
        A('v_lshrrev_b32 v6, 3, v5'); A('v_lshlrev_b32 v6, 6, v6'); A('v_and_b32 v8, 1, v4'); A('v_lshl_add_u32 v6, v8, 5, v6')
        A('v_and_b32 v8, 4, v5'); A('v_lshl_add_u32 v6, v8, 2, v6'); A('v_and_b32 v8, 3, v5'); A('v_lshl_add_u32 v6, v8, 1, v6')
        A('v_lshrrev_b32 v9, 1, v4'); A('s_lshl_b32 s8, s3, 7'); A('v_add3_u32 v6, v6, v9, s8')
        A('v_lshl_add_u32 v7, v6, 1, v13')
        for a in range(4):
            for e in range(2): A(f'ds_read_u16 v{248+2*a+e}, v7 offset:{L_CONST - LM + 2048*a + 16*e}')
        A('s_lshl_b32 s8, s2, 3'); A('v_lshl_add_u32 v238, v8, 1, s8'); A('v_add_u32 v7, v13, v238')
        A(f'ds_read_u16 v239, v7 offset:{L_CONST - LM + 8192}')
        A('v_lshrrev_b32 v9, 2, v6'); A('v_cmp_eq_u32 s[76:77], s2, v9'); A('v_add_u32 v9, 2, v9'); A('v_cmp_eq_u32 s[78:79], s2, v9')
        A('v_and_b32 v9, 3, v6'); A('v_lshlrev_b32 v245, 3, v9'); A(f'v_add_u32 v245, {L_OWN}, v245')
        A('v_lshl_add_u32 v231, v8, 3, v13')
        A('v_lshlrev_b32 v244, 13, v4'); A('v_lshl_add_u32 v244, v5, 4, v244')
        A('s_and_b32 s8, s2, 7'); A('s_lshl_b32 s8, s8, 15'); A('s_lshl_b32 s75, s3, 8'); A('s_add_u32 s75, s75, s8')
        A(f's_add_u32 s75, s75, {WS_T2}'); A('s_add_u32 s73, s75, 4096')
        A(f's_mov_b32 s66, {f2u(1/1024):#x}'); A('s_mov_b32 s67, s66')
        A('v_lshrrev_b32 v9, 5, v0'); A('v_lshlrev_b32 v246, 2, v9'); A('s_lshl_b32 s8, s3, 3'); A('v_add3_u32 v246, s8, v246, v13')
        A('v_lshl_add_u32 v229, v0, 4, v13')
        A('v_lshlrev_b32 v230, 2, v5'); A('v_lshl_add_u32 v230, v9, 6, v230')
        A('s_lshl_b32 s72, s6, 11'); A('s_lshl_b32 s8, s7, 7'); A('s_add_u32 s72, s72, s8'); A('s_lshl_b32 s8, s3, 15'); A('s_add_u32 s72, s72, s8')
        A(f's_add_u32 s72, s72, {WS_T2}')
        A('v_and_b32 v7, 1, v5'); A('v_lshlrev_b32 v7, 4, v7'); A('v_mov_b32 v9, 0x3f80'); A('v_lshlrev_b32 v7, v7, v9')
        A('v_and_b32 v8, 14, v5')
        for m in range(4):
            A(f'v_cmp_eq_u32 vcc, {4*m}, v8'); A(f'v_cndmask_b32 v{232+m}, 0, v7, vcc')
        A('s_waitcnt lgkmcnt(0)')
        for k in range(8): A(f'v_lshlrev_b32 v{248+k}, 16, v{248+k}')
        A('v_lshlrev_b32 v239, 16, v239')
        A('v_add_f32 v254, 1.0, v254'); A('v_add_f32 v255, 1.0, v255'); rnd(254, 255)
    def dma(base, dst, cnt):
        for n in range(cnt):
            if n % 4 == 0:
                A(f's_mov_b32 m0, {dst + 1024*n}'); A(f's_mov_b32 s8, {base + 1024*n}')
            A(f'buffer_load_dwordx4 v1, s[56:59], s8 offen offset:{(n % 4) * 1024} sc1 lds')

    for l in header.splitlines(): A(l)
    A(f'; @launch grid=(256,1,1) block=(512,1,1) lds={LDS_BYTES}')
    A('.amdgcn_target "amdgcn-amd-amdhsa--gfx950"')
    A('.text'); A(f'.globl {NAME}_kernel'); A('.p2align 8'); A(f'.type {NAME}_kernel,@function')
    A(f'{NAME}_kernel:')
    A('s_load_dwordx16 s[16:31], s[0:1], 0')
    A('s_load_dwordx8 s[32:39], s[0:1], 64')
    A('s_load_dwordx4 s[40:43], s[0:1], 96')
    A('s_load_dwordx2 s[44:45], s[0:1], 112')
    if endstamp: A('s_memrealtime s[80:81]')
    A('v_lshrrev_b32 v1, 6, v0'); A('v_and_b32 v0, 63, v0')
    A('s_lshr_b32 s4, s2, 8'); A('s_cbranch_scc1 L_end')
    A('v_readfirstlane_b32 s3, v1')
    A('s_mov_b32 s51, 0x20000')
    A('s_lshr_b32 s4, s2, 6'); A('s_and_b32 s5, s2, 63')
    A('s_cmp_ge_u32 s3, 4'); A('s_cbranch_scc1 L_service')

    A('s_getpc_b64 s[70:71]')
    A('L_pcref:')
    A('s_bfe_u32 s7, s2, 0x40003')
    A('s_lshl2_add_u32 s8, s7, s3'); A('s_lshl_b32 s8, s8, 9')
    A('v_lshl_add_u32 v1, v0, 7, s8'); A('v_min_u32 v1, L_end-L_pcref, v1')
    A('s_mov_b64 exec, 15'); A('global_load_dword v12, v1, s[70:71]'); A('s_mov_b64 exec, -1')
    A('s_lshl2_add_u32 s9, s5, s3'); A('s_lshl_b32 s9, s9, 13')
    A('s_lshl_b32 s8, s4, 24'); A('s_add_u32 s9, s9, s8')
    A('s_lshl_b32 s12, s3, 15')
    A('v_lshrrev_b32 v13, 4, v0'); A('v_and_b32 v14, 15, v0')
    A('v_lshlrev_b32 v15, 2, v13'); A('v_xor_b32 v1, v14, v15'); A('v_lshlrev_b32 v1, 4, v1')
    A('v_lshl_add_u32 v1, v13, 8, v1')
    A('v_xor_b32 v2, 16, v1'); A('v_xor_b32 v3, 32, v1'); A('v_xor_b32 v4, 48, v1')
    A('s_brev_b32 s50, 32')
    A('s_waitcnt lgkmcnt(0)')
    A('s_mov_b64 s[48:49], s[18:19]')
    def attn_setup():
        A('v_lshlrev_b32 v5, 4, v0')
        A('s_mov_b32 s54, 0x4000000'); A('s_mov_b32 s55, 0x20000')
        A('s_mov_b32 s60, 0x05040100'); A('s_mov_b32 s61, 0x07060302')
        A(f's_mov_b32 s63, {f2u(128 ** -0.5):#x}'); A(f's_mov_b32 s64, {f2u(LOG2E):#x}')
        A('s_mov_b32 s58, 0x400000'); A('s_mov_b32 s59, 0x20000')
        A('v_and_b32 v6, 3, v14'); A('v_lshlrev_b32 v6, 2, v6'); A('v_lshrrev_b32 v15, 2, v14'); A('v_add_u32 v6, v6, v15')
        A('v_lshlrev_b32 v6, 8, v6'); A('v_xor_b32 v15, v13, v14'); A('v_lshl_add_u32 v6, v15, 4, v6'); A('v_add_u32 v6, s12, v6')
        A('v_xor_b32 v7, 64, v6'); A('v_xor_b32 v8, 0x80, v6'); A('v_xor_b32 v9, 0xc0, v6')
        A(f'v_mov_b32 v13, {LM}')
        A('v_mov_b32 v14, 0'); A('v_lshl_add_u32 v15, v0, 2, v13'); A('ds_write_b32 v15, v14')
        A('s_mov_b32 s70, 0xff00ff00'); A('s_mov_b32 s71, 0xff00ff00')
        A('s_mov_b64 s[52:53], s[20:21]'); A('s_mov_b64 s[56:57], s[44:45]'); A('s_mov_b64 s[66:67], s[24:25]')
        A('s_waitcnt lgkmcnt(0)')
        A('s_barrier')
    issued = [0]
    TS = 64 * 4 * 8192
    LEV = list(lev) if lev else [DB]
    def throttle(D, boost):
        if issued[0] < D: return
        if boost:
            l = A.lab('go')
            for k in range(len(LEV) - 1, -1, -1):
                A(f's_waitcnt vmcnt({LEV[k]-1})')
                if k == len(LEV) - 1: A(f's_cbranch_vccnz {l}')
                elif k > 0: A(f's_cmp_eq_u32 s13, {k}'); A(f's_cbranch_scc1 {l}')
            A(f'{l}:')
        else: A(f's_waitcnt vmcnt({D-1})')
    def kload(t, n, D, boost=False):
        if n % 4 == 0:
            A(f's_add_u32 m0, s12, {(t % 4) * 8192 + (n // 4) * 4096}')
            A(f's_add_u32 s10, s9, {t * TS + (n // 4) * 4096}')
        throttle(D, boost)
        A(f'buffer_load_dwordx4 v{1 + n % 4}, s[48:51], s10 offen offset:{(n % 4) * 1024} nt lds')
        issued[0] += 1
    def vload(t, e, D, boost=False):
        if e % 4 == 0: A(f's_add_u32 s10, s9, {t * TS + (e // 4) * 4096}')
        throttle(D, boost)
        A(f'buffer_load_dwordx4 {v(128 + 32 * (t % 4) + 4 * e, 4)}, v5, s[52:55], s10 offen offset:{(e % 4) * 1024} nt')
        issued[0] += 1
    for n in range(64):
        if n == early:
            A('s_branch L_attn2'); A(';MARK attn2')
            A('L_attn2:')
            attn_setup()
            if 'svc' not in cut: lds_spin(C_GO, 1, 14)
        if diag and trajA and n >= early and (n % 8 == 0 or n == early): sstamp(24 + n // 8)
        if n < 32: kload(n // 8, n % 8, DA)
        else: vload((n - 32) // 8, n % 8, DA)
        if issued[0] in (p2_at, q_at): lds_add(C_PROG, 14)
    stamp(1)
    if not cut: lds_spin(C_Q, 1, 14)
    A('v_and_b32 v14, 7, v0'); A('v_lshlrev_b32 v14, 8, v14'); A('v_lshrrev_b32 v15, 4, v0'); A('v_lshl_add_u32 v14, v15, 4, v14')
    A(f'v_add_u32 v14, {L_Q}, v14')
    for s in range(4): A(f'ds_read_b128 {v(16+4*s,4)}, v14 offset:{64*s}')
    stamp(2)
    def qk(t):
        off = (t % 4) * 8192
        for hb in range(2):
            for s in range(4): A(f'ds_read_b128 {v(96+16*hb+4*s,4)}, v{6+s} offset:{off + hb*4096}')
        for hb in range(2):
            S = 32 + 8 * (t % 4) + 4 * hb
            for s in range(4):
                A(f's_waitcnt lgkmcnt({7 - 4*hb - s})')
                A(f'v_mfma_f32_16x16x32_bf16 {v(S,4)}, {v(96+16*hb+4*s,4)}, {v(16+4*s,4)}, {0 if s == 0 else v(S,4)}')
    def rscale(t):
        S = 32 + 8 * (t % 4)
        rnd(*range(S, S + 8))
        for k in range(8): A(f'v_mul_f32 v{S+k}, s63, v{S+k}')
        rnd(*range(S, S + 8))
        if t == 0: A(f'v_max_f32 v15, v{S}, v{S+1}')
        else: A(f'v_max3_f32 v15, v{S}, v{S+1}, v{10 if t == 4 else 15}')
        for k in range(1, 4): A(f'v_max3_f32 v15, v{S+2*k}, v{S+2*k+1}, v15')
    def rescale_o():
        A('v_mov_b32 v17, v16')
        for k in range(8): A(f'v_pk_mul_f32 {v(64+2*k,2)}, {v(64+2*k,2)}, v[16:17]')
    def mfin(second):
        xg_reduce('v_max_f32', [15], 14)
        if second: A('v_sub_f32 v16, v10, v15'); A('v_mul_f32 v16, s64, v16'); A('v_exp_f32 v16, v16')
        A('v_mov_b32 v10, v15'); A('v_mul_f32 v12, s64, v15')
        if second: A('v_mul_f32 v11, v11, v16')
    def expo(t):
        S = 32 + 8 * (t % 4)
        for k in range(8): A(f'v_fma_f32 v{S+k}, v{S+k}, s64, -v12')
        for k in range(8): A(f'v_exp_f32 v{S+k}, v{S+k}')
        for k in range(4): A(f'v_add_f32 v{96+k}, v{S+2*k}, v{S+2*k+1}')
        for k in range(4): A(f'v_cvt_pk_bf16_f32 v{S+k}, v{S+2*k}, v{S+2*k+1}')
        for k in range(4): A(f'v_cndmask_b32 v{S+4+k}, 0, v{S+k}, s[70:71]')
        for k in range(4): A(f'v_cndmask_b32 v{S+k}, v{S+k}, 0, s[70:71]')
        A('v_add_f32 v96, v96, v97'); A('v_add_f32 v98, v98, v99')
        if t == 0: A('v_add_f32 v11, v96, v98')
        else: A('v_add_f32 v96, v96, v98'); A('v_add_f32 v11, v11, v96')
    def omf(d, P, first):
        o = 64 + 4 * (d & 3)
        A(f'v_mfma_f32_16x16x32_bf16 {v(o,4)}, {v(96+4*d,4)}, {v(P + (d & 4),4)}, {0 if (first and d < 4) else v(o,4)}')
    def pvt(t, half):
        Vb = 128 + 32 * (t % 4); ds_ = list(range(4 * half, 4 * half + 4))
        for m in range(4): perm(96 + 4*ds_[0] + m, Vb, m, ds_[0])
        for k, d in enumerate(ds_):
            if k + 1 < 4:
                for m in range(4): perm(96 + 4*ds_[k+1] + m, Vb, m, ds_[k+1])
            omf(d, 32 + 8 * (t % 4), t == 0)
    def publish_ml():
        xg_reduce('v_add_f32', [11], 14)
        A('v_lshrrev_b32 v14, 1, v5'); A('s_lshl_b32 s8, s3, 6'); A(f's_add_u32 s8, s8, {L_ML}'); A('v_add_u32 v14, s8, v14')
        A('s_mov_b64 exec, 0xff'); A('ds_write_b64 v14, v[10:11]'); A('s_mov_b64 exec, -1')
        lds_add(C_ML, 14)
    def endsetup():
        A('v_bfe_u32 v28, v0, 4, 1'); A('s_lshl_b32 s8, s3, 1'); A('v_add_u32 v28, s8, v28')
        A(f'v_mul_u32_u24 v20, {OSTRIDE}, v28')
        A('v_lshlrev_b32 v28, 4, v28'); A(f'v_add_u32 v28, {L_FAC}, v28')
        A('v_and_b32 v21, 15, v0'); A('v_lshl_add_u32 v20, v21, 5, v20'); A('v_lshrrev_b32 v21, 5, v0')
        A('v_lshl_add_u32 v20, v21, 4, v20'); A('v_add_u32 v21, 0x10000, v20')
        A('v_and_b32 v4, 7, v0'); A(f'v_mul_u32_u24 v22, {OSTRIDE}, v4'); A('v_and_b32 v23, 8, v0'); A('v_lshl_add_u32 v22, v23, 5, v22')
        A('v_lshlrev_b32 v1, 9, v23')
        A('v_lshrrev_b32 v23, 4, v0'); A('v_lshl_add_u32 v22, v23, 4, v22'); A('v_add_u32 v22, s12, v22')
        A('v_lshl_add_u32 v1, v23, 15, v1'); A('v_lshl_add_u32 v1, v4, 4, v1')
        A('v_lshrrev_b32 v2, 3, v0'); A('v_lshlrev_b32 v2, 12, v2'); A('v_lshl_add_u32 v2, v4, 4, v2')
        A('v_and_b32 v3, 16, v0'); A('v_lshlrev_b32 v3, 4, v3'); A('v_lshlrev_b32 v4, 2, v4')
        A('s_lshl_b32 s8, s3, 9'); A(f's_add_u32 s8, s8, {L_RED2}'); A('v_add3_u32 v3, v3, v4, s8')
        rb_calc()
        A('s_mov_b64 s[48:49], s[66:67]'); A('s_mov_b32 s50, 0x800000')
        A('s_lshl_b32 s73, s6, 8'); A('s_lshr_b32 s8, s3, 1'); A('s_lshl_b32 s8, s8, 7'); A('s_add_u32 s73, s73, s8')
        A('s_and_b32 s8, s3, 1'); A('s_lshl2_add_u32 s73, s8, s73'); A('s_lshl_b32 s73, s73, 11')
        A('s_lshl_b32 s8, s7, 7'); A('s_add_u32 s73, s73, s8')
        A('s_lshl_b32 s74, s6, 15'); A('s_lshl_b32 s8, s3, 7'); A('s_add_u32 s74, s74, s8'); A(f's_add_u32 s74, s74, {WS_T1}')
        A('s_lshl2_add_u32 s8, s4, s3'); A('s_lshl_b32 s8, s8, 15'); A('s_lshl_b32 s11, s5, 9'); A('s_add_u32 s11, s11, s8')
        A(f's_add_u32 s11, s11, {WS_T1}')
    sched = {i: [] for i in range(-1, 64)}
    def put(pos, fn, landed=None): sched[pos].append((fn, landed))
    DM = max(LEV + [DA])
    CP = list(cps) if (len(LEV) > 1 and not sc) else []
    THR = [list(t) for t in thrs] * (len(sc or cps) if len(thrs) == 1 else 1)
    ctl = bool(CP) or bool(sc)
    NRL = (1 << nshb) * len(sc) if sc else (4 << wsh) * len(CP)
    put(-1, lambda: qk(0))
    for t in range(1, 4): put(t - 1, (lambda t=t: qk(t)))
    for t in range(4): put(3 + t, (lambda t=t: rscale(t)))
    put(7, lambda: mfin(False))
    for t in range(4): put(8 + t, (lambda t=t: expo(t)))
    for t in range(4):
        for h in range(2): put(12 + 2 * t + h, (lambda t=t, h=h: pvt(t, h)), -1)
    pos = {4: max(20, 7 + DS), 5: max(22, 15 + DS), 6: 23 + DS, 7: 31 + DS}
    for t in range(4, 8):
        put(pos[t], (lambda t=t: qk(t)), 8 * (t - 4) + 7)
        put(pos[t] + 1, (lambda t=t: rscale(t)))
    b = pos[7] + 1
    put(b, lambda: mfin(True))
    put(b + 1, lambda: (expo(4), expo(5))); put(b + 2, lambda: (expo(6), expo(7)))
    put(b + 3, publish_ml); put(b + 4, rescale_o)
    p4 = max(39 + DS, b + 5)
    put(p4, lambda: pvt(4, 0), 39); put(p4 + 1, lambda: pvt(4, 1))
    p5 = max(47 + DS, p4 + 2)
    put(p5, lambda: pvt(5, 0), 47); put(p5 + 1, lambda: pvt(5, 1))
    put(60, endsetup)
    assert p5 + 1 < 60 and (not CP or max(CP) + rd < 60)
    def run(posn):
        for fn, landed in sched[posn]:
            if landed is not None and posn - landed < DM: A(f's_waitcnt vmcnt({posn - landed})')
            fn()
    if CP:
        A('s_mov_b64 vcc, 0'); A(f's_mov_b32 s13, {LEV.index(DB)}')
        A(f's_bfe_u32 s11, s2, {(wsh << 16) | 3:#x}'); A('s_lshl2_add_u32 s11, s11, s3'); A(f's_mul_i32 s11, s11, {RSTR}')
        A(f's_add_u32 s11, s11, {WS_RANK}')
        assert (4 << wsh) * len(CP) <= 128
    if sc: A('s_mov_b64 vcc, 0'); A(f's_mov_b32 s13, {LEV.index(DB)}')
    run(-1)
    for L in range(64):
        if diag and not trajA and L % 8 == 0: sstamp(24 + L // 8)
        if L in CP:
            A('s_mov_b32 s47, 1'); A(f's_atomic_add s47, s[44:45], s11 offset:{(4 << wsh) * RSTR * CP.index(L)} glc')
        if L < 32: kload(4 + L // 8, L % 8, DB, ctl)
        else: vload(4 + (L - 32) // 8, L % 8, DB, ctl)
        if L - rd in CP:
            th = [int(round(t_ * (256 >> wsh) / 64.0)) for t_ in THR[CP.index(L - rd)]]
            A('s_waitcnt lgkmcnt(0)')
            if diag: A(f's_mov_b32 s{32 + CP.index(L - rd)}, s47')
            A('s_mov_b32 s13, 0')
            for k, t_ in enumerate(th[:-1]):
                A(f's_cmp_ge_u32 s47, {t_}'); A(f's_cselect_b32 s13, {k+1}, s13')
            A(f's_cmp_ge_u32 s47, {th[-1]}'); A('s_cselect_b64 vcc, -1, 0')
        if sc and L in sc: lds_add(C_RK, 14)
        if sc and any(L - r_ in sc for r_ in scr):
            A(f'ds_read_b32 v14, v13 offset:{C_LEV}'); A('s_waitcnt lgkmcnt(0)')
            A('v_readfirstlane_b32 s13, v14'); A(f's_add_u32 s13, s13, {LEV.index(DB)}')
            A(f's_cmp_eq_u32 s13, {len(LEV) - 1}'); A('s_cselect_b64 vcc, -1, 0')
        if L in (r2_at, fin_at, ml_at): lds_add(C_PROG, 14)
        run(L)
    assert r2_at < fin_at < ml_at
    stamp(3)
    NWO = [0]
    def wo_upto(k):
        while NWO[0] < k:
            n = NWO[0]; m, hh = n >> 1, n & 1
            if n < wothr: throttle(DB, ctl)
            A(f's_add_u32 s10, s73, {(64 * (m & 1) + 8 * hh + (m >> 1)) * 2048}')
            A(f'buffer_load_dwordx4 {v(128 + 4*n, 4)}, v1, s[48:51], s10 offen nt')
            NWO[0] += 1
    wo_upto(wos[0])
    A(f's_waitcnt vmcnt({8 + NWO[0]})')
    pvt(6, 0); wo_upto(wos[1]); pvt(6, 1); wo_upto(wos[2])
    Vb = 128 + 96; P = 32 + 24
    for m in range(3):
        A(f's_waitcnt vmcnt({6 - 2*m + NWO[0]})')
        for d in range(8): perm(96 + 4*d + m, Vb, m, d)
        wo_upto(wos[3 + m])
    A(f's_waitcnt vmcnt({NWO[0]})')
    stamp(4)
    if cut:
        for k in range(8): A(f'v_writelane_b32 v15, s{24+k}, {16+k}')
        A('s_branch L_fin')
    order = [0, 4, 1, 5, 2, 6, 3, 7]
    for d in order[:3]: perm(96 + 4*d + 3, Vb, 3, d)
    for k, d in enumerate(order):
        omf(d, P, False)
        if k + 3 < 8: perm(96 + 4*order[k+3] + 3, Vb, 3, order[k+3])
    wo_upto(wos[6])
    for d in range(4): A(f'ds_write_b128 v22, {v(64+4*d,4)} offset:{64*d}')
    wo_upto(wos[7])
    assert NWO[0] == 8
    A('s_waitcnt lgkmcnt(0)')
    A('s_barrier')
    A('ds_read_b128 v[16:19], v28')
    A('ds_read_b128 v[32:35], v20'); A('ds_read_b128 v[36:39], v20 offset:32768')
    A('ds_read_b128 v[40:43], v21'); A('ds_read_b128 v[44:47], v21 offset:32768')
    for w in range(4):
        A(f's_waitcnt lgkmcnt({3-w})')
        for k in range(2):
            f_ = v(16 + (w & 2), 2); h_ = w & 1
            if w == 0: A(f'v_pk_mul_f32 {v(32+2*k,2)}, {v(32+2*k,2)}, {f_} op_sel:[0,{h_}] op_sel_hi:[1,{h_}]')
            else: A(f'v_pk_fma_f32 {v(32+2*k,2)}, {v(32+4*w+2*k,2)}, {f_}, {v(32+2*k,2)} op_sel:[0,{h_},0] op_sel_hi:[1,{h_},1]')
    A('v_cvt_pk_bf16_f32 v24, v32, v33'); A('v_cvt_pk_bf16_f32 v25, v34, v35')
    A('v_min_u32 v24, -2, v24'); A('v_min_u32 v25, -2, v25')
    A('v_permlane32_swap_b32 v24, v26'); A('v_permlane32_swap_b32 v25, v27')
    A('s_mov_b32 exec_hi, 0')
    A('buffer_store_dwordx4 v[24:27], v5, s[56:59], s11 offen sc1')
    A('s_mov_b64 exec, -1')
    stamp(5)
    if diag:
        for k in range(8): A(f'v_writelane_b32 v15, s{24+k}, {16+k}')
        for k in range(5): A(f'v_writelane_b32 v15, s{32+k}, {11+k}')
        A('s_load_dwordx16 s[16:31], s[0:1], 0'); A('s_load_dwordx8 s[32:39], s[0:1], 64'); A('s_waitcnt lgkmcnt(0)')
    def t1_load(n): A(f'buffer_load_dwordx4 {v(160+4*n,4)}, v2, s[56:59], s74 offen offset:{512*n} sc1')
    prep()
    xstamp(8)
    A('s_waitcnt vmcnt(1)')
    for e in range(8):
        for m in range(4): perm(192 + 4*e + m, 128, m, e)
    A('s_waitcnt vmcnt(0)')
    for n in range(8): t1_load(n)
    xstamp(9)
    sweep('t1', 8, t1_load, lambda k: 160 + 4*k, 60, 6)
    stamp(6)
    row_reduce('v_add_f32', [60, 61], (8,))
    A('v_cvt_pk_bf16_f32 v60, v60, v61')
    for c in range(4): A(f'v_mov_b32_dpp v{224+c}, v60 quad_perm:[{c},{c},{c},{c}] row_mask:0xf bank_mask:0xf')
    for e in range(8): A(f'v_mfma_f32_16x16x32_bf16 {v(64+4*e,4)}, v[224:227], {v(192+4*e,4)}, 0')
    A('s_mov_b32 exec_lo, 0xff0000ff'); A('s_mov_b32 exec_hi, 0')
    for e in range(0, 8, 2): A(f'ds_write2_b32 v3, v{64+4*e}, v{68+4*e} offset0:{8*e} offset1:{8*e+8}')
    A('s_mov_b64 exec, -1')
    A('s_waitcnt lgkmcnt(0)')

    A(';MARK service')
    A('L_service:')
    if 'svc' in cut: A('s_endpgm')
    A('s_sub_u32 s3, s3, 4')
    A('s_cmp_ge_u32 s3, 2'); A('s_cbranch_scc1 L_tabwaves')
    A('s_and_b32 s55, s2, 4'); A('s_lshr_b32 s55, s55, 1')
    A('s_lshr_b32 s53, s2, 3'); A('s_and_b32 s8, s2, 3'); A('s_lshl2_add_u32 s53, s53, s8')
    A('s_cmp_eq_u32 s3, 1'); A('s_cselect_b32 s65, 1, s55')
    A('s_setprio 3')
    A('L_unit:')
    A('s_and_b32 s67, s53, 63'); A('s_add_u32 s67, s67, 32'); A('s_lshr_b32 s69, s53, 6'); A('s_add_u32 s69, s69, s55'); A('s_movk_i32 s66, 0x3000')
    A('s_and_b32 s8, s53, 31'); A('s_lshr_b32 s10, s53, 5')
    A('s_cmp_eq_u32 s65, 0'); A('s_cselect_b32 s67, s8, s67'); A('s_cselect_b32 s69, s10, s69')
    A('s_add_u32 s68, s5, 96')
    A('s_cmp_eq_u32 s65, 1'); A('s_cselect_b32 s68, s68, s67'); A('s_cselect_b32 s67, s5, s67'); A('s_cselect_b32 s66, 0x2000, s66'); A('s_cselect_b32 s69, s4, s69')
    A('s_lshl_b32 s50, s66, 10'); A('s_lshl_b32 s67, s67, 7')
    A('v_and_b32 v1, 56, v0'); A('v_mul_u32_u24 v1, s66, v1')
    A('v_and_b32 v2, 7, v0'); A('v_lshl_add_u32 v1, v2, 4, v1')
    A('s_cmp_eq_u32 s65, 3'); A('s_cselect_b32 s8, 7, 8'); A('s_lshl_b32 s54, s69, s8')
    A('s_mul_i32 s10, s54, s66'); A('s_add_u32 s10, s10, s67')
    A('s_mul_i32 s11, s66, 57')
    A('s_lshl_b32 s8, s54, 1'); A('v_lshl_add_u32 v2, v0, 2, s8')
    A('s_waitcnt lgkmcnt(0)')
    xstamp(0)
    A('s_mov_b64 s[48:49], s[38:39]'); A('s_mov_b64 s[70:71], s[36:37]')
    A('s_cmp_lg_u32 s65, 1'); A('s_cbranch_scc1 L_notq')
    A('s_mov_b64 s[48:49], s[22:23]'); A('s_mov_b64 s[70:71], s[16:17]')
    A('v_lshlrev_b32 v3, 5, v0')
    A('s_barrier')
    A('global_load_dwordx4 v[16:19], v3, s[16:17]'); A('global_load_dwordx4 v[20:23], v3, s[16:17] offset:16')
    A('L_notq:')
    A('global_load_dword v4, v2, s[70:71]'); A('global_load_dword v5, v2, s[70:71] offset:256')
    for G in range(4):
        if G == 2: A('s_cmp_eq_u32 s65, 3'); A('s_cbranch_scc1 L_halfl')
        if G == 1:
            svc_setup()
            if ctl:
                A('s_cmp_lg_u32 s65, 0'); A('s_cbranch_scc1 L_norclr')
                A(f's_cmp_ge_u32 s53, {NRL}'); A('s_cbranch_scc1 L_norclr')
                A(f's_mul_i32 s8, s53, {RSTR}'); A(f's_add_u32 s8, s8, {WS_RANK}')
                A('s_mov_b64 exec, 1'); A('buffer_store_dword v0, off, s[56:59], s8 sc1'); A('s_mov_b64 exec, -1')
                A('L_norclr:')
        for r in range(8):
            if 8*G + r >= WU: A(f's_waitcnt vmcnt({WU-1})')
            A(f'buffer_load_dwordx4 {v(128+32*G+4*r,4)}, v1, s[48:51], s10 offen nt')
            if not (G == 3 and r == 7): A(f's_add_u32 s10, s10, {"s11" if r == 7 else "s66"}')
    A('s_cmp_eq_u32 s65, 1'); A('s_cbranch_scc1 L_go')
    A(f's_waitcnt vmcnt({hu})')
    A('s_barrier')
    A('s_branch L_went')
    A('L_halfl:')
    A('s_waitcnt vmcnt(0)')
    A('s_branch L_went')
    A('L_go:')
    A(f's_waitcnt vmcnt({hg})')
    lds_add(C_GO, 10)
    A('L_went:')
    A('s_waitcnt lgkmcnt(0)'); A('s_add_u32 s46, s9, 1')
    A('s_lshl2_add_u32 s47, s68, s69')
    A('s_lshl_b32 s68, s68, 9'); A(f's_mul_i32 s8, s69, {PSTR}'); A('s_add_u32 s68, s68, s8'); A(f's_add_u32 s68, s68, {WS_PART}')
    xstamp(3)
    A('v_lshlrev_b32 v6, 16, v4'); A('v_and_b32 v7, s62, v4'); A('v_lshlrev_b32 v8, 16, v5'); A('v_and_b32 v9, s62, v5')
    A('s_cmp_eq_u32 s65, 1'); A('s_cbranch_scc1 L_jobq')
    for k in range(4): A(f'v_mul_f32 v{24+k}, s64, v{6+k}')
    for k in range(4): A(f'v_exp_f32 v{24+k}, -v{24+k}')
    for k in range(4): A(f'v_add_f32 v{24+k}, 1.0, v{24+k}')
    for k in range(4): A(f'v_rcp_f32 v{24+k}, v{24+k}')
    for k in range(4): A(f'v_mul_f32 v{6+k}, v{6+k}, v{24+k}')
    A('L_jobcommon:')
    def jobq():
        A('L_jobq:')
        for k in range(8):
            A(f'v_lshlrev_b32 v{96+2*k}, 16, v{16+k}'); A(f'v_and_b32 v{97+2*k}, s62, v{16+k}')
        A('v_add_f32 v24, v96, v97')
        for k in range(2, 16): A(f'v_add_f32 v24, v24, v{96+k}')
        row_reduce('v_add_f32', [24]); xg_reduce('v_add_f32', [24], 25)
        A(f'v_mul_f32 v24, {f2u(1/1024):#x}, v24')
        for k in range(16): A(f'v_sub_f32 v{96+k}, v{96+k}, v24')
        A('v_mul_f32 v26, v96, v96')
        for k in range(1, 16): A(f'v_fmac_f32 v26, v{96+k}, v{96+k}')
        row_reduce('v_add_f32', [26]); xg_reduce('v_add_f32', [26], 25)
        A(f'v_mul_f32 v26, {f2u(1/1024):#x}, v26')
        rnd(24, 26)
        A(f'v_add_f32 v26, {f2u(1e-5):#x}, v26'); rnd(26); A('v_sqrt_f32 v26, v26'); rnd(26); A('v_rcp_f32 v26, v26')
        for k in range(4): A(f'v_sub_f32 v{6+k}, v{6+k}, v24')
        rnd(6, 7, 8, 9)
        for k in range(4): A(f'v_mul_f32 v{6+k}, v{6+k}, v26')
        rnd(6, 7, 8, 9)
        A('v_lshlrev_b32 v3, 2, v2')
        loads = []
        for a in range(2):
            for rho in range(4):
                A(f's_mov_b32 s{72 + 4*a + rho}, {WS_PART + rho * PSTR + a * 8192}')
                for k in range(2):
                    d = 16 + 32*a + 16*k + 4*rho
                    loads.append((d, f'buffer_load_dwordx4 {v(d,4)}, v3, s[56:59], s{72 + 4*a + rho} offen offset:{1024*k} sc1'))
        A('s_waitcnt vmcnt(0)')
        lds_spin(C_PROG, 4, 10)
        if 'p2g' not in cut: tag_gather(loads, 10, cid=0)
        for q_ in range(4):
            b_ = 16 + 16 * q_
            for j in range(2):
                A(f'v_add_f32 v{b_+2*j}, v{b_+2*j}, v{b_+4+2*j}'); A(f'v_add_f32 v{b_+8+2*j}, v{b_+8+2*j}, v{b_+12+2*j}')
            for j in range(2): A(f'v_add_f32 v{96+2*q_+j}, v{b_+2*j}, v{b_+8+2*j}')
        rnd(*range(96, 104))
        for k in range(4): A(f'v_add_f32 v{100+k}, 1.0, v{100+k}')
        rnd(100, 101, 102, 103)
        for k in range(4): A(f'v_mul_f32 v{6+k}, v{6+k}, v{100+k}')
        rnd(6, 7, 8, 9)
        for k in range(4): A(f'v_add_f32 v{6+k}, v{6+k}, v{96+k}')
        A('s_branch L_jobcommon')
    A('v_cvt_pk_bf16_f32 v4, v6, v7'); A('v_cvt_pk_bf16_f32 v5, v8, v9')
    A('s_lshl_b32 s8, s3, 10'); A(f's_add_u32 s8, s8, {L_SCR}')
    A('v_lshl_add_u32 v2, v0, 2, s8')
    A('ds_write2_b32 v2, v4, v5 offset0:0 offset1:64')
    A('v_lshrrev_b32 v3, 4, v0'); A('v_lshlrev_b32 v3, 1, v3'); A('v_and_b32 v6, 1, v0'); A('v_add_u32 v3, v3, v6'); A('v_lshl_add_u32 v3, v3, 4, s8')
    A('s_waitcnt lgkmcnt(0)')
    for G in range(4): A(f'ds_read_b128 {v(32+8*G,4)}, v3 offset:{128*G}')
    A('s_waitcnt lgkmcnt(0)')
    for G in range(4):
        if G == 2: A('s_cmp_eq_u32 s65, 3'); A('s_cbranch_scc1 L_halfg')
        A(f's_waitcnt vmcnt({24 - 8*G})')
        if G in (0, 3): xstamp(5 if G == 0 else 6)
        for m in range(4): perm(96 + m, 128 + 32*G, m, 0)
        for d in range(8):
            if d + 1 < 8:
                for m in range(4): perm(96 + 4*(d+1) + m, 128 + 32*G, m, d + 1)
            A(f'v_mfma_f32_16x16x32_bf16 {v(64+4*d,4)}, {v(96+4*d,4)}, {v(32+8*G,4)}, {0 if G == 0 else v(64+4*d,4)}')
    A('L_halfg:')
    A('v_lshrrev_b32 v3, 5, v0'); A('v_lshlrev_b32 v3, 8, v3'); A('v_and_b32 v6, 16, v0'); A('v_add3_u32 v3, v3, v6, s8')
    A('v_and_b32 v6, 3, v0'); A('v_lshlrev_b32 v6, 6, v6'); A('v_bfe_u32 v7, v0, 2, 3'); A('v_lshl_add_u32 v6, v7, 2, v6'); A('v_add_u32 v6, s8, v6')
    A('s_mov_b32 exec_lo, 0x00010001'); A('s_mov_b32 exec_hi, 0x00020002')
    for e in range(8): A(f'ds_write_b128 v3, {v(64+4*e,4)} offset:{512 + 32*e}')
    A('s_mov_b32 exec_lo, -1'); A('s_mov_b32 exec_hi, 0')
    A('s_waitcnt lgkmcnt(0)')
    A('ds_read2_b32 v[16:17], v6 offset0:128 offset1:136'); A('ds_read2_b32 v[20:21], v6 offset0:192 offset1:200')
    A('v_lshlrev_b32 v3, 4, v0'); A('v_mov_b32 v19, s46')
    A('s_lshl_b32 s8, s69, 3'); A('s_lshl_b32 s52, 0xff, s8'); A('s_not_b32 s52, s52')
    if not skipown: A('s_mov_b32 s52, -1')
    A('s_cmp_eq_u32 s65, 0'); A('s_cselect_b32 s52, -1, s52')
    A('s_waitcnt lgkmcnt(0)')
    A('v_add_f32 v18, v17, v21'); A('v_add_f32 v16, v16, v20'); A('v_mov_b32 v17, s46')
    A('s_cmp_lg_u32 s65, 3'); A('s_cbranch_scc1 L_nomrg')
    A('v_add_f32 v16, v16, v28'); A('v_add_f32 v18, v18, v29')
    A('L_nomrg:')
    A('v_mov_b32 v28, v16'); A('v_mov_b32 v29, v18')
    A('s_cmp_eq_u32 s65, 2'); A('s_cbranch_scc1 L_nopub')
    A('v_mov_b32 v28, 0'); A('v_mov_b32 v29, 0')
    A('s_mov_b32 exec_lo, s52')
    if 'nopub' not in cut: A('buffer_store_dwordx4 v[16:19], v3, s[56:59], s68 offen sc1')
    A('L_nopub:')
    A('s_mov_b64 exec, -1')
    A('s_bitcmp1_b32 s65, 0'); A('s_cbranch_scc1 L_unit_done')
    xstamp(7)
    lds_spin(C_P2, 1, 6, sleep=4)
    A('s_mov_b32 s65, 3'); A('s_branch L_unit')
    jobq()
    A('L_unit_done:')
    stamp(1)
    if 'qg' in cut: lds_add(C_P2, 10); A('s_endpgm')
    A('s_cmp_eq_u32 s3, 1'); A('s_cbranch_scc1 L_lvl2')
    if 'late' in cut: A('s_endpgm')
    lds_spin(C_PROG, 12, 6, sleep=8)
    A('L_lvl2:')
    A('s_waitcnt vmcnt(0)')
    A('v_lshrrev_b32 v1, 3, v0'); A(f's_mov_b32 s8, {PSTR}'); A('v_mul_lo_u32 v1, v1, s8'); A('v_and_b32 v2, 7, v0'); A('v_lshl_add_u32 v1, v2, 4, v1')
    A('s_lshl_b32 s8, s47, 7'); A(f's_add_u32 s8, s8, {WS_PART}')
    A('s_mov_b32 exec_lo, s52'); A('s_mov_b32 exec_hi, 0')
    tag_gather([(16, 'buffer_load_dwordx4 v[16:19], v1, s[56:59], s8 offen sc1')], 10, sleep=6, cid=3)
    A('s_mov_b64 exec, -1')
    row_reduce('v_add_f32', [16, 18], (8,))
    for r in (16, 18): A(f'v_mov_b32 v{r+4}, v{r}')
    for r in (16, 18): A(f'v_permlane16_swap_b32 v{r}, v{r+4}')
    for r in (16, 18): A(f'v_add_f32 v{r}, v{r}, v{r+4}')
    A('v_cvt_pk_bf16_f32 v16, v16, v18')
    A('s_cmp_eq_u32 s3, 0'); A('s_cbranch_scc1 L_rest2')
    A('; ---- wave 5: publish and gather q, later stage the modulation vectors')
    A('v_lshlrev_b32 v2, 3, v2'); A('s_lshl_b32 s8, s47, 6'); A(f's_add_u32 s8, s8, {WS_Q - 384 * 64}')
    A('s_mov_b64 exec, 0xff'); A('buffer_store_dwordx2 v[16:17], v2, s[56:59], s8 offen sc1'); A('s_mov_b64 exec, -1')
    lds_add(C_P2, 10)
    xstamp(7)
    lds_spin(C_PROG, 8, 6, sleep=4)
    A('s_lshl_b32 s8, s4, 12'); A(f's_add_u32 s8, s8, {WS_Q}'); A('v_lshlrev_b32 v1, 4, v0')
    tag_gather([(20+4*n, f'buffer_load_dwordx4 {v(20+4*n,4)}, v1, s[56:59], s8 offen offset:{1024*n} sc1') for n in range(4)], 10, sleep=6, cid=1)
    A('v_lshrrev_b32 v2, 1, v1'); A(f'v_add_u32 v2, {L_Q}, v2')
    for n in range(4):
        A(f'v_mov_b32 v{21+4*n}, v{22+4*n}'); A(f'ds_write_b64 v2, {v(20+4*n,2)} offset:{512*n}')
    lds_add(C_Q, 6)
    stamp(2)
    if 'late' in cut: A('s_endpgm')
    A(f's_mov_b32 m0, {L_CONST}')
    A('global_load_lds_dwordx4 v1, s[16:17]'); A('global_load_lds_dwordx4 v1, s[16:17] offset:1024')
    def svc_rank(k):
        lds_spin(C_RK, 4 * (k + 1), 6, sleep=1)
        A(f's_bfe_u32 s10, s2, {(nshb << 16) | 3:#x}'); A(f's_mul_i32 s10, s10, {RSTR}'); A(f's_add_u32 s10, s10, {WS_RANK + (RSTR << nshb) * k}')
        A('s_mov_b32 s11, 1'); A('s_atomic_add s11, s[44:45], s10 glc'); A('s_waitcnt lgkmcnt(0)')
        A(f's_mov_b32 s8, {-LEV.index(DB)}')
        for j, t_ in enumerate(THR[k]):
            A(f's_cmp_ge_u32 s11, {int(round(t_ * (256 >> nshb) / 64.0))}'); A(f's_cselect_b32 s8, {j + 1 - LEV.index(DB)}, s8')
        A('v_mov_b32 v6, s8'); A(f'ds_write_b32 v13, v6 offset:{C_LEV}')
    for k in range(len(sc or ())):
        if sc[k] < sc_split: svc_rank(k)
    lds_spin(C_PROG, 16, 6, sleep=8)
    A(f's_mov_b32 s8, {WS_CLR}')
    tag_gather([(16, 'buffer_load_dwordx4 v[16:19], v1, s[56:59], s8 offen sc1')], 10, sleep=16, tagregs=(0, 1, 2, 3), cid=2)
    dma(WS_MOD, L_CONST + 2048, 6)
    A('s_lshl_b32 s10, s2, 3'); A(f's_add_u32 m0, s10, {L_CONST + 8192}'); A(f's_add_u32 s8, s10, {WS_MOD + 6144}'); A('v_lshlrev_b32 v2, 2, v0')
    A('s_mov_b64 exec, 3'); A('buffer_load_dword v2, s[56:59], s8 offen sc1 lds'); A('s_mov_b64 exec, -1')
    A('s_waitcnt vmcnt(0)')
    stamp(3)
    A('s_branch L_staged')
    A('; ---- wave 4: publish the rest of the modulation, exchange the softmax statistics of the group')
    A('L_rest2:')
    A('v_lshlrev_b32 v2, 2, v2'); A('s_lshl_b32 s8, s47, 5'); A(f's_sub_u32 s8, s8, {128 * 32 - WS_MOD}')
    A('s_mov_b64 exec, 0xff'); A('buffer_store_dword v16, v2, s[56:59], s8 offen sc1'); A('s_mov_b64 exec, -1')
    done_event(6)
    stamp(2)
    lds_spin(C_ML, 4, 6, sleep=2)
    A('v_and_b32 v1, 7, v0'); A('v_lshlrev_b32 v1, 3, v1'); A(f'v_add_u32 v2, {L_ML}, v1')
    for w in range(4): A(f'ds_read_b64 {v(16+2*w,2)}, v2 offset:{64*w}')
    A('s_waitcnt lgkmcnt(0)')
    A('v_max_f32 v24, v16, v18'); A('v_max3_f32 v24, v20, v22, v24')
    for w in range(4): A(f'v_sub_f32 v{28+w}, v{16+2*w}, v24')
    for w in range(4): A(f'v_mul_f32 v{28+w}, s64, v{28+w}')
    for w in range(4): A(f'v_exp_f32 v{28+w}, v{28+w}')
    A('v_mul_f32 v25, v28, v17')
    for w in range(1, 4): A(f'v_fmac_f32 v25, v{28+w}, v{17+2*w}')
    A('v_mov_b32_dpp v28, v24 quad_perm:[1,1,3,3] row_mask:0xf bank_mask:0xf')
    A('v_mov_b32 v27, s46')
    A('v_mov_b32_dpp v26, v25 quad_perm:[1,1,3,3] row_mask:0xf bank_mask:0xf')
    A('v_cvt_pk_bf16_f32 v24, v24, v28')
    A('s_lshl_b32 s8, s2, 6'); A(f's_add_u32 s8, s8, {WS_ML}')
    A('s_mov_b64 exec, 0x55'); A('buffer_store_dwordx4 v[24:27], v1, s[56:59], s8 offen sc1'); A('s_mov_b64 exec, -1')
    stamp(3)
    A('v_and_b32 v2, 3, v0'); A('v_bfe_u32 v3, v0, 2, 1'); A('v_lshl_add_u32 v2, v2, 1, v3'); A('v_bfe_u32 v4, v0, 3, 2')
    A('v_lshlrev_b32 v7, 6, v4'); A('v_lshl_add_u32 v7, v2, 3, v7'); A('v_add_u32 v7, v7, v13')
    A(f'ds_read_b32 v8, v7 offset:{L_ML - LM}')
    A('v_lshlrev_b32 v7, 2, v4'); A('v_lshl_add_u32 v7, v2, 4, v7'); A('v_add_u32 v7, v7, v13')
    A('s_lshl_b32 s10, s4, 12'); A(f's_add_u32 s10, s10, {WS_ML}'); A('v_lshlrev_b32 v1, 4, v0')
    lds_spin(C_PROG, 20, 6, sleep=2)
    tag_gather([(32+4*n, f'buffer_load_dwordx4 {v(32+4*n,4)}, v1, s[56:59], s10 offen offset:{1024*n} sc1') for n in range(4)], 10, sleep=6, cid=4, tagregs=(3,))
    stamp(4)
    for n in range(4): A(f'v_lshlrev_b32 v{16+n}, 16, v{32+4*n}'); A(f'v_and_b32 v{20+n}, s62, v{32+4*n}')
    for h in range(2): A(f'v_max_f32 v{24+h}, v{16+4*h}, v{17+4*h}'); A(f'v_max3_f32 v{24+h}, v{18+4*h}, v{19+4*h}, v{24+h}')
    row_reduce('v_max_f32', [24, 25], (8, 4)); xg_reduce('v_max_f32', [24, 25], 28)
    for k in range(8): A(f'v_sub_f32 v{16+k}, v{16+k}, v{24 + k//4}')
    for k in range(8): A(f'v_mul_f32 v{16+k}, s64, v{16+k}')
    for k in range(8): A(f'v_exp_f32 v{16+k}, v{16+k}')
    for n in range(4):
        for h in range(2): A(f'{"v_mul_f32" if n == 0 else "v_fmac_f32"} v{26+h}, v{16+4*h+n}, v{33+4*n+h}')
    row_reduce('v_add_f32', [26, 27], (8, 4)); xg_reduce('v_add_f32', [26, 27], 28)
    A('v_cmp_eq_u32 vcc, 1, v3'); A('v_cndmask_b32 v24, v24, v25, vcc'); A('v_cndmask_b32 v26, v26, v27, vcc')
    A('v_rcp_f32 v26, v26')
    A('v_sub_f32 v8, v8, v24'); A('v_mul_f32 v8, s64, v8'); A('v_exp_f32 v8, v8'); A('v_mul_f32 v8, v8, v26')
    A(f'ds_write_b32 v7, v8 offset:{L_FAC - LM}')
    A('s_branch L_staged')

    A('L_tabwaves:')
    if 'tab' in cut: A('s_endpgm')
    A('s_waitcnt lgkmcnt(0)')
    svc_setup()
    A('s_cmp_eq_u32 s3, 3'); A('s_cbranch_scc1 L_tabinit')
    if 'noclr' not in cut:
        A('v_mov_b32 v20, -1'); A('v_mov_b32 v21, -1'); A('v_mov_b32 v22, -1'); A('v_mov_b32 v23, -1')
        A('v_lshrrev_b32 v1, 5, v0'); A('v_lshlrev_b32 v1, 15, v1'); A('v_and_b32 v2, 31, v0'); A('v_lshl_add_u32 v1, v2, 4, v1')
        A('v_lshrrev_b32 v3, 3, v0'); A('v_lshlrev_b32 v3, 15, v3'); A('v_and_b32 v2, 7, v0'); A('v_lshl_add_u32 v3, v2, 4, v3')
        A('s_lshl_b32 s8, s4, 17'); A('s_lshl_b32 s10, s5, 9'); A('s_add_u32 s8, s8, s10'); A(f's_add_u32 s8, s8, {WS_T1}'); A('s_add_u32 s10, s8, 0x10000')
        A('s_lshl_b32 s11, s6, 11'); A('s_lshl_b32 s14, s7, 7'); A('s_add_u32 s11, s11, s14'); A(f's_add_u32 s11, s11, {WS_T2}')
        for va, so in (('v1', 's8'), ('v1', 's10'), ('v3', 's11')): A(f'buffer_store_dwordx4 v[20:23], {va}, s[56:59], {so} offen sc1')
    A('L_tabinit:')
    A('s_and_b32 s8, s2, 127'); A(f's_mul_i32 s8, s8, {NB}'); A(f's_add_u32 s8, s8, {TAB_E0}')
    A('s_lshr_b32 s10, s2, 7'); A('s_lshl_b32 s10, s10, 15'); A('s_add_u32 s8, s8, s10')
    A('v_add_u32 v2, s8, v0'); A('v_lshlrev_b32 v2, 16, v2')
    A(f'v_cmp_gt_u32 vcc, {NB}, v0'); A('v_cndmask_b32 v12, 0, v2, vcc')
    A('s_mov_b32 s65, 0'); A('v_mov_b32 v238, 0')
    A('s_waitcnt lgkmcnt(0)'); A('s_add_u32 s46, s9, 1')
    if tb0 == 'early': A('s_barrier')
    A('L_mlp:')
    TR = list(range(16, 28)) + list(range(48, 56)) + [36, 37]
    NT = NB + 1
    assert NT <= len(TR) and NT <= 24
    A('s_sub_u32 s8, s3, 2'); A('s_mul_i32 s8, s8, 3584'); A('v_lshl_add_u32 v1, v0, 3, s8')
    def pload():
        for a, ptr in enumerate(('s[28:29]', 's[30:31]', 's[32:33]')):
            if 'tabl' not in cut: A(f'global_load_dwordx2 {v(56 + 2*a, 2)}, v1, {ptr}')
    pload()
    A('s_load_dword s47, s[34:35], 0')
    for k in range(NT): A(f'v_readlane_b32 s{TR[k]}, v12, {k}')
    c0 = -2.0 * math.sqrt(2.0 / math.pi) * LOG2E; c1 = c0 * 0.044715
    A(f's_mov_b32 s72, {f2u(c1):#x}'); A('s_mov_b32 s73, s72'); A(f's_mov_b32 s74, {f2u(3*c1):#x}'); A('s_mov_b32 s75, s74')
    A('s_mov_b32 s66, 1.0'); A('s_mov_b32 s67, 1.0')
    A(f'v_mov_b32 v10, {f2u(c0):#x}'); A('v_mov_b32 v11, v10')
    for k in range(48): A(f'v_mov_b32 v{64+k}, 0')
    A('s_mov_b32 s68, 0')
    if tb0 == 'late':
        A('s_cmp_eq_u32 s65, 1'); A('s_cbranch_scc1 L_mlp_loop'); A('s_barrier')
    A('.p2align 3')
    A('L_mlp_loop:')
    A('s_waitcnt vmcnt(0)')
    CO = 24
    for r in range(2):
        for a in range(3):
            A(f'v_lshlrev_b32 v{2+2*a}, 16, v{56 + 2*a + r}'); A(f'v_and_b32 v{3+2*a}, s62, v{56 + 2*a + r}')
        if r == 1:
            A('v_add_u32 v1, 0x200, v1')
            A('s_cmp_eq_u32 s68, 6'); A('s_cbranch_scc1 L_mlp_nold'); pload(); A('L_mlp_nold:')
        c = CO + 12 * r
        A('v_pk_mul_f32 v[8:9], v[2:3], v[2:3]'); A('v_pk_mul_f32 v[16:17], v[4:5], v[4:5]')
        A('v_pk_mul_f32 v[18:19], v[8:9], s[72:73]'); A('v_pk_mul_f32 v[8:9], v[8:9], s[74:75]')
        A('v_pk_fma_f32 v[20:21], v[16:17], s[74:75], v[10:11]'); A('v_pk_fma_f32 v[16:17], v[16:17], s[72:73], v[10:11]')
        A(f'v_pk_mul_f32 {v(c,2)}, v[18:19], v[2:3]'); A(f'v_pk_mul_f32 {v(c+2,2)}, v[8:9], v[4:5]')
        A(f'v_pk_mul_f32 {v(c+4,2)}, v[20:21], v[2:3]'); A(f'v_pk_mul_f32 {v(c+6,2)}, v[16:17], v[4:5]')
        A(f'v_pk_mul_f32 {v(c+8,2)}, v[2:3], v[6:7]'); A(f'v_pk_mul_f32 {v(c+10,2)}, v[4:5], v[6:7]')
    A('.p2align 3')
    for k in range(NT):
        if k == 4: A('s_cmp_eq_u32 s65, 1'); A('s_cbranch_scc1 L_mlp_next')
        sp = f's[{TR[k] & ~1}:{(TR[k] & ~1) + 1}]'; h_ = TR[k] & 1
        os_ = f'op_sel:[0,{h_},0] op_sel_hi:[1,{h_},1]'
        cs = [CO, CO + 12]
        x0 = 2 if k % 2 == 0 else 48
        for d in range(2): A(f'v_pk_fma_f32 {v(x0+2*d,2)}, {v(cs[d],2)}, {sp}, {v(cs[d]+2,2)} {os_}')
        for d in range(2): A(f'v_pk_fma_f32 {v(x0+2*d,2)}, {v(x0+2*d,2)}, {sp}, {v(cs[d]+4,2)} {os_}')
        for d in range(2): A(f'v_pk_fma_f32 {v(x0+2*d,2)}, {v(x0+2*d,2)}, {sp}, {v(cs[d]+6,2)} {os_}')
        for d in range(4): A(f'v_exp_f32 v{x0+d}, v{x0+d}')
        for d in range(2): A(f'v_pk_fma_f32 {v(x0+4+2*d,2)}, {v(cs[d]+8,2)}, {sp}, {v(cs[d]+10,2)} {os_}')
        for d in range(2): A(f'v_pk_add_f32 {v(x0+2*d,2)}, {v(x0+2*d,2)}, s[66:67]')
        for d in range(4): A(f'v_rcp_f32 v{x0+d}, v{x0+d}')
        for d in range(2): A(f'v_pk_fma_f32 {v(64+2*k,2)}, {v(x0+4+2*d,2)}, {v(x0+2*d,2)}, {v(64+2*k,2)}')
    A('L_mlp_next:')
    A('s_add_u32 s68, s68, 1'); A('s_cmp_lt_u32 s68, 7'); A('s_cbranch_scc1 L_mlp_loop')
    xstamp(4)
    for k in range(NT): A(f'v_add_f32 v{64+2*k}, v{64+2*k}, v{65+2*k}')
    for k in range(0, 24, 2): A(f'v_permlane32_swap_b32 v{64+2*k}, v{66+2*k}')
    for k in range(0, 24, 2): A(f'v_add_f32 v{64+2*k}, v{64+2*k}, v{66+2*k}')
    for k in range(0, 24, 4): A(f'v_permlane16_swap_b32 v{64+2*k}, v{68+2*k}')
    for k in range(0, 24, 4): A(f'v_add_f32 v{64+2*k}, v{64+2*k}, v{68+2*k}')
    row_reduce('v_add_f32', [64 + 8*j for j in range(6)])
    A('s_lshl_b32 s8, s3, 7'); A(f's_add_u32 s8, s8, {L_TP - 256}')
    A('v_lshrrev_b32 v2, 5, v0'); A('v_lshl_add_u32 v2, v2, 2, s8'); A('v_and_b32 v1, 16, v0'); A('v_lshrrev_b32 v1, 1, v1'); A('v_add_u32 v2, v2, v1')
    A('v_and_b32 v1, 31, v0')
    A('s_mov_b32 exec_lo, 0x00010001'); A('s_mov_b32 exec_hi, 0x00010001')
    for j in range(6): A(f'ds_write_b32 v2, v{64+8*j} offset:{16*j}')
    A('s_waitcnt lgkmcnt(0)')
    A('s_lshl_b32 s8, s65, 2'); A('v_add_u32 v3, s8, v13')
    A('s_mov_b64 exec, 1'); A('v_mov_b32 v6, 1'); A(f'ds_add_rtn_u32 v6, v3, v6 offset:{C_TAB}'); A('s_mov_b64 exec, -1')
    A('s_waitcnt lgkmcnt(0)')
    A('v_readfirstlane_b32 s8, v6')
    A('s_cmp_eq_u32 s8, 1'); A('s_cbranch_scc1 L_mlp_last')
    A('s_cmp_eq_u32 s65, 0'); A('s_cbranch_scc1 L_staged')
    A('s_branch L_fin')
    A('L_mlp_last:')
    A(f'v_lshlrev_b32 v2, 2, v1'); A(f'v_add_u32 v2, {L_TP}, v2')
    A('ds_read2_b32 v[16:17], v2 offset0:0 offset1:32')
    A('s_lshl_b32 s47, s47, 16')
    A('s_waitcnt lgkmcnt(0)')
    A('v_add_f32 v16, v16, v17'); rnd(16); A('v_add_f32 v16, s47, v16'); rnd(16)
    A('s_cmp_eq_u32 s65, 1'); A('s_cbranch_scc1 L_output')
    A('v_mov_b32_dpp v17, v16 quad_perm:[1,1,3,3] row_mask:0xf bank_mask:0xf')
    A('v_cvt_pk_bf16_f32 v18, v16, v17')
    A('v_lshlrev_b32 v2, 1, v0'); A(f's_mul_i32 s8, s2, {2*NB}'); A(f's_add_u32 s8, s8, {WS_TAB}')
    A(f's_mov_b64 exec, {0x55555555 & ((1 << NB) - 1):#x}'); A('buffer_store_dword v18, v2, s[56:59], s8 offen sc1')
    A(f's_mov_b64 exec, {1 << NB:#x}'); A(f'ds_write_b16 v13, v18 offset:{L_TABLE + 512 * NB - LM}')
    A('s_mov_b64 exec, -1')
    done_event(6)
    stamp(3)
    A('L_staged:')
    if sc and max(sc) >= sc_split:
        A('s_cmp_lg_u32 s3, 3'); A('s_cbranch_scc1 L_noctl')
        for k in range(len(sc)):
            if sc[k] >= sc_split: svc_rank(k)
        A('L_noctl:')
    A('s_setprio 0')
    A('s_add_u32 s3, s3, 4')
    A('s_waitcnt lgkmcnt(0)')
    stamp(5)
    if cut: A('s_endpgm')
    A('s_barrier')
    prep()
    A('v_lshlrev_b32 v1, 4, v0')
    A('s_branch L_tail')

    A(';MARK tail')
    A('L_tail:')
    A('s_barrier')
    xstamp(10)
    for w in range(2): A(f'ds_read_b128 {v(16+4*w,4)}, v229 offset:{L_RED2 - LM + 1024*w}')
    A('s_waitcnt lgkmcnt(0)')
    A('v_pk_add_f32 v[16:17], v[16:17], v[20:21]'); A('v_pk_add_f32 v[18:19], v[18:19], v[22:23]')
    for e in range(2): A(f'v_permlane32_swap_b32 v{16+e}, v{18+e}')
    A('v_pk_add_f32 v[16:17], v[16:17], v[18:19]')
    A('v_mov_b32 v18, v16'); A('v_mov_b32 v19, v17')
    for e in range(2): A(f'v_permlane16_swap_b32 v{16+e}, v{18+e}')
    A('v_pk_add_f32 v[16:17], v[16:17], v[18:19]')
    A('v_cvt_pk_bf16_f32 v16, v16, v17')
    A('v_min_u32 v16, -2, v16')
    for c in range(1, 4): A(f'v_mov_b32_dpp v{16+c}, v16 quad_perm:[{c},{c},{c},{c}] row_mask:0xf bank_mask:0xf')
    A('s_mov_b32 exec_lo, 0x1111'); A('s_mov_b32 exec_hi, 0x1111')
    A('buffer_store_dwordx4 v[16:19], v230, s[56:59], s72 offen sc1')
    A('s_mov_b64 exec, -1')
    xstamp(11)
    A('s_cmp_eq_u32 s3, 5'); A('s_cbranch_scc1 L_tabdma')
    A('s_waitcnt vmcnt(0)')
    def tab_cold():
        A('L_tabdma:'); dma(WS_TAB, L_TABLE, NB // 2); A('s_branch L_t2go')
    COLD.append(tab_cold)
    A('L_t2go:')
    A('s_barrier')
    stamp(7)
    def t2_load(n): A(f'buffer_load_dwordx4 {v(16+4*n,4)}, v244, s[56:59], {"s75" if n < 2 else "s73"} offen offset:{2048 * (n & 1)} sc1')
    for n in range(4): t2_load(n)
    sweep('t2', 4, t2_load, lambda k: 16 + 4*k, 240, 6)
    stamp(8)
    rnd(240, 241)
    A('v_pk_mul_f32 v[240:241], v[250:251], v[240:241]'); rnd(240, 241)
    A('v_pk_add_f32 v[240:241], v[248:249], v[240:241]'); rnd(240, 241)
    def stats(a, b, lds_off):
        A(f'v_add_f32 v46, v{a}, v{b}'); A(f'v_mul_f32 v47, v{a}, v{a}'); A(f'v_fmac_f32 v47, v{b}, v{b}')
        A('v_permlane32_swap_b32 v46, v47'); A('v_add_f32 v46, v46, v47')
        A('v_mov_b32 v47, v46'); A('v_permlane16_swap_b32 v46, v47'); A('v_add_f32 v46, v46, v47')
        row_reduce('v_add_f32', [46])
        A('s_mov_b32 exec_lo, 1'); A('s_mov_b32 exec_hi, 1')
        A(f'ds_write_b32 v246, v46 offset:{lds_off}')
        A('s_mov_b64 exec, -1')
        A('s_waitcnt lgkmcnt(0)')
        A('s_barrier')
    def stats_read(lds_off):
        for k in range(4): A(f'ds_read_b128 {v(48+4*k,4)}, v13 offset:{lds_off + 16*k}')
    def stats_calc(pending):
        for k in range(4):
            A(f's_waitcnt lgkmcnt({3 - k + pending})'); A(f'v_pk_add_f32 {v(48+4*k,2)}, {v(48+4*k,2)}, {v(50+4*k,2)}')
        A('v_pk_add_f32 v[48:49], v[48:49], v[52:53]'); A('v_pk_add_f32 v[56:57], v[56:57], v[60:61]')
        A('v_pk_add_f32 v[46:47], v[48:49], v[56:57]')
        A('v_pk_mul_f32 v[46:47], v[46:47], s[66:67]')
        A('v_fma_f32 v47, -v46, v46, v47'); A('v_max_f32 v47, 0, v47'); rnd(47)
        A(f'v_add_f32 v47, {f2u(1e-5):#x}, v47'); rnd(47); A('v_sqrt_f32 v47, v47'); rnd(46); rnd(47); A('v_rcp_f32 v47, v47')
    stats(240, 241, L_ST1)
    xstamp(12)
    stats_read(L_ST1); stats_calc(0)
    A('v_sub_f32 v42, v240, v46'); A('v_sub_f32 v43, v241, v46'); rnd(42, 43)
    A('v_mul_f32 v42, v42, v47'); A('v_mul_f32 v43, v43, v47'); rnd(42, 43)
    A('v_pk_mul_f32 v[42:43], v[42:43], v[254:255]'); rnd(42, 43)
    A('v_pk_add_f32 v[42:43], v[42:43], v[252:253]'); rnd(42, 43)
    A('s_mov_b64 exec, s[76:77]'); A('ds_write2_b32 v245, v42, v240 offset0:0 offset1:1')
    A('s_mov_b64 exec, s[78:79]'); A('ds_write2_b32 v245, v43, v241 offset0:0 offset1:1')
    A('s_mov_b64 exec, -1')
    stats(42, 43, L_ST2)
    xstamp(13)
    A('s_cmp_lt_u32 s3, 6'); A('s_cbranch_scc1 L_early')
    stats_read(L_ST2)
    A(f'ds_read_b64 v[236:237], v231 offset:{L_OWN - LM}')
    stats_calc(1)
    A('s_waitcnt lgkmcnt(0)')
    A('v_sub_f32 v12, v236, v46'); rnd(12); A('v_mul_f32 v12, v12, v47'); rnd(12)
    stamp(9)
    A('v_bfe_u32 v3, v12, 16, 15'); A('v_lshrrev_b32 v4, 31, v12'); A(f'v_subrev_u32 v5, {TAB_E0}, v3')
    A('v_cmp_eq_u32 s[70:71], 0, v3'); A(f'v_cmp_lt_u32 vcc, {128 * NB - 1}, v5')
    A(f'v_mul_u32_u24 v4, {128 * NB}, v4'); A('v_add_u32 v5, v4, v5'); A(f'v_mov_b32 v4, {256 * NB}'); A('v_cndmask_b32 v5, v5, v4, s[70:71]')
    A('v_lshl_add_u32 v5, v5, 1, v13')
    A(f'ds_read_u16 v16, v5 offset:{L_TABLE - LM}')
    A('s_andn2_b64 vcc, vcc, s[70:71]')
    A('s_branch L_fallback' if force_fb else 's_cbranch_vccnz L_fallback')
    A('s_cmp_lg_u32 s3, 6'); A('s_cbranch_scc1 L_fin')
    A('s_waitcnt lgkmcnt(0)')
    A('v_lshlrev_b32 v16, 16, v16')
    A('L_output:')
    A('v_mul_f32 v16, v239, v16'); rnd(16)
    A('v_add_f32 v16, v237, v16'); A('v_cvt_pk_bf16_f32 v16, v16, v16')
    A('s_mov_b64 exec, 15')
    A('global_store_short v238, v16, s[40:41]')
    if endstamp: A('s_mov_b64 exec, -1'); A('s_branch L_fin')
    else: A('s_endpgm')
    A('; ---- arguments outside the table: waves 6,7 evaluate the MLP directly')
    A('L_fallback:')
    A('s_waitcnt lgkmcnt(0)')
    A('s_sub_u32 s3, s3, 4'); A('s_mov_b32 s65, 1')
    A('s_branch L_mlp')
    for c in COLD: c()
    A('L_early:')
    A('s_cmp_lg_u32 s3, 4'); A('s_cbranch_scc1 L_fin')
    A('s_cmp_lg_u32 s2, 0'); A('s_cbranch_scc1 L_fin')
    A('s_mov_b64 exec, 1'); A('v_mov_b32 v16, s46'); A(f's_mov_b32 s8, {WS_EPOCH}')
    A('buffer_store_dword v16, off, s[56:59], s8')
    if endstamp: A('s_mov_b64 exec, -1')
    A('L_fin:')
    if endstamp:
        A('s_waitcnt vmcnt(0)')
        A('s_memrealtime s[100:101]'); A('s_waitcnt lgkmcnt(0)')
        A('v_mov_b32 v61, v15')
        for k in range(11): A(f'v_writelane_b32 v61, s{80+2*k}, {k}')
        A('s_lshl_b32 s8, s2, 3'); A('s_add_u32 s8, s8, s3'); A('s_lshl_b32 s8, s8, 7'); A(f's_add_u32 s8, s8, {WS_STAMP}')
        A('v_lshlrev_b32 v1, 2, v0'); A('s_mov_b32 exec_lo, -1'); A('s_mov_b32 exec_hi, 0')
        A('buffer_store_dword v61, v1, s[56:59], s8 offen')
    if probe:
        k_, wlo, whi, op = probe
        A('s_sleep 127'); A('s_sleep 127')
        A('s_mov_b64 exec, 1')
        A('s_not_b32 s8, s80'); A('v_mov_b32 v1, s8'); A('v_mov_b32 v2, 0')
        A('global_atomic_umax v2, v1, s[42:43] sc1')
        A(f's_cmp_lt_u32 s3, {wlo}'); A('s_cbranch_scc1 L_pskip'); A(f's_cmp_gt_u32 s3, {whi}'); A('s_cbranch_scc1 L_pskip')
        A(f'v_readlane_b32 s8, v61, {k_}')
        if op == 'sum': A('s_sub_u32 s8, s8, s80')
        A('v_mov_b32 v1, s8')
        A(f'global_atomic_{"add" if op in ("sum", "cnt") else "umax"} v2, v1, s[42:43] offset:128 sc1')
        A('L_pskip:')
        A('s_waitcnt vmcnt(0)')
        A('s_cmp_lg_u32 s2, 0'); A('s_cbranch_scc1 L_end'); A('s_cmp_lg_u32 s3, 0'); A('s_cbranch_scc1 L_end')
        A('s_add_u32 s10, s80, 9000')
        A('L_ph1:'); A('s_memrealtime s[100:101]'); A('s_waitcnt lgkmcnt(0)'); A('s_sub_u32 s8, s100, s10'); A('s_cmp_lt_i32 s8, 0'); A('s_cbranch_scc1 L_ph1')
        A('global_load_dword v3, v2, s[42:43] sc1'); A('global_load_dword v4, v2, s[42:43] offset:128 sc1'); A('s_waitcnt vmcnt(0)')
        A('v_readfirstlane_b32 s10, v3'); A('v_readfirstlane_b32 s11, v4')
        A('s_not_b32 s10, s10')
        if op == 'max': A('s_sub_u32 s11, s11, s10')
        if op == 'sum': A(f's_lshr_b32 s11, s11, {(256 * (whi - wlo + 1)).bit_length() - 1}')
        A('s_min_u32 s11, s11, 6000'); A('s_mul_i32 s11, s11, 10')
        A('s_add_u32 s10, s10, 10000'); A('s_add_u32 s10, s10, s11')
        A('L_ph2:'); A('s_memrealtime s[100:101]'); A('s_waitcnt lgkmcnt(0)'); A('s_sub_u32 s8, s100, s10'); A('s_cmp_lt_i32 s8, 0'); A('s_cbranch_scc1 L_ph2')
    A('L_end:')
    A('s_endpgm')
    A('.section .rodata,"a"'); A('.p2align 6'); A(f'.amdhsa_kernel {NAME}_kernel')
    A('.amdhsa_next_free_vgpr 256'); A('.amdhsa_next_free_sgpr 102'); A('.amdhsa_accum_offset 256')
    A('.amdhsa_group_segment_fixed_size 0'); A('.amdhsa_kernarg_size 120'); A('.amdhsa_user_sgpr_count 2')
    A('.amdhsa_user_sgpr_kernarg_segment_ptr 1'); A('.amdhsa_system_sgpr_workgroup_id_x 1')
    A('.amdhsa_float_denorm_mode_32 3')
    A('.end_amdhsa_kernel')
    ia, isv, it_ = (A.L.index(';MARK ' + m) for m in ('attn2', 'service', 'tail'))
    A.L = A.L[:ia] + A.L[isv:it_] + A.L[ia:isv] + A.L[it_:]
    A.L = [l for l in A.L if not l.startswith(';MARK')]
    txt, nn = A.finish()
    return txt

if __name__ == '__main__':
    kw = eval('dict(%s)' % (sys.argv[2] if len(sys.argv) > 2 else ''))
    open(sys.argv[1], 'w').write(gen(**kw))
```

```python
import gen_kernel as G
ref = open('cdna_kernels/' + G.NAME + '.s.ref').read().splitlines()
hdr = [l for l in ref if l.startswith(';') and '@launch' not in l and 'Override' not in l and 'grid=ceil' not in l]
hdr += ['''; One persistent launch, one 8-wave workgroup per CU.
; per-launch tag (epoch word + 1) or by slots cleared in this launch.''']
import sys
kw = eval('dict(%s)' % (sys.argv[2] if len(sys.argv) > 2 else ''))
open(sys.argv[1], 'w').write(G.gen(header='\n'.join(hdr), **kw))
```

```python
import sys, struct, math
from asmlib import Asm
NAME = 'adaLN_cond__gqa_block_cached__mixer_token_mlp__decode'

def f2u(x): return struct.unpack('<I', struct.pack('<f', x))[0]
LOG2E = 1.4426950408889634

WS_MOD, WS_TAB, WS_ML, WS_Q, WS_CLR, WS_EPOCH, WS_RANK = 0x0, 0x8000, 0x10000, 0x20000, 0x28000, 0x29000, 0x30000
WS_PART, WS_T2, WS_T1, WS_STAMP = 0x40000, 0xC0000, 0x100000, 0x200000
PSTR = 10240 * 8
RSTR = 256
LM = 131072
C_Q, C_ML, C_PROG, C_TAB, C_FB, C_DONE, C_P2, C_GO, C_RK, C_LEV, C_LIST = 4, 8, 12, 16, 20, 24, 28, 32, 36, 40, 44
L_ST1, L_ST2 = 128, 192
L_ML = LM + 256
L_FAC = LM + 512
L_TP = LM + 768
L_Q = LM + 1024
L_CONST = LM + 3072
NB = 20
L_TABLE = LM + 13312
L_SCR = LM + 13312 + 512 * NB + 256
L_RED2 = L_SCR + 2048
L_LIST = 0
LDS_BYTES = 163840
assert L_RED2 + 2048 <= LDS_BYTES
OSTRIDE = 528
TAB_E0 = (130 - NB) << 7
SPIN_CAP = 0x40000

def gen(DA=6, DB=5, early=2, WU=20, hu=16, hg=14, p2_at=13, q_at=52, r2_at=0, fin_at=40, ml_at=54,
        cps=(3, 23, 42), lev=(4, 5, 6, 8), thrs=((16, 40, 56),), wsh=2, rd=4, DS=5, wos=(1, 2, 3, 3, 4, 4, 6, 8), wothr=4,
        skipown=True, sc=None, scr=(4, 7), nshb=3, sc_split=99, gw=0, hw=0, nrep=1, cx=0, ackw=True, ncb=3, t1w='ack', t1x=0, cboost=False, pref=1, prefn=1, t2x=0, tb0='early', diag=False, lite=False, probe=None, force_fb=False, cut=(), trajA=False, header=''):
    A = Asm()
    endstamp = diag or lite
    if lite: diag = False
    COLD = []
    def stamp(k):
        if diag: A(f's_memrealtime s[{80+2*k}:{81+2*k}]'); A('s_waitcnt lgkmcnt(0)')
    def xstamp(k):
        if diag: A('s_memrealtime s[100:101]'); A('s_waitcnt lgkmcnt(0)'); A(f'v_writelane_b32 v15, s100, {16 + k}')
    def sstamp(r):
        A('s_memrealtime s[100:101]'); A('s_waitcnt lgkmcnt(0)'); A(f's_mov_b32 s{r}, s100')
    def v(a, n=1): return f'v{a}' if n == 1 else f'v[{a}:{a+n-1}]'
    def rnd(*regs):
        for a in regs: A(f'v_cvt_pk_bf16_f32 v{a}, 0, v{a}')
    def lds_spin(off, target, vt, sleep=1):
        l0 = A.lab('spin'); l1 = A.lab('spun')
        A('s_mov_b32 s14, 0')
        A(f'{l0}:')
        A(f'ds_read_b32 v{vt}, v13 offset:{off}'); A('s_waitcnt lgkmcnt(0)')
        A(f'v_readfirstlane_b32 s15, v{vt}')
        A(f's_cmp_ge_u32 s15, {target}'); A(f's_cbranch_scc1 {l1}')
        A(f's_sleep {sleep}')
        A('s_add_u32 s14, s14, 1'); A(f's_cmp_lt_u32 s14, {SPIN_CAP}'); A(f's_cbranch_scc1 {l0}')
        A(f'{l1}:')
    def lds_add(off, vt):
        A('s_waitcnt lgkmcnt(0)')
        A('s_mov_b64 exec, 1'); A(f'v_mov_b32 v{vt}, 1'); A(f'ds_add_u32 v13, v{vt} offset:{off}'); A('s_mov_b64 exec, -1')
    def done_event(vt):
        l1 = A.lab('nodone')
        A('s_waitcnt vmcnt(0) lgkmcnt(0)')
        A('s_mov_b64 exec, 1'); A(f'v_mov_b32 v{vt}, 1'); A(f'ds_add_rtn_u32 v{vt}, v13, v{vt} offset:{C_DONE}')
        A('s_waitcnt lgkmcnt(0)')
        A(f'v_readfirstlane_b32 s8, v{vt}')
        A('s_cmp_lg_u32 s8, 1'); A(f's_cbranch_scc1 {l1}')
        A('s_lshl_b32 s8, s2, 2'); A(f's_add_u32 s8, s8, {WS_CLR}'); A(f'v_mov_b32 v{vt}, s46')
        A(f'buffer_store_dword v{vt}, off, s[56:59], s8 sc1')
        A(f'{l1}:')
        A('s_mov_b64 exec, -1')
    def tag_gather(loads, vt, sleep=2, tagregs=(1, 3), cid=None):
        l0 = A.lab('tg'); l1 = A.lab('tgok')
        A('s_mov_b32 s14, 0')
        A(f'{l0}:')
        for n_, (d, txt) in enumerate(loads):
            if gw and n_ >= gw: A(f's_waitcnt vmcnt({gw-1})')
            A(txt)
        A('s_waitcnt vmcnt(0)')
        regs = [d + r for d, txt in loads for r in tagregs]
        A(f'v_min_u32 v{vt}, v{regs[0]}, v{regs[1]}'); A(f'v_max_u32 v{vt+1}, v{regs[0]}, v{regs[1]}')
        for k in range(2, len(regs), 2):
            A(f'v_min3_u32 v{vt}, v{regs[k]}, v{regs[k+1]}, v{vt}'); A(f'v_max3_u32 v{vt+1}, v{regs[k]}, v{regs[k+1]}, v{vt+1}')
        A(f'v_cmp_ne_u32 vcc, s46, v{vt}'); A(f'v_cmp_ne_u32 s[70:71], s46, v{vt+1}'); A('s_or_b64 vcc, vcc, s[70:71]')
        A(f's_cbranch_vccz {l1}')
        A(f's_sleep {sleep}')
        A('s_add_u32 s14, s14, 1'); A(f's_cmp_lt_u32 s14, {SPIN_CAP}'); A(f's_cbranch_scc1 {l0}')
        A(f'{l1}:')
        if diag and cid is not None: A(f'v_writelane_b32 v15, s14, {11 + cid}')
    def xg_reduce(op, regs, t):
        for sw_ in (32, 16):
            for k, a in enumerate(regs): A(f'v_mov_b32 v{t+k}, v{a}')
            for k, a in enumerate(regs): A(f'v_permlane{sw_}_swap_b32 v{a}, v{t+k}')
            for k, a in enumerate(regs): A(f'{op} v{a}, v{a}, v{t+k}')
    def row_reduce(op, regs, steps=(8, 4, 2, 1)):
        for sh in steps:
            for a in regs: A(f'{op}_dpp v{a}, v{a}, v{a} row_ror:{sh} row_mask:0xf bank_mask:0xf')
    def perm(dst, base, m, d):
        A(f'v_perm_b32 v{dst}, v{base+8*m+4+(d>>1)}, v{base+8*m+(d>>1)}, s{60+(d&1)}')
    MREG = [16, 18, 20, 22, 24, 26, 36, 38]
    def sweep(name, n, load, dreg, acc, vt):
        A('s_mov_b32 s14, 0')
        A(f'L_{name}_chk:')
        for k in range(n):
            d = dreg(k); m = MREG[k]
            A(f's_waitcnt vmcnt({n-1-k})')
            A(f'v_max3_u32 v{vt}, v{d}, v{d+1}, v{d+2}'); A(f'v_max_u32 v{vt}, v{vt}, v{d+3}')
            A(f'v_mfma_f32_16x16x32_bf16 {v(acc,4)}, v[232:235], {v(d,4)}, {0 if k == 0 else v(acc,4)}')
            A(f'v_cmp_eq_u32 s[{m}:{m+1}], -1, v{vt}')
            if k == 2: A(f's_or_b64 vcc, s[{MREG[0]}:{MREG[0]+1}], s[{MREG[1]}:{MREG[1]+1}]')
            elif k > 2: A(f's_or_b64 vcc, vcc, s[{MREG[k-1]}:{MREG[k-1]+1}]')
        A(f's_or_b64 vcc, vcc, s[{MREG[n-1]}:{MREG[n-1]+1}]')
        A(f's_cbranch_scc1 L_{name}_retry')
        A(f'L_{name}_done:')
        if diag: A(f'v_writelane_b32 v15, s14, {30 if name == "t1" else 31}')
        def cold():
            A(f'L_{name}_retry:')
            for k in range(n):
                A(f's_mov_b64 exec, s[{MREG[k]}:{MREG[k]+1}]'); load(k)
            A('s_mov_b64 exec, -1')
            A('s_add_u32 s14, s14, 1'); A(f's_cmp_lt_u32 s14, {SPIN_CAP}'); A(f's_cbranch_scc1 L_{name}_chk')
            A('s_waitcnt vmcnt(0)')
            A(f's_branch L_{name}_done')
        COLD.append(cold)
    def rb_calc():
        A('s_and_b32 s6, s2, 7'); A('s_lshr_b32 s8, s2, 7'); A('s_lshl1_add_u32 s6, s6, s8')
    def svc_setup():
        A(f's_load_dword s9, s[44:45], {WS_EPOCH}')
        A('s_bfe_u32 s7, s2, 0x40003')
        rb_calc()
        A('s_mov_b32 s60, 0x05040100'); A('s_mov_b32 s61, 0x07060302'); A('s_mov_b32 s62, 0xffff0000')
        A(f's_mov_b32 s64, {f2u(LOG2E):#x}')
        A('s_mov_b64 s[56:57], s[44:45]'); A('s_mov_b32 s58, 0x400000'); A('s_mov_b32 s59, 0x20000')
        A(f'v_mov_b32 v13, {LM}')
    def notcons(label):
        A(f's_and_b32 s8, s2, {0xff & ~(((1 << ncb) - 1) << 3):#x}'); A(f's_cmp_lg_u32 s8, {cx}'); A(f's_cbranch_scc1 {label}')
    def prep():
        l = A.lab('noprep')
        A('v_lshrrev_b32 v4, 4, v0'); A('v_and_b32 v5, 15, v0')
        A('v_lshrrev_b32 v9, 5, v0')
        A('v_lshl_add_u32 v229, v0, 4, v13')
        A('v_lshlrev_b32 v230, 2, v5'); A('v_lshl_add_u32 v230, v9, 6, v230')
        A('s_lshl_b32 s72, s6, 11'); A('s_lshl_b32 s8, s7, 7'); A('s_add_u32 s72, s72, s8'); A(f's_add_u32 s72, s72, {WS_T2}')
        A('v_and_b32 v7, 1, v5'); A('v_lshlrev_b32 v7, 4, v7'); A('v_mov_b32 v8, 0x3f80'); A('v_lshlrev_b32 v7, v7, v8')
        A('v_and_b32 v8, 14, v5')
        for m in range(4):
            A(f'v_cmp_eq_u32 vcc, {4*m}, v8'); A(f'v_cndmask_b32 v{232+m}, 0, v7, vcc')
        A('v_lshlrev_b32 v244, 13, v4'); A('v_lshl_add_u32 v244, v5, 4, v244')
        A('v_lshrrev_b32 v6, 3, v5'); A('v_lshlrev_b32 v6, 6, v6'); A('v_and_b32 v8, 1, v4'); A('v_lshl_add_u32 v6, v8, 5, v6')
        A('v_and_b32 v8, 4, v5'); A('v_lshl_add_u32 v6, v8, 2, v6'); A('v_and_b32 v8, 3, v5'); A('v_lshl_add_u32 v6, v8, 1, v6')
        A('v_lshrrev_b32 v8, 1, v4'); A('s_lshl_b32 s8, s3, 7'); A('v_add3_u32 v6, v6, v8, s8')
        A('v_lshlrev_b32 v238, 1, v6')
        notcons(l)
        A('v_add_u32 v7, v13, v238')
        for a, r in enumerate((248, 250, 252, 254, 236)):
            for e in range(2): A(f'ds_read_u16 v{r+e}, v7 offset:{L_CONST - LM + 2048*a + 16*e}')
        A('s_lshl_b32 s75, s3, 8'); A(f's_add_u32 s75, s75, {WS_T2}'); A('s_add_u32 s73, s75, 4096')
        A(f's_mov_b32 s66, {f2u(1/1024):#x}'); A('s_mov_b32 s67, s66')
        A('v_lshlrev_b32 v246, 2, v9'); A('s_lshl_b32 s8, s3, 3'); A('v_add3_u32 v246, s8, v246, v13')
        A(f'v_mov_b32 v245, {128 * NB}'); A(f'v_mov_b32 v247, {256 * NB}')
        A('s_waitcnt lgkmcnt(0)')
        for r in list(range(248, 256)) + [236, 237]: A(f'v_lshlrev_b32 v{r}, 16, v{r}')
        A('v_add_f32 v254, 1.0, v254'); A('v_add_f32 v255, 1.0, v255'); rnd(254, 255)
        A(f'{l}:')
    def dma(base, dst, cnt):
        for n in range(cnt):
            if n % 4 == 0:
                A(f's_mov_b32 m0, {dst + 1024*n}'); A(f's_mov_b32 s8, {base + 1024*n}')
            A(f'buffer_load_dwordx4 v1, s[56:59], s8 offen offset:{(n % 4) * 1024} sc1 lds')

    for l in header.splitlines(): A(l)
    A(f'; @launch grid=(256,1,1) block=(512,1,1) lds={LDS_BYTES}')
    A('.amdgcn_target "amdgcn-amd-amdhsa--gfx950"')
    A('.text'); A(f'.globl {NAME}_kernel'); A('.p2align 8'); A(f'.type {NAME}_kernel,@function')
    A(f'{NAME}_kernel:')
    A('s_load_dwordx16 s[16:31], s[0:1], 0')
    A('s_load_dwordx8 s[32:39], s[0:1], 64')
    A('s_load_dwordx4 s[40:43], s[0:1], 96')
    A('s_load_dwordx2 s[44:45], s[0:1], 112')
    if endstamp: A('s_memrealtime s[80:81]')
    A('v_lshrrev_b32 v1, 6, v0'); A('v_and_b32 v0, 63, v0')
    A('s_lshr_b32 s4, s2, 8'); A('s_cbranch_scc1 L_end')
    A('v_readfirstlane_b32 s3, v1')
    A('s_mov_b32 s51, 0x20000')
    A('s_lshr_b32 s4, s2, 6'); A('s_and_b32 s5, s2, 63')
    A('s_cmp_ge_u32 s3, 4'); A('s_cbranch_scc1 L_service')

    A('s_getpc_b64 s[70:71]')
    A('L_pcref:')
    A('s_bfe_u32 s7, s2, 0x40003')
    A('s_lshl2_add_u32 s8, s7, s3'); A('s_lshl_b32 s8, s8, 9')
    A('v_lshl_add_u32 v1, v0, 7, s8'); A('v_min_u32 v1, L_end-L_pcref, v1')
    A('s_mov_b64 exec, 15'); A('global_load_dword v12, v1, s[70:71]'); A('s_mov_b64 exec, -1')
    A('s_lshl2_add_u32 s9, s5, s3'); A('s_lshl_b32 s9, s9, 13')
    A('s_lshl_b32 s8, s4, 24'); A('s_add_u32 s9, s9, s8')
    A('s_lshl_b32 s12, s3, 15')
    A('v_lshrrev_b32 v13, 4, v0'); A('v_and_b32 v14, 15, v0')
    A('v_lshlrev_b32 v15, 2, v13'); A('v_xor_b32 v1, v14, v15'); A('v_lshlrev_b32 v1, 4, v1')
    A('v_lshl_add_u32 v1, v13, 8, v1')
    A('v_xor_b32 v2, 16, v1'); A('v_xor_b32 v3, 32, v1'); A('v_xor_b32 v4, 48, v1')
    A('s_brev_b32 s50, 32')
    A('s_waitcnt lgkmcnt(0)')
    A('s_mov_b64 s[48:49], s[18:19]')
    def attn_setup():
        A('v_lshlrev_b32 v5, 4, v0')
        A('s_mov_b32 s54, 0x4000000'); A('s_mov_b32 s55, 0x20000')
        A('s_mov_b32 s60, 0x05040100'); A('s_mov_b32 s61, 0x07060302')
        A(f's_mov_b32 s63, {f2u(128 ** -0.5):#x}'); A(f's_mov_b32 s64, {f2u(LOG2E):#x}')
        A('s_mov_b32 s58, 0x400000'); A('s_mov_b32 s59, 0x20000')
        A('v_and_b32 v6, 3, v14'); A('v_lshlrev_b32 v6, 2, v6'); A('v_lshrrev_b32 v15, 2, v14'); A('v_add_u32 v6, v6, v15')
        A('v_lshlrev_b32 v6, 8, v6'); A('v_xor_b32 v15, v13, v14'); A('v_lshl_add_u32 v6, v15, 4, v6'); A('v_add_u32 v6, s12, v6')
        A('v_xor_b32 v7, 64, v6'); A('v_xor_b32 v8, 0x80, v6'); A('v_xor_b32 v9, 0xc0, v6')
        A(f'v_mov_b32 v13, {LM}')
        A('v_mov_b32 v14, 0'); A('v_lshl_add_u32 v15, v0, 2, v13'); A('ds_write_b32 v15, v14')
        A('s_mov_b32 s70, 0xff00ff00'); A('s_mov_b32 s71, 0xff00ff00')
        A('s_mov_b64 s[52:53], s[20:21]'); A('s_mov_b64 s[56:57], s[44:45]'); A('s_mov_b64 s[66:67], s[24:25]')
        A('s_waitcnt lgkmcnt(0)')
        A('s_barrier')
    issued = [0]
    TS = 64 * 4 * 8192
    LEV = list(lev) if lev else [DB]
    def throttle(D, boost):
        if issued[0] < D: return
        if boost:
            l = A.lab('go')
            for k in range(len(LEV) - 1, -1, -1):
                A(f's_waitcnt vmcnt({LEV[k]-1})')
                if k == len(LEV) - 1: A(f's_cbranch_vccnz {l}')
                elif k > 0: A(f's_cmp_eq_u32 s13, {k}'); A(f's_cbranch_scc1 {l}')
            A(f'{l}:')
        else: A(f's_waitcnt vmcnt({D-1})')
    def kload(t, n, D, boost=False):
        if n % 4 == 0:
            A(f's_add_u32 m0, s12, {(t % 4) * 8192 + (n // 4) * 4096}')
            A(f's_add_u32 s10, s9, {t * TS + (n // 4) * 4096}')
        throttle(D, boost)
        A(f'buffer_load_dwordx4 v{1 + n % 4}, s[48:51], s10 offen offset:{(n % 4) * 1024} nt lds')
        issued[0] += 1
    def vload(t, e, D, boost=False):
        if e % 4 == 0: A(f's_add_u32 s10, s9, {t * TS + (e // 4) * 4096}')
        throttle(D, boost)
        A(f'buffer_load_dwordx4 {v(128 + 32 * (t % 4) + 4 * e, 4)}, v5, s[52:55], s10 offen offset:{(e % 4) * 1024} nt')
        issued[0] += 1
    for n in range(64):
        if n == early:
            A('s_branch L_attn2'); A(';MARK attn2')
            A('L_attn2:')
            attn_setup()
            if 'svc' not in cut: lds_spin(C_GO, 1, 14)
        if diag and trajA and n >= early and (n % 8 == 0 or n == early): sstamp(24 + n // 8)
        if n < 32: kload(n // 8, n % 8, DA)
        else: vload((n - 32) // 8, n % 8, DA)
        if issued[0] in (p2_at, q_at): lds_add(C_PROG, 14)
    stamp(1)
    if not cut: lds_spin(C_Q, 1, 14)
    A('v_and_b32 v14, 7, v0'); A('v_lshlrev_b32 v14, 8, v14'); A('v_lshrrev_b32 v15, 4, v0'); A('v_lshl_add_u32 v14, v15, 4, v14')
    A(f'v_add_u32 v14, {L_Q}, v14')
    for s in range(4): A(f'ds_read_b128 {v(16+4*s,4)}, v14 offset:{64*s}')
    stamp(2)
    def qk(t):
        off = (t % 4) * 8192
        for hb in range(2):
            for s in range(4): A(f'ds_read_b128 {v(96+16*hb+4*s,4)}, v{6+s} offset:{off + hb*4096}')
        for hb in range(2):
            S = 32 + 8 * (t % 4) + 4 * hb
            for s in range(4):
                A(f's_waitcnt lgkmcnt({7 - 4*hb - s})')
                A(f'v_mfma_f32_16x16x32_bf16 {v(S,4)}, {v(96+16*hb+4*s,4)}, {v(16+4*s,4)}, {0 if s == 0 else v(S,4)}')
    def rscale(t):
        S = 32 + 8 * (t % 4)
        rnd(*range(S, S + 8))
        for k in range(8): A(f'v_mul_f32 v{S+k}, s63, v{S+k}')
        rnd(*range(S, S + 8))
        if t == 0: A(f'v_max_f32 v15, v{S}, v{S+1}')
        else: A(f'v_max3_f32 v15, v{S}, v{S+1}, v{10 if t == 4 else 15}')
        for k in range(1, 4): A(f'v_max3_f32 v15, v{S+2*k}, v{S+2*k+1}, v15')
    def rescale_o():
        A('v_mov_b32 v17, v16')
        for k in range(8): A(f'v_pk_mul_f32 {v(64+2*k,2)}, {v(64+2*k,2)}, v[16:17]')
    def mfin(second):
        xg_reduce('v_max_f32', [15], 14)
        if second: A('v_sub_f32 v16, v10, v15'); A('v_mul_f32 v16, s64, v16'); A('v_exp_f32 v16, v16')
        A('v_mov_b32 v10, v15'); A('v_mul_f32 v12, s64, v15')
        if second: A('v_mul_f32 v11, v11, v16')
    def expo(t):
        S = 32 + 8 * (t % 4)
        for k in range(8): A(f'v_fma_f32 v{S+k}, v{S+k}, s64, -v12')
        for k in range(8): A(f'v_exp_f32 v{S+k}, v{S+k}')
        for k in range(4): A(f'v_add_f32 v{96+k}, v{S+2*k}, v{S+2*k+1}')
        for k in range(4): A(f'v_cvt_pk_bf16_f32 v{S+k}, v{S+2*k}, v{S+2*k+1}')
        for k in range(4): A(f'v_cndmask_b32 v{S+4+k}, 0, v{S+k}, s[70:71]')
        for k in range(4): A(f'v_cndmask_b32 v{S+k}, v{S+k}, 0, s[70:71]')
        A('v_add_f32 v96, v96, v97'); A('v_add_f32 v98, v98, v99')
        if t == 0: A('v_add_f32 v11, v96, v98')
        else: A('v_add_f32 v96, v96, v98'); A('v_add_f32 v11, v11, v96')
    def omf(d, P, first):
        o = 64 + 4 * (d & 3)
        A(f'v_mfma_f32_16x16x32_bf16 {v(o,4)}, {v(96+4*d,4)}, {v(P + (d & 4),4)}, {0 if (first and d < 4) else v(o,4)}')
    def pvt(t, half):
        Vb = 128 + 32 * (t % 4); ds_ = list(range(4 * half, 4 * half + 4))
        for m in range(4): perm(96 + 4*ds_[0] + m, Vb, m, ds_[0])
        for k, d in enumerate(ds_):
            if k + 1 < 4:
                for m in range(4): perm(96 + 4*ds_[k+1] + m, Vb, m, ds_[k+1])
            omf(d, 32 + 8 * (t % 4), t == 0)
    def publish_ml():
        xg_reduce('v_add_f32', [11], 14)
        A('v_lshrrev_b32 v14, 1, v5'); A('s_lshl_b32 s8, s3, 6'); A(f's_add_u32 s8, s8, {L_ML}'); A('v_add_u32 v14, s8, v14')
        A('s_mov_b64 exec, 0xff'); A('ds_write_b64 v14, v[10:11]'); A('s_mov_b64 exec, -1')
        lds_add(C_ML, 14)
    def endsetup():
        A('v_bfe_u32 v28, v0, 4, 1'); A('s_lshl_b32 s8, s3, 1'); A('v_add_u32 v28, s8, v28')
        A(f'v_mul_u32_u24 v20, {OSTRIDE}, v28')
        A('v_lshlrev_b32 v28, 4, v28'); A(f'v_add_u32 v28, {L_FAC}, v28')
        A('v_and_b32 v21, 15, v0'); A('v_lshl_add_u32 v20, v21, 5, v20'); A('v_lshrrev_b32 v21, 5, v0')
        A('v_lshl_add_u32 v20, v21, 4, v20'); A('v_add_u32 v21, 0x10000, v20')
        A('v_and_b32 v4, 7, v0'); A(f'v_mul_u32_u24 v22, {OSTRIDE}, v4'); A('v_and_b32 v23, 8, v0'); A('v_lshl_add_u32 v22, v23, 5, v22')
        A('v_lshlrev_b32 v1, 9, v23')
        A('v_lshrrev_b32 v23, 4, v0'); A('v_lshl_add_u32 v22, v23, 4, v22'); A('v_add_u32 v22, s12, v22')
        A('v_lshl_add_u32 v1, v23, 15, v1'); A('v_lshl_add_u32 v1, v4, 4, v1')
        A('v_lshrrev_b32 v2, 3, v0'); A('v_lshlrev_b32 v2, 12, v2'); A('v_lshl_add_u32 v2, v4, 4, v2')
        A('v_and_b32 v3, 16, v0'); A('v_lshlrev_b32 v3, 4, v3'); A('v_lshlrev_b32 v4, 2, v4')
        A('s_lshl_b32 s8, s3, 9'); A(f's_add_u32 s8, s8, {L_RED2}'); A('v_add3_u32 v3, v3, v4, s8')
        rb_calc()
        A('s_mov_b64 s[48:49], s[66:67]'); A('s_mov_b32 s50, 0x800000')
        A('s_lshl_b32 s73, s6, 8'); A('s_lshr_b32 s8, s3, 1'); A('s_lshl_b32 s8, s8, 7'); A('s_add_u32 s73, s73, s8')
        A('s_and_b32 s8, s3, 1'); A('s_lshl2_add_u32 s73, s8, s73'); A('s_lshl_b32 s73, s73, 11')
        A('s_lshl_b32 s8, s7, 7'); A('s_add_u32 s73, s73, s8')
        A('s_lshl_b32 s74, s6, 15'); A('s_lshl_b32 s8, s3, 7'); A('s_add_u32 s74, s74, s8'); A(f's_add_u32 s74, s74, {WS_T1}')
        A('s_lshl2_add_u32 s8, s4, s3'); A('s_lshl_b32 s8, s8, 15'); A('s_lshl_b32 s11, s5, 9'); A('s_add_u32 s11, s11, s8')
        A(f's_add_u32 s11, s11, {WS_T1}')
    sched = {i: [] for i in range(-1, 64)}
    def put(pos, fn, landed=None): sched[pos].append((fn, landed))
    DM = max(LEV + [DA])
    CP = list(cps) if (len(LEV) > 1 and not sc) else []
    THR = [list(t) for t in thrs] * (len(sc or cps) if len(thrs) == 1 else 1)
    ctl = bool(CP) or bool(sc)
    NRL = (1 << nshb) * len(sc) if sc else (4 << wsh) * len(CP)
    put(-1, lambda: qk(0))
    for t in range(1, 4): put(t - 1, (lambda t=t: qk(t)))
    for t in range(4): put(3 + t, (lambda t=t: rscale(t)))
    put(7, lambda: mfin(False))
    for t in range(4): put(8 + t, (lambda t=t: expo(t)))
    for t in range(4):
        for h in range(2): put(12 + 2 * t + h, (lambda t=t, h=h: pvt(t, h)), -1)
    pos = {4: max(20, 7 + DS), 5: max(22, 15 + DS), 6: 23 + DS, 7: 31 + DS}
    for t in range(4, 8):
        put(pos[t], (lambda t=t: qk(t)), 8 * (t - 4) + 7)
        put(pos[t] + 1, (lambda t=t: rscale(t)))
    b = pos[7] + 1
    put(b, lambda: mfin(True))
    put(b + 1, lambda: (expo(4), expo(5))); put(b + 2, lambda: (expo(6), expo(7)))
    put(b + 3, publish_ml); put(b + 4, rescale_o)
    p4 = max(39 + DS, b + 5)
    put(p4, lambda: pvt(4, 0), 39); put(p4 + 1, lambda: pvt(4, 1))
    p5 = max(47 + DS, p4 + 2)
    put(p5, lambda: pvt(5, 0), 47); put(p5 + 1, lambda: pvt(5, 1))
    put(60, endsetup)
    assert p5 + 1 < 60 and (not CP or max(CP) + rd < 60)
    def run(posn):
        for fn, landed in sched[posn]:
            if landed is not None and posn - landed < DM: A(f's_waitcnt vmcnt({posn - landed})')
            fn()
    if CP:
        A('s_mov_b64 vcc, 0'); A(f's_mov_b32 s13, {LEV.index(DB)}')
        A(f's_bfe_u32 s11, s2, {(wsh << 16) | 3:#x}'); A('s_lshl2_add_u32 s11, s11, s3'); A(f's_mul_i32 s11, s11, {RSTR}')
        A(f's_add_u32 s11, s11, {WS_RANK}')
        if cboost: A(f's_and_b32 s8, s2, {0xff & ~(((1 << ncb) - 1) << 3):#x}'); A(f's_cmp_eq_u32 s8, {cx}'); A(f's_cselect_b32 s68, {cboost}, 0')
        assert (4 << wsh) * len(CP) <= 128
    if sc: A('s_mov_b64 vcc, 0'); A(f's_mov_b32 s13, {LEV.index(DB)}')
    run(-1)
    for L in range(64):
        if diag and not trajA and L % 8 == 0: sstamp(24 + L // 8)
        if L in CP:
            A('s_mov_b32 s47, 1'); A(f's_atomic_add s47, s[44:45], s11 offset:{(4 << wsh) * RSTR * CP.index(L)} glc')
        if L < 32: kload(4 + L // 8, L % 8, DB, ctl)
        else: vload(4 + (L - 32) // 8, L % 8, DB, ctl)
        if L - rd in CP:
            th = [int(round(t_ * (256 >> wsh) / 64.0)) for t_ in THR[CP.index(L - rd)]]
            A('s_waitcnt lgkmcnt(0)')
            if diag: A(f's_mov_b32 s{32 + CP.index(L - rd)}, s47')
            if cboost: A('s_add_u32 s47, s47, s68')
            A('s_mov_b32 s13, 0')
            for k, t_ in enumerate(th[:-1]):
                A(f's_cmp_ge_u32 s47, {t_}'); A(f's_cselect_b32 s13, {k+1}, s13')
            A(f's_cmp_ge_u32 s47, {th[-1]}'); A('s_cselect_b64 vcc, -1, 0')
        if sc and L in sc: lds_add(C_RK, 14)
        if sc and any(L - r_ in sc for r_ in scr):
            A(f'ds_read_b32 v14, v13 offset:{C_LEV}'); A('s_waitcnt lgkmcnt(0)')
            A('v_readfirstlane_b32 s13, v14'); A(f's_add_u32 s13, s13, {LEV.index(DB)}')
            A(f's_cmp_eq_u32 s13, {len(LEV) - 1}'); A('s_cselect_b64 vcc, -1, 0')
        if L in (r2_at, fin_at, ml_at): lds_add(C_PROG, 14)
        run(L)
    assert r2_at < fin_at < ml_at
    stamp(3)
    NWO = [0]
    def wo_upto(k):
        while NWO[0] < k:
            n = NWO[0]; m, hh = n >> 1, n & 1
            if n < wothr: throttle(DB, ctl)
            A(f's_add_u32 s10, s73, {(64 * (m & 1) + 8 * hh + (m >> 1)) * 2048}')
            A(f'buffer_load_dwordx4 {v(128 + 4*n, 4)}, v1, s[48:51], s10 offen nt')
            NWO[0] += 1
    wo_upto(wos[0])
    A(f's_waitcnt vmcnt({8 + NWO[0]})')
    pvt(6, 0); wo_upto(wos[1]); pvt(6, 1); wo_upto(wos[2])
    Vb = 128 + 96; P = 32 + 24
    for m in range(3):
        A(f's_waitcnt vmcnt({6 - 2*m + NWO[0]})')
        for d in range(8): perm(96 + 4*d + m, Vb, m, d)
        wo_upto(wos[3 + m])
    A(f's_waitcnt vmcnt({NWO[0]})')
    stamp(4)
    if cut:
        for k in range(8): A(f'v_writelane_b32 v15, s{24+k}, {16+k}')
        A('s_branch L_fin')
    order = [0, 4, 1, 5, 2, 6, 3, 7]
    for d in order[:3]: perm(96 + 4*d + 3, Vb, 3, d)
    for k, d in enumerate(order):
        omf(d, P, False)
        if k + 3 < 8: perm(96 + 4*order[k+3] + 3, Vb, 3, order[k+3])
    wo_upto(wos[6])
    for d in range(4): A(f'ds_write_b128 v22, {v(64+4*d,4)} offset:{64*d}')
    wo_upto(wos[7])
    assert NWO[0] == 8
    A('s_waitcnt lgkmcnt(0)')
    A('s_barrier')
    A('ds_read_b128 v[16:19], v28')
    A('ds_read_b128 v[32:35], v20'); A('ds_read_b128 v[36:39], v20 offset:32768')
    A('ds_read_b128 v[40:43], v21'); A('ds_read_b128 v[44:47], v21 offset:32768')
    for w in range(4):
        A(f's_waitcnt lgkmcnt({3-w})')
        for k in range(2):
            f_ = v(16 + (w & 2), 2); h_ = w & 1
            if w == 0: A(f'v_pk_mul_f32 {v(32+2*k,2)}, {v(32+2*k,2)}, {f_} op_sel:[0,{h_}] op_sel_hi:[1,{h_}]')
            else: A(f'v_pk_fma_f32 {v(32+2*k,2)}, {v(32+4*w+2*k,2)}, {f_}, {v(32+2*k,2)} op_sel:[0,{h_},0] op_sel_hi:[1,{h_},1]')
    A('v_cvt_pk_bf16_f32 v24, v32, v33'); A('v_cvt_pk_bf16_f32 v25, v34, v35')
    A('v_min_u32 v24, -2, v24'); A('v_min_u32 v25, -2, v25')
    A('v_permlane32_swap_b32 v24, v26'); A('v_permlane32_swap_b32 v25, v27')
    A('s_mov_b32 exec_hi, 0')
    A('buffer_store_dwordx4 v[24:27], v5, s[56:59], s11 offen sc1')
    A('s_mov_b64 exec, -1')
    stamp(5)
    if diag:
        for k in range(8): A(f'v_writelane_b32 v15, s{24+k}, {16+k}')
        for k in range(5): A(f'v_writelane_b32 v15, s{32+k}, {11+k}')
        A('s_load_dwordx16 s[16:31], s[0:1], 0'); A('s_load_dwordx8 s[32:39], s[0:1], 64'); A('s_waitcnt lgkmcnt(0)')
    def t1_load(n): A(f'buffer_load_dwordx4 {v(160+4*n,4)}, v2, s[56:59], s74 offen offset:{512*n} sc1')
    prep()
    xstamp(8)
    A('s_waitcnt vmcnt(1)')
    for e in range(8):
        for m in range(4): perm(192 + 4*e + m, 128, m, e)
    if t1w == 'ack': A('s_waitcnt vmcnt(0)')
    if t1x: A(f's_sleep {t1x}')
    for n in range(8): t1_load(n)
    xstamp(9)
    sweep('t1', 8, t1_load, lambda k: 160 + 4*k, 60, 6)
    stamp(6)
    row_reduce('v_add_f32', [60, 61], (8,))
    A('v_cvt_pk_bf16_f32 v60, v60, v61')
    for c in range(4): A(f'v_mov_b32_dpp v{224+c}, v60 quad_perm:[{c},{c},{c},{c}] row_mask:0xf bank_mask:0xf')
    for e in range(8): A(f'v_mfma_f32_16x16x32_bf16 {v(64+4*e,4)}, v[224:227], {v(192+4*e,4)}, 0')
    A('s_mov_b32 exec_lo, 0xff0000ff'); A('s_mov_b32 exec_hi, 0')
    for e in range(0, 8, 2): A(f'ds_write2_b32 v3, v{64+4*e}, v{68+4*e} offset0:{8*e} offset1:{8*e+8}')
    A('s_mov_b64 exec, -1')
    A('s_waitcnt lgkmcnt(0)')

    A(';MARK service')
    A('L_service:')
    if 'svc' in cut: A('s_endpgm')
    A('s_sub_u32 s3, s3, 4')
    A('s_cmp_ge_u32 s3, 2'); A('s_cbranch_scc1 L_tabwaves')
    A('s_and_b32 s55, s2, 4'); A('s_lshr_b32 s55, s55, 1')
    A('s_lshr_b32 s53, s2, 3'); A('s_and_b32 s8, s2, 3'); A('s_lshl2_add_u32 s53, s53, s8')
    A('s_cmp_eq_u32 s3, 1'); A('s_cselect_b32 s65, 1, s55')
    A('s_setprio 3')
    A('L_unit:')
    A('s_and_b32 s67, s53, 63'); A('s_add_u32 s67, s67, 32'); A('s_lshr_b32 s69, s53, 6'); A('s_add_u32 s69, s69, s55'); A('s_movk_i32 s66, 0x3000')
    A('s_and_b32 s8, s53, 31'); A('s_lshr_b32 s10, s53, 5')
    A('s_cmp_eq_u32 s65, 0'); A('s_cselect_b32 s67, s8, s67'); A('s_cselect_b32 s69, s10, s69')
    A('s_add_u32 s68, s5, 96')
    A('s_cmp_eq_u32 s65, 1'); A('s_cselect_b32 s68, s68, s67'); A('s_cselect_b32 s67, s5, s67'); A('s_cselect_b32 s66, 0x2000, s66'); A('s_cselect_b32 s69, s4, s69')
    A('s_lshl_b32 s50, s66, 10'); A('s_lshl_b32 s67, s67, 7')
    A('v_and_b32 v1, 56, v0'); A('v_mul_u32_u24 v1, s66, v1')
    A('v_and_b32 v2, 7, v0'); A('v_lshl_add_u32 v1, v2, 4, v1')
    A('s_cmp_eq_u32 s65, 3'); A('s_cselect_b32 s8, 7, 8'); A('s_lshl_b32 s54, s69, s8')
    A('s_mul_i32 s10, s54, s66'); A('s_add_u32 s10, s10, s67')
    A('s_mul_i32 s11, s66, 57')
    A('s_lshl_b32 s8, s54, 1'); A('v_lshl_add_u32 v2, v0, 2, s8')
    A('s_waitcnt lgkmcnt(0)')
    xstamp(0)
    A('s_mov_b64 s[48:49], s[38:39]'); A('s_mov_b64 s[70:71], s[36:37]')
    A('s_cmp_lg_u32 s65, 1'); A('s_cbranch_scc1 L_notq')
    A('s_mov_b64 s[48:49], s[22:23]'); A('s_mov_b64 s[70:71], s[16:17]')
    A('v_lshlrev_b32 v3, 5, v0')
    A('s_barrier')
    A('global_load_dwordx4 v[16:19], v3, s[16:17]'); A('global_load_dwordx4 v[20:23], v3, s[16:17] offset:16')
    A('L_notq:')
    A('global_load_dword v4, v2, s[70:71]'); A('global_load_dword v5, v2, s[70:71] offset:256')
    for G in range(4):
        if G == 2: A('s_cmp_eq_u32 s65, 3'); A('s_cbranch_scc1 L_halfl')
        if G == 1:
            svc_setup()
            if ctl:
                A('s_cmp_lg_u32 s65, 0'); A('s_cbranch_scc1 L_norclr')
                A(f's_cmp_ge_u32 s53, {NRL}'); A('s_cbranch_scc1 L_norclr')
                A(f's_mul_i32 s8, s53, {RSTR}'); A(f's_add_u32 s8, s8, {WS_RANK}')
                A('s_mov_b64 exec, 1'); A('buffer_store_dword v0, off, s[56:59], s8 sc1'); A('s_mov_b64 exec, -1')
                A('L_norclr:')
        for r in range(8):
            if hw and G < 2 and 8*G + r >= hw:
                l = A.lab('hw'); A('s_cmp_lg_u32 s65, 3'); A(f's_cbranch_scc1 {l}'); A(f's_waitcnt vmcnt({hw-1})'); A(f'{l}:')
            if 8*G + r >= WU: A(f's_waitcnt vmcnt({WU-1})')
            A(f'buffer_load_dwordx4 {v(128+32*G+4*r,4)}, v1, s[48:51], s10 offen nt')
            if not (G == 3 and r == 7): A(f's_add_u32 s10, s10, {"s11" if r == 7 else "s66"}')
    A('s_cmp_eq_u32 s65, 1'); A('s_cbranch_scc1 L_go')
    A(f's_waitcnt vmcnt({hu})')
    A('s_barrier')
    A('s_branch L_went')
    A('L_halfl:')
    A('s_waitcnt vmcnt(0)')
    A('s_branch L_went')
    A('L_go:')
    A(f's_waitcnt vmcnt({hg})')
    lds_add(C_GO, 10)
    A('L_went:')
    A('s_waitcnt lgkmcnt(0)'); A('s_add_u32 s46, s9, 1')
    A('s_lshl2_add_u32 s47, s68, s69')
    A('s_lshl_b32 s68, s68, 9'); A(f's_mul_i32 s8, s69, {PSTR}'); A('s_add_u32 s68, s68, s8'); A(f's_add_u32 s68, s68, {WS_PART}')
    xstamp(3)
    A('v_lshlrev_b32 v6, 16, v4'); A('v_and_b32 v7, s62, v4'); A('v_lshlrev_b32 v8, 16, v5'); A('v_and_b32 v9, s62, v5')
    A('s_cmp_eq_u32 s65, 1'); A('s_cbranch_scc1 L_jobq')
    for k in range(4): A(f'v_mul_f32 v{24+k}, s64, v{6+k}')
    for k in range(4): A(f'v_exp_f32 v{24+k}, -v{24+k}')
    for k in range(4): A(f'v_add_f32 v{24+k}, 1.0, v{24+k}')
    for k in range(4): A(f'v_rcp_f32 v{24+k}, v{24+k}')
    for k in range(4): A(f'v_mul_f32 v{6+k}, v{6+k}, v{24+k}')
    A('L_jobcommon:')
    def jobq():
        A('L_jobq:')
        for k in range(8):
            A(f'v_lshlrev_b32 v{96+2*k}, 16, v{16+k}'); A(f'v_and_b32 v{97+2*k}, s62, v{16+k}')
        A('v_add_f32 v24, v96, v97')
        for k in range(2, 16): A(f'v_add_f32 v24, v24, v{96+k}')
        row_reduce('v_add_f32', [24]); xg_reduce('v_add_f32', [24], 25)
        A(f'v_mul_f32 v24, {f2u(1/1024):#x}, v24')
        for k in range(16): A(f'v_sub_f32 v{96+k}, v{96+k}, v24')
        A('v_mul_f32 v26, v96, v96')
        for k in range(1, 16): A(f'v_fmac_f32 v26, v{96+k}, v{96+k}')
        row_reduce('v_add_f32', [26]); xg_reduce('v_add_f32', [26], 25)
        A(f'v_mul_f32 v26, {f2u(1/1024):#x}, v26')
        rnd(24, 26)
        A(f'v_add_f32 v26, {f2u(1e-5):#x}, v26'); rnd(26); A('v_sqrt_f32 v26, v26'); rnd(26); A('v_rcp_f32 v26, v26')
        for k in range(4): A(f'v_sub_f32 v{6+k}, v{6+k}, v24')
        rnd(6, 7, 8, 9)
        for k in range(4): A(f'v_mul_f32 v{6+k}, v{6+k}, v26')
        rnd(6, 7, 8, 9)
        A('v_lshlrev_b32 v3, 2, v2')
        loads = []
        for a in range(2):
            for rho in range(4):
                A(f's_mov_b32 s{72 + 4*a + rho}, {WS_PART + rho * PSTR + a * 8192}')
                for k in range(2):
                    d = 16 + 32*a + 16*k + 4*rho
                    loads.append((d, f'buffer_load_dwordx4 {v(d,4)}, v3, s[56:59], s{72 + 4*a + rho} offen offset:{1024*k} sc1'))
        A('s_waitcnt vmcnt(0)')
        lds_spin(C_PROG, 4, 10)
        if 'p2g' not in cut: tag_gather(loads, 10, cid=0)
        for q_ in range(4):
            b_ = 16 + 16 * q_
            for j in range(2):
                A(f'v_add_f32 v{b_+2*j}, v{b_+2*j}, v{b_+4+2*j}'); A(f'v_add_f32 v{b_+8+2*j}, v{b_+8+2*j}, v{b_+12+2*j}')
            for j in range(2): A(f'v_add_f32 v{96+2*q_+j}, v{b_+2*j}, v{b_+8+2*j}')
        rnd(*range(96, 104))
        for k in range(4): A(f'v_add_f32 v{100+k}, 1.0, v{100+k}')
        rnd(100, 101, 102, 103)
        for k in range(4): A(f'v_mul_f32 v{6+k}, v{6+k}, v{100+k}')
        rnd(6, 7, 8, 9)
        for k in range(4): A(f'v_add_f32 v{6+k}, v{6+k}, v{96+k}')
        A('s_branch L_jobcommon')
    A('v_cvt_pk_bf16_f32 v4, v6, v7'); A('v_cvt_pk_bf16_f32 v5, v8, v9')
    A('s_lshl_b32 s8, s3, 10'); A(f's_add_u32 s8, s8, {L_SCR}')
    A('v_lshl_add_u32 v2, v0, 2, s8')
    A('ds_write2_b32 v2, v4, v5 offset0:0 offset1:64')
    A('v_lshrrev_b32 v3, 4, v0'); A('v_lshlrev_b32 v3, 1, v3'); A('v_and_b32 v6, 1, v0'); A('v_add_u32 v3, v3, v6'); A('v_lshl_add_u32 v3, v3, 4, s8')
    A('s_waitcnt lgkmcnt(0)')
    for G in range(4): A(f'ds_read_b128 {v(32+8*G,4)}, v3 offset:{128*G}')
    A('s_waitcnt lgkmcnt(0)')
    for G in range(4):
        if G == 2: A('s_cmp_eq_u32 s65, 3'); A('s_cbranch_scc1 L_halfg')
        A(f's_waitcnt vmcnt({24 - 8*G})')
        if G in (0, 3): xstamp(5 if G == 0 else 6)
        for m in range(4): perm(96 + m, 128 + 32*G, m, 0)
        for d in range(8):
            if d + 1 < 8:
                for m in range(4): perm(96 + 4*(d+1) + m, 128 + 32*G, m, d + 1)
            A(f'v_mfma_f32_16x16x32_bf16 {v(64+4*d,4)}, {v(96+4*d,4)}, {v(32+8*G,4)}, {0 if G == 0 else v(64+4*d,4)}')
    A('L_halfg:')
    A('v_lshrrev_b32 v3, 5, v0'); A('v_lshlrev_b32 v3, 8, v3'); A('v_and_b32 v6, 16, v0'); A('v_add3_u32 v3, v3, v6, s8')
    A('v_and_b32 v6, 3, v0'); A('v_lshlrev_b32 v6, 6, v6'); A('v_bfe_u32 v7, v0, 2, 3'); A('v_lshl_add_u32 v6, v7, 2, v6'); A('v_add_u32 v6, s8, v6')
    A('s_mov_b32 exec_lo, 0x00010001'); A('s_mov_b32 exec_hi, 0x00020002')
    for e in range(8): A(f'ds_write_b128 v3, {v(64+4*e,4)} offset:{512 + 32*e}')
    A('s_mov_b32 exec_lo, -1'); A('s_mov_b32 exec_hi, 0')
    A('s_waitcnt lgkmcnt(0)')
    A('ds_read2_b32 v[16:17], v6 offset0:128 offset1:136'); A('ds_read2_b32 v[20:21], v6 offset0:192 offset1:200')
    A('v_lshlrev_b32 v3, 4, v0'); A('v_mov_b32 v19, s46')
    A('s_lshl_b32 s8, s69, 3'); A('s_lshl_b32 s52, 0xff, s8'); A('s_not_b32 s52, s52')
    if not skipown: A('s_mov_b32 s52, -1')
    A('s_cmp_eq_u32 s65, 0'); A('s_cselect_b32 s52, -1, s52')
    A('s_waitcnt lgkmcnt(0)')
    A('v_add_f32 v18, v17, v21'); A('v_add_f32 v16, v16, v20'); A('v_mov_b32 v17, s46')
    A('s_cmp_lg_u32 s65, 3'); A('s_cbranch_scc1 L_nomrg')
    A('v_add_f32 v16, v16, v28'); A('v_add_f32 v18, v18, v29')
    A('L_nomrg:')
    A('v_mov_b32 v28, v16'); A('v_mov_b32 v29, v18')
    A('s_cmp_eq_u32 s65, 2'); A('s_cbranch_scc1 L_nopub')
    A('v_mov_b32 v28, 0'); A('v_mov_b32 v29, 0')
    A('s_mov_b32 exec_lo, s52')
    if 'nopub' not in cut: A('buffer_store_dwordx4 v[16:19], v3, s[56:59], s68 offen sc1')
    A('L_nopub:')
    A('s_mov_b64 exec, -1')
    A('s_bitcmp1_b32 s65, 0'); A('s_cbranch_scc1 L_unit_done')
    xstamp(7)
    lds_spin(C_P2, 1, 6, sleep=4)
    A('s_mov_b32 s65, 3'); A('s_branch L_unit')
    jobq()
    A('L_unit_done:')
    stamp(1)
    if 'qg' in cut: lds_add(C_P2, 10); A('s_endpgm')
    A('s_cmp_eq_u32 s3, 1'); A('s_cbranch_scc1 L_lvl2')
    if 'late' in cut: A('s_endpgm')
    lds_spin(C_PROG, 12, 6, sleep=8)
    A('L_lvl2:')
    A('s_waitcnt vmcnt(0)')
    A('v_lshrrev_b32 v1, 3, v0'); A(f's_mov_b32 s8, {PSTR}'); A('v_mul_lo_u32 v1, v1, s8'); A('v_and_b32 v2, 7, v0'); A('v_lshl_add_u32 v1, v2, 4, v1')
    A('s_lshl_b32 s8, s47, 7'); A(f's_add_u32 s8, s8, {WS_PART}')
    A('s_mov_b32 exec_lo, s52'); A('s_mov_b32 exec_hi, 0')
    tag_gather([(16, 'buffer_load_dwordx4 v[16:19], v1, s[56:59], s8 offen sc1')], 10, sleep=6, cid=3)
    A('s_mov_b64 exec, -1')
    row_reduce('v_add_f32', [16, 18], (8,))
    for r in (16, 18): A(f'v_mov_b32 v{r+4}, v{r}')
    for r in (16, 18): A(f'v_permlane16_swap_b32 v{r}, v{r+4}')
    for r in (16, 18): A(f'v_add_f32 v{r}, v{r}, v{r+4}')
    A('v_cvt_pk_bf16_f32 v16, v16, v18')
    A('s_cmp_eq_u32 s3, 0'); A('s_cbranch_scc1 L_rest2')
    A('; ---- wave 5: publish and gather q, later stage the modulation vectors')
    A('v_lshlrev_b32 v2, 3, v2'); A('s_lshl_b32 s8, s47, 6'); A(f's_add_u32 s8, s8, {WS_Q - 384 * 64}')
    A('s_mov_b64 exec, 0xff'); A('buffer_store_dwordx2 v[16:17], v2, s[56:59], s8 offen sc1'); A('s_mov_b64 exec, -1')
    lds_add(C_P2, 10)
    xstamp(7)
    lds_spin(C_PROG, 8, 6, sleep=4)
    A('s_lshl_b32 s8, s4, 12'); A(f's_add_u32 s8, s8, {WS_Q}'); A('v_lshlrev_b32 v1, 4, v0')
    tag_gather([(20+4*n, f'buffer_load_dwordx4 {v(20+4*n,4)}, v1, s[56:59], s8 offen offset:{1024*n} sc1') for n in range(4)], 10, sleep=6, cid=1)
    A('v_lshrrev_b32 v2, 1, v1'); A(f'v_add_u32 v2, {L_Q}, v2')
    for n in range(4):
        A(f'v_mov_b32 v{21+4*n}, v{22+4*n}'); A(f'ds_write_b64 v2, {v(20+4*n,2)} offset:{512*n}')
    lds_add(C_Q, 6)
    stamp(2)
    if 'late' in cut: A('s_endpgm')
    def svc_rank(k):
        lds_spin(C_RK, 4 * (k + 1), 6, sleep=1)
        A(f's_bfe_u32 s10, s2, {(nshb << 16) | 3:#x}'); A(f's_mul_i32 s10, s10, {RSTR}'); A(f's_add_u32 s10, s10, {WS_RANK + (RSTR << nshb) * k}')
        A('s_mov_b32 s11, 1'); A('s_atomic_add s11, s[44:45], s10 glc'); A('s_waitcnt lgkmcnt(0)')
        A(f's_mov_b32 s8, {-LEV.index(DB)}')
        for j, t_ in enumerate(THR[k]):
            A(f's_cmp_ge_u32 s11, {int(round(t_ * (256 >> nshb) / 64.0))}'); A(f's_cselect_b32 s8, {j + 1 - LEV.index(DB)}, s8')
        A('v_mov_b32 v6, s8'); A(f'ds_write_b32 v13, v6 offset:{C_LEV}')
    for k in range(len(sc or ())):
        if sc[k] < sc_split: svc_rank(k)
    lds_spin(C_PROG, 16, 6, sleep=8)
    A(f's_mov_b32 s8, {WS_CLR}')
    tag_gather([(16, 'buffer_load_dwordx4 v[16:19], v1, s[56:59], s8 offen sc1')], 10, sleep=16, tagregs=(0, 1, 2, 3), cid=2)
    notcons('L_staged')
    A(f's_mov_b32 m0, {L_CONST}')
    A('global_load_lds_dwordx4 v1, s[16:17]'); A('global_load_lds_dwordx4 v1, s[16:17] offset:1024')
    dma(WS_MOD, L_CONST + 2048, 8)
    dma(WS_TAB, L_TABLE, NB // 2)
    A('s_waitcnt vmcnt(0)')
    stamp(3)
    A('s_branch L_staged')
    A('; ---- wave 4: publish the rest of the modulation, exchange the softmax statistics of the group')
    A('L_rest2:')
    A('v_lshlrev_b32 v2, 2, v2'); A('s_lshl_b32 s8, s47, 5'); A(f's_sub_u32 s8, s8, {128 * 32 - WS_MOD}')
    A('s_mov_b64 exec, 0xff'); A('buffer_store_dword v16, v2, s[56:59], s8 offen sc1'); A('s_mov_b64 exec, -1')
    done_event(6)
    stamp(2)
    lds_spin(C_ML, 4, 6, sleep=2)
    A('v_and_b32 v1, 7, v0'); A('v_lshlrev_b32 v1, 3, v1'); A(f'v_add_u32 v2, {L_ML}, v1')
    for w in range(4): A(f'ds_read_b64 {v(16+2*w,2)}, v2 offset:{64*w}')
    A('s_waitcnt lgkmcnt(0)')
    A('v_max_f32 v24, v16, v18'); A('v_max3_f32 v24, v20, v22, v24')
    for w in range(4): A(f'v_sub_f32 v{28+w}, v{16+2*w}, v24')
    for w in range(4): A(f'v_mul_f32 v{28+w}, s64, v{28+w}')
    for w in range(4): A(f'v_exp_f32 v{28+w}, v{28+w}')
    A('v_mul_f32 v25, v28, v17')
    for w in range(1, 4): A(f'v_fmac_f32 v25, v{28+w}, v{17+2*w}')
    A('v_mov_b32_dpp v28, v24 quad_perm:[1,1,3,3] row_mask:0xf bank_mask:0xf')
    A('v_mov_b32 v27, s46')
    A('v_mov_b32_dpp v26, v25 quad_perm:[1,1,3,3] row_mask:0xf bank_mask:0xf')
    A('v_cvt_pk_bf16_f32 v24, v24, v28')
    A('s_lshl_b32 s8, s2, 6'); A(f's_add_u32 s8, s8, {WS_ML}')
    A('s_mov_b64 exec, 0x55'); A('buffer_store_dwordx4 v[24:27], v1, s[56:59], s8 offen sc1'); A('s_mov_b64 exec, -1')
    stamp(3)
    A('v_and_b32 v2, 3, v0'); A('v_bfe_u32 v3, v0, 2, 1'); A('v_lshl_add_u32 v2, v2, 1, v3'); A('v_bfe_u32 v4, v0, 3, 2')
    A('v_lshlrev_b32 v7, 6, v4'); A('v_lshl_add_u32 v7, v2, 3, v7'); A('v_add_u32 v7, v7, v13')
    A(f'ds_read_b32 v8, v7 offset:{L_ML - LM}')
    A('v_lshlrev_b32 v7, 2, v4'); A('v_lshl_add_u32 v7, v2, 4, v7'); A('v_add_u32 v7, v7, v13')
    A('s_lshl_b32 s10, s4, 12'); A(f's_add_u32 s10, s10, {WS_ML}'); A('v_lshlrev_b32 v1, 4, v0')
    lds_spin(C_PROG, 20, 6, sleep=2)
    tag_gather([(32+4*n, f'buffer_load_dwordx4 {v(32+4*n,4)}, v1, s[56:59], s10 offen offset:{1024*n} sc1') for n in range(4)], 10, sleep=6, cid=4, tagregs=(3,))
    stamp(4)
    for n in range(4): A(f'v_lshlrev_b32 v{16+n}, 16, v{32+4*n}'); A(f'v_and_b32 v{20+n}, s62, v{32+4*n}')
    for h in range(2): A(f'v_max_f32 v{24+h}, v{16+4*h}, v{17+4*h}'); A(f'v_max3_f32 v{24+h}, v{18+4*h}, v{19+4*h}, v{24+h}')
    row_reduce('v_max_f32', [24, 25], (8, 4)); xg_reduce('v_max_f32', [24, 25], 28)
    for k in range(8): A(f'v_sub_f32 v{16+k}, v{16+k}, v{24 + k//4}')
    for k in range(8): A(f'v_mul_f32 v{16+k}, s64, v{16+k}')
    for k in range(8): A(f'v_exp_f32 v{16+k}, v{16+k}')
    for n in range(4):
        for h in range(2): A(f'{"v_mul_f32" if n == 0 else "v_fmac_f32"} v{26+h}, v{16+4*h+n}, v{33+4*n+h}')
    row_reduce('v_add_f32', [26, 27], (8, 4)); xg_reduce('v_add_f32', [26, 27], 28)
    A('v_cmp_eq_u32 vcc, 1, v3'); A('v_cndmask_b32 v24, v24, v25, vcc'); A('v_cndmask_b32 v26, v26, v27, vcc')
    A('v_rcp_f32 v26, v26')
    A('v_sub_f32 v8, v8, v24'); A('v_mul_f32 v8, s64, v8'); A('v_exp_f32 v8, v8'); A('v_mul_f32 v8, v8, v26')
    A(f'ds_write_b32 v7, v8 offset:{L_FAC - LM}')
    A('s_branch L_staged')

    A('L_tabwaves:')
    if 'tab' in cut: A('s_endpgm')
    A('s_waitcnt lgkmcnt(0)')
    svc_setup()
    A('s_cmp_eq_u32 s3, 3'); A('s_cbranch_scc1 L_tabinit')
    if 'noclr' not in cut:
        A('v_mov_b32 v20, -1'); A('v_mov_b32 v21, -1'); A('v_mov_b32 v22, -1'); A('v_mov_b32 v23, -1')
        A('v_lshrrev_b32 v1, 5, v0'); A('v_lshlrev_b32 v1, 15, v1'); A('v_and_b32 v2, 31, v0'); A('v_lshl_add_u32 v1, v2, 4, v1')
        A('v_lshrrev_b32 v3, 3, v0'); A('v_lshlrev_b32 v3, 15, v3'); A('v_and_b32 v2, 7, v0'); A('v_lshl_add_u32 v3, v2, 4, v3')
        A('s_lshl_b32 s8, s4, 17'); A('s_lshl_b32 s10, s5, 9'); A('s_add_u32 s8, s8, s10'); A(f's_add_u32 s8, s8, {WS_T1}'); A('s_add_u32 s10, s8, 0x10000')
        A('s_lshl_b32 s11, s6, 11'); A('s_lshl_b32 s14, s7, 7'); A('s_add_u32 s11, s11, s14'); A(f's_add_u32 s11, s11, {WS_T2}')
        for va, so in (('v1', 's8'), ('v1', 's10'), ('v3', 's11')):
            if va == 'v3' and nrep < 8: A(f's_mov_b32 exec_lo, {(1 << (8*nrep)) - 1 if nrep < 4 else -1}'); A('s_mov_b32 exec_hi, 0')
            A(f'buffer_store_dwordx4 v[20:23], {va}, s[56:59], {so} offen sc1')
        if nrep < 8: A('s_mov_b64 exec, -1')
    A('L_tabinit:')
    A('s_and_b32 s8, s2, 127'); A(f's_mul_i32 s8, s8, {NB}'); A(f's_add_u32 s8, s8, {TAB_E0}')
    A('s_lshr_b32 s10, s2, 7'); A('s_lshl_b32 s10, s10, 15'); A('s_add_u32 s8, s8, s10')
    A('v_add_u32 v2, s8, v0'); A('v_lshlrev_b32 v2, 16, v2')
    A(f'v_cmp_gt_u32 vcc, {NB}, v0'); A('v_cndmask_b32 v12, 0, v2, vcc')
    A('s_mov_b32 s65, 0'); A('v_mov_b32 v239, 0')
    A('s_waitcnt lgkmcnt(0)'); A('s_add_u32 s46, s9, 1')
    if tb0 == 'early': A('s_barrier')
    A('L_mlp:')
    TR = list(range(16, 28)) + list(range(48, 56)) + [36, 37]
    NT = NB + 1
    assert NT <= len(TR) and NT <= 24
    A('s_sub_u32 s8, s3, 2'); A('s_mul_i32 s8, s8, 3584'); A('v_lshl_add_u32 v1, v0, 3, s8')
    def pload():
        for a, ptr in enumerate(('s[28:29]', 's[30:31]', 's[32:33]')):
            if 'tabl' not in cut: A(f'global_load_dwordx2 {v(56 + 2*a, 2)}, v1, {ptr}')
    pload()
    A('s_load_dword s47, s[34:35], 0')
    for k in range(NT): A(f'v_readlane_b32 s{TR[k]}, v12, {k}')
    c0 = -2.0 * math.sqrt(2.0 / math.pi) * LOG2E; c1 = c0 * 0.044715
    A(f's_mov_b32 s72, {f2u(c1):#x}'); A('s_mov_b32 s73, s72'); A(f's_mov_b32 s74, {f2u(3*c1):#x}'); A('s_mov_b32 s75, s74')
    A('s_mov_b32 s66, 1.0'); A('s_mov_b32 s67, 1.0')
    A(f'v_mov_b32 v10, {f2u(c0):#x}'); A('v_mov_b32 v11, v10')
    for k in range(48): A(f'v_mov_b32 v{64+k}, 0')
    A('s_mov_b32 s68, 0')
    if tb0 == 'late':
        A('s_cmp_eq_u32 s65, 1'); A('s_cbranch_scc1 L_mlp_loop'); A('s_barrier')
    A('.p2align 3')
    A('L_mlp_loop:')
    A('s_waitcnt vmcnt(0)')
    CO = 24
    for r in range(2):
        for a in range(3):
            A(f'v_lshlrev_b32 v{2+2*a}, 16, v{56 + 2*a + r}'); A(f'v_and_b32 v{3+2*a}, s62, v{56 + 2*a + r}')
        if r == 1:
            A('v_add_u32 v1, 0x200, v1')
            A('s_cmp_eq_u32 s68, 6'); A('s_cbranch_scc1 L_mlp_nold'); pload(); A('L_mlp_nold:')
        c = CO + 12 * r
        A('v_pk_mul_f32 v[8:9], v[2:3], v[2:3]'); A('v_pk_mul_f32 v[16:17], v[4:5], v[4:5]')
        A('v_pk_mul_f32 v[18:19], v[8:9], s[72:73]'); A('v_pk_mul_f32 v[8:9], v[8:9], s[74:75]')
        A('v_pk_fma_f32 v[20:21], v[16:17], s[74:75], v[10:11]'); A('v_pk_fma_f32 v[16:17], v[16:17], s[72:73], v[10:11]')
        A(f'v_pk_mul_f32 {v(c,2)}, v[18:19], v[2:3]'); A(f'v_pk_mul_f32 {v(c+2,2)}, v[8:9], v[4:5]')
        A(f'v_pk_mul_f32 {v(c+4,2)}, v[20:21], v[2:3]'); A(f'v_pk_mul_f32 {v(c+6,2)}, v[16:17], v[4:5]')
        A(f'v_pk_mul_f32 {v(c+8,2)}, v[2:3], v[6:7]'); A(f'v_pk_mul_f32 {v(c+10,2)}, v[4:5], v[6:7]')
    A('.p2align 3')
    for k in range(NT):
        if k == 4: A('s_cmp_eq_u32 s65, 1'); A('s_cbranch_scc1 L_mlp_next')
        sp = f's[{TR[k] & ~1}:{(TR[k] & ~1) + 1}]'; h_ = TR[k] & 1
        os_ = f'op_sel:[0,{h_},0] op_sel_hi:[1,{h_},1]'
        cs = [CO, CO + 12]
        x0 = 2 if k % 2 == 0 else 48
        for d in range(2): A(f'v_pk_fma_f32 {v(x0+2*d,2)}, {v(cs[d],2)}, {sp}, {v(cs[d]+2,2)} {os_}')
        for d in range(2): A(f'v_pk_fma_f32 {v(x0+2*d,2)}, {v(x0+2*d,2)}, {sp}, {v(cs[d]+4,2)} {os_}')
        for d in range(2): A(f'v_pk_fma_f32 {v(x0+2*d,2)}, {v(x0+2*d,2)}, {sp}, {v(cs[d]+6,2)} {os_}')
        for d in range(4): A(f'v_exp_f32 v{x0+d}, v{x0+d}')
        for d in range(2): A(f'v_pk_fma_f32 {v(x0+4+2*d,2)}, {v(cs[d]+8,2)}, {sp}, {v(cs[d]+10,2)} {os_}')
        for d in range(2): A(f'v_pk_add_f32 {v(x0+2*d,2)}, {v(x0+2*d,2)}, s[66:67]')
        for d in range(4): A(f'v_rcp_f32 v{x0+d}, v{x0+d}')
        for d in range(2): A(f'v_pk_fma_f32 {v(64+2*k,2)}, {v(x0+4+2*d,2)}, {v(x0+2*d,2)}, {v(64+2*k,2)}')
    A('L_mlp_next:')
    A('s_add_u32 s68, s68, 1'); A('s_cmp_lt_u32 s68, 7'); A('s_cbranch_scc1 L_mlp_loop')
    xstamp(4)
    for k in range(NT): A(f'v_add_f32 v{64+2*k}, v{64+2*k}, v{65+2*k}')
    for k in range(0, 24, 2): A(f'v_permlane32_swap_b32 v{64+2*k}, v{66+2*k}')
    for k in range(0, 24, 2): A(f'v_add_f32 v{64+2*k}, v{64+2*k}, v{66+2*k}')
    for k in range(0, 24, 4): A(f'v_permlane16_swap_b32 v{64+2*k}, v{68+2*k}')
    for k in range(0, 24, 4): A(f'v_add_f32 v{64+2*k}, v{64+2*k}, v{68+2*k}')
    row_reduce('v_add_f32', [64 + 8*j for j in range(6)])
    A('s_lshl_b32 s8, s3, 7'); A(f's_add_u32 s8, s8, {L_TP - 256}')
    A('v_lshrrev_b32 v2, 5, v0'); A('v_lshl_add_u32 v2, v2, 2, s8'); A('v_and_b32 v1, 16, v0'); A('v_lshrrev_b32 v1, 1, v1'); A('v_add_u32 v2, v2, v1')
    A('v_and_b32 v1, 31, v0')
    A('s_mov_b32 exec_lo, 0x00010001'); A('s_mov_b32 exec_hi, 0x00010001')
    for j in range(6): A(f'ds_write_b32 v2, v{64+8*j} offset:{16*j}')
    A('s_waitcnt lgkmcnt(0)')
    A('s_lshl_b32 s8, s65, 2'); A('v_add_u32 v3, s8, v13')
    A('s_mov_b64 exec, 1'); A('v_mov_b32 v6, 1'); A(f'ds_add_rtn_u32 v6, v3, v6 offset:{C_TAB}'); A('s_mov_b64 exec, -1')
    A('s_waitcnt lgkmcnt(0)')
    A('v_readfirstlane_b32 s8, v6')
    A('s_bitcmp1_b32 s8, 0'); A('s_cbranch_scc1 L_mlp_last')
    A('s_cmp_eq_u32 s65, 0'); A('s_cbranch_scc1 L_staged')
    A('s_branch L_batchdone')
    A('L_mlp_last:')
    A(f'v_lshlrev_b32 v2, 2, v1'); A(f'v_add_u32 v2, {L_TP}, v2')
    A('ds_read2_b32 v[16:17], v2 offset0:0 offset1:32')
    A('s_lshl_b32 s47, s47, 16')
    A('s_waitcnt lgkmcnt(0)')
    A('v_add_f32 v16, v16, v17'); rnd(16); A('v_add_f32 v16, s47, v16'); rnd(16)
    A('s_cmp_eq_u32 s65, 1'); A('s_cbranch_scc1 L_output')
    A('v_mov_b32_dpp v17, v16 quad_perm:[1,1,3,3] row_mask:0xf bank_mask:0xf')
    A('v_cvt_pk_bf16_f32 v18, v16, v17')
    A('v_lshlrev_b32 v2, 1, v0'); A(f's_mul_i32 s8, s2, {2*NB}'); A(f's_add_u32 s8, s8, {WS_TAB}')
    A(f's_mov_b64 exec, {0x55555555 & ((1 << NB) - 1):#x}'); A('buffer_store_dword v18, v2, s[56:59], s8 offen sc1')
    A(f's_mov_b64 exec, {1 << NB:#x}'); A(f'ds_write_b16 v13, v18 offset:{L_TABLE + 512 * NB - LM}')
    A('s_mov_b64 exec, -1')
    done_event(6)
    stamp(3)
    A('L_staged:')
    if sc and max(sc) >= sc_split:
        A('s_cmp_lg_u32 s3, 3'); A('s_cbranch_scc1 L_noctl')
        for k in range(len(sc)):
            if sc[k] >= sc_split: svc_rank(k)
        A('L_noctl:')
    A('s_setprio 0')
    A('s_add_u32 s3, s3, 4')
    A('s_waitcnt lgkmcnt(0)')
    stamp(5)
    if cut: A('s_endpgm')
    notcons('L_fin')
    A('s_barrier')
    prep()
    A('s_branch L_tail')

    A(';MARK tail')
    A('L_tail:')
    A('s_barrier')
    xstamp(10)
    if nrep < 8: A(f's_cmp_ge_u32 s3, {nrep}'); A('s_cbranch_scc1 L_norep')
    for w in range(2): A(f'ds_read_b128 {v(16+4*w,4)}, v229 offset:{L_RED2 - LM + 1024*w}')
    A('s_waitcnt lgkmcnt(0)')
    A('v_pk_add_f32 v[16:17], v[16:17], v[20:21]'); A('v_pk_add_f32 v[18:19], v[18:19], v[22:23]')
    for e in range(2): A(f'v_permlane32_swap_b32 v{16+e}, v{18+e}')
    A('v_pk_add_f32 v[16:17], v[16:17], v[18:19]')
    A('v_mov_b32 v18, v16'); A('v_mov_b32 v19, v17')
    for e in range(2): A(f'v_permlane16_swap_b32 v{16+e}, v{18+e}')
    A('v_pk_add_f32 v[16:17], v[16:17], v[18:19]')
    A('v_cvt_pk_bf16_f32 v16, v16, v17')
    A('v_min_u32 v16, -2, v16')
    for c in range(1, 4): A(f'v_mov_b32_dpp v{16+c}, v16 quad_perm:[{c},{c},{c},{c}] row_mask:0xf bank_mask:0xf')
    A('s_mov_b32 exec_lo, 0x1111'); A('s_mov_b32 exec_hi, 0x1111')
    A('buffer_store_dwordx4 v[16:19], v230, s[56:59], s72 offen sc1')
    A('s_mov_b64 exec, -1')
    if ackw: A('s_waitcnt vmcnt(0)')
    A('L_norep:')
    xstamp(11)
    if pref:
        def pref_cold():
            A('L_pref:')
            A('s_and_b32 s8, s2, 7'); A(f's_cmp_lg_u32 s8, {cx & 7}'); A('s_cbranch_scc1 L_fin')
            if pref == 1: A('s_barrier')
            A('v_lshlrev_b32 v1, 7, v0'); A('s_lshl_b32 s8, s3, 13'); A(f's_add_u32 s8, s8, {WS_T2}')
            for n_ in range(prefn):
                if n_: A('s_waitcnt vmcnt(0)')
                A('buffer_load_dword v2, v1, s[56:59], s8 offen sc1')
            A('s_branch L_fin')
        COLD.append(pref_cold)
    notcons('L_pref' if pref else 'L_fin')
    A('s_barrier')
    if t2x: A(f's_sleep {t2x}')
    stamp(7)
    def t2_load(n): A(f'buffer_load_dwordx4 {v(16+4*n,4)}, v244, s[56:59], {"s75" if n < 2 else "s73"} offen offset:{2048 * (n & 1)} sc1')
    for n in range(4): t2_load(n)
    sweep('t2', 4, t2_load, lambda k: 16 + 4*k, 240, 6)
    stamp(8)
    rnd(240, 241)
    A('v_pk_mul_f32 v[240:241], v[250:251], v[240:241]'); rnd(240, 241)
    A('v_pk_add_f32 v[240:241], v[248:249], v[240:241]'); rnd(240, 241)
    def stats(a, b, lds_off):
        A(f'v_add_f32 v46, v{a}, v{b}'); A(f'v_mul_f32 v47, v{a}, v{a}'); A(f'v_fmac_f32 v47, v{b}, v{b}')
        A('v_permlane32_swap_b32 v46, v47'); A('v_add_f32 v46, v46, v47')
        A('v_mov_b32 v47, v46'); A('v_permlane16_swap_b32 v46, v47'); A('v_add_f32 v46, v46, v47')
        row_reduce('v_add_f32', [46])
        A('s_mov_b32 exec_lo, 1'); A('s_mov_b32 exec_hi, 1')
        A(f'ds_write_b32 v246, v46 offset:{lds_off}')
        A('s_mov_b64 exec, -1')
        A('s_waitcnt lgkmcnt(0)')
        A('s_barrier')
    def stats_read(lds_off):
        for k in range(4): A(f'ds_read_b128 {v(48+4*k,4)}, v13 offset:{lds_off + 16*k}')
    def stats_calc(pending):
        for k in range(4):
            A(f's_waitcnt lgkmcnt({3 - k + pending})'); A(f'v_pk_add_f32 {v(48+4*k,2)}, {v(48+4*k,2)}, {v(50+4*k,2)}')
        A('v_pk_add_f32 v[48:49], v[48:49], v[52:53]'); A('v_pk_add_f32 v[56:57], v[56:57], v[60:61]')
        A('v_pk_add_f32 v[46:47], v[48:49], v[56:57]')
        A('v_pk_mul_f32 v[46:47], v[46:47], s[66:67]')
        A('v_fma_f32 v47, -v46, v46, v47'); A('v_max_f32 v47, 0, v47'); rnd(47)
        A(f'v_add_f32 v47, {f2u(1e-5):#x}, v47'); rnd(47); A('v_sqrt_f32 v47, v47'); rnd(46); rnd(47); A('v_rcp_f32 v47, v47')
    stats(240, 241, L_ST1)
    xstamp(12)
    stats_read(L_ST1); stats_calc(0)
    A('v_sub_f32 v42, v240, v46'); A('v_sub_f32 v43, v241, v46'); rnd(42, 43)
    A('v_mul_f32 v42, v42, v47'); A('v_mul_f32 v43, v43, v47'); rnd(42, 43)
    A('v_pk_mul_f32 v[42:43], v[42:43], v[254:255]'); rnd(42, 43)
    A('v_pk_add_f32 v[42:43], v[42:43], v[252:253]'); rnd(42, 43)
    stats(42, 43, L_ST2)
    xstamp(13)
    if ncb:
        A('s_lshr_b32 s8, s2, 3'); A('s_xor_b32 s8, s8, s3'); A(f's_and_b32 s8, s8, {(1 << ncb) - 1}'); A('s_cbranch_scc1 L_early')
    stats_read(L_ST2); stats_calc(0)
    A('v_sub_f32 v42, v42, v46'); A('v_sub_f32 v43, v43, v46'); rnd(42, 43)
    A('v_mul_f32 v42, v42, v47'); A('v_mul_f32 v43, v43, v47'); rnd(42, 43)
    stamp(9)
    for e in range(2):
        A(f'v_bfe_u32 v{2+e}, v{42+e}, 16, 15'); A(f'v_lshrrev_b32 v{4+e}, 31, v{42+e}'); A(f'v_subrev_u32 v{6+e}, {TAB_E0}, v{2+e}')
    for e in range(2):
        A(f'v_cmp_eq_u32 s[{16+2*e}:{17+2*e}], 0, v{2+e}'); A(f'v_cmp_gt_u32 s[{20+2*e}:{21+2*e}], v245, v{6+e}')
    for e in range(2): A(f'v_mad_u32_u24 v{6+e}, v{4+e}, v245, v{6+e}')
    for e in range(2): A(f'v_cndmask_b32 v{6+e}, v{6+e}, v247, s[{16+2*e}:{17+2*e}]')
    for e in range(2): A(f'v_lshl_add_u32 v{6+e}, v{6+e}, 1, v13'); A(f'ds_read_u16 v{16+e}, v{6+e} offset:{L_TABLE - LM}')
    for e in range(2):
        A(f's_or_b64 s[{20+2*e}:{21+2*e}], s[{20+2*e}:{21+2*e}], s[{16+2*e}:{17+2*e}]')
        if force_fb: A(f's_and_b64 s[{20+2*e}:{21+2*e}], s[{20+2*e}:{21+2*e}], {force_fb if isinstance(force_fb, str) else "0"}')
    A('s_waitcnt lgkmcnt(0)')
    A('v_lshlrev_b32 v16, 16, v16'); A('v_lshlrev_b32 v17, 16, v17')
    A('v_pk_mul_f32 v[16:17], v[16:17], v[236:237]'); rnd(16, 17)
    A('v_pk_add_f32 v[16:17], v[16:17], v[240:241]'); A('v_cvt_pk_bf16_f32 v16, v16, v17')
    A('s_mov_b64 exec, s[20:21]'); A('global_store_short v238, v16, s[40:41]')
    A('s_mov_b64 exec, s[22:23]'); A('global_store_short_d16_hi v238, v16, s[40:41] offset:16')
    A('s_and_b64 s[16:17], s[20:21], s[22:23]'); A('s_not_b64 s[16:17], s[16:17]'); A('s_cbranch_scc0 L_listed')
    for e in range(2):
        A(f's_not_b64 exec, s[{20+2*e}:{21+2*e}]')
        A('v_mov_b32 v2, 1'); A(f'ds_add_rtn_u32 v2, v13, v2 offset:{C_LIST}')
        A(f'v_mov_b32 v4, v{42+e}'); A(f'v_mov_b32 v5, v{240+e}'); A(f'v_mov_b32 v6, v{236+e}'); A(f'v_add_u32 v7, {16*e}, v238')
        A('s_waitcnt lgkmcnt(0)')
        A('v_lshlrev_b32 v2, 4, v2'); A(f'ds_write_b128 v2, v[4:7] offset:{L_LIST}')
    A('s_waitcnt lgkmcnt(0)')
    A('L_listed:')
    A('s_mov_b64 exec, -1')
    A('L_wait67:')
    A('s_barrier')
    A('s_cmp_lt_u32 s3, 6'); A('s_cbranch_scc1 L_last')
    A(f'ds_read_b32 v2, v13 offset:{C_LIST}'); A('s_waitcnt lgkmcnt(0)')
    A('v_readfirstlane_b32 s69, v2')
    A('s_cmp_eq_u32 s69, 0'); A('s_cbranch_scc1 L_fin')
    A('s_sub_u32 s3, s3, 4'); A('s_mov_b32 s65, 1'); A('s_mov_b32 s76, 0')
    A('L_batch:')
    A('v_and_b32 v2, 3, v0'); A('v_add_u32 v2, s76, v2'); A('v_cmp_gt_u32 s[78:79], s69, v2'); A('s_sub_u32 s8, s69, 1'); A('v_min_u32 v2, s8, v2')
    A('v_lshlrev_b32 v2, 4, v2'); A(f'ds_read_b128 v[236:239], v2 offset:{L_LIST}')
    A('s_waitcnt lgkmcnt(0)')
    A('v_mov_b32 v12, v236')
    A('s_branch L_mlp')
    A('L_output:')
    A('v_mul_f32 v16, v238, v16'); rnd(16)
    A('v_add_f32 v16, v237, v16'); A('v_cvt_pk_bf16_f32 v16, v16, v16')
    A('s_and_b64 exec, s[78:79], 15')
    A('global_store_short v239, v16, s[40:41]')
    A('s_mov_b64 exec, -1')
    A('L_batchdone:')
    A('s_barrier')
    A('s_add_u32 s76, s76, 4'); A('s_cmp_lt_u32 s76, s69'); A('s_cbranch_scc1 L_batch')
    A('s_branch L_fin')
    for c in COLD: c()
    A('L_early:')
    A('s_cmp_ge_u32 s3, 6'); A('s_cbranch_scc1 L_wait67')
    A('L_last:')
    A('s_cmp_lg_u32 s3, 4'); A('s_cbranch_scc1 L_fin')
    A(f's_cmp_lg_u32 s2, {cx}'); A('s_cbranch_scc1 L_fin')
    A('s_mov_b64 exec, 1'); A('v_mov_b32 v16, s46'); A(f's_mov_b32 s8, {WS_EPOCH}')
    A('buffer_store_dword v16, off, s[56:59], s8')
    if endstamp: A('s_mov_b64 exec, -1')
    A('L_fin:')
    if endstamp:
        A('s_waitcnt vmcnt(0)')
        A('s_memrealtime s[100:101]'); A('s_waitcnt lgkmcnt(0)')
        A('v_mov_b32 v61, v15')
        for k in range(11): A(f'v_writelane_b32 v61, s{80+2*k}, {k}')
        A('s_lshl_b32 s8, s2, 3'); A('s_add_u32 s8, s8, s3'); A('s_lshl_b32 s8, s8, 7'); A(f's_add_u32 s8, s8, {WS_STAMP}')
        A('v_lshlrev_b32 v1, 2, v0'); A('s_mov_b32 exec_lo, -1'); A('s_mov_b32 exec_hi, 0')
        A('buffer_store_dword v61, v1, s[56:59], s8 offen')
    if probe:
        k_, wlo, whi, op = probe
        A('s_sleep 127'); A('s_sleep 127')
        A('s_mov_b64 exec, 1')
        A('s_not_b32 s8, s80'); A('v_mov_b32 v1, s8'); A('v_mov_b32 v2, 0')
        A('global_atomic_umax v2, v1, s[42:43] sc1')
        A(f's_cmp_lt_u32 s3, {wlo}'); A('s_cbranch_scc1 L_pskip'); A(f's_cmp_gt_u32 s3, {whi}'); A('s_cbranch_scc1 L_pskip')
        A(f'v_readlane_b32 s8, v61, {k_}')
        if op == 'sum': A('s_sub_u32 s8, s8, s80')
        A('v_mov_b32 v1, s8')
        A(f'global_atomic_{"add" if op in ("sum", "cnt") else "umax"} v2, v1, s[42:43] offset:128 sc1')
        A('L_pskip:')
        A('s_waitcnt vmcnt(0)')
        A('s_cmp_lg_u32 s2, 0'); A('s_cbranch_scc1 L_end'); A('s_cmp_lg_u32 s3, 0'); A('s_cbranch_scc1 L_end')
        A('s_add_u32 s10, s80, 9000')
        A('L_ph1:'); A('s_memrealtime s[100:101]'); A('s_waitcnt lgkmcnt(0)'); A('s_sub_u32 s8, s100, s10'); A('s_cmp_lt_i32 s8, 0'); A('s_cbranch_scc1 L_ph1')
        A('global_load_dword v3, v2, s[42:43] sc1'); A('global_load_dword v4, v2, s[42:43] offset:128 sc1'); A('s_waitcnt vmcnt(0)')
        A('v_readfirstlane_b32 s10, v3'); A('v_readfirstlane_b32 s11, v4')
        A('s_not_b32 s10, s10')
        if op == 'max': A('s_sub_u32 s11, s11, s10')
        if op == 'sum': A(f's_lshr_b32 s11, s11, {(256 * (whi - wlo + 1)).bit_length() - 1}')
        A('s_min_u32 s11, s11, 6000'); A('s_mul_i32 s11, s11, 10')
        A('s_add_u32 s10, s10, 10000'); A('s_add_u32 s10, s10, s11')
        A('L_ph2:'); A('s_memrealtime s[100:101]'); A('s_waitcnt lgkmcnt(0)'); A('s_sub_u32 s8, s100, s10'); A('s_cmp_lt_i32 s8, 0'); A('s_cbranch_scc1 L_ph2')
    A('L_end:')
    A('s_endpgm')
    A('.section .rodata,"a"'); A('.p2align 6'); A(f'.amdhsa_kernel {NAME}_kernel')
    A('.amdhsa_next_free_vgpr 256'); A('.amdhsa_next_free_sgpr 102'); A('.amdhsa_accum_offset 256')
    A('.amdhsa_group_segment_fixed_size 0'); A('.amdhsa_kernarg_size 120'); A('.amdhsa_user_sgpr_count 2')
    A('.amdhsa_user_sgpr_kernarg_segment_ptr 1'); A('.amdhsa_system_sgpr_workgroup_id_x 1')
    A('.amdhsa_float_denorm_mode_32 3')
    A('.end_amdhsa_kernel')
    ia, isv, it_ = (A.L.index(';MARK ' + m) for m in ('attn2', 'service', 'tail'))
    A.L = A.L[:ia] + A.L[isv:it_] + A.L[ia:isv] + A.L[it_:]
    A.L = [l for l in A.L if not l.startswith(';MARK')]
    txt, nn = A.finish()
    return txt

if __name__ == '__main__':
    kw = eval('dict(%s)' % (sys.argv[2] if len(sys.argv) > 2 else ''))
    open(sys.argv[1], 'w').write(gen(**kw))
```

```python
import sys, struct, math
from asmlib import Asm
NAME = 'adaLN_cond__gqa_block_cached__mixer_token_mlp__decode'

def f2u(x): return struct.unpack('<I', struct.pack('<f', x))[0]
LOG2E = 1.4426950408889634

WS_MOD, WS_TAB, WS_ML, WS_Q, WS_CLR, WS_EPOCH, WS_RANK = 0x0, 0x8000, 0x10000, 0x20000, 0x28000, 0x29000, 0x30000
WS_G = WS_Q - 384 * 64
WS_PART, WS_T2, WS_T1, WS_STAMP = 0x40000, 0xC0000, 0x100000, 0x200000
PSTR = 10240 * 8
RSTR = 256
LM = 131072
C_Q, C_ML, C_PROG, C_TAB, C_FB, C_DONE, C_P2, C_GO, C_RK, C_LEV, C_LIST = 4, 8, 12, 16, 20, 24, 28, 32, 36, 40, 44
L_ST1, L_ST2 = 128, 192
L_ML = LM + 256
L_FAC = LM + 512
L_TP = LM + 768
L_Q = LM + 1024
L_CONST = LM + 3072
NB = 20
L_TABLE = LM + 13312
L_SCR = LM + 13312 + 512 * NB + 256
L_RED2 = L_SCR + 2048
L_LIST = 0
LDS_BYTES = 163840
assert L_RED2 + 2048 <= LDS_BYTES
OSTRIDE = 528
TAB_E0 = (130 - NB) << 7
SPIN_CAP = 0x40000

def gen(DA=6, DB=5, early=2, WU=20, hu=16, hg=14, p2_at=13, q_at=52, r2_at=0, fin_at=40, ml_at=54,
        cps=(3, 23, 42), lev=(4, 5, 6, 8), thrs=((16, 40, 56), (16, 40, 56), (16, 40, 56), (16, 40, 56), (10, 42, 58), (6, 42, 58), (0, 40, 56)), wsh=2, rd=4, DS=5, wos=(1, 2, 3, 3, 4, 4, 6, 8), wothr=4,
        skipown=True, sc=(0, 9, 18, 27, 36, 44, 52), scr=(3, 5, 7), nshb=3, sc_split=0, mret=True, rsl=1, gw=0, hw=0, nrep=1, cx=0, ackw=True, ncb=3, t1w='ack', t1x=0, cboost=False, pref=1, prefn=1, t2x=0, h2l=False, l2w=True, tb0='early', diag=False, lite=False, probe=None, force_fb=False, cut=(), trajA=False, header=''):
    A = Asm()
    endstamp = diag or lite
    if lite: diag = False
    COLD = []
    def stamp(k):
        if diag: A(f's_memrealtime s[{80+2*k}:{81+2*k}]'); A('s_waitcnt lgkmcnt(0)')
    def xstamp(k):
        if diag: A('s_memrealtime s[100:101]'); A('s_waitcnt lgkmcnt(0)'); A(f'v_writelane_b32 v15, s100, {16 + k}')
    def sstamp(r):
        A('s_memrealtime s[100:101]'); A('s_waitcnt lgkmcnt(0)'); A(f's_mov_b32 s{r}, s100')
    def v(a, n=1): return f'v{a}' if n == 1 else f'v[{a}:{a+n-1}]'
    def rnd(*regs):
        for a in regs: A(f'v_cvt_pk_bf16_f32 v{a}, 0, v{a}')
    def lds_spin(off, target, vt, sleep=1):
        l0 = A.lab('spin'); l1 = A.lab('spun')
        A('s_mov_b32 s14, 0')
        A(f'{l0}:')
        A(f'ds_read_b32 v{vt}, v13 offset:{off}'); A('s_waitcnt lgkmcnt(0)')
        A(f'v_readfirstlane_b32 s15, v{vt}')
        A(f's_cmp_ge_u32 s15, {target}'); A(f's_cbranch_scc1 {l1}')
        A(f's_sleep {sleep}')
        A('s_add_u32 s14, s14, 1'); A(f's_cmp_lt_u32 s14, {SPIN_CAP}'); A(f's_cbranch_scc1 {l0}')
        A(f'{l1}:')
    def lds_add(off, vt):
        A('s_waitcnt lgkmcnt(0)')
        A('s_mov_b64 exec, 1'); A(f'v_mov_b32 v{vt}, 1'); A(f'ds_add_u32 v13, v{vt} offset:{off}'); A('s_mov_b64 exec, -1')
    def done_event(vt):
        l1 = A.lab('nodone')
        A('s_waitcnt vmcnt(0) lgkmcnt(0)')
        A('s_mov_b64 exec, 1'); A(f'v_mov_b32 v{vt}, 1'); A(f'ds_add_rtn_u32 v{vt}, v13, v{vt} offset:{C_DONE}')
        A('s_waitcnt lgkmcnt(0)')
        A(f'v_readfirstlane_b32 s8, v{vt}')
        A('s_cmp_lg_u32 s8, 1'); A(f's_cbranch_scc1 {l1}')
        A('s_lshl_b32 s8, s2, 2'); A(f's_add_u32 s8, s8, {WS_CLR}'); A(f'v_mov_b32 v{vt}, s46')
        A(f'buffer_store_dword v{vt}, off, s[56:59], s8 sc1')
        A(f'{l1}:')
        A('s_mov_b64 exec, -1')
    def tag_gather(loads, vt, sleep=2, tagregs=(1, 3), cid=None):
        l0 = A.lab('tg'); l1 = A.lab('tgok')
        A('s_mov_b32 s14, 0')
        A(f'{l0}:')
        for n_, (d, txt) in enumerate(loads):
            if gw and n_ >= gw: A(f's_waitcnt vmcnt({gw-1})')
            A(txt)
        A('s_waitcnt vmcnt(0)')
        regs = [d + r for d, txt in loads for r in tagregs]
        A(f'v_min_u32 v{vt}, v{regs[0]}, v{regs[1]}'); A(f'v_max_u32 v{vt+1}, v{regs[0]}, v{regs[1]}')
        for k in range(2, len(regs), 2):
            A(f'v_min3_u32 v{vt}, v{regs[k]}, v{regs[k+1]}, v{vt}'); A(f'v_max3_u32 v{vt+1}, v{regs[k]}, v{regs[k+1]}, v{vt+1}')
        A(f'v_cmp_ne_u32 vcc, s46, v{vt}'); A(f'v_cmp_ne_u32 s[70:71], s46, v{vt+1}'); A('s_or_b64 vcc, vcc, s[70:71]')
        A(f's_cbranch_vccz {l1}')
        if mret: A('s_mov_b64 exec, vcc')
        A(f's_sleep {sleep * rsl}')
        A('s_add_u32 s14, s14, 1'); A(f's_cmp_lt_u32 s14, {SPIN_CAP}'); A(f's_cbranch_scc1 {l0}')
        A(f'{l1}:')
        if mret: A('s_mov_b64 exec, -1')
        if diag and cid is not None: A(f'v_writelane_b32 v15, s14, {11 + cid}')
    def xg_reduce(op, regs, t):
        for sw_ in (32, 16):
            for k, a in enumerate(regs): A(f'v_mov_b32 v{t+k}, v{a}')
            for k, a in enumerate(regs): A(f'v_permlane{sw_}_swap_b32 v{a}, v{t+k}')
            for k, a in enumerate(regs): A(f'{op} v{a}, v{a}, v{t+k}')
    def row_reduce(op, regs, steps=(8, 4, 2, 1)):
        for sh in steps:
            for a in regs: A(f'{op}_dpp v{a}, v{a}, v{a} row_ror:{sh} row_mask:0xf bank_mask:0xf')
    def perm(dst, base, m, d):
        A(f'v_perm_b32 v{dst}, v{base+8*m+4+(d>>1)}, v{base+8*m+(d>>1)}, s{60+(d&1)}')
    MREG = [16, 18, 20, 22, 24, 26, 36, 38]
    def sweep(name, n, load, dreg, acc, vt):
        A('s_mov_b32 s14, 0')
        A(f'L_{name}_chk:')
        for k in range(n):
            d = dreg(k); m = MREG[k]
            A(f's_waitcnt vmcnt({n-1-k})')
            A(f'v_max3_u32 v{vt}, v{d}, v{d+1}, v{d+2}'); A(f'v_max_u32 v{vt}, v{vt}, v{d+3}')
            A(f'v_mfma_f32_16x16x32_bf16 {v(acc,4)}, v[232:235], {v(d,4)}, {0 if k == 0 else v(acc,4)}')
            A(f'v_cmp_eq_u32 s[{m}:{m+1}], -1, v{vt}')
            if k == 2: A(f's_or_b64 vcc, s[{MREG[0]}:{MREG[0]+1}], s[{MREG[1]}:{MREG[1]+1}]')
            elif k > 2: A(f's_or_b64 vcc, vcc, s[{MREG[k-1]}:{MREG[k-1]+1}]')
        A(f's_or_b64 vcc, vcc, s[{MREG[n-1]}:{MREG[n-1]+1}]')
        A(f's_cbranch_scc1 L_{name}_retry')
        A(f'L_{name}_done:')
        if diag: A(f'v_writelane_b32 v15, s14, {30 if name == "t1" else 31}')
        def cold():
            A(f'L_{name}_retry:')
            for k in range(n):
                A(f's_mov_b64 exec, s[{MREG[k]}:{MREG[k]+1}]'); load(k)
            A('s_mov_b64 exec, -1')
            A('s_add_u32 s14, s14, 1'); A(f's_cmp_lt_u32 s14, {SPIN_CAP}'); A(f's_cbranch_scc1 L_{name}_chk')
            A('s_waitcnt vmcnt(0)')
            A(f's_branch L_{name}_done')
        COLD.append(cold)
    def rb_calc():
        A('s_and_b32 s6, s2, 7'); A('s_lshr_b32 s8, s2, 7'); A('s_lshl1_add_u32 s6, s6, s8')
    def svc_setup():
        A(f's_load_dword s9, s[44:45], {WS_EPOCH}')
        A('s_bfe_u32 s7, s2, 0x40003')
        rb_calc()
        A('s_mov_b32 s60, 0x05040100'); A('s_mov_b32 s61, 0x07060302'); A('s_mov_b32 s62, 0xffff0000')
        A(f's_mov_b32 s64, {f2u(LOG2E):#x}')
        A('s_mov_b64 s[56:57], s[44:45]'); A('s_mov_b32 s58, 0x400000'); A('s_mov_b32 s59, 0x20000')
        A(f'v_mov_b32 v13, {LM}')
    def notcons(label):
        A(f's_and_b32 s8, s2, {0xff & ~(((1 << ncb) - 1) << 3):#x}'); A(f's_cmp_lg_u32 s8, {cx}'); A(f's_cbranch_scc1 {label}')
    def prep():
        l = A.lab('noprep')
        A('v_lshrrev_b32 v4, 4, v0'); A('v_and_b32 v5, 15, v0')
        A('v_lshrrev_b32 v9, 5, v0')
        A('v_lshl_add_u32 v229, v0, 4, v13')
        A('v_lshlrev_b32 v230, 2, v5'); A('v_lshl_add_u32 v230, v9, 6, v230')
        A('s_lshl_b32 s72, s6, 11'); A('s_lshl_b32 s8, s7, 7'); A('s_add_u32 s72, s72, s8'); A(f's_add_u32 s72, s72, {WS_T2}')
        A('v_and_b32 v7, 1, v5'); A('v_lshlrev_b32 v7, 4, v7'); A('v_mov_b32 v8, 0x3f80'); A('v_lshlrev_b32 v7, v7, v8')
        A('v_and_b32 v8, 14, v5')
        for m in range(4):
            A(f'v_cmp_eq_u32 vcc, {4*m}, v8'); A(f'v_cndmask_b32 v{232+m}, 0, v7, vcc')
        A('v_lshlrev_b32 v244, 13, v4'); A('v_lshl_add_u32 v244, v5, 4, v244')
        A('v_lshrrev_b32 v6, 3, v5'); A('v_lshlrev_b32 v6, 6, v6'); A('v_and_b32 v8, 1, v4'); A('v_lshl_add_u32 v6, v8, 5, v6')
        A('v_and_b32 v8, 4, v5'); A('v_lshl_add_u32 v6, v8, 2, v6'); A('v_and_b32 v8, 3, v5'); A('v_lshl_add_u32 v6, v8, 1, v6')
        A('v_lshrrev_b32 v8, 1, v4'); A('s_lshl_b32 s8, s3, 7'); A('v_add3_u32 v6, v6, v8, s8')
        A('v_lshlrev_b32 v238, 1, v6')
        notcons(l)
        A('v_add_u32 v7, v13, v238')
        for a, r in enumerate((248, 250, 252, 254, 236)):
            for e in range(2): A(f'ds_read_u16 v{r+e}, v7 offset:{L_CONST - LM + 2048*a + 16*e}')
        A('s_lshl_b32 s75, s3, 8'); A(f's_add_u32 s75, s75, {WS_T2}'); A('s_add_u32 s73, s75, 4096')
        A(f's_mov_b32 s66, {f2u(1/1024):#x}'); A('s_mov_b32 s67, s66')
        A('v_lshlrev_b32 v246, 2, v9'); A('s_lshl_b32 s8, s3, 3'); A('v_add3_u32 v246, s8, v246, v13')
        A(f'v_mov_b32 v245, {128 * NB}'); A(f'v_mov_b32 v247, {256 * NB}')
        A('s_waitcnt lgkmcnt(0)')
        for r in list(range(248, 256)) + [236, 237]: A(f'v_lshlrev_b32 v{r}, 16, v{r}')
        A('v_add_f32 v254, 1.0, v254'); A('v_add_f32 v255, 1.0, v255'); rnd(254, 255)
        A(f'{l}:')
    def dma(base, dst, cnt):
        for n in range(cnt):
            if n % 4 == 0:
                A(f's_mov_b32 m0, {dst + 1024*n}'); A(f's_mov_b32 s8, {base + 1024*n}')
            A(f'buffer_load_dwordx4 v1, s[56:59], s8 offen offset:{(n % 4) * 1024} sc1 lds')

    for l in header.splitlines(): A(l)
    A(f'; @launch grid=(256,1,1) block=(512,1,1) lds={LDS_BYTES}')
    A('.amdgcn_target "amdgcn-amd-amdhsa--gfx950"')
    A('.text'); A(f'.globl {NAME}_kernel'); A('.p2align 8'); A(f'.type {NAME}_kernel,@function')
    A(f'{NAME}_kernel:')
    A('s_load_dwordx16 s[16:31], s[0:1], 0')
    A('s_load_dwordx8 s[32:39], s[0:1], 64')
    A('s_load_dwordx4 s[40:43], s[0:1], 96')
    A('s_load_dwordx2 s[44:45], s[0:1], 112')
    if endstamp: A('s_memrealtime s[80:81]')
    A('v_lshrrev_b32 v1, 6, v0'); A('v_and_b32 v0, 63, v0')
    A('s_lshr_b32 s4, s2, 8'); A('s_cbranch_scc1 L_end')
    A('v_readfirstlane_b32 s3, v1')
    A('s_mov_b32 s51, 0x20000')
    A('s_lshr_b32 s4, s2, 6'); A('s_and_b32 s5, s2, 63')
    A('s_cmp_ge_u32 s3, 4'); A('s_cbranch_scc1 L_service')

    A('; ---- attention waves 0..3: code prefetch, first K loads')
    A('s_getpc_b64 s[70:71]')
    A('L_pcref:')
    A('s_bfe_u32 s7, s2, 0x40003')
    A('s_lshl2_add_u32 s8, s7, s3'); A('s_lshl_b32 s8, s8, 9')
    A('v_lshl_add_u32 v1, v0, 7, s8'); A('v_min_u32 v1, L_end-L_pcref, v1')
    A('s_mov_b64 exec, 15'); A('global_load_dword v12, v1, s[70:71]'); A('s_mov_b64 exec, -1')
    A('s_lshl2_add_u32 s9, s5, s3'); A('s_lshl_b32 s9, s9, 13')
    A('s_lshl_b32 s8, s4, 24'); A('s_add_u32 s9, s9, s8')
    A('s_lshl_b32 s12, s3, 15')
    A('v_lshrrev_b32 v13, 4, v0'); A('v_and_b32 v14, 15, v0')
    A('v_lshlrev_b32 v15, 2, v13'); A('v_xor_b32 v1, v14, v15'); A('v_lshlrev_b32 v1, 4, v1')
    A('v_lshl_add_u32 v1, v13, 8, v1')
    A('v_xor_b32 v2, 16, v1'); A('v_xor_b32 v3, 32, v1'); A('v_xor_b32 v4, 48, v1')
    A('s_brev_b32 s50, 32')
    A('s_waitcnt lgkmcnt(0)')
    A('s_mov_b64 s[48:49], s[18:19]')
    def attn_setup():
        A('v_lshlrev_b32 v5, 4, v0')
        A('s_mov_b32 s54, 0x4000000'); A('s_mov_b32 s55, 0x20000')
        A('s_mov_b32 s60, 0x05040100'); A('s_mov_b32 s61, 0x07060302')
        A(f's_mov_b32 s63, {f2u(128 ** -0.5):#x}'); A(f's_mov_b32 s64, {f2u(LOG2E):#x}')
        A('s_mov_b32 s58, 0x400000'); A('s_mov_b32 s59, 0x20000')
        A('v_and_b32 v6, 3, v14'); A('v_lshlrev_b32 v6, 2, v6'); A('v_lshrrev_b32 v15, 2, v14'); A('v_add_u32 v6, v6, v15')
        A('v_lshlrev_b32 v6, 8, v6'); A('v_xor_b32 v15, v13, v14'); A('v_lshl_add_u32 v6, v15, 4, v6'); A('v_add_u32 v6, s12, v6')
        A('v_xor_b32 v7, 64, v6'); A('v_xor_b32 v8, 0x80, v6'); A('v_xor_b32 v9, 0xc0, v6')
        A(f'v_mov_b32 v13, {LM}')
        A('v_mov_b32 v14, 0'); A('v_lshl_add_u32 v15, v0, 2, v13'); A('ds_write_b32 v15, v14')
        A('s_mov_b32 s70, 0xff00ff00'); A('s_mov_b32 s71, 0xff00ff00')
        A('s_mov_b64 s[52:53], s[20:21]'); A('s_mov_b64 s[56:57], s[44:45]'); A('s_mov_b64 s[66:67], s[24:25]')
        A('s_waitcnt lgkmcnt(0)')
        A('s_barrier')
    issued = [0]
    TS = 64 * 4 * 8192
    LEV = list(lev) if lev else [DB]
    if not lev: sc = None
    def throttle(D, boost):
        if issued[0] < D: return
        if boost:
            l = A.lab('go')
            for k in range(len(LEV) - 1, -1, -1):
                A(f's_waitcnt vmcnt({LEV[k]-1})')
                if k == len(LEV) - 1: A(f's_cbranch_vccnz {l}')
                elif k > 0: A(f's_cmp_eq_u32 s13, {k}'); A(f's_cbranch_scc1 {l}')
            A(f'{l}:')
        else: A(f's_waitcnt vmcnt({D-1})')
    def kload(t, n, D, boost=False):
        if n % 4 == 0:
            A(f's_add_u32 m0, s12, {(t % 4) * 8192 + (n // 4) * 4096}')
            A(f's_add_u32 s10, s9, {t * TS + (n // 4) * 4096}')
        throttle(D, boost)
        A(f'buffer_load_dwordx4 v{1 + n % 4}, s[48:51], s10 offen offset:{(n % 4) * 1024} nt lds')
        issued[0] += 1
    def vload(t, e, D, boost=False):
        if e % 4 == 0: A(f's_add_u32 s10, s9, {t * TS + (e // 4) * 4096}')
        throttle(D, boost)
        A(f'buffer_load_dwordx4 {v(128 + 32 * (t % 4) + 4 * e, 4)}, v5, s[52:55], s10 offen offset:{(e % 4) * 1024} nt')
        issued[0] += 1
    for n in range(64):
        if n == early:
            A('s_branch L_attn2'); A(';MARK attn2')
            A('L_attn2:')
            attn_setup()
            if 'svc' not in cut: lds_spin(C_GO, 1, 14)
        if diag and trajA and n >= early and (n % 8 == 0 or n == early): sstamp(24 + n // 8)
        if n < 32: kload(n // 8, n % 8, DA)
        else: vload((n - 32) // 8, n % 8, DA)
        if issued[0] in (p2_at, q_at): lds_add(C_PROG, 14)
    stamp(1)
    if not cut: lds_spin(C_Q, 1, 14)
    A('v_and_b32 v14, 7, v0'); A('v_lshlrev_b32 v14, 8, v14'); A('v_lshrrev_b32 v15, 4, v0'); A('v_lshl_add_u32 v14, v15, 4, v14')
    A(f'v_add_u32 v14, {L_Q}, v14')
    for s in range(4): A(f'ds_read_b128 {v(16+4*s,4)}, v14 offset:{64*s}')
    stamp(2)
    def qk(t):
        off = (t % 4) * 8192
        for hb in range(2):
            for s in range(4): A(f'ds_read_b128 {v(96+16*hb+4*s,4)}, v{6+s} offset:{off + hb*4096}')
        for hb in range(2):
            S = 32 + 8 * (t % 4) + 4 * hb
            for s in range(4):
                A(f's_waitcnt lgkmcnt({7 - 4*hb - s})')
                A(f'v_mfma_f32_16x16x32_bf16 {v(S,4)}, {v(96+16*hb+4*s,4)}, {v(16+4*s,4)}, {0 if s == 0 else v(S,4)}')
    def rscale(t):
        S = 32 + 8 * (t % 4)
        rnd(*range(S, S + 8))
        for k in range(8): A(f'v_mul_f32 v{S+k}, s63, v{S+k}')
        rnd(*range(S, S + 8))
        if t == 0: A(f'v_max_f32 v15, v{S}, v{S+1}')
        else: A(f'v_max3_f32 v15, v{S}, v{S+1}, v{10 if t == 4 else 15}')
        for k in range(1, 4): A(f'v_max3_f32 v15, v{S+2*k}, v{S+2*k+1}, v15')
    def rescale_o():
        A('v_mov_b32 v17, v16')
        for k in range(8): A(f'v_pk_mul_f32 {v(64+2*k,2)}, {v(64+2*k,2)}, v[16:17]')
    def mfin(second):
        xg_reduce('v_max_f32', [15], 14)
        if second: A('v_sub_f32 v16, v10, v15'); A('v_mul_f32 v16, s64, v16'); A('v_exp_f32 v16, v16')
        A('v_mov_b32 v10, v15'); A('v_mul_f32 v12, s64, v15')
        if second: A('v_mul_f32 v11, v11, v16')
    def expo(t):
        S = 32 + 8 * (t % 4)
        for k in range(8): A(f'v_fma_f32 v{S+k}, v{S+k}, s64, -v12')
        for k in range(8): A(f'v_exp_f32 v{S+k}, v{S+k}')
        for k in range(4): A(f'v_add_f32 v{96+k}, v{S+2*k}, v{S+2*k+1}')
        for k in range(4): A(f'v_cvt_pk_bf16_f32 v{S+k}, v{S+2*k}, v{S+2*k+1}')
        for k in range(4): A(f'v_cndmask_b32 v{S+4+k}, 0, v{S+k}, s[70:71]')
        for k in range(4): A(f'v_cndmask_b32 v{S+k}, v{S+k}, 0, s[70:71]')
        A('v_add_f32 v96, v96, v97'); A('v_add_f32 v98, v98, v99')
        if t == 0: A('v_add_f32 v11, v96, v98')
        else: A('v_add_f32 v96, v96, v98'); A('v_add_f32 v11, v11, v96')
    def omf(d, P, first):
        o = 64 + 4 * (d & 3)
        A(f'v_mfma_f32_16x16x32_bf16 {v(o,4)}, {v(96+4*d,4)}, {v(P + (d & 4),4)}, {0 if (first and d < 4) else v(o,4)}')
    def pvt(t, half):
        Vb = 128 + 32 * (t % 4); ds_ = list(range(4 * half, 4 * half + 4))
        for m in range(4): perm(96 + 4*ds_[0] + m, Vb, m, ds_[0])
        for k, d in enumerate(ds_):
            if k + 1 < 4:
                for m in range(4): perm(96 + 4*ds_[k+1] + m, Vb, m, ds_[k+1])
            omf(d, 32 + 8 * (t % 4), t == 0)
    def publish_ml():
        xg_reduce('v_add_f32', [11], 14)
        A('v_lshrrev_b32 v14, 1, v5'); A('s_lshl_b32 s8, s3, 6'); A(f's_add_u32 s8, s8, {L_ML}'); A('v_add_u32 v14, s8, v14')
        A('s_mov_b64 exec, 0xff'); A('ds_write_b64 v14, v[10:11]'); A('s_mov_b64 exec, -1')
        lds_add(C_ML, 14)
    def endsetup():
        A('v_bfe_u32 v28, v0, 4, 1'); A('s_lshl_b32 s8, s3, 1'); A('v_add_u32 v28, s8, v28')
        A(f'v_mul_u32_u24 v20, {OSTRIDE}, v28')
        A('v_lshlrev_b32 v28, 4, v28'); A(f'v_add_u32 v28, {L_FAC}, v28')
        A('v_and_b32 v21, 15, v0'); A('v_lshl_add_u32 v20, v21, 5, v20'); A('v_lshrrev_b32 v21, 5, v0')
        A('v_lshl_add_u32 v20, v21, 4, v20'); A('v_add_u32 v21, 0x10000, v20')
        A('v_and_b32 v4, 7, v0'); A(f'v_mul_u32_u24 v22, {OSTRIDE}, v4'); A('v_and_b32 v23, 8, v0'); A('v_lshl_add_u32 v22, v23, 5, v22')
        A('v_lshlrev_b32 v1, 9, v23')
        A('v_lshrrev_b32 v23, 4, v0'); A('v_lshl_add_u32 v22, v23, 4, v22'); A('v_add_u32 v22, s12, v22')
        A('v_lshl_add_u32 v1, v23, 15, v1'); A('v_lshl_add_u32 v1, v4, 4, v1')
        A('v_lshrrev_b32 v2, 3, v0'); A('v_lshlrev_b32 v2, 12, v2'); A('v_lshl_add_u32 v2, v4, 4, v2')
        A('v_and_b32 v3, 16, v0'); A('v_lshlrev_b32 v3, 4, v3'); A('v_lshlrev_b32 v4, 2, v4')
        A('s_lshl_b32 s8, s3, 9'); A(f's_add_u32 s8, s8, {L_RED2}'); A('v_add3_u32 v3, v3, v4, s8')
        rb_calc()
        A('s_mov_b64 s[48:49], s[66:67]'); A('s_mov_b32 s50, 0x800000')
        A('s_lshl_b32 s73, s6, 8'); A('s_lshr_b32 s8, s3, 1'); A('s_lshl_b32 s8, s8, 7'); A('s_add_u32 s73, s73, s8')
        A('s_and_b32 s8, s3, 1'); A('s_lshl2_add_u32 s73, s8, s73'); A('s_lshl_b32 s73, s73, 11')
        A('s_lshl_b32 s8, s7, 7'); A('s_add_u32 s73, s73, s8')
        A('s_lshl_b32 s74, s6, 15'); A('s_lshl_b32 s8, s3, 7'); A('s_add_u32 s74, s74, s8'); A(f's_add_u32 s74, s74, {WS_T1}')
        A('s_lshl2_add_u32 s8, s4, s3'); A('s_lshl_b32 s8, s8, 15'); A('s_lshl_b32 s11, s5, 9'); A('s_add_u32 s11, s11, s8')
        A(f's_add_u32 s11, s11, {WS_T1}')
    sched = {i: [] for i in range(-1, 64)}
    def put(pos, fn, landed=None): sched[pos].append((fn, landed))
    DM = max(LEV + [DA])
    CP = list(cps) if (len(LEV) > 1 and not sc) else []
    THR = [list(t) for t in thrs] * (len(sc or cps) if len(thrs) == 1 else 1)
    ctl = bool(CP) or bool(sc)
    NRL = (1 << nshb) * len(sc) if sc else (4 << wsh) * len(CP)
    put(-1, lambda: qk(0))
    for t in range(1, 4): put(t - 1, (lambda t=t: qk(t)))
    for t in range(4): put(3 + t, (lambda t=t: rscale(t)))
    put(7, lambda: mfin(False))
    for t in range(4): put(8 + t, (lambda t=t: expo(t)))
    for t in range(4):
        for h in range(2): put(12 + 2 * t + h, (lambda t=t, h=h: pvt(t, h)), -1)
    pos = {4: max(20, 7 + DS), 5: max(22, 15 + DS), 6: 23 + DS, 7: 31 + DS}
    for t in range(4, 8):
        put(pos[t], (lambda t=t: qk(t)), 8 * (t - 4) + 7)
        put(pos[t] + 1, (lambda t=t: rscale(t)))
    b = pos[7] + 1
    put(b, lambda: mfin(True))
    put(b + 1, lambda: (expo(4), expo(5))); put(b + 2, lambda: (expo(6), expo(7)))
    put(b + 3, publish_ml); put(b + 4, rescale_o)
    p4 = max(39 + DS, b + 5)
    put(p4, lambda: pvt(4, 0), 39); put(p4 + 1, lambda: pvt(4, 1))
    p5 = max(47 + DS, p4 + 2)
    put(p5, lambda: pvt(5, 0), 47); put(p5 + 1, lambda: pvt(5, 1))
    put(60, endsetup)
    assert p5 + 1 < 60 and (not CP or max(CP) + rd < 60)
    def run(posn):
        for fn, landed in sched[posn]:
            if landed is not None and posn - landed < DM: A(f's_waitcnt vmcnt({posn - landed})')
            fn()
    if CP:
        A('s_mov_b64 vcc, 0'); A(f's_mov_b32 s13, {LEV.index(DB)}')
        A(f's_bfe_u32 s11, s2, {(wsh << 16) | 3:#x}'); A('s_lshl2_add_u32 s11, s11, s3'); A(f's_mul_i32 s11, s11, {RSTR}')
        A(f's_add_u32 s11, s11, {WS_RANK}')
        if cboost: A(f's_and_b32 s8, s2, {0xff & ~(((1 << ncb) - 1) << 3):#x}'); A(f's_cmp_eq_u32 s8, {cx}'); A(f's_cselect_b32 s68, {cboost}, 0')
        assert (4 << wsh) * len(CP) <= 128
    if sc: A('s_mov_b64 vcc, 0'); A(f's_mov_b32 s13, {LEV.index(DB)}')
    run(-1)
    for L in range(64):
        if diag and not trajA and L % 8 == 0: sstamp(24 + L // 8)
        if L in CP:
            A('s_mov_b32 s47, 1'); A(f's_atomic_add s47, s[44:45], s11 offset:{(4 << wsh) * RSTR * CP.index(L)} glc')
        if L < 32: kload(4 + L // 8, L % 8, DB, ctl)
        else: vload(4 + (L - 32) // 8, L % 8, DB, ctl)
        if L - rd in CP:
            th = [int(round(t_ * (256 >> wsh) / 64.0)) for t_ in THR[CP.index(L - rd)]]
            A('s_waitcnt lgkmcnt(0)')
            if diag: A(f's_mov_b32 s{32 + CP.index(L - rd)}, s47')
            if cboost: A('s_add_u32 s47, s47, s68')
            A('s_mov_b32 s13, 0')
            for k, t_ in enumerate(th[:-1]):
                A(f's_cmp_ge_u32 s47, {t_}'); A(f's_cselect_b32 s13, {k+1}, s13')
            A(f's_cmp_ge_u32 s47, {th[-1]}'); A('s_cselect_b64 vcc, -1, 0')
        if sc and L in sc: lds_add(C_RK, 14)
        if sc and any(L - r_ in sc for r_ in scr):
            A(f'ds_read_b32 v14, v13 offset:{C_LEV}'); A('s_waitcnt lgkmcnt(0)')
            A('v_readfirstlane_b32 s13, v14'); A(f's_add_u32 s13, s13, {LEV.index(DB)}')
            A(f's_cmp_eq_u32 s13, {len(LEV) - 1}'); A('s_cselect_b64 vcc, -1, 0')
        if L in (r2_at, fin_at, ml_at): lds_add(C_PROG, 14)
        run(L)
    assert r2_at < fin_at < ml_at
    stamp(3)
    NWO = [0]
    def wo_upto(k):
        while NWO[0] < k:
            n = NWO[0]; m, hh = n >> 1, n & 1
            if n < wothr: throttle(DB, ctl)
            A(f's_add_u32 s10, s73, {(64 * (m & 1) + 8 * hh + (m >> 1)) * 2048}')
            A(f'buffer_load_dwordx4 {v(128 + 4*n, 4)}, v1, s[48:51], s10 offen nt')
            NWO[0] += 1
    wo_upto(wos[0])
    A(f's_waitcnt vmcnt({8 + NWO[0]})')
    pvt(6, 0); wo_upto(wos[1]); pvt(6, 1); wo_upto(wos[2])
    Vb = 128 + 96; P = 32 + 24
    for m in range(3):
        A(f's_waitcnt vmcnt({6 - 2*m + NWO[0]})')
        for d in range(8): perm(96 + 4*d + m, Vb, m, d)
        wo_upto(wos[3 + m])
    A(f's_waitcnt vmcnt({NWO[0]})')
    stamp(4)
    if cut:
        for k in range(8): A(f'v_writelane_b32 v15, s{24+k}, {16+k}')
        A('s_branch L_fin')
    order = [0, 4, 1, 5, 2, 6, 3, 7]
    for d in order[:3]: perm(96 + 4*d + 3, Vb, 3, d)
    for k, d in enumerate(order):
        omf(d, P, False)
        if k + 3 < 8: perm(96 + 4*order[k+3] + 3, Vb, 3, order[k+3])
    wo_upto(wos[6])
    for d in range(4): A(f'ds_write_b128 v22, {v(64+4*d,4)} offset:{64*d}')
    wo_upto(wos[7])
    A('s_waitcnt lgkmcnt(0)')
    A('s_barrier')
    A('ds_read_b128 v[16:19], v28')
    A('ds_read_b128 v[32:35], v20'); A('ds_read_b128 v[36:39], v20 offset:32768')
    A('ds_read_b128 v[40:43], v21'); A('ds_read_b128 v[44:47], v21 offset:32768')
    for w in range(4):
        A(f's_waitcnt lgkmcnt({3-w})')
        for k in range(2):
            f_ = v(16 + (w & 2), 2); h_ = w & 1
            if w == 0: A(f'v_pk_mul_f32 {v(32+2*k,2)}, {v(32+2*k,2)}, {f_} op_sel:[0,{h_}] op_sel_hi:[1,{h_}]')
            else: A(f'v_pk_fma_f32 {v(32+2*k,2)}, {v(32+4*w+2*k,2)}, {f_}, {v(32+2*k,2)} op_sel:[0,{h_},0] op_sel_hi:[1,{h_},1]')
    A('v_cvt_pk_bf16_f32 v24, v32, v33'); A('v_cvt_pk_bf16_f32 v25, v34, v35')
    A('v_min_u32 v24, -2, v24'); A('v_min_u32 v25, -2, v25')
    A('v_permlane32_swap_b32 v24, v26'); A('v_permlane32_swap_b32 v25, v27')
    A('s_mov_b32 exec_hi, 0')
    A('buffer_store_dwordx4 v[24:27], v5, s[56:59], s11 offen sc1')
    A('s_mov_b64 exec, -1')
    late_wo = NWO[0] < 8
    wo_upto(8)
    stamp(5)
    if diag:
        for k in range(8): A(f'v_writelane_b32 v15, s{24+k}, {16+k}')
        for k in range(5): A(f'v_writelane_b32 v15, s{32+k}, {11+k}')
        A('s_load_dwordx16 s[16:31], s[0:1], 0'); A('s_load_dwordx8 s[32:39], s[0:1], 64'); A('s_waitcnt lgkmcnt(0)')
    def t1_load(n): A(f'buffer_load_dwordx4 {v(160+4*n,4)}, v2, s[56:59], s74 offen offset:{512*n} sc1')
    prep()
    xstamp(8)
    if t1w == 'pre':
        if t1x: A(f's_sleep {t1x}')
        for n in range(8): t1_load(n)
    A(f's_waitcnt vmcnt({(9 if t1w == "pre" else 1) - late_wo})')
    for e in range(8):
        for m in range(4): perm(192 + 4*e + m, 128, m, e)
    if t1w == 'ack': A('s_waitcnt vmcnt(0)')
    if t1w != 'pre':
        if t1x: A(f's_sleep {t1x}')
        for n in range(8): t1_load(n)
    xstamp(9)
    sweep('t1', 8, t1_load, lambda k: 160 + 4*k, 60, 6)
    stamp(6)
    row_reduce('v_add_f32', [60, 61], (8,))
    A('v_cvt_pk_bf16_f32 v60, v60, v61')
    for c in range(4): A(f'v_mov_b32_dpp v{224+c}, v60 quad_perm:[{c},{c},{c},{c}] row_mask:0xf bank_mask:0xf')
    for e in range(8): A(f'v_mfma_f32_16x16x32_bf16 {v(64+4*e,4)}, v[224:227], {v(192+4*e,4)}, 0')
    A('s_mov_b32 exec_lo, 0xff0000ff'); A('s_mov_b32 exec_hi, 0')
    for e in range(0, 8, 2): A(f'ds_write2_b32 v3, v{64+4*e}, v{68+4*e} offset0:{8*e} offset1:{8*e+8}')
    A('s_mov_b64 exec, -1')
    A('s_waitcnt lgkmcnt(0)')

    A(';MARK service')
    A('L_service:')
    if 'svc' in cut: A('s_endpgm')
    A('s_sub_u32 s3, s3, 4')
    A('s_cmp_ge_u32 s3, 2'); A('s_cbranch_scc1 L_tabwaves')
    A('s_and_b32 s55, s2, 4'); A('s_lshr_b32 s55, s55, 1')
    A('s_lshr_b32 s53, s2, 3'); A('s_and_b32 s8, s2, 3'); A('s_lshl2_add_u32 s53, s53, s8')
    A('s_cmp_eq_u32 s3, 1'); A('s_cselect_b32 s65, 1, s55')
    A('s_setprio 3')
    A('L_unit:')
    A('s_and_b32 s67, s53, 63'); A('s_add_u32 s67, s67, 32'); A('s_lshr_b32 s69, s53, 6'); A('s_add_u32 s69, s69, s55'); A('s_movk_i32 s66, 0x3000')
    A('s_and_b32 s8, s53, 31'); A('s_lshr_b32 s10, s53, 5')
    A('s_cmp_eq_u32 s65, 0'); A('s_cselect_b32 s67, s8, s67'); A('s_cselect_b32 s69, s10, s69')
    A('s_add_u32 s68, s5, 96')
    A('s_cmp_eq_u32 s65, 1'); A('s_cselect_b32 s68, s68, s67'); A('s_cselect_b32 s67, s5, s67'); A('s_cselect_b32 s66, 0x2000, s66'); A('s_cselect_b32 s69, s4, s69')
    A('s_lshl_b32 s50, s66, 10'); A('s_lshl_b32 s67, s67, 7')
    A('v_and_b32 v1, 56, v0'); A('v_mul_u32_u24 v1, s66, v1')
    A('v_and_b32 v2, 7, v0'); A('v_lshl_add_u32 v1, v2, 4, v1')
    A('s_cmp_eq_u32 s65, 3'); A('s_cselect_b32 s8, 7, 8'); A('s_lshl_b32 s54, s69, s8')
    A('s_mul_i32 s10, s54, s66'); A('s_add_u32 s10, s10, s67')
    A('s_mul_i32 s11, s66, 57')
    A('s_lshl_b32 s8, s54, 1'); A('v_lshl_add_u32 v2, v0, 2, s8')
    A('s_waitcnt lgkmcnt(0)')
    xstamp(0)
    A('s_mov_b64 s[48:49], s[38:39]'); A('s_mov_b64 s[70:71], s[36:37]')
    A('s_cmp_lg_u32 s65, 1'); A('s_cbranch_scc1 L_notq')
    A('s_mov_b64 s[48:49], s[22:23]'); A('s_mov_b64 s[70:71], s[16:17]')
    A('v_lshlrev_b32 v3, 5, v0')
    A('s_barrier')
    A('global_load_dwordx4 v[16:19], v3, s[16:17]'); A('global_load_dwordx4 v[20:23], v3, s[16:17] offset:16')
    A('L_notq:')
    A('global_load_dword v4, v2, s[70:71]'); A('global_load_dword v5, v2, s[70:71] offset:256')
    for G in range(4):
        if G == 2: A('s_cmp_eq_u32 s65, 3'); A('s_cbranch_scc1 L_halfl')
        if G == 1:
            svc_setup()
            if ctl:
                A('s_cmp_lg_u32 s65, 0'); A('s_cbranch_scc1 L_norclr')
                A(f's_cmp_ge_u32 s53, {NRL}'); A('s_cbranch_scc1 L_norclr')
                A(f's_mul_i32 s8, s53, {RSTR}'); A(f's_add_u32 s8, s8, {WS_RANK}')
                A('s_mov_b64 exec, 1'); A('buffer_store_dword v0, off, s[56:59], s8 sc1'); A('s_mov_b64 exec, -1')
                A('L_norclr:')
        for r in range(8):
            if hw and G < 2 and 8*G + r >= hw:
                l = A.lab('hw'); A('s_cmp_lg_u32 s65, 3'); A(f's_cbranch_scc1 {l}'); A(f's_waitcnt vmcnt({hw-1})'); A(f'{l}:')
            if 8*G + r >= WU: A(f's_waitcnt vmcnt({WU-1})')
            A(f'buffer_load_dwordx4 {v(128+32*G+4*r,4)}, v1, s[48:51], s10 offen nt')
            if not (G == 3 and r == 7): A(f's_add_u32 s10, s10, {"s11" if r == 7 else "s66"}')
    A('s_cmp_eq_u32 s65, 1'); A('s_cbranch_scc1 L_go')
    A(f's_waitcnt vmcnt({hu})')
    A('s_barrier')
    A('s_branch L_went')
    A('L_halfl:')
    A('s_waitcnt vmcnt(0)')
    A('s_branch L_went')
    A('L_go:')
    A(f's_waitcnt vmcnt({hg})')
    lds_add(C_GO, 10)
    A('L_went:')
    A('s_waitcnt lgkmcnt(0)'); A('s_add_u32 s46, s9, 1')
    A('s_lshl2_add_u32 s47, s68, s69')
    A('s_lshl_b32 s68, s68, 9'); A(f's_mul_i32 s8, s69, {PSTR}'); A('s_add_u32 s68, s68, s8'); A(f's_add_u32 s68, s68, {WS_PART}')
    xstamp(3)
    A('v_lshlrev_b32 v6, 16, v4'); A('v_and_b32 v7, s62, v4'); A('v_lshlrev_b32 v8, 16, v5'); A('v_and_b32 v9, s62, v5')
    A('s_cmp_eq_u32 s65, 1'); A('s_cbranch_scc1 L_jobq')
    for k in range(4): A(f'v_mul_f32 v{24+k}, s64, v{6+k}')
    for k in range(4): A(f'v_exp_f32 v{24+k}, -v{24+k}')
    for k in range(4): A(f'v_add_f32 v{24+k}, 1.0, v{24+k}')
    for k in range(4): A(f'v_rcp_f32 v{24+k}, v{24+k}')
    for k in range(4): A(f'v_mul_f32 v{6+k}, v{6+k}, v{24+k}')
    A('L_jobcommon:')
    def jobq():
        A('L_jobq:')
        for k in range(8):
            A(f'v_lshlrev_b32 v{96+2*k}, 16, v{16+k}'); A(f'v_and_b32 v{97+2*k}, s62, v{16+k}')
        A('v_add_f32 v24, v96, v97')
        for k in range(2, 16): A(f'v_add_f32 v24, v24, v{96+k}')
        row_reduce('v_add_f32', [24]); xg_reduce('v_add_f32', [24], 25)
        A(f'v_mul_f32 v24, {f2u(1/1024):#x}, v24')
        for k in range(16): A(f'v_sub_f32 v{96+k}, v{96+k}, v24')
        A('v_mul_f32 v26, v96, v96')
        for k in range(1, 16): A(f'v_fmac_f32 v26, v{96+k}, v{96+k}')
        row_reduce('v_add_f32', [26]); xg_reduce('v_add_f32', [26], 25)
        A(f'v_mul_f32 v26, {f2u(1/1024):#x}, v26')
        rnd(24, 26)
        A(f'v_add_f32 v26, {f2u(1e-5):#x}, v26'); rnd(26); A('v_sqrt_f32 v26, v26'); rnd(26); A('v_rcp_f32 v26, v26')
        for k in range(4): A(f'v_sub_f32 v{6+k}, v{6+k}, v24')
        rnd(6, 7, 8, 9)
        for k in range(4): A(f'v_mul_f32 v{6+k}, v{6+k}, v26')
        rnd(6, 7, 8, 9)
        if h2l:
            A('v_lshlrev_b32 v3, 1, v2'); A(f's_mov_b32 s72, {WS_G}'); A(f's_mov_b32 s73, {WS_G + 4096}')
            loads = [(16 + 4*a + 2*k, f'buffer_load_dwordx2 {v(16 + 4*a + 2*k, 2)}, v3, s[56:59], s{72+a} offen offset:{512*k} sc1') for a in range(2) for k in range(2)]
            A('s_waitcnt vmcnt(0)')
            lds_spin(C_PROG, 4, 10)
            if 'p2g' not in cut: tag_gather(loads, 10, cid=0, tagregs=(1,))
            for q_ in range(4): A(f'v_lshlrev_b32 v{96+2*q_}, 16, v{16+2*q_}'); A(f'v_and_b32 v{97+2*q_}, s62, v{16+2*q_}')
        else:
            A('v_lshlrev_b32 v3, 2, v2')
            loads = []
            for a in range(2):
                for rho in range(4):
                    A(f's_mov_b32 s{72 + 4*a + rho}, {WS_PART + rho * PSTR + a * 8192}')
                    for k in range(2):
                        d = 16 + 32*a + 16*k + 4*rho
                        loads.append((d, f'buffer_load_dwordx4 {v(d,4)}, v3, s[56:59], s{72 + 4*a + rho} offen offset:{1024*k} sc1'))
            A('s_waitcnt vmcnt(0)')
            lds_spin(C_PROG, 4, 10)
            if 'p2g' not in cut: tag_gather(loads, 10, cid=0)
            for q_ in range(4):
                b_ = 16 + 16 * q_
                for j in range(2):
                    A(f'v_add_f32 v{b_+2*j}, v{b_+2*j}, v{b_+4+2*j}'); A(f'v_add_f32 v{b_+8+2*j}, v{b_+8+2*j}, v{b_+12+2*j}')
                for j in range(2): A(f'v_add_f32 v{96+2*q_+j}, v{b_+2*j}, v{b_+8+2*j}')
            rnd(*range(96, 104))
        for k in range(4): A(f'v_add_f32 v{100+k}, 1.0, v{100+k}')
        rnd(100, 101, 102, 103)
        for k in range(4): A(f'v_mul_f32 v{6+k}, v{6+k}, v{100+k}')
        rnd(6, 7, 8, 9)
        for k in range(4): A(f'v_add_f32 v{6+k}, v{6+k}, v{96+k}')
        A('s_branch L_jobcommon')
    A('v_cvt_pk_bf16_f32 v4, v6, v7'); A('v_cvt_pk_bf16_f32 v5, v8, v9')
    A('s_lshl_b32 s8, s3, 10'); A(f's_add_u32 s8, s8, {L_SCR}')
    A('v_lshl_add_u32 v2, v0, 2, s8')
    A('ds_write2_b32 v2, v4, v5 offset0:0 offset1:64')
    A('v_lshrrev_b32 v3, 4, v0'); A('v_lshlrev_b32 v3, 1, v3'); A('v_and_b32 v6, 1, v0'); A('v_add_u32 v3, v3, v6'); A('v_lshl_add_u32 v3, v3, 4, s8')
    A('s_waitcnt lgkmcnt(0)')
    for G in range(4): A(f'ds_read_b128 {v(32+8*G,4)}, v3 offset:{128*G}')
    A('s_waitcnt lgkmcnt(0)')
    for G in range(4):
        if G == 2: A('s_cmp_eq_u32 s65, 3'); A('s_cbranch_scc1 L_halfg')
        A(f's_waitcnt vmcnt({24 - 8*G})')
        if G in (0, 3): xstamp(5 if G == 0 else 6)
        for m in range(4): perm(96 + m, 128 + 32*G, m, 0)
        for d in range(8):
            if d + 1 < 8:
                for m in range(4): perm(96 + 4*(d+1) + m, 128 + 32*G, m, d + 1)
            A(f'v_mfma_f32_16x16x32_bf16 {v(64+4*d,4)}, {v(96+4*d,4)}, {v(32+8*G,4)}, {0 if G == 0 else v(64+4*d,4)}')
    A('L_halfg:')
    A('v_lshrrev_b32 v3, 5, v0'); A('v_lshlrev_b32 v3, 8, v3'); A('v_and_b32 v6, 16, v0'); A('v_add3_u32 v3, v3, v6, s8')
    A('v_and_b32 v6, 3, v0'); A('v_lshlrev_b32 v6, 6, v6'); A('v_bfe_u32 v7, v0, 2, 3'); A('v_lshl_add_u32 v6, v7, 2, v6'); A('v_add_u32 v6, s8, v6')
    A('s_mov_b32 exec_lo, 0x00010001'); A('s_mov_b32 exec_hi, 0x00020002')
    for e in range(8): A(f'ds_write_b128 v3, {v(64+4*e,4)} offset:{512 + 32*e}')
    A('s_mov_b32 exec_lo, -1'); A('s_mov_b32 exec_hi, 0')
    A('s_waitcnt lgkmcnt(0)')
    A('ds_read2_b32 v[16:17], v6 offset0:128 offset1:136'); A('ds_read2_b32 v[20:21], v6 offset0:192 offset1:200')
    A('v_lshlrev_b32 v3, 4, v0'); A('v_mov_b32 v19, s46')
    A('s_lshl_b32 s8, s69, 3'); A('s_lshl_b32 s52, 0xff, s8'); A('s_not_b32 s52, s52')
    if not skipown: A('s_mov_b32 s52, -1')
    if not h2l: A('s_cmp_eq_u32 s65, 0'); A('s_cselect_b32 s52, -1, s52')
    A('s_waitcnt lgkmcnt(0)')
    A('v_add_f32 v18, v17, v21'); A('v_add_f32 v16, v16, v20'); A('v_mov_b32 v17, s46')
    A('s_cmp_lg_u32 s65, 3'); A('s_cbranch_scc1 L_nomrg')
    A('v_add_f32 v16, v16, v28'); A('v_add_f32 v18, v18, v29')
    A('L_nomrg:')
    A('v_mov_b32 v28, v16'); A('v_mov_b32 v29, v18')
    A('s_cmp_eq_u32 s65, 2'); A('s_cbranch_scc1 L_nopub')
    A('v_mov_b32 v28, 0'); A('v_mov_b32 v29, 0')
    A('s_mov_b32 exec_lo, s52')
    if 'nopub' not in cut: A('buffer_store_dwordx4 v[16:19], v3, s[56:59], s68 offen sc1')
    A('L_nopub:')
    A('s_mov_b64 exec, -1')
    A('s_bitcmp1_b32 s65, 0'); A('s_cbranch_scc1 L_unit_done')
    if h2l and 'nopub' not in cut: A('s_cmp_eq_u32 s65, 0'); A('s_cbranch_scc1 L_lvl2')
    A('L_second:')
    xstamp(7)
    lds_spin(C_P2, 1, 6, sleep=4)
    A('s_mov_b32 s65, 3'); A('s_branch L_unit')
    jobq()
    A('L_unit_done:')
    stamp(1)
    if 'qg' in cut: lds_add(C_P2, 10); A('s_endpgm')
    A('s_cmp_eq_u32 s3, 1'); A('s_cbranch_scc1 L_lvl2')
    if 'late' in cut: A('s_endpgm')
    lds_spin(C_PROG, 12, 6, sleep=8)
    A('L_lvl2:')
    if l2w is True: A('s_waitcnt vmcnt(0)')
    elif l2w: A(f's_sleep {l2w}')
    A('v_lshrrev_b32 v1, 3, v0'); A(f's_mov_b32 s8, {PSTR}'); A('v_mul_lo_u32 v1, v1, s8'); A('v_and_b32 v2, 7, v0'); A('v_lshl_add_u32 v1, v2, 4, v1')
    A('s_lshl_b32 s8, s47, 7'); A(f's_add_u32 s8, s8, {WS_PART}')
    A('s_mov_b32 exec_lo, s52'); A('s_mov_b32 exec_hi, 0')
    tag_gather([(16, 'buffer_load_dwordx4 v[16:19], v1, s[56:59], s8 offen sc1')], 10, sleep=6, cid=3)
    A('s_mov_b64 exec, -1')
    row_reduce('v_add_f32', [16, 18], (8,))
    for r in (16, 18): A(f'v_mov_b32 v{r+4}, v{r}')
    for r in (16, 18): A(f'v_permlane16_swap_b32 v{r}, v{r+4}')
    for r in (16, 18): A(f'v_add_f32 v{r}, v{r}, v{r+4}')
    A('v_cvt_pk_bf16_f32 v16, v16, v18')
    A('s_cmp_eq_u32 s65, 3'); A('s_cbranch_scc1 L_rest2')
    A('; ---- wave 5: publish and gather q, later stage the modulation vectors')
    A('v_lshlrev_b32 v2, 3, v2'); A('s_lshl_b32 s8, s47, 6'); A(f's_add_u32 s8, s8, {WS_G}')
    A('s_mov_b64 exec, 0xff'); A('buffer_store_dwordx2 v[16:17], v2, s[56:59], s8 offen sc1'); A('s_mov_b64 exec, -1')
    A('s_cmp_eq_u32 s65, 0'); A('s_cbranch_scc1 L_second')
    lds_add(C_P2, 10)
    xstamp(7)
    lds_spin(C_PROG, 8, 6, sleep=4)
    A('s_lshl_b32 s8, s4, 12'); A(f's_add_u32 s8, s8, {WS_Q}'); A('v_lshlrev_b32 v1, 4, v0')
    tag_gather([(20+4*n, f'buffer_load_dwordx4 {v(20+4*n,4)}, v1, s[56:59], s8 offen offset:{1024*n} sc1') for n in range(4)], 10, sleep=6, cid=1)
    A('v_lshrrev_b32 v2, 1, v1'); A(f'v_add_u32 v2, {L_Q}, v2')
    for n in range(4):
        A(f'v_mov_b32 v{21+4*n}, v{22+4*n}'); A(f'ds_write_b64 v2, {v(20+4*n,2)} offset:{512*n}')
    lds_add(C_Q, 6)
    stamp(2)
    if 'late' in cut: A('s_endpgm')
    def svc_rank(k):
        lds_spin(C_RK, 4 * (k + 1), 6, sleep=1)
        A(f's_bfe_u32 s10, s2, {(nshb << 16) | 3:#x}'); A(f's_mul_i32 s10, s10, {RSTR}'); A(f's_add_u32 s10, s10, {WS_RANK + (RSTR << nshb) * k}')
        A('s_mov_b32 s11, 1'); A('s_atomic_add s11, s[44:45], s10 glc'); A('s_waitcnt lgkmcnt(0)')
        A(f's_mov_b32 s8, {-LEV.index(DB)}')
        for j, t_ in enumerate(THR[k]):
            A(f's_cmp_ge_u32 s11, {int(round(t_ * (256 >> nshb) / 64.0))}'); A(f's_cselect_b32 s8, {j + 1 - LEV.index(DB)}, s8')
        A('v_mov_b32 v6, s8'); A(f'ds_write_b32 v13, v6 offset:{C_LEV}')
    for k in range(len(sc or ())):
        if sc[k] < sc_split: svc_rank(k)
    lds_spin(C_PROG, 16, 6, sleep=8)
    A(f's_mov_b32 s8, {WS_CLR}')
    tag_gather([(16, 'buffer_load_dwordx4 v[16:19], v1, s[56:59], s8 offen sc1')], 10, sleep=16, tagregs=(0, 1, 2, 3), cid=2)
    notcons('L_staged')
    A(f's_mov_b32 m0, {L_CONST}')
    A('global_load_lds_dwordx4 v1, s[16:17]'); A('global_load_lds_dwordx4 v1, s[16:17] offset:1024')
    dma(WS_MOD, L_CONST + 2048, 8)
    dma(WS_TAB, L_TABLE, NB // 2)
    A('s_waitcnt vmcnt(0)')
    stamp(3)
    A('s_branch L_staged')
    A('; ---- wave 4: publish the rest of the modulation, exchange the softmax statistics of the group')
    A('L_rest2:')
    A('v_lshlrev_b32 v2, 2, v2'); A('s_lshl_b32 s8, s47, 5'); A(f's_sub_u32 s8, s8, {128 * 32 - WS_MOD}')
    A('s_mov_b64 exec, 0xff'); A('buffer_store_dword v16, v2, s[56:59], s8 offen sc1'); A('s_mov_b64 exec, -1')
    done_event(6)
    stamp(2)
    lds_spin(C_ML, 4, 6, sleep=2)
    A('v_and_b32 v1, 7, v0'); A('v_lshlrev_b32 v1, 3, v1'); A(f'v_add_u32 v2, {L_ML}, v1')
    for w in range(4): A(f'ds_read_b64 {v(16+2*w,2)}, v2 offset:{64*w}')
    A('s_waitcnt lgkmcnt(0)')
    A('v_max_f32 v24, v16, v18'); A('v_max3_f32 v24, v20, v22, v24')
    for w in range(4): A(f'v_sub_f32 v{28+w}, v{16+2*w}, v24')
    for w in range(4): A(f'v_mul_f32 v{28+w}, s64, v{28+w}')
    for w in range(4): A(f'v_exp_f32 v{28+w}, v{28+w}')
    A('v_mul_f32 v25, v28, v17')
    for w in range(1, 4): A(f'v_fmac_f32 v25, v{28+w}, v{17+2*w}')
    A('v_mov_b32_dpp v28, v24 quad_perm:[1,1,3,3] row_mask:0xf bank_mask:0xf')
    A('v_mov_b32 v27, s46')
    A('v_mov_b32_dpp v26, v25 quad_perm:[1,1,3,3] row_mask:0xf bank_mask:0xf')
    A('v_cvt_pk_bf16_f32 v24, v24, v28')
    A('s_lshl_b32 s8, s2, 6'); A(f's_add_u32 s8, s8, {WS_ML}')
    A('s_mov_b64 exec, 0x55'); A('buffer_store_dwordx4 v[24:27], v1, s[56:59], s8 offen sc1'); A('s_mov_b64 exec, -1')
    stamp(3)
    A('v_and_b32 v2, 3, v0'); A('v_bfe_u32 v3, v0, 2, 1'); A('v_lshl_add_u32 v2, v2, 1, v3'); A('v_bfe_u32 v4, v0, 3, 2')
    A('v_lshlrev_b32 v7, 6, v4'); A('v_lshl_add_u32 v7, v2, 3, v7'); A('v_add_u32 v7, v7, v13')
    A(f'ds_read_b32 v8, v7 offset:{L_ML - LM}')
    A('v_lshlrev_b32 v7, 2, v4'); A('v_lshl_add_u32 v7, v2, 4, v7'); A('v_add_u32 v7, v7, v13')
    A('s_lshl_b32 s10, s4, 12'); A(f's_add_u32 s10, s10, {WS_ML}'); A('v_lshlrev_b32 v1, 4, v0')
    lds_spin(C_PROG, 20, 6, sleep=2)
    tag_gather([(32+4*n, f'buffer_load_dwordx4 {v(32+4*n,4)}, v1, s[56:59], s10 offen offset:{1024*n} sc1') for n in range(4)], 10, sleep=6, cid=4, tagregs=(3,))
    stamp(4)
    for n in range(4): A(f'v_lshlrev_b32 v{16+n}, 16, v{32+4*n}'); A(f'v_and_b32 v{20+n}, s62, v{32+4*n}')
    for h in range(2): A(f'v_max_f32 v{24+h}, v{16+4*h}, v{17+4*h}'); A(f'v_max3_f32 v{24+h}, v{18+4*h}, v{19+4*h}, v{24+h}')
    row_reduce('v_max_f32', [24, 25], (8, 4)); xg_reduce('v_max_f32', [24, 25], 28)
    for k in range(8): A(f'v_sub_f32 v{16+k}, v{16+k}, v{24 + k//4}')
    for k in range(8): A(f'v_mul_f32 v{16+k}, s64, v{16+k}')
    for k in range(8): A(f'v_exp_f32 v{16+k}, v{16+k}')
    for n in range(4):
        for h in range(2): A(f'{"v_mul_f32" if n == 0 else "v_fmac_f32"} v{26+h}, v{16+4*h+n}, v{33+4*n+h}')
    row_reduce('v_add_f32', [26, 27], (8, 4)); xg_reduce('v_add_f32', [26, 27], 28)
    A('v_cmp_eq_u32 vcc, 1, v3'); A('v_cndmask_b32 v24, v24, v25, vcc'); A('v_cndmask_b32 v26, v26, v27, vcc')
    A('v_rcp_f32 v26, v26')
    A('v_sub_f32 v8, v8, v24'); A('v_mul_f32 v8, s64, v8'); A('v_exp_f32 v8, v8'); A('v_mul_f32 v8, v8, v26')
    A(f'ds_write_b32 v7, v8 offset:{L_FAC - LM}')
    A('s_branch L_staged')

    A('L_tabwaves:')
    if 'tab' in cut: A('s_endpgm')
    A('s_waitcnt lgkmcnt(0)')
    svc_setup()
    A('s_cmp_eq_u32 s3, 3'); A('s_cbranch_scc1 L_tabinit')
    if 'noclr' not in cut:
        A('v_mov_b32 v20, -1'); A('v_mov_b32 v21, -1'); A('v_mov_b32 v22, -1'); A('v_mov_b32 v23, -1')
        A('v_lshrrev_b32 v1, 5, v0'); A('v_lshlrev_b32 v1, 15, v1'); A('v_and_b32 v2, 31, v0'); A('v_lshl_add_u32 v1, v2, 4, v1')
        A('v_lshrrev_b32 v3, 3, v0'); A('v_lshlrev_b32 v3, 15, v3'); A('v_and_b32 v2, 7, v0'); A('v_lshl_add_u32 v3, v2, 4, v3')
        A('s_lshl_b32 s8, s4, 17'); A('s_lshl_b32 s10, s5, 9'); A('s_add_u32 s8, s8, s10'); A(f's_add_u32 s8, s8, {WS_T1}'); A('s_add_u32 s10, s8, 0x10000')
        A('s_lshl_b32 s11, s6, 11'); A('s_lshl_b32 s14, s7, 7'); A('s_add_u32 s11, s11, s14'); A(f's_add_u32 s11, s11, {WS_T2}')
        for va, so in (('v1', 's8'), ('v1', 's10'), ('v3', 's11')):
            if va == 'v3' and nrep < 8: A(f's_mov_b32 exec_lo, {(1 << (8*nrep)) - 1 if nrep < 4 else -1}'); A('s_mov_b32 exec_hi, 0')
            A(f'buffer_store_dwordx4 v[20:23], {va}, s[56:59], {so} offen sc1')
        if nrep < 8: A('s_mov_b64 exec, -1')
    A('L_tabinit:')
    A('s_and_b32 s8, s2, 127'); A(f's_mul_i32 s8, s8, {NB}'); A(f's_add_u32 s8, s8, {TAB_E0}')
    A('s_lshr_b32 s10, s2, 7'); A('s_lshl_b32 s10, s10, 15'); A('s_add_u32 s8, s8, s10')
    A('v_add_u32 v2, s8, v0'); A('v_lshlrev_b32 v2, 16, v2')
    A(f'v_cmp_gt_u32 vcc, {NB}, v0'); A('v_cndmask_b32 v12, 0, v2, vcc')
    A('s_mov_b32 s65, 0'); A('v_mov_b32 v239, 0')
    A('s_waitcnt lgkmcnt(0)'); A('s_add_u32 s46, s9, 1')
    if tb0 == 'early': A('s_barrier')
    A('L_mlp:')
    TR = list(range(16, 28)) + list(range(48, 56)) + [36, 37]
    NT = NB + 1
    assert NT <= len(TR) and NT <= 24
    A('s_sub_u32 s8, s3, 2'); A('s_mul_i32 s8, s8, 3584'); A('v_lshl_add_u32 v1, v0, 3, s8')
    def pload():
        for a, ptr in enumerate(('s[28:29]', 's[30:31]', 's[32:33]')):
            if 'tabl' not in cut: A(f'global_load_dwordx2 {v(56 + 2*a, 2)}, v1, {ptr}')
    pload()
    A('s_load_dword s47, s[34:35], 0')
    for k in range(NT): A(f'v_readlane_b32 s{TR[k]}, v12, {k}')
    c0 = -2.0 * math.sqrt(2.0 / math.pi) * LOG2E; c1 = c0 * 0.044715
    A(f's_mov_b32 s72, {f2u(c1):#x}'); A('s_mov_b32 s73, s72'); A(f's_mov_b32 s74, {f2u(3*c1):#x}'); A('s_mov_b32 s75, s74')
    A('s_mov_b32 s66, 1.0'); A('s_mov_b32 s67, 1.0')
    A(f'v_mov_b32 v10, {f2u(c0):#x}'); A('v_mov_b32 v11, v10')
    for k in range(48): A(f'v_mov_b32 v{64+k}, 0')
    A('s_mov_b32 s68, 0')
    if tb0 == 'late':
        A('s_cmp_eq_u32 s65, 1'); A('s_cbranch_scc1 L_mlp_loop'); A('s_barrier')
    A('.p2align 3')
    A('L_mlp_loop:')
    A('s_waitcnt vmcnt(0)')
    CO = 24
    for r in range(2):
        for a in range(3):
            A(f'v_lshlrev_b32 v{2+2*a}, 16, v{56 + 2*a + r}'); A(f'v_and_b32 v{3+2*a}, s62, v{56 + 2*a + r}')
        if r == 1:
            A('v_add_u32 v1, 0x200, v1')
            A('s_cmp_eq_u32 s68, 6'); A('s_cbranch_scc1 L_mlp_nold'); pload(); A('L_mlp_nold:')
        c = CO + 12 * r
        A('v_pk_mul_f32 v[8:9], v[2:3], v[2:3]'); A('v_pk_mul_f32 v[16:17], v[4:5], v[4:5]')
        A('v_pk_mul_f32 v[18:19], v[8:9], s[72:73]'); A('v_pk_mul_f32 v[8:9], v[8:9], s[74:75]')
        A('v_pk_fma_f32 v[20:21], v[16:17], s[74:75], v[10:11]'); A('v_pk_fma_f32 v[16:17], v[16:17], s[72:73], v[10:11]')
        A(f'v_pk_mul_f32 {v(c,2)}, v[18:19], v[2:3]'); A(f'v_pk_mul_f32 {v(c+2,2)}, v[8:9], v[4:5]')
        A(f'v_pk_mul_f32 {v(c+4,2)}, v[20:21], v[2:3]'); A(f'v_pk_mul_f32 {v(c+6,2)}, v[16:17], v[4:5]')
        A(f'v_pk_mul_f32 {v(c+8,2)}, v[2:3], v[6:7]'); A(f'v_pk_mul_f32 {v(c+10,2)}, v[4:5], v[6:7]')
    A('.p2align 3')
    for k in range(NT):
        if k == 4: A('s_cmp_eq_u32 s65, 1'); A('s_cbranch_scc1 L_mlp_next')
        sp = f's[{TR[k] & ~1}:{(TR[k] & ~1) + 1}]'; h_ = TR[k] & 1
        os_ = f'op_sel:[0,{h_},0] op_sel_hi:[1,{h_},1]'
        cs = [CO, CO + 12]
        x0 = 2 if k % 2 == 0 else 48
        for d in range(2): A(f'v_pk_fma_f32 {v(x0+2*d,2)}, {v(cs[d],2)}, {sp}, {v(cs[d]+2,2)} {os_}')
        for d in range(2): A(f'v_pk_fma_f32 {v(x0+2*d,2)}, {v(x0+2*d,2)}, {sp}, {v(cs[d]+4,2)} {os_}')
        for d in range(2): A(f'v_pk_fma_f32 {v(x0+2*d,2)}, {v(x0+2*d,2)}, {sp}, {v(cs[d]+6,2)} {os_}')
        for d in range(4): A(f'v_exp_f32 v{x0+d}, v{x0+d}')
        for d in range(2): A(f'v_pk_fma_f32 {v(x0+4+2*d,2)}, {v(cs[d]+8,2)}, {sp}, {v(cs[d]+10,2)} {os_}')
        for d in range(2): A(f'v_pk_add_f32 {v(x0+2*d,2)}, {v(x0+2*d,2)}, s[66:67]')
        for d in range(4): A(f'v_rcp_f32 v{x0+d}, v{x0+d}')
        for d in range(2): A(f'v_pk_fma_f32 {v(64+2*k,2)}, {v(x0+4+2*d,2)}, {v(x0+2*d,2)}, {v(64+2*k,2)}')
    A('L_mlp_next:')
    A('s_add_u32 s68, s68, 1'); A('s_cmp_lt_u32 s68, 7'); A('s_cbranch_scc1 L_mlp_loop')
    xstamp(4)
    for k in range(NT): A(f'v_add_f32 v{64+2*k}, v{64+2*k}, v{65+2*k}')
    for k in range(0, 24, 2): A(f'v_permlane32_swap_b32 v{64+2*k}, v{66+2*k}')
    for k in range(0, 24, 2): A(f'v_add_f32 v{64+2*k}, v{64+2*k}, v{66+2*k}')
    for k in range(0, 24, 4): A(f'v_permlane16_swap_b32 v{64+2*k}, v{68+2*k}')
    for k in range(0, 24, 4): A(f'v_add_f32 v{64+2*k}, v{64+2*k}, v{68+2*k}')
    row_reduce('v_add_f32', [64 + 8*j for j in range(6)])
    A('s_lshl_b32 s8, s3, 7'); A(f's_add_u32 s8, s8, {L_TP - 256}')
    A('v_lshrrev_b32 v2, 5, v0'); A('v_lshl_add_u32 v2, v2, 2, s8'); A('v_and_b32 v1, 16, v0'); A('v_lshrrev_b32 v1, 1, v1'); A('v_add_u32 v2, v2, v1')
    A('v_and_b32 v1, 31, v0')
    A('s_mov_b32 exec_lo, 0x00010001'); A('s_mov_b32 exec_hi, 0x00010001')
    for j in range(6): A(f'ds_write_b32 v2, v{64+8*j} offset:{16*j}')
    A('s_waitcnt lgkmcnt(0)')
    A('s_lshl_b32 s8, s65, 2'); A('v_add_u32 v3, s8, v13')
    A('s_mov_b64 exec, 1'); A('v_mov_b32 v6, 1'); A(f'ds_add_rtn_u32 v6, v3, v6 offset:{C_TAB}'); A('s_mov_b64 exec, -1')
    A('s_waitcnt lgkmcnt(0)')
    A('v_readfirstlane_b32 s8, v6')
    A('s_bitcmp1_b32 s8, 0'); A('s_cbranch_scc1 L_mlp_last')
    A('s_cmp_eq_u32 s65, 0'); A('s_cbranch_scc1 L_staged')
    A('s_branch L_batchdone')
    A('L_mlp_last:')
    A(f'v_lshlrev_b32 v2, 2, v1'); A(f'v_add_u32 v2, {L_TP}, v2')
    A('ds_read2_b32 v[16:17], v2 offset0:0 offset1:32')
    A('s_lshl_b32 s47, s47, 16')
    A('s_waitcnt lgkmcnt(0)')
    A('v_add_f32 v16, v16, v17'); rnd(16); A('v_add_f32 v16, s47, v16'); rnd(16)
    A('s_cmp_eq_u32 s65, 1'); A('s_cbranch_scc1 L_output')
    A('v_mov_b32_dpp v17, v16 quad_perm:[1,1,3,3] row_mask:0xf bank_mask:0xf')
    A('v_cvt_pk_bf16_f32 v18, v16, v17')
    A('v_lshlrev_b32 v2, 1, v0'); A(f's_mul_i32 s8, s2, {2*NB}'); A(f's_add_u32 s8, s8, {WS_TAB}')
    A(f's_mov_b64 exec, {0x55555555 & ((1 << NB) - 1):#x}'); A('buffer_store_dword v18, v2, s[56:59], s8 offen sc1')
    A(f's_mov_b64 exec, {1 << NB:#x}'); A(f'ds_write_b16 v13, v18 offset:{L_TABLE + 512 * NB - LM}')
    A('s_mov_b64 exec, -1')
    done_event(6)
    stamp(3)
    A('L_staged:')
    if sc and max(sc) >= sc_split:
        A('s_cmp_lg_u32 s3, 3'); A('s_cbranch_scc1 L_noctl')
        for k in range(len(sc)):
            if sc[k] >= sc_split: svc_rank(k)
        A('L_noctl:')
    A('s_setprio 0')
    A('s_add_u32 s3, s3, 4')
    A('s_waitcnt lgkmcnt(0)')
    stamp(5)
    if cut: A('s_endpgm')
    notcons('L_fin')
    A('s_barrier')
    prep()
    A('s_branch L_tail')

    A(';MARK tail')
    A('L_tail:')
    A('s_barrier')
    xstamp(10)
    if nrep < 8: A(f's_cmp_ge_u32 s3, {nrep}'); A('s_cbranch_scc1 L_norep')
    for w in range(2): A(f'ds_read_b128 {v(16+4*w,4)}, v229 offset:{L_RED2 - LM + 1024*w}')
    A('s_waitcnt lgkmcnt(0)')
    A('v_pk_add_f32 v[16:17], v[16:17], v[20:21]'); A('v_pk_add_f32 v[18:19], v[18:19], v[22:23]')
    for e in range(2): A(f'v_permlane32_swap_b32 v{16+e}, v{18+e}')
    A('v_pk_add_f32 v[16:17], v[16:17], v[18:19]')
    A('v_mov_b32 v18, v16'); A('v_mov_b32 v19, v17')
    for e in range(2): A(f'v_permlane16_swap_b32 v{16+e}, v{18+e}')
    A('v_pk_add_f32 v[16:17], v[16:17], v[18:19]')
    A('v_cvt_pk_bf16_f32 v16, v16, v17')
    A('v_min_u32 v16, -2, v16')
    for c in range(1, 4): A(f'v_mov_b32_dpp v{16+c}, v16 quad_perm:[{c},{c},{c},{c}] row_mask:0xf bank_mask:0xf')
    A('s_mov_b32 exec_lo, 0x1111'); A('s_mov_b32 exec_hi, 0x1111')
    A('buffer_store_dwordx4 v[16:19], v230, s[56:59], s72 offen sc1')
    A('s_mov_b64 exec, -1')
    if ackw: A('s_waitcnt vmcnt(0)')
    A('L_norep:')
    xstamp(11)
    if pref:
        def pref_cold():
            A('L_pref:')
            A('s_and_b32 s8, s2, 7'); A(f's_cmp_lg_u32 s8, {cx & 7}'); A('s_cbranch_scc1 L_fin')
            if pref == 1: A('s_barrier')
            A('v_lshlrev_b32 v1, 7, v0'); A('s_lshl_b32 s8, s3, 13'); A(f's_add_u32 s8, s8, {WS_T2}')
            for n_ in range(prefn):
                if n_: A('s_waitcnt vmcnt(0)')
                A('buffer_load_dword v2, v1, s[56:59], s8 offen sc1')
            A('s_branch L_fin')
        COLD.append(pref_cold)
    notcons('L_pref' if pref else 'L_fin')
    A('s_barrier')
    if t2x: A(f's_sleep {t2x}')
    stamp(7)
    def t2_load(n): A(f'buffer_load_dwordx4 {v(16+4*n,4)}, v244, s[56:59], {"s75" if n < 2 else "s73"} offen offset:{2048 * (n & 1)} sc1')
    for n in range(4): t2_load(n)
    sweep('t2', 4, t2_load, lambda k: 16 + 4*k, 240, 6)
    stamp(8)
    rnd(240, 241)
    A('v_pk_mul_f32 v[240:241], v[250:251], v[240:241]'); rnd(240, 241)
    A('v_pk_add_f32 v[240:241], v[248:249], v[240:241]'); rnd(240, 241)
    def stats(a, b, lds_off):
        A(f'v_add_f32 v46, v{a}, v{b}'); A(f'v_mul_f32 v47, v{a}, v{a}'); A(f'v_fmac_f32 v47, v{b}, v{b}')
        A('v_permlane32_swap_b32 v46, v47'); A('v_add_f32 v46, v46, v47')
        A('v_mov_b32 v47, v46'); A('v_permlane16_swap_b32 v46, v47'); A('v_add_f32 v46, v46, v47')
        row_reduce('v_add_f32', [46])
        A('s_mov_b32 exec_lo, 1'); A('s_mov_b32 exec_hi, 1')
        A(f'ds_write_b32 v246, v46 offset:{lds_off}')
        A('s_mov_b64 exec, -1')
        A('s_waitcnt lgkmcnt(0)')
        A('s_barrier')
    def stats_read(lds_off):
        for k in range(4): A(f'ds_read_b128 {v(48+4*k,4)}, v13 offset:{lds_off + 16*k}')
    def stats_calc(pending):
        for k in range(4):
            A(f's_waitcnt lgkmcnt({3 - k + pending})'); A(f'v_pk_add_f32 {v(48+4*k,2)}, {v(48+4*k,2)}, {v(50+4*k,2)}')
        A('v_pk_add_f32 v[48:49], v[48:49], v[52:53]'); A('v_pk_add_f32 v[56:57], v[56:57], v[60:61]')
        A('v_pk_add_f32 v[46:47], v[48:49], v[56:57]')
        A('v_pk_mul_f32 v[46:47], v[46:47], s[66:67]')
        A('v_fma_f32 v47, -v46, v46, v47'); A('v_max_f32 v47, 0, v47'); rnd(47)
        A(f'v_add_f32 v47, {f2u(1e-5):#x}, v47'); rnd(47); A('v_sqrt_f32 v47, v47'); rnd(46); rnd(47); A('v_rcp_f32 v47, v47')
    stats(240, 241, L_ST1)
    xstamp(12)
    stats_read(L_ST1); stats_calc(0)
    A('v_sub_f32 v42, v240, v46'); A('v_sub_f32 v43, v241, v46'); rnd(42, 43)
    A('v_mul_f32 v42, v42, v47'); A('v_mul_f32 v43, v43, v47'); rnd(42, 43)
    A('v_pk_mul_f32 v[42:43], v[42:43], v[254:255]'); rnd(42, 43)
    A('v_pk_add_f32 v[42:43], v[42:43], v[252:253]'); rnd(42, 43)
    stats(42, 43, L_ST2)
    xstamp(13)
    if ncb:
        A('s_lshr_b32 s8, s2, 3'); A('s_xor_b32 s8, s8, s3'); A(f's_and_b32 s8, s8, {(1 << ncb) - 1}'); A('s_cbranch_scc1 L_early')
    stats_read(L_ST2); stats_calc(0)
    A('v_sub_f32 v42, v42, v46'); A('v_sub_f32 v43, v43, v46'); rnd(42, 43)
    A('v_mul_f32 v42, v42, v47'); A('v_mul_f32 v43, v43, v47'); rnd(42, 43)
    stamp(9)
    for e in range(2):
        A(f'v_bfe_u32 v{2+e}, v{42+e}, 16, 15'); A(f'v_lshrrev_b32 v{4+e}, 31, v{42+e}'); A(f'v_subrev_u32 v{6+e}, {TAB_E0}, v{2+e}')
    for e in range(2):
        A(f'v_cmp_eq_u32 s[{16+2*e}:{17+2*e}], 0, v{2+e}'); A(f'v_cmp_gt_u32 s[{20+2*e}:{21+2*e}], v245, v{6+e}')
    for e in range(2): A(f'v_mad_u32_u24 v{6+e}, v{4+e}, v245, v{6+e}')
    for e in range(2): A(f'v_cndmask_b32 v{6+e}, v{6+e}, v247, s[{16+2*e}:{17+2*e}]')
    for e in range(2): A(f'v_lshl_add_u32 v{6+e}, v{6+e}, 1, v13'); A(f'ds_read_u16 v{16+e}, v{6+e} offset:{L_TABLE - LM}')
    for e in range(2):
        A(f's_or_b64 s[{20+2*e}:{21+2*e}], s[{20+2*e}:{21+2*e}], s[{16+2*e}:{17+2*e}]')
        if force_fb: A(f's_and_b64 s[{20+2*e}:{21+2*e}], s[{20+2*e}:{21+2*e}], {force_fb if isinstance(force_fb, str) else "0"}')
    A('s_waitcnt lgkmcnt(0)')
    A('v_lshlrev_b32 v16, 16, v16'); A('v_lshlrev_b32 v17, 16, v17')
    A('v_pk_mul_f32 v[16:17], v[16:17], v[236:237]'); rnd(16, 17)
    A('v_pk_add_f32 v[16:17], v[16:17], v[240:241]'); A('v_cvt_pk_bf16_f32 v16, v16, v17')
    A('s_mov_b64 exec, s[20:21]'); A('global_store_short v238, v16, s[40:41]')
    A('s_mov_b64 exec, s[22:23]'); A('global_store_short_d16_hi v238, v16, s[40:41] offset:16')
    A('s_and_b64 s[16:17], s[20:21], s[22:23]'); A('s_not_b64 s[16:17], s[16:17]'); A('s_cbranch_scc0 L_listed')
    for e in range(2):
        A(f's_not_b64 exec, s[{20+2*e}:{21+2*e}]')
        A('v_mov_b32 v2, 1'); A(f'ds_add_rtn_u32 v2, v13, v2 offset:{C_LIST}')
        A(f'v_mov_b32 v4, v{42+e}'); A(f'v_mov_b32 v5, v{240+e}'); A(f'v_mov_b32 v6, v{236+e}'); A(f'v_add_u32 v7, {16*e}, v238')
        A('s_waitcnt lgkmcnt(0)')
        A('v_lshlrev_b32 v2, 4, v2'); A(f'ds_write_b128 v2, v[4:7] offset:{L_LIST}')
    A('s_waitcnt lgkmcnt(0)')
    A('L_listed:')
    A('s_mov_b64 exec, -1')
    A('L_wait67:')
    A('s_barrier')
    A('s_cmp_lt_u32 s3, 6'); A('s_cbranch_scc1 L_last')
    A(f'ds_read_b32 v2, v13 offset:{C_LIST}'); A('s_waitcnt lgkmcnt(0)')
    A('v_readfirstlane_b32 s69, v2')
    A('s_cmp_eq_u32 s69, 0'); A('s_cbranch_scc1 L_fin')
    A('s_sub_u32 s3, s3, 4'); A('s_mov_b32 s65, 1'); A('s_mov_b32 s76, 0')
    A('L_batch:')
    A('v_and_b32 v2, 3, v0'); A('v_add_u32 v2, s76, v2'); A('v_cmp_gt_u32 s[78:79], s69, v2'); A('s_sub_u32 s8, s69, 1'); A('v_min_u32 v2, s8, v2')
    A('v_lshlrev_b32 v2, 4, v2'); A(f'ds_read_b128 v[236:239], v2 offset:{L_LIST}')
    A('s_waitcnt lgkmcnt(0)')
    A('v_mov_b32 v12, v236')
    A('s_branch L_mlp')
    A('L_output:')
    A('v_mul_f32 v16, v238, v16'); rnd(16)
    A('v_add_f32 v16, v237, v16'); A('v_cvt_pk_bf16_f32 v16, v16, v16')
    A('s_and_b64 exec, s[78:79], 15')
    A('global_store_short v239, v16, s[40:41]')
    A('s_mov_b64 exec, -1')
    A('L_batchdone:')
    A('s_barrier')
    A('s_add_u32 s76, s76, 4'); A('s_cmp_lt_u32 s76, s69'); A('s_cbranch_scc1 L_batch')
    A('s_branch L_fin')
    for c in COLD: c()
    A('L_early:')
    A('s_cmp_ge_u32 s3, 6'); A('s_cbranch_scc1 L_wait67')
    A('L_last:')
    A('s_cmp_lg_u32 s3, 4'); A('s_cbranch_scc1 L_fin')
    A(f's_cmp_lg_u32 s2, {cx}'); A('s_cbranch_scc1 L_fin')
    A('s_mov_b64 exec, 1'); A('v_mov_b32 v16, s46'); A(f's_mov_b32 s8, {WS_EPOCH}')
    A('buffer_store_dword v16, off, s[56:59], s8')
    if endstamp: A('s_mov_b64 exec, -1')
    A('L_fin:')
    if endstamp:
        A('s_waitcnt vmcnt(0)')
        A('s_memrealtime s[100:101]'); A('s_waitcnt lgkmcnt(0)')
        A('v_mov_b32 v61, v15')
        for k in range(11): A(f'v_writelane_b32 v61, s{80+2*k}, {k}')
        A('s_lshl_b32 s8, s2, 3'); A('s_add_u32 s8, s8, s3'); A('s_lshl_b32 s8, s8, 7'); A(f's_add_u32 s8, s8, {WS_STAMP}')
        A('v_lshlrev_b32 v1, 2, v0'); A('s_mov_b32 exec_lo, -1'); A('s_mov_b32 exec_hi, 0')
        A('buffer_store_dword v61, v1, s[56:59], s8 offen')
    if probe:
        k_, wlo, whi, op = probe
        A('s_sleep 127'); A('s_sleep 127')
        A('s_mov_b64 exec, 1')
        A('s_not_b32 s8, s80'); A('v_mov_b32 v1, s8'); A('v_mov_b32 v2, 0')
        A('global_atomic_umax v2, v1, s[42:43] sc1')
        A(f's_cmp_lt_u32 s3, {wlo}'); A('s_cbranch_scc1 L_pskip'); A(f's_cmp_gt_u32 s3, {whi}'); A('s_cbranch_scc1 L_pskip')
        A(f'v_readlane_b32 s8, v61, {k_}')
        if op == 'sum': A('s_sub_u32 s8, s8, s80')
        A('v_mov_b32 v1, s8')
        A(f'global_atomic_{"add" if op in ("sum", "cnt") else "umax"} v2, v1, s[42:43] offset:128 sc1')
        A('L_pskip:')
        A('s_waitcnt vmcnt(0)')
        A('s_cmp_lg_u32 s2, 0'); A('s_cbranch_scc1 L_end'); A('s_cmp_lg_u32 s3, 0'); A('s_cbranch_scc1 L_end')
        A('s_add_u32 s10, s80, 9000')
        A('L_ph1:'); A('s_memrealtime s[100:101]'); A('s_waitcnt lgkmcnt(0)'); A('s_sub_u32 s8, s100, s10'); A('s_cmp_lt_i32 s8, 0'); A('s_cbranch_scc1 L_ph1')
        A('global_load_dword v3, v2, s[42:43] sc1'); A('global_load_dword v4, v2, s[42:43] offset:128 sc1'); A('s_waitcnt vmcnt(0)')
        A('v_readfirstlane_b32 s10, v3'); A('v_readfirstlane_b32 s11, v4')
        A('s_not_b32 s10, s10')
        if op == 'max': A('s_sub_u32 s11, s11, s10')
        if op == 'sum': A(f's_lshr_b32 s11, s11, {(256 * (whi - wlo + 1)).bit_length() - 1}')
        A('s_min_u32 s11, s11, 6000'); A('s_mul_i32 s11, s11, 10')
        A('s_add_u32 s10, s10, 10000'); A('s_add_u32 s10, s10, s11')
        A('L_ph2:'); A('s_memrealtime s[100:101]'); A('s_waitcnt lgkmcnt(0)'); A('s_sub_u32 s8, s100, s10'); A('s_cmp_lt_i32 s8, 0'); A('s_cbranch_scc1 L_ph2')
    A('L_end:')
    A('s_endpgm')
    A('.section .rodata,"a"'); A('.p2align 6'); A(f'.amdhsa_kernel {NAME}_kernel')
    A('.amdhsa_next_free_vgpr 256'); A('.amdhsa_next_free_sgpr 102'); A('.amdhsa_accum_offset 256')
    A('.amdhsa_group_segment_fixed_size 0'); A('.amdhsa_kernarg_size 120'); A('.amdhsa_user_sgpr_count 2')
    A('.amdhsa_user_sgpr_kernarg_segment_ptr 1'); A('.amdhsa_system_sgpr_workgroup_id_x 1')
    A('.amdhsa_float_denorm_mode_32 3')
    A('.end_amdhsa_kernel')
    ia, isv, it_ = (A.L.index(';MARK ' + m) for m in ('attn2', 'service', 'tail'))
    A.L = A.L[:ia] + A.L[isv:it_] + A.L[ia:isv] + A.L[it_:]
    A.L = [l for l in A.L if not l.startswith(';MARK')]
    txt, nn = A.finish()
    return txt

if __name__ == '__main__':
    kw = eval('dict(%s)' % (sys.argv[2] if len(sys.argv) > 2 else ''))
    open(sys.argv[1], 'w').write(gen(**kw))
```

```python
import sys, struct, math
from asmlib import Asm
NAME = 'adaLN_cond__gqa_block_cached__mixer_token_mlp__decode'

def f2u(x): return struct.unpack('<I', struct.pack('<f', x))[0]
LOG2E = 1.4426950408889634

WS_MOD, WS_TAB, WS_ML, WS_Q, WS_CLR, WS_EPOCH, WS_RANK = 0x0, 0x8000, 0x10000, 0x20000, 0x28000, 0x29000, 0x30000
WS_MK = 0x2A000
WS_G = WS_Q - 384 * 64
WS_PART, WS_T2, WS_T1, WS_STAMP = 0x40000, 0xC0000, 0x100000, 0x200000
PSTR = 10240 * 8
RSTR = 256
LM = 131072
C_Q, C_ML, C_PROG, C_TAB, C_FB, C_DONE, C_P2, C_GO, C_RK, C_LEV, C_LIST = 4, 8, 12, 16, 20, 24, 28, 32, 36, 40, 44
L_ST1, L_ST2 = 128, 192
L_ML = LM + 256
L_FAC = LM + 512
L_TP = LM + 768
L_Q = LM + 1024
L_CONST = LM + 3072
NB = 20
L_TABLE = LM + 13312
L_SCR = LM + 13312 + 512 * NB + 256
L_RED2 = L_SCR + 2048
L_LIST = 0
L_MK = L_RED2 + 2048
L_MKO = 64
LDS_BYTES = 163840
assert L_MK + 256 <= LDS_BYTES
OSTRIDE = 528
TAB_E0 = (130 - NB) << 7
SPIN_CAP = 0x40000

def gen(DA=6, DB=5, early=2, WU=20, hu=16, hg=14, p2_at=13, q_at=52, r2_at=0, fin_at=40, ml_at=48,
        cps=(3, 23, 42), lev=(4, 5, 6, 8), thrs=((16, 40, 56), (16, 40, 56), (16, 40, 56), (16, 40, 56), (10, 42, 58), (6, 42, 58), (0, 40, 56)), wsh=2, rd=4, DS=5, wos=(1, 2, 3, 3, 4, 4, 6, 8), wothr=4,
        skipown=True, sc=(0, 9, 18, 27, 36, 44, 52), scr=(3, 5, 7), nshb=3, sc_split=0, mret=True, gsp=0, mk=False, swapw=False, goff=False, scr4=True, sec='late', rsl=1, gw=0, hw=0, nrep=1, cx=0, ackw=True, ncb=3, t1w='ack', t1x=0, cboost=False, pref=1, prefn=1, t2x=0, h2l=False, l2w=True, tb0='early', diag=False, lite=False, probe=None, force_fb=False, cut=(), trajA=False, header=''):
    A = Asm()
    endstamp = diag or lite
    if lite: diag = False
    COLD = []
    def stamp(k):
        if diag: A(f's_memrealtime s[{80+2*k}:{81+2*k}]'); A('s_waitcnt lgkmcnt(0)')
    def xstamp(k):
        if diag: A('s_memrealtime s[100:101]'); A('s_waitcnt lgkmcnt(0)'); A(f'v_writelane_b32 v15, s100, {16 + k}')
    def sstamp(r):
        A('s_memrealtime s[100:101]'); A('s_waitcnt lgkmcnt(0)'); A(f's_mov_b32 s{r}, s100')
    def v(a, n=1): return f'v{a}' if n == 1 else f'v[{a}:{a+n-1}]'
    def rnd(*regs):
        for a in regs: A(f'v_cvt_pk_bf16_f32 v{a}, 0, v{a}')
    def lds_spin(off, target, vt, sleep=1):
        l0 = A.lab('spin'); l1 = A.lab('spun')
        A('s_mov_b32 s14, 0')
        A(f'{l0}:')
        A(f'ds_read_b32 v{vt}, v13 offset:{off}'); A('s_waitcnt lgkmcnt(0)')
        A(f'v_readfirstlane_b32 s15, v{vt}')
        A(f's_cmp_ge_u32 s15, {target}'); A(f's_cbranch_scc1 {l1}')
        A(f's_sleep {sleep}')
        A('s_add_u32 s14, s14, 1'); A(f's_cmp_lt_u32 s14, {SPIN_CAP}'); A(f's_cbranch_scc1 {l0}')
        A(f'{l1}:')
    def lds_add(off, vt):
        A('s_waitcnt lgkmcnt(0)')
        A('s_mov_b64 exec, 1'); A(f'v_mov_b32 v{vt}, 1'); A(f'ds_add_u32 v13, v{vt} offset:{off}'); A('s_mov_b64 exec, -1')
    def done_event(vt):
        l1 = A.lab('nodone')
        A('s_waitcnt vmcnt(0) lgkmcnt(0)')
        A('s_mov_b64 exec, 1'); A(f'v_mov_b32 v{vt}, 1'); A(f'ds_add_rtn_u32 v{vt}, v13, v{vt} offset:{C_DONE}')
        A('s_waitcnt lgkmcnt(0)')
        A(f'v_readfirstlane_b32 s8, v{vt}')
        A('s_cmp_lg_u32 s8, 1'); A(f's_cbranch_scc1 {l1}')
        A('s_lshl_b32 s8, s2, 2'); A(f's_add_u32 s8, s8, {WS_CLR}'); A(f'v_mov_b32 v{vt}, s46')
        A(f'buffer_store_dword v{vt}, off, s[56:59], s8 sc1')
        A(f'{l1}:')
        A('s_mov_b64 exec, -1')
    def tag_gather(loads, vt, sleep=2, tagregs=(1, 3), cid=None):
        l0 = A.lab('tg'); l1 = A.lab('tgok')
        A('s_mov_b32 s14, 0')
        A(f'{l0}:')
        for n_, (d, txt) in enumerate(loads):
            if gw and n_ >= gw: A(f's_waitcnt vmcnt({gw-1})')
            if gsp and len(loads) == 16 and n_ and n_ % 2 == 0: A(f's_sleep {gsp}')
            A(txt)
        A('s_waitcnt vmcnt(0)')
        regs = [d + r for d, txt in loads for r in tagregs]
        A(f'v_min_u32 v{vt}, v{regs[0]}, v{regs[1]}'); A(f'v_max_u32 v{vt+1}, v{regs[0]}, v{regs[1]}')
        for k in range(2, len(regs), 2):
            A(f'v_min3_u32 v{vt}, v{regs[k]}, v{regs[k+1]}, v{vt}'); A(f'v_max3_u32 v{vt+1}, v{regs[k]}, v{regs[k+1]}, v{vt+1}')
        A(f'v_cmp_ne_u32 vcc, s46, v{vt}'); A(f'v_cmp_ne_u32 s[70:71], s46, v{vt+1}'); A('s_or_b64 vcc, vcc, s[70:71]')
        A(f's_cbranch_vccz {l1}')
        if mret: A('s_mov_b64 exec, vcc')
        A(f's_sleep {sleep * rsl}')
        A('s_add_u32 s14, s14, 1'); A(f's_cmp_lt_u32 s14, {SPIN_CAP}'); A(f's_cbranch_scc1 {l0}')
        A(f'{l1}:')
        if mret: A('s_mov_b64 exec, -1')
        if diag and cid is not None: A(f'v_writelane_b32 v15, s14, {11 + cid}')
    def xg_reduce(op, regs, t):
        for sw_ in (32, 16):
            for k, a in enumerate(regs): A(f'v_mov_b32 v{t+k}, v{a}')
            for k, a in enumerate(regs): A(f'v_permlane{sw_}_swap_b32 v{a}, v{t+k}')
            for k, a in enumerate(regs): A(f'{op} v{a}, v{a}, v{t+k}')
    def row_reduce(op, regs, steps=(8, 4, 2, 1)):
        for sh in steps:
            for a in regs: A(f'{op}_dpp v{a}, v{a}, v{a} row_ror:{sh} row_mask:0xf bank_mask:0xf')
    def perm(dst, base, m, d):
        A(f'v_perm_b32 v{dst}, v{base+8*m+4+(d>>1)}, v{base+8*m+(d>>1)}, s{60+(d&1)}')
    MREG = [16, 18, 20, 22, 24, 26, 36, 38]
    def sweep(name, n, load, dreg, acc, vt):
        marked = mk and name == 't1'
        A('s_mov_b32 s14, 0')
        if marked:
            for k in range(n): A(f's_mov_b64 s[{MREG[k]}:{MREG[k]+1}], -1')
        A(f'L_{name}_chk:')
        for k in range(n):
            d = dreg(k); m = MREG[k]
            def acc_or():
                if k == 2: A(f's_or_b64 vcc, s[{MREG[0]}:{MREG[0]+1}], s[{MREG[1]}:{MREG[1]+1}]')
                elif k > 2: A(f's_or_b64 vcc, vcc, s[{MREG[k-1]}:{MREG[k-1]+1}]')
            mf = f'v_mfma_f32_16x16x32_bf16 {v(acc,4)}, v[232:235], {v(d,4)}, {0 if k == 0 else v(acc,4)}'
            A(f's_waitcnt vmcnt({n-1-k})')
            if marked:
                A(f'v_and_b32 v{vt}, 1, v{d}'); A(f'v_and_b32 v{d}, -2, v{d}'); A(f'v_cmp_ne_u32 s[68:69], v{vt}, v{112+k}')
                acc_or(); A(mf); A(f's_and_b64 s[{m}:{m+1}], s[{m}:{m+1}], s[68:69]')
            else:
                A(f'v_max3_u32 v{vt}, v{d}, v{d+1}, v{d+2}'); A(f'v_max_u32 v{vt}, v{vt}, v{d+3}')
                A(mf); A(f'v_cmp_eq_u32 s[{m}:{m+1}], -1, v{vt}'); acc_or()
        A(f's_or_b64 vcc, vcc, s[{MREG[n-1]}:{MREG[n-1]+1}]')
        A(f's_cbranch_scc1 L_{name}_retry')
        A(f'L_{name}_done:')
        if diag: A(f'v_writelane_b32 v15, s14, {30 if name == "t1" else 31}')
        def cold():
            A(f'L_{name}_retry:')
            for k in range(n):
                A(f's_mov_b64 exec, s[{MREG[k]}:{MREG[k]+1}]'); load(k)
            A('s_mov_b64 exec, -1')
            if marked: A('s_waitcnt vmcnt(0)')
            A('s_add_u32 s14, s14, 1'); A(f's_cmp_lt_u32 s14, {SPIN_CAP}'); A(f's_cbranch_scc1 L_{name}_chk')
            A('s_waitcnt vmcnt(0)')
            A(f's_branch L_{name}_done')
        COLD.append(cold)
    def rb_calc():
        A('s_and_b32 s6, s2, 7'); A('s_lshr_b32 s8, s2, 7'); A('s_lshl1_add_u32 s6, s6, s8')
    def svc_setup():
        A(f's_load_dword s9, s[44:45], {WS_EPOCH}')
        A('s_bfe_u32 s7, s2, 0x40003')
        rb_calc()
        A('s_mov_b32 s60, 0x05040100'); A('s_mov_b32 s61, 0x07060302'); A('s_mov_b32 s62, 0xffff0000')
        A(f's_mov_b32 s64, {f2u(LOG2E):#x}')
        A('s_mov_b64 s[56:57], s[44:45]'); A('s_mov_b32 s58, 0x400000'); A('s_mov_b32 s59, 0x20000')
        A(f'v_mov_b32 v13, {LM}')
    def notcons(label):
        A(f's_and_b32 s8, s2, {0xff & ~(((1 << ncb) - 1) << 3):#x}'); A(f's_cmp_lg_u32 s8, {cx}'); A(f's_cbranch_scc1 {label}')
    def prep():
        l = A.lab('noprep')
        A('v_lshrrev_b32 v4, 4, v0'); A('v_and_b32 v5, 15, v0')
        A('v_lshrrev_b32 v9, 5, v0')
        A('v_lshl_add_u32 v229, v0, 4, v13')
        A('v_lshlrev_b32 v230, 2, v5'); A('v_lshl_add_u32 v230, v9, 6, v230')
        A('s_lshl_b32 s72, s6, 11'); A('s_lshl_b32 s8, s7, 7'); A('s_add_u32 s72, s72, s8'); A(f's_add_u32 s72, s72, {WS_T2}')
        A('v_and_b32 v7, 1, v5'); A('v_lshlrev_b32 v7, 4, v7'); A('v_mov_b32 v8, 0x3f80'); A('v_lshlrev_b32 v7, v7, v8')
        A('v_and_b32 v8, 14, v5')
        for m in range(4):
            A(f'v_cmp_eq_u32 vcc, {4*m}, v8'); A(f'v_cndmask_b32 v{232+m}, 0, v7, vcc')
        A('v_lshlrev_b32 v244, 13, v4'); A('v_lshl_add_u32 v244, v5, 4, v244')
        A('v_lshrrev_b32 v6, 3, v5'); A('v_lshlrev_b32 v6, 6, v6'); A('v_and_b32 v8, 1, v4'); A('v_lshl_add_u32 v6, v8, 5, v6')
        A('v_and_b32 v8, 4, v5'); A('v_lshl_add_u32 v6, v8, 2, v6'); A('v_and_b32 v8, 3, v5'); A('v_lshl_add_u32 v6, v8, 1, v6')
        A('v_lshrrev_b32 v8, 1, v4'); A('s_lshl_b32 s8, s3, 7'); A('v_add3_u32 v6, v6, v8, s8')
        A('v_lshlrev_b32 v238, 1, v6')
        notcons(l)
        A('v_add_u32 v7, v13, v238')
        for a, r in enumerate((248, 250, 252, 254, 236)):
            for e in range(2): A(f'ds_read_u16 v{r+e}, v7 offset:{L_CONST - LM + 2048*a + 16*e}')
        A('s_lshl_b32 s75, s3, 8'); A(f's_add_u32 s75, s75, {WS_T2}'); A('s_add_u32 s73, s75, 4096')
        A(f's_mov_b32 s66, {f2u(1/1024):#x}'); A('s_mov_b32 s67, s66')
        A('v_lshlrev_b32 v246, 2, v9'); A('s_lshl_b32 s8, s3, 3'); A('v_add3_u32 v246, s8, v246, v13')
        A(f'v_mov_b32 v245, {128 * NB}'); A(f'v_mov_b32 v247, {256 * NB}')
        A('s_waitcnt lgkmcnt(0)')
        for r in list(range(248, 256)) + [236, 237]: A(f'v_lshlrev_b32 v{r}, 16, v{r}')
        A('v_add_f32 v254, 1.0, v254'); A('v_add_f32 v255, 1.0, v255'); rnd(254, 255)
        A(f'{l}:')
    def dma(base, dst, cnt):
        for n in range(cnt):
            if n % 4 == 0:
                A(f's_mov_b32 m0, {dst + 1024*n}'); A(f's_mov_b32 s8, {base + 1024*n}')
            A(f'buffer_load_dwordx4 v1, s[56:59], s8 offen offset:{(n % 4) * 1024} sc1 lds')

    for l in header.splitlines(): A(l)
    A(f'; @launch grid=(256,1,1) block=(512,1,1) lds={LDS_BYTES}')
    A('.amdgcn_target "amdgcn-amd-amdhsa--gfx950"')
    A('.text'); A(f'.globl {NAME}_kernel'); A('.p2align 8'); A(f'.type {NAME}_kernel,@function')
    A(f'{NAME}_kernel:')
    A('s_load_dwordx16 s[16:31], s[0:1], 0')
    A('s_load_dwordx8 s[32:39], s[0:1], 64')
    A('s_load_dwordx4 s[40:43], s[0:1], 96')
    A('s_load_dwordx2 s[44:45], s[0:1], 112')
    if endstamp: A('s_memrealtime s[80:81]')
    A('v_lshrrev_b32 v1, 6, v0'); A('v_and_b32 v0, 63, v0')
    A('s_lshr_b32 s4, s2, 8'); A('s_cbranch_scc1 L_end')
    A('v_readfirstlane_b32 s3, v1')
    A('s_mov_b32 s51, 0x20000')
    if swapw: A('s_xor_b32 s3, s3, 4')
    A('s_lshr_b32 s4, s2, 6'); A('s_and_b32 s5, s2, 63')
    A('s_cmp_ge_u32 s3, 4'); A('s_cbranch_scc1 L_service')

    A('; ---- attention waves 0..3: code prefetch, first K loads')
    A('s_getpc_b64 s[70:71]')
    A('L_pcref:')
    A('s_bfe_u32 s7, s2, 0x40003')
    A('s_lshl2_add_u32 s8, s7, s3'); A('s_lshl_b32 s8, s8, 9')
    A('v_lshl_add_u32 v1, v0, 7, s8'); A('v_min_u32 v1, L_end-L_pcref, v1')
    A('s_mov_b64 exec, 15'); A('global_load_dword v12, v1, s[70:71]'); A('s_mov_b64 exec, -1')
    A('s_lshl2_add_u32 s9, s5, s3'); A('s_lshl_b32 s9, s9, 13')
    A(f's_lshl_b32 s8, s4, {22 if goff else 24}'); A('s_add_u32 s9, s9, s8')
    if goff: A('s_lshl_b32 s65, s4, 24')
    A('s_lshl_b32 s12, s3, 15')
    A('v_lshrrev_b32 v13, 4, v0'); A('v_and_b32 v14, 15, v0')
    A('v_lshlrev_b32 v15, 2, v13'); A('v_xor_b32 v1, v14, v15'); A('v_lshlrev_b32 v1, 4, v1')
    A('v_lshl_add_u32 v1, v13, 8, v1')
    A('v_xor_b32 v2, 16, v1'); A('v_xor_b32 v3, 32, v1'); A('v_xor_b32 v4, 48, v1')
    A('s_mov_b32 s50, 0x1000000' if goff else 's_brev_b32 s50, 32')
    A('s_waitcnt lgkmcnt(0)')
    if goff: A('s_add_u32 s48, s18, s65'); A('s_addc_u32 s49, s19, 0')
    else: A('s_mov_b64 s[48:49], s[18:19]')
    def attn_setup():
        A('v_lshlrev_b32 v5, 4, v0')
        A('s_mov_b32 s54, s50'); A('s_mov_b32 s55, 0x20000')
        A('s_mov_b32 s60, 0x05040100'); A('s_mov_b32 s61, 0x07060302')
        A(f's_mov_b32 s63, {f2u(128 ** -0.5):#x}'); A(f's_mov_b32 s64, {f2u(LOG2E):#x}')
        A('s_mov_b32 s58, 0x400000'); A('s_mov_b32 s59, 0x20000')
        A('v_and_b32 v6, 3, v14'); A('v_lshlrev_b32 v6, 2, v6'); A('v_lshrrev_b32 v15, 2, v14'); A('v_add_u32 v6, v6, v15')
        A('v_lshlrev_b32 v6, 8, v6'); A('v_xor_b32 v15, v13, v14'); A('v_lshl_add_u32 v6, v15, 4, v6'); A('v_add_u32 v6, s12, v6')
        A('v_xor_b32 v7, 64, v6'); A('v_xor_b32 v8, 0x80, v6'); A('v_xor_b32 v9, 0xc0, v6')
        A(f'v_mov_b32 v13, {LM}')
        A('v_mov_b32 v14, 0'); A('v_lshl_add_u32 v15, v0, 2, v13'); A('ds_write_b32 v15, v14')
        if swapw: A('s_setprio 1')
        A('s_mov_b32 s70, 0xff00ff00'); A('s_mov_b32 s71, 0xff00ff00')
        if goff: A('s_add_u32 s52, s20, s65'); A('s_addc_u32 s53, s21, 0'); A('s_mov_b32 s65, 0xffffff')
        else: A('s_mov_b64 s[52:53], s[20:21]')
        A('s_mov_b64 s[56:57], s[44:45]'); A('s_mov_b64 s[66:67], s[24:25]')
        A('s_waitcnt lgkmcnt(0)')
        A('s_barrier')
    issued = [0]
    TS = 64 * 4 * 8192
    LEV = list(lev) if lev else [DB]
    if not lev: sc = None
    def throttle(D, boost):
        if issued[0] < D: return
        if boost:
            l = A.lab('go')
            for k in range(len(LEV) - 1, -1, -1):
                A(f's_waitcnt vmcnt({LEV[k]-1})')
                if k == len(LEV) - 1: A(f's_cbranch_vccnz {l}')
                elif k > 0: A(f's_cmp_eq_u32 s13, {k}'); A(f's_cbranch_scc1 {l}')
            A(f'{l}:')
        else: A(f's_waitcnt vmcnt({D-1})')
    def kload(t, n, D, boost=False):
        tolds = t < 4 or (scr4 and t == 4 and n < 4)
        if n % 4 == 0:
            if t < 4: A(f's_add_u32 m0, s12, {t * 8192 + (n // 4) * 4096}')
            elif tolds: A('s_lshl_b32 s8, s3, 12'); A(f's_add_u32 m0, s8, {L_CONST}')
            A(f's_add_u32 s10, s9, {t * TS + (n // 4) * 4096}')
        throttle(D, boost)
        if tolds: A(f'buffer_load_dwordx4 v{1 + n % 4}, s[48:51], s10 offen offset:{(n % 4) * 1024} nt lds')
        else: A(f'buffer_load_dwordx4 {v(128 + 32 * (t % 4) + 4 * n, 4)}, v{1 + n % 4}, s[48:51], s10 offen offset:{(n % 4) * 1024} nt')
        issued[0] += 1
    def vload(t, e, D, boost=False):
        if e % 4 == 0:
            A(f's_add_u32 s10, s9, {t * TS + (e // 4) * 4096}')
            if goff and t >= 2: A('s_and_b32 s10, s10, s65')
        throttle(D, boost)
        A(f'buffer_load_dwordx4 {v(128 + 32 * (t % 4) + 4 * e, 4)}, v5, s[52:55], s10 offen offset:{(e % 4) * 1024} nt')
        issued[0] += 1
    for n in range(64):
        if n == early:
            A('s_branch L_attn2'); A(';MARK attn2')
            A('L_attn2:')
            attn_setup()
            if 'svc' not in cut: lds_spin(C_GO, 1, 14)
        if diag and trajA and n >= early and (n % 8 == 0 or n == early): sstamp(24 + n // 8)
        kload(n // 8, n % 8, DA)
        if issued[0] in (p2_at, q_at): lds_add(C_PROG, 14)
    stamp(1)
    if not cut: lds_spin(C_Q, 2 if mk else 1, 14)
    A('v_and_b32 v14, 7, v0'); A('v_lshlrev_b32 v14, 8, v14'); A('v_lshrrev_b32 v15, 4, v0'); A('v_lshl_add_u32 v14, v15, 4, v14')
    A(f'v_add_u32 v14, {L_Q}, v14')
    for s in range(4): A(f'ds_read_b128 {v(16+4*s,4)}, v14 offset:{64*s}')
    A('v_add_u32 v1, s12, v5')
    stamp(2)
    def flush(t, ns, wait=True):
        for n in ns: A(f'ds_write_b128 v1, {v(128 + 32*t + 4*n, 4)} offset:{t * 8192 + n * 1024}')
        if wait: A('s_waitcnt lgkmcnt(0)')
    def qk(t):
        off = (t % 4) * 8192
        for hb in range(2):
            if scr4 and t == 4 and hb == 0:
                A('s_mul_i32 s8, s3, 0x7000'); A(f's_sub_u32 s8, {L_CONST}, s8')
                for s in range(4): A(f'v_add_u32 v{96+4*s}, s8, v{6+s}'); A(f'ds_read_b128 {v(96+4*s,4)}, v{96+4*s}')
                continue
            for s in range(4): A(f'ds_read_b128 {v(96+16*hb+4*s,4)}, v{6+s} offset:{off + hb*4096}')
        for hb in range(2):
            S = 32 + 8 * t + 4 * hb
            for s in range(4):
                A(f's_waitcnt lgkmcnt({7 - 4*hb - s})')
                A(f'v_mfma_f32_16x16x32_bf16 {v(S,4)}, {v(96+16*hb+4*s,4)}, {v(16+4*s,4)}, {0 if s == 0 else v(S,4)}')
    def rscale(t):
        S = 32 + 8 * t
        rnd(*range(S, S + 8))
        for k in range(8): A(f'v_mul_f32 v{S+k}, s63, v{S+k}')
        rnd(*range(S, S + 8))
        if t == 0: A(f'v_max_f32 v15, v{S}, v{S+1}')
        else: A(f'v_max3_f32 v15, v{S}, v{S+1}, v15')
        for k in range(1, 4): A(f'v_max3_f32 v15, v{S+2*k}, v{S+2*k+1}, v15')
    def mfin():
        xg_reduce('v_max_f32', [15], 14)
        A('v_mov_b32 v10, v15'); A('v_mul_f32 v12, s64, v15')
    def expo(t):
        S = 32 + 8 * t
        for k in range(8): A(f'v_fma_f32 v{S+k}, v{S+k}, s64, -v12')
        for k in range(8): A(f'v_exp_f32 v{S+k}, v{S+k}')
        for k in range(4): A(f'v_add_f32 v{96+k}, v{S+2*k}, v{S+2*k+1}')
        for k in range(4): A(f'v_cvt_pk_bf16_f32 v{S+k}, v{S+2*k}, v{S+2*k+1}')
        for k in range(4): A(f'v_cndmask_b32 v{S+4+k}, 0, v{S+k}, s[70:71]')
        for k in range(4): A(f'v_cndmask_b32 v{S+k}, v{S+k}, 0, s[70:71]')
        A('v_add_f32 v96, v96, v97'); A('v_add_f32 v98, v98, v99')
        if t == 0: A('v_add_f32 v11, v96, v98')
        else: A('v_add_f32 v96, v96, v98'); A('v_add_f32 v11, v11, v96')
    def omf(d, P, first):
        o = 16 + 4 * (d & 3)
        A(f'v_mfma_f32_16x16x32_bf16 {v(o,4)}, {v(96+4*d,4)}, {v(P + (d & 4),4)}, {0 if (first and d < 4) else v(o,4)}')
    def pvt(t, half):
        Vb = 128 + 32 * (t % 4); ds_ = list(range(4 * half, 4 * half + 4))
        for m in range(4): perm(96 + 4*ds_[0] + m, Vb, m, ds_[0])
        for k, d in enumerate(ds_):
            if k + 1 < 4:
                for m in range(4): perm(96 + 4*ds_[k+1] + m, Vb, m, ds_[k+1])
            omf(d, 32 + 8 * t, t == 0)
    def publish_ml():
        xg_reduce('v_add_f32', [11], 14)
        A('v_lshrrev_b32 v14, 1, v5'); A('s_lshl_b32 s8, s3, 6'); A(f's_add_u32 s8, s8, {L_ML}'); A('v_add_u32 v14, s8, v14')
        A('s_mov_b64 exec, 0xff'); A('ds_write_b64 v14, v[10:11]'); A('s_mov_b64 exec, -1')
        lds_add(C_ML, 14)
    def endsetup():
        if mk: A('s_lshl_b32 s8, s3, 2'); A('v_add_u32 v53, s8, v13'); A(f'ds_read_b32 v53, v53 offset:{L_MKO}')
        A('v_bfe_u32 v52, v0, 4, 1'); A('s_lshl_b32 s8, s3, 1'); A('v_add_u32 v52, s8, v52')
        A(f'v_mul_u32_u24 v48, {OSTRIDE}, v52')
        A('v_lshlrev_b32 v52, 4, v52'); A(f'v_add_u32 v52, {L_FAC}, v52')
        A('v_and_b32 v49, 15, v0'); A('v_lshl_add_u32 v48, v49, 5, v48'); A('v_lshrrev_b32 v49, 5, v0')
        A('v_lshl_add_u32 v48, v49, 4, v48'); A('v_add_u32 v49, 0x10000, v48')
        A('v_and_b32 v4, 7, v0'); A(f'v_mul_u32_u24 v50, {OSTRIDE}, v4'); A('v_and_b32 v51, 8, v0'); A('v_lshl_add_u32 v50, v51, 5, v50')
        A('v_lshlrev_b32 v1, 9, v51')
        A('v_lshrrev_b32 v51, 4, v0'); A('v_lshl_add_u32 v50, v51, 4, v50'); A('v_add_u32 v50, s12, v50')
        A('v_lshl_add_u32 v1, v51, 15, v1'); A('v_lshl_add_u32 v1, v4, 4, v1')
        A('v_lshrrev_b32 v2, 3, v0'); A('v_lshlrev_b32 v2, 12, v2'); A('v_lshl_add_u32 v2, v4, 4, v2')
        A('v_and_b32 v3, 16, v0'); A('v_lshlrev_b32 v3, 4, v3'); A('v_lshlrev_b32 v4, 2, v4')
        A('s_lshl_b32 s8, s3, 9'); A(f's_add_u32 s8, s8, {L_RED2}'); A('v_add3_u32 v3, v3, v4, s8')
        rb_calc()
        A('s_mov_b64 s[48:49], s[66:67]'); A('s_mov_b32 s50, 0x800000')
        A('s_lshl_b32 s73, s6, 8'); A('s_lshr_b32 s8, s3, 1'); A('s_lshl_b32 s8, s8, 7'); A('s_add_u32 s73, s73, s8')
        A('s_and_b32 s8, s3, 1'); A('s_lshl2_add_u32 s73, s8, s73'); A('s_lshl_b32 s73, s73, 11')
        A('s_lshl_b32 s8, s7, 7'); A('s_add_u32 s73, s73, s8')
        A('s_lshl_b32 s74, s6, 15'); A('s_lshl_b32 s8, s3, 7'); A('s_add_u32 s74, s74, s8'); A(f's_add_u32 s74, s74, {WS_T1}')
        A('s_lshl2_add_u32 s8, s4, s3'); A('s_lshl_b32 s8, s8, 15'); A('s_lshl_b32 s11, s5, 9'); A('s_add_u32 s11, s11, s8')
        A(f's_add_u32 s11, s11, {WS_T1}')
        if mk: A('s_waitcnt lgkmcnt(0)'); A('v_lshrrev_b32 v53, v0, v53')
    sched = {i: [] for i in range(-1, 64)}
    def put(pos, fn, landed=None): sched[pos].append((fn, landed))
    DM = max(LEV + [DA])
    CP = list(cps) if (len(LEV) > 1 and not sc) else []
    THR = [list(t) for t in thrs] * (len(sc or cps) if len(thrs) == 1 else 1)
    ctl = bool(CP) or bool(sc)
    NRL = (1 << nshb) * len(sc) if sc else (4 << wsh) * len(CP)
    if scr4:
        put(0, lambda: qk(0)); put(1, lambda: flush(0, range(4, 8), False), -25)
        for t in range(1, 4):
            put(3 * t - 1, (lambda t=t: qk(t)))
            put(3 * t, (lambda t=t: flush(t, range(4), False)), 8 * t - 25); put(3 * t, (lambda t=t: rscale(t - 1)))
            put(3 * t + 1, (lambda t=t: flush(t, range(4, 8), False)))
        put(10, lambda: rscale(3))
        for t in range(4, 8): put(7 + t, (lambda t=t: qk(t)))
        for t in range(4, 8): put(13 + t // 2, (lambda t=t: rscale(t)))
        put(17, mfin)
        for t in range(8): put(18 + t, (lambda t=t: expo(t)))
        put(26, publish_ml)
        pp = 27
    else:
        put(-1, lambda: qk(0)); put(-1, lambda: flush(0, range(0, 3)), -25)
        put(0, lambda: flush(0, range(3, 8)))
        for t in range(1, 4):
            put(2 * t - 1, (lambda t=t: qk(t))); put(2 * t, (lambda t=t: flush(t, range(8))), 8 * t - 25)
        for t in range(4, 8): put(3 + t, (lambda t=t: qk(t)))
        for t in range(8): put(11 + t // 2, (lambda t=t: rscale(t)))
        put(15, mfin)
        for t in range(8): put(16 + t, (lambda t=t: expo(t)))
        put(24, publish_ml)
        pp = 25
    for t in range(6):
        pp = max(pp, 8 * t + 7 + DS)
        put(pp, (lambda t=t: pvt(t, 0)), 8 * t + 7); put(pp + 1, (lambda t=t: pvt(t, 1)))
        assert t >= 4 or pp + 1 < 32 + 8 * t
        pp += 2
    p5 = pp - 2
    put(60, endsetup)
    assert p5 + 1 < 60 and (not CP or max(CP) + rd < 60)
    def run(posn):
        for fn, landed in sched[posn]:
            if landed is not None and posn - landed < DM: A(f's_waitcnt vmcnt({posn - landed})')
            fn()
    if CP:
        A('s_mov_b64 vcc, 0'); A(f's_mov_b32 s13, {LEV.index(DB)}')
        A(f's_bfe_u32 s11, s2, {(wsh << 16) | 3:#x}'); A('s_lshl2_add_u32 s11, s11, s3'); A(f's_mul_i32 s11, s11, {RSTR}')
        A(f's_add_u32 s11, s11, {WS_RANK}')
        if cboost: A(f's_and_b32 s8, s2, {0xff & ~(((1 << ncb) - 1) << 3):#x}'); A(f's_cmp_eq_u32 s8, {cx}'); A(f's_cselect_b32 s68, {cboost}, 0')
        assert (4 << wsh) * len(CP) <= 128
    if sc: A('s_mov_b64 vcc, 0'); A(f's_mov_b32 s13, {LEV.index(DB)}')
    run(-1)
    for L in range(64):
        if diag and not trajA and L % 8 == 0: sstamp(24 + L // 8)
        if L in CP:
            A('s_mov_b32 s47, 1'); A(f's_atomic_add s47, s[44:45], s11 offset:{(4 << wsh) * RSTR * CP.index(L)} glc')
        vload(L // 8, L % 8, DB, ctl)
        if L - rd in CP:
            th = [int(round(t_ * (256 >> wsh) / 64.0)) for t_ in THR[CP.index(L - rd)]]
            A('s_waitcnt lgkmcnt(0)')
            if diag: A(f's_mov_b32 s{32 + CP.index(L - rd)}, s47')
            if cboost: A('s_add_u32 s47, s47, s68')
            A('s_mov_b32 s13, 0')
            for k, t_ in enumerate(th[:-1]):
                A(f's_cmp_ge_u32 s47, {t_}'); A(f's_cselect_b32 s13, {k+1}, s13')
            A(f's_cmp_ge_u32 s47, {th[-1]}'); A('s_cselect_b64 vcc, -1, 0')
        if sc and L in sc: lds_add(C_RK, 14)
        if sc and any(L - r_ in sc for r_ in scr):
            A(f'ds_read_b32 v14, v13 offset:{C_LEV}'); A('s_waitcnt lgkmcnt(0)')
            A('v_readfirstlane_b32 s13, v14'); A(f's_add_u32 s13, s13, {LEV.index(DB)}')
            A(f's_cmp_eq_u32 s13, {len(LEV) - 1}'); A('s_cselect_b64 vcc, -1, 0')
        if L in (r2_at, fin_at, ml_at): lds_add(C_PROG, 14)
        run(L)
    assert r2_at < fin_at < ml_at
    stamp(3)
    NWO = [0]
    def wo_upto(k):
        while NWO[0] < k:
            n = NWO[0]; m, hh = n >> 1, n & 1
            if n < wothr: throttle(DB, ctl)
            A(f's_add_u32 s10, s73, {(64 * (m & 1) + 8 * hh + (m >> 1)) * 2048}')
            A(f'buffer_load_dwordx4 {v(128 + 4*n, 4)}, v1, s[48:51], s10 offen nt')
            NWO[0] += 1
    wo_upto(wos[0])
    A(f's_waitcnt vmcnt({8 + NWO[0]})')
    pvt(6, 0); wo_upto(wos[1]); pvt(6, 1); wo_upto(wos[2])
    Vb = 128 + 96; P = 32 + 56
    for m in range(3):
        A(f's_waitcnt vmcnt({6 - 2*m + NWO[0]})')
        for d in range(8): perm(96 + 4*d + m, Vb, m, d)
        wo_upto(wos[3 + m])
    A(f's_waitcnt vmcnt({NWO[0]})')
    stamp(4)
    if cut:
        for k in range(8): A(f'v_writelane_b32 v15, s{24+k}, {16+k}')
        A('s_branch L_fin')
    order = [0, 4, 1, 5, 2, 6, 3, 7]
    for d in order[:3]: perm(96 + 4*d + 3, Vb, 3, d)
    for k, d in enumerate(order):
        omf(d, P, False)
        if k + 3 < 8: perm(96 + 4*order[k+3] + 3, Vb, 3, order[k+3])
    wo_upto(wos[6])
    for d in range(4): A(f'ds_write_b128 v50, {v(16+4*d,4)} offset:{64*d}')
    wo_upto(wos[7])
    A('s_waitcnt lgkmcnt(0)')
    A('s_barrier')
    A('ds_read_b128 v[16:19], v52')
    A('ds_read_b128 v[32:35], v48'); A('ds_read_b128 v[36:39], v48 offset:32768')
    A('ds_read_b128 v[40:43], v49'); A('ds_read_b128 v[44:47], v49 offset:32768')
    for w in range(4):
        A(f's_waitcnt lgkmcnt({3-w})')
        for k in range(2):
            f_ = v(16 + (w & 2), 2); h_ = w & 1
            if w == 0: A(f'v_pk_mul_f32 {v(32+2*k,2)}, {v(32+2*k,2)}, {f_} op_sel:[0,{h_}] op_sel_hi:[1,{h_}]')
            else: A(f'v_pk_fma_f32 {v(32+2*k,2)}, {v(32+4*w+2*k,2)}, {f_}, {v(32+2*k,2)} op_sel:[0,{h_},0] op_sel_hi:[1,{h_},1]')
    A('v_cvt_pk_bf16_f32 v24, v32, v33'); A('v_cvt_pk_bf16_f32 v25, v34, v35')
    if not mk: A('v_min_u32 v24, -2, v24'); A('v_min_u32 v25, -2, v25')
    A('v_permlane32_swap_b32 v24, v26'); A('v_permlane32_swap_b32 v25, v27')
    if mk: A('v_bfi_b32 v24, 1, v53, v24')
    A('s_mov_b32 exec_hi, 0')
    A('buffer_store_dwordx4 v[24:27], v5, s[56:59], s11 offen sc1')
    A('s_mov_b64 exec, -1')
    late_wo = NWO[0] < 8; nlate = 8 - NWO[0]
    wo_upto(8)
    stamp(5)
    if diag:
        for k in range(8): A(f'v_writelane_b32 v15, s{24+k}, {16+k}')
        for k in range(5): A(f'v_writelane_b32 v15, s{32+k}, {11+k}')
        A('s_load_dwordx16 s[16:31], s[0:1], 0'); A('s_load_dwordx8 s[32:39], s[0:1], 64'); A('s_waitcnt lgkmcnt(0)')
    def t1_load(n): A(f'buffer_load_dwordx4 {v(160+4*n,4)}, v2, s[56:59], s74 offen offset:{512*n} sc1')
    if mk:
        A('v_and_b32 v30, 56, v0'); A('v_lshl_add_u32 v30, v30, 2, v13')
        A(f'ds_read_b128 v[112:115], v30 offset:{L_MK - LM}'); A(f'ds_read_b128 v[116:119], v30 offset:{L_MK - LM + 16}')
    prep()
    if mk:
        A('v_and_b32 v30, 7, v0'); A('s_lshl_b32 s8, s3, 3'); A('v_add_u32 v30, s8, v30')
        A('s_waitcnt lgkmcnt(0)')
        for n in range(8): A(f'v_bfe_u32 v{112+n}, v{112+n}, v30, 1')
    xstamp(8)
    if t1w == 'ack2': A(f's_waitcnt vmcnt({nlate})'); t1w = 'pre'
    if t1w == 'pre':
        if t1x: A(f's_sleep {t1x}')
        for n in range(8): t1_load(n)
    A(f's_waitcnt vmcnt({(9 if t1w == "pre" else 1) - late_wo})')
    for e in range(8):
        for m in range(4): perm(192 + 4*e + m, 128, m, e)
    if t1w == 'ack': A('s_waitcnt vmcnt(0)')
    if t1w != 'pre':
        if t1x: A(f's_sleep {t1x}')
        for n in range(8): t1_load(n)
    xstamp(9)
    sweep('t1', 8, t1_load, lambda k: 160 + 4*k, 60, 6)
    stamp(6)
    row_reduce('v_add_f32', [60, 61], (8,))
    A('v_cvt_pk_bf16_f32 v60, v60, v61')
    for c in range(4): A(f'v_mov_b32_dpp v{224+c}, v60 quad_perm:[{c},{c},{c},{c}] row_mask:0xf bank_mask:0xf')
    for e in range(8): A(f'v_mfma_f32_16x16x32_bf16 {v(64+4*e,4)}, v[224:227], {v(192+4*e,4)}, 0')
    A('s_mov_b32 exec_lo, 0xff0000ff'); A('s_mov_b32 exec_hi, 0')
    for e in range(0, 8, 2): A(f'ds_write2_b32 v3, v{64+4*e}, v{68+4*e} offset0:{8*e} offset1:{8*e+8}')
    A('s_mov_b64 exec, -1')
    A('s_waitcnt lgkmcnt(0)')

    A(';MARK service')
    A('L_service:')
    if 'svc' in cut: A('s_endpgm')
    A('s_sub_u32 s3, s3, 4')
    A('s_cmp_ge_u32 s3, 2'); A('s_cbranch_scc1 L_tabwaves')
    A('s_and_b32 s55, s2, 4'); A('s_lshr_b32 s55, s55, 1')
    A('s_lshr_b32 s53, s2, 3'); A('s_and_b32 s8, s2, 3'); A('s_lshl2_add_u32 s53, s53, s8')
    A('s_cmp_eq_u32 s3, 1'); A('s_cselect_b32 s65, 1, s55')
    A('s_setprio 3')
    A('L_unit:')
    A('s_and_b32 s67, s53, 63'); A('s_add_u32 s67, s67, 32'); A('s_lshr_b32 s69, s53, 6'); A('s_add_u32 s69, s69, s55'); A('s_movk_i32 s66, 0x3000')
    A('s_and_b32 s8, s53, 31'); A('s_lshr_b32 s10, s53, 5')
    A('s_cmp_eq_u32 s65, 0'); A('s_cselect_b32 s67, s8, s67'); A('s_cselect_b32 s69, s10, s69')
    A('s_add_u32 s68, s5, 96')
    A('s_cmp_eq_u32 s65, 1'); A('s_cselect_b32 s68, s68, s67'); A('s_cselect_b32 s67, s5, s67'); A('s_cselect_b32 s66, 0x2000, s66'); A('s_cselect_b32 s69, s4, s69')
    A('s_lshl_b32 s50, s66, 10'); A('s_lshl_b32 s67, s67, 7')
    A('v_and_b32 v1, 56, v0'); A('v_mul_u32_u24 v1, s66, v1')
    A('v_and_b32 v2, 7, v0'); A('v_lshl_add_u32 v1, v2, 4, v1')
    A('s_cmp_eq_u32 s65, 3'); A('s_cselect_b32 s8, 7, 8'); A('s_lshl_b32 s54, s69, s8')
    A('s_mul_i32 s10, s54, s66'); A('s_add_u32 s10, s10, s67')
    A('s_mul_i32 s11, s66, 57')
    A('s_lshl_b32 s8, s54, 1'); A('v_lshl_add_u32 v2, v0, 2, s8')
    A('s_waitcnt lgkmcnt(0)')
    xstamp(0)
    A('s_mov_b64 s[48:49], s[38:39]'); A('s_mov_b64 s[70:71], s[36:37]')
    A('s_cmp_lg_u32 s65, 1'); A('s_cbranch_scc1 L_notq')
    A('s_mov_b64 s[48:49], s[22:23]'); A('s_mov_b64 s[70:71], s[16:17]')
    A('v_lshlrev_b32 v3, 5, v0')
    A('s_barrier')
    A('global_load_dwordx4 v[16:19], v3, s[16:17]'); A('global_load_dwordx4 v[20:23], v3, s[16:17] offset:16')
    A('L_notq:')
    A('global_load_dword v4, v2, s[70:71]'); A('global_load_dword v5, v2, s[70:71] offset:256')
    for G in range(4):
        if G == 2: A('s_cmp_eq_u32 s65, 3'); A('s_cbranch_scc1 L_halfl')
        if G == 1:
            svc_setup()
            if ctl:
                A('s_cmp_lg_u32 s65, 0'); A('s_cbranch_scc1 L_norclr')
                A(f's_cmp_ge_u32 s53, {NRL}'); A('s_cbranch_scc1 L_norclr')
                A(f's_mul_i32 s8, s53, {RSTR}'); A(f's_add_u32 s8, s8, {WS_RANK}')
                A('s_mov_b64 exec, 1'); A('buffer_store_dword v0, off, s[56:59], s8 sc1'); A('s_mov_b64 exec, -1')
                A('L_norclr:')
        for r in range(8):
            if hw and G < 2 and 8*G + r >= hw:
                l = A.lab('hw'); A('s_cmp_lg_u32 s65, 3'); A(f's_cbranch_scc1 {l}'); A(f's_waitcnt vmcnt({hw-1})'); A(f'{l}:')
            if 8*G + r >= WU: A(f's_waitcnt vmcnt({WU-1})')
            A(f'buffer_load_dwordx4 {v(128+32*G+4*r,4)}, v1, s[48:51], s10 offen nt')
            if not (G == 3 and r == 7): A(f's_add_u32 s10, s10, {"s11" if r == 7 else "s66"}')
    A('s_cmp_eq_u32 s65, 1'); A('s_cbranch_scc1 L_go')
    A(f's_waitcnt vmcnt({hu})')
    A('s_barrier')
    A('s_branch L_went')
    A('L_halfl:')
    A('s_waitcnt vmcnt(0)')
    A('s_branch L_went')
    A('L_go:')
    A(f's_waitcnt vmcnt({hg})')
    lds_add(C_GO, 10)
    A('L_went:')
    A('s_waitcnt lgkmcnt(0)'); A('s_add_u32 s46, s9, 1')
    A('s_lshl2_add_u32 s47, s68, s69')
    A('s_lshl_b32 s68, s68, 9'); A(f's_mul_i32 s8, s69, {PSTR}'); A('s_add_u32 s68, s68, s8'); A(f's_add_u32 s68, s68, {WS_PART}')
    xstamp(3)
    A('v_lshlrev_b32 v6, 16, v4'); A('v_and_b32 v7, s62, v4'); A('v_lshlrev_b32 v8, 16, v5'); A('v_and_b32 v9, s62, v5')
    A('s_cmp_eq_u32 s65, 1'); A('s_cbranch_scc1 L_jobq')
    for k in range(4): A(f'v_mul_f32 v{24+k}, s64, v{6+k}')
    for k in range(4): A(f'v_exp_f32 v{24+k}, -v{24+k}')
    for k in range(4): A(f'v_add_f32 v{24+k}, 1.0, v{24+k}')
    for k in range(4): A(f'v_rcp_f32 v{24+k}, v{24+k}')
    for k in range(4): A(f'v_mul_f32 v{6+k}, v{6+k}, v{24+k}')
    A('L_jobcommon:')
    def jobq():
        A('L_jobq:')
        for k in range(8):
            A(f'v_lshlrev_b32 v{96+2*k}, 16, v{16+k}'); A(f'v_and_b32 v{97+2*k}, s62, v{16+k}')
        A('v_add_f32 v24, v96, v97')
        for k in range(2, 16): A(f'v_add_f32 v24, v24, v{96+k}')
        row_reduce('v_add_f32', [24]); xg_reduce('v_add_f32', [24], 25)
        A(f'v_mul_f32 v24, {f2u(1/1024):#x}, v24')
        for k in range(16): A(f'v_sub_f32 v{96+k}, v{96+k}, v24')
        A('v_mul_f32 v26, v96, v96')
        for k in range(1, 16): A(f'v_fmac_f32 v26, v{96+k}, v{96+k}')
        row_reduce('v_add_f32', [26]); xg_reduce('v_add_f32', [26], 25)
        A(f'v_mul_f32 v26, {f2u(1/1024):#x}, v26')
        rnd(24, 26)
        A(f'v_add_f32 v26, {f2u(1e-5):#x}, v26'); rnd(26); A('v_sqrt_f32 v26, v26'); rnd(26); A('v_rcp_f32 v26, v26')
        for k in range(4): A(f'v_sub_f32 v{6+k}, v{6+k}, v24')
        rnd(6, 7, 8, 9)
        for k in range(4): A(f'v_mul_f32 v{6+k}, v{6+k}, v26')
        rnd(6, 7, 8, 9)
        if h2l:
            A('v_lshlrev_b32 v3, 1, v2'); A(f's_mov_b32 s72, {WS_G}'); A(f's_mov_b32 s73, {WS_G + 4096}')
            loads = [(16 + 4*a + 2*k, f'buffer_load_dwordx2 {v(16 + 4*a + 2*k, 2)}, v3, s[56:59], s{72+a} offen offset:{512*k} sc1') for a in range(2) for k in range(2)]
            A('s_waitcnt vmcnt(0)')
            lds_spin(C_PROG, 4, 10)
            if 'p2g' not in cut: tag_gather(loads, 10, cid=0, tagregs=(1,))
            for q_ in range(4): A(f'v_lshlrev_b32 v{96+2*q_}, 16, v{16+2*q_}'); A(f'v_and_b32 v{97+2*q_}, s62, v{16+2*q_}')
        else:
            A('v_lshlrev_b32 v3, 2, v2')
            loads = []
            for a in range(2):
                for rho in range(4):
                    A(f's_mov_b32 s{72 + 4*a + rho}, {WS_PART + rho * PSTR + a * 8192}')
                    for k in range(2):
                        d = 16 + 32*a + 16*k + 4*rho
                        loads.append((d, f'buffer_load_dwordx4 {v(d,4)}, v3, s[56:59], s{72 + 4*a + rho} offen offset:{1024*k} sc1'))
            A('s_waitcnt vmcnt(0)')
            lds_spin(C_PROG, 4, 10)
            if 'p2g' not in cut: tag_gather(loads, 10, cid=0)
            for q_ in range(4):
                b_ = 16 + 16 * q_
                for j in range(2):
                    A(f'v_add_f32 v{b_+2*j}, v{b_+2*j}, v{b_+4+2*j}'); A(f'v_add_f32 v{b_+8+2*j}, v{b_+8+2*j}, v{b_+12+2*j}')
                for j in range(2): A(f'v_add_f32 v{96+2*q_+j}, v{b_+2*j}, v{b_+8+2*j}')
            rnd(*range(96, 104))
        for k in range(4): A(f'v_add_f32 v{100+k}, 1.0, v{100+k}')
        rnd(100, 101, 102, 103)
        for k in range(4): A(f'v_mul_f32 v{6+k}, v{6+k}, v{100+k}')
        rnd(6, 7, 8, 9)
        for k in range(4): A(f'v_add_f32 v{6+k}, v{6+k}, v{96+k}')
        A('s_branch L_jobcommon')
    A('v_cvt_pk_bf16_f32 v4, v6, v7'); A('v_cvt_pk_bf16_f32 v5, v8, v9')
    A('s_lshl_b32 s8, s3, 10'); A(f's_add_u32 s8, s8, {L_SCR}')
    A('v_lshl_add_u32 v2, v0, 2, s8')
    A('ds_write2_b32 v2, v4, v5 offset0:0 offset1:64')
    A('v_lshrrev_b32 v3, 4, v0'); A('v_lshlrev_b32 v3, 1, v3'); A('v_and_b32 v6, 1, v0'); A('v_add_u32 v3, v3, v6'); A('v_lshl_add_u32 v3, v3, 4, s8')
    A('s_waitcnt lgkmcnt(0)')
    for G in range(4): A(f'ds_read_b128 {v(32+8*G,4)}, v3 offset:{128*G}')
    A('s_waitcnt lgkmcnt(0)')
    for G in range(4):
        if G == 2: A('s_cmp_eq_u32 s65, 3'); A('s_cbranch_scc1 L_halfg')
        A(f's_waitcnt vmcnt({24 - 8*G})')
        if G in (0, 3): xstamp(5 if G == 0 else 6)
        for m in range(4): perm(96 + m, 128 + 32*G, m, 0)
        for d in range(8):
            if d + 1 < 8:
                for m in range(4): perm(96 + 4*(d+1) + m, 128 + 32*G, m, d + 1)
            A(f'v_mfma_f32_16x16x32_bf16 {v(64+4*d,4)}, {v(96+4*d,4)}, {v(32+8*G,4)}, {0 if G == 0 else v(64+4*d,4)}')
    A('L_halfg:')
    A('v_lshrrev_b32 v3, 5, v0'); A('v_lshlrev_b32 v3, 8, v3'); A('v_and_b32 v6, 16, v0'); A('v_add3_u32 v3, v3, v6, s8')
    A('v_and_b32 v6, 3, v0'); A('v_lshlrev_b32 v6, 6, v6'); A('v_bfe_u32 v7, v0, 2, 3'); A('v_lshl_add_u32 v6, v7, 2, v6'); A('v_add_u32 v6, s8, v6')
    A('s_mov_b32 exec_lo, 0x00010001'); A('s_mov_b32 exec_hi, 0x00020002')
    for e in range(8): A(f'ds_write_b128 v3, {v(64+4*e,4)} offset:{512 + 32*e}')
    A('s_mov_b32 exec_lo, -1'); A('s_mov_b32 exec_hi, 0')
    A('s_waitcnt lgkmcnt(0)')
    A('ds_read2_b32 v[16:17], v6 offset0:128 offset1:136'); A('ds_read2_b32 v[20:21], v6 offset0:192 offset1:200')
    A('v_lshlrev_b32 v3, 4, v0'); A('v_mov_b32 v19, s46')
    A('s_lshl_b32 s8, s69, 3'); A('s_lshl_b32 s52, 0xff, s8'); A('s_not_b32 s52, s52')
    if not skipown: A('s_mov_b32 s52, -1')
    if not h2l: A('s_cmp_eq_u32 s65, 0'); A('s_cselect_b32 s52, -1, s52')
    A('s_waitcnt lgkmcnt(0)')
    A('v_add_f32 v18, v17, v21'); A('v_add_f32 v16, v16, v20'); A('v_mov_b32 v17, s46')
    A('s_cmp_lg_u32 s65, 3'); A('s_cbranch_scc1 L_nomrg')
    A('v_add_f32 v16, v16, v28'); A('v_add_f32 v18, v18, v29')
    A('L_nomrg:')
    A('v_mov_b32 v28, v16'); A('v_mov_b32 v29, v18')
    A('s_cmp_eq_u32 s65, 2'); A('s_cbranch_scc1 L_nopub')
    A('v_mov_b32 v28, 0'); A('v_mov_b32 v29, 0')
    A('s_mov_b32 exec_lo, s52')
    if 'nopub' not in cut: A('buffer_store_dwordx4 v[16:19], v3, s[56:59], s68 offen sc1')
    A('L_nopub:')
    A('s_mov_b64 exec, -1')
    A('s_bitcmp1_b32 s65, 0'); A('s_cbranch_scc1 L_unit_done')
    if h2l and 'nopub' not in cut: A('s_cmp_eq_u32 s65, 0'); A('s_cbranch_scc1 L_lvl2')
    A('L_second:')
    xstamp(7)
    if sec == 'late': lds_spin(C_P2, 1, 6, sleep=4)
    A('s_mov_b32 s65, 3'); A('s_branch L_unit')
    jobq()
    A('L_unit_done:')
    stamp(1)
    if 'qg' in cut: lds_add(C_P2, 10); A('s_endpgm')
    A('s_cmp_eq_u32 s3, 1'); A('s_cbranch_scc1 L_lvl2')
    if 'late' in cut: A('s_endpgm')
    lds_spin(C_PROG, 12, 6, sleep=8)
    A('L_lvl2:')
    if l2w is True: A('s_waitcnt vmcnt(0)')
    elif l2w: A(f's_sleep {l2w}')
    A('v_lshrrev_b32 v1, 3, v0'); A(f's_mov_b32 s8, {PSTR}'); A('v_mul_lo_u32 v1, v1, s8'); A('v_and_b32 v2, 7, v0'); A('v_lshl_add_u32 v1, v2, 4, v1')
    A('s_lshl_b32 s8, s47, 7'); A(f's_add_u32 s8, s8, {WS_PART}')
    A('s_mov_b32 exec_lo, s52'); A('s_mov_b32 exec_hi, 0')
    tag_gather([(16, 'buffer_load_dwordx4 v[16:19], v1, s[56:59], s8 offen sc1')], 10, sleep=6, cid=3)
    A('s_mov_b64 exec, -1')
    row_reduce('v_add_f32', [16, 18], (8,))
    for r in (16, 18): A(f'v_mov_b32 v{r+4}, v{r}')
    for r in (16, 18): A(f'v_permlane16_swap_b32 v{r}, v{r+4}')
    for r in (16, 18): A(f'v_add_f32 v{r}, v{r}, v{r+4}')
    A('v_cvt_pk_bf16_f32 v16, v16, v18')
    A('s_cmp_eq_u32 s65, 3'); A('s_cbranch_scc1 L_rest2')
    A('; ---- wave 5: publish and gather q, later stage the modulation vectors')
    A('v_lshlrev_b32 v2, 3, v2'); A('s_lshl_b32 s8, s47, 6'); A(f's_add_u32 s8, s8, {WS_G}')
    A('s_mov_b64 exec, 0xff'); A('buffer_store_dwordx2 v[16:17], v2, s[56:59], s8 offen sc1'); A('s_mov_b64 exec, -1')
    A('s_cmp_eq_u32 s65, 0'); A('s_cbranch_scc1 L_second')
    lds_add(C_P2, 10)
    xstamp(7)
    lds_spin(C_PROG, 8, 6, sleep=4)
    A('s_lshl_b32 s8, s4, 12'); A(f's_add_u32 s8, s8, {WS_Q}'); A('v_lshlrev_b32 v1, 4, v0')
    tag_gather([(20+4*n, f'buffer_load_dwordx4 {v(20+4*n,4)}, v1, s[56:59], s8 offen offset:{1024*n} sc1') for n in range(4)], 10, sleep=6, cid=1)
    A('v_lshrrev_b32 v2, 1, v1'); A(f'v_add_u32 v2, {L_Q}, v2')
    for n in range(4):
        A(f'v_mov_b32 v{21+4*n}, v{22+4*n}'); A(f'ds_write_b64 v2, {v(20+4*n,2)} offset:{512*n}')
    lds_add(C_Q, 6)
    stamp(2)
    if 'late' in cut: A('s_endpgm')
    if mk:
        A('s_lshr_b32 s8, s6, 2'); A('s_lshl_b32 s8, s8, 11'); A('s_and_b32 s10, s6, 3'); A('s_lshl3_add_u32 s8, s10, s8'); A(f's_add_u32 s8, s8, {WS_MK}')
        A('v_lshlrev_b32 v2, 5, v0')
        tag_gather([(16, 'buffer_load_dwordx2 v[16:17], v2, s[56:59], s8 offen sc1')], 10, sleep=8, tagregs=(1, 1))
        A('v_lshl_add_u32 v2, v0, 2, v13'); A(f'ds_write_b32 v2, v16 offset:{L_MK - LM}')
        assert not sc or sc_split == 0
        notcons('L_staged')
    def svc_rank(k):
        lds_spin(C_RK, 4 * (k + 1), 6, sleep=1)
        A(f's_bfe_u32 s10, s2, {(nshb << 16) | 3:#x}'); A(f's_mul_i32 s10, s10, {RSTR}'); A(f's_add_u32 s10, s10, {WS_RANK + (RSTR << nshb) * k}')
        A('s_mov_b32 s11, 1'); A('s_atomic_add s11, s[44:45], s10 glc'); A('s_waitcnt lgkmcnt(0)')
        A(f's_mov_b32 s8, {-LEV.index(DB)}')
        for j, t_ in enumerate(THR[k]):
            A(f's_cmp_ge_u32 s11, {int(round(t_ * (256 >> nshb) / 64.0))}'); A(f's_cselect_b32 s8, {j + 1 - LEV.index(DB)}, s8')
        A('v_mov_b32 v6, s8'); A(f'ds_write_b32 v13, v6 offset:{C_LEV}')
    for k in range(len(sc or ())):
        if sc[k] < sc_split: svc_rank(k)
    lds_spin(C_PROG, 16, 6, sleep=8)
    A(f's_mov_b32 s8, {WS_CLR}')
    tag_gather([(16, 'buffer_load_dwordx4 v[16:19], v1, s[56:59], s8 offen sc1')], 10, sleep=16, tagregs=(0, 1, 2, 3), cid=2)
    notcons('L_staged')
    lds_spin(C_ML, 4, 6, sleep=4)
    A(f's_mov_b32 m0, {L_CONST}')
    A('global_load_lds_dwordx4 v1, s[16:17]'); A('global_load_lds_dwordx4 v1, s[16:17] offset:1024')
    dma(WS_MOD, L_CONST + 2048, 8)
    dma(WS_TAB, L_TABLE, NB // 2)
    A('s_waitcnt vmcnt(0)')
    stamp(3)
    A('s_branch L_staged')
    A('; ---- wave 4: publish the rest of the modulation, exchange the softmax statistics of the group')
    A('L_rest2:')
    A('v_lshlrev_b32 v2, 2, v2'); A('s_lshl_b32 s8, s47, 5'); A(f's_sub_u32 s8, s8, {128 * 32 - WS_MOD}')
    A('s_mov_b64 exec, 0xff'); A('buffer_store_dword v16, v2, s[56:59], s8 offen sc1'); A('s_mov_b64 exec, -1')
    done_event(6)
    stamp(2)
    lds_spin(C_ML, 4, 6, sleep=2)
    A('v_and_b32 v1, 7, v0'); A('v_lshlrev_b32 v1, 3, v1'); A(f'v_add_u32 v2, {L_ML}, v1')
    for w in range(4): A(f'ds_read_b64 {v(16+2*w,2)}, v2 offset:{64*w}')
    A('s_waitcnt lgkmcnt(0)')
    A('v_max_f32 v24, v16, v18'); A('v_max3_f32 v24, v20, v22, v24')
    for w in range(4): A(f'v_sub_f32 v{28+w}, v{16+2*w}, v24')
    for w in range(4): A(f'v_mul_f32 v{28+w}, s64, v{28+w}')
    for w in range(4): A(f'v_exp_f32 v{28+w}, v{28+w}')
    A('v_mul_f32 v25, v28, v17')
    for w in range(1, 4): A(f'v_fmac_f32 v25, v{28+w}, v{17+2*w}')
    A('v_mov_b32_dpp v28, v24 quad_perm:[1,1,3,3] row_mask:0xf bank_mask:0xf')
    A('v_mov_b32 v27, s46')
    A('v_mov_b32_dpp v26, v25 quad_perm:[1,1,3,3] row_mask:0xf bank_mask:0xf')
    A('v_cvt_pk_bf16_f32 v24, v24, v28')
    A('s_lshl_b32 s8, s2, 6'); A(f's_add_u32 s8, s8, {WS_ML}')
    A('s_mov_b64 exec, 0x55'); A('buffer_store_dwordx4 v[24:27], v1, s[56:59], s8 offen sc1'); A('s_mov_b64 exec, -1')
    stamp(3)
    A('v_and_b32 v2, 3, v0'); A('v_bfe_u32 v3, v0, 2, 1'); A('v_lshl_add_u32 v2, v2, 1, v3'); A('v_bfe_u32 v4, v0, 3, 2')
    A('v_lshlrev_b32 v7, 6, v4'); A('v_lshl_add_u32 v7, v2, 3, v7'); A('v_add_u32 v7, v7, v13')
    A(f'ds_read_b32 v8, v7 offset:{L_ML - LM}')
    A('v_lshlrev_b32 v7, 2, v4'); A('v_lshl_add_u32 v7, v2, 4, v7'); A('v_add_u32 v7, v7, v13')
    A('s_lshl_b32 s10, s4, 12'); A(f's_add_u32 s10, s10, {WS_ML}'); A('v_lshlrev_b32 v1, 4, v0')
    lds_spin(C_PROG, 20, 6, sleep=2)
    tag_gather([(32+4*n, f'buffer_load_dwordx4 {v(32+4*n,4)}, v1, s[56:59], s10 offen offset:{1024*n} sc1') for n in range(4)], 10, sleep=6, cid=4, tagregs=(3,))
    stamp(4)
    for n in range(4): A(f'v_lshlrev_b32 v{16+n}, 16, v{32+4*n}'); A(f'v_and_b32 v{20+n}, s62, v{32+4*n}')
    for h in range(2): A(f'v_max_f32 v{24+h}, v{16+4*h}, v{17+4*h}'); A(f'v_max3_f32 v{24+h}, v{18+4*h}, v{19+4*h}, v{24+h}')
    row_reduce('v_max_f32', [24, 25], (8, 4)); xg_reduce('v_max_f32', [24, 25], 28)
    for k in range(8): A(f'v_sub_f32 v{16+k}, v{16+k}, v{24 + k//4}')
    for k in range(8): A(f'v_mul_f32 v{16+k}, s64, v{16+k}')
    for k in range(8): A(f'v_exp_f32 v{16+k}, v{16+k}')
    for n in range(4):
        for h in range(2): A(f'{"v_mul_f32" if n == 0 else "v_fmac_f32"} v{26+h}, v{16+4*h+n}, v{33+4*n+h}')
    row_reduce('v_add_f32', [26, 27], (8, 4)); xg_reduce('v_add_f32', [26, 27], 28)
    A('v_cmp_eq_u32 vcc, 1, v3'); A('v_cndmask_b32 v24, v24, v25, vcc'); A('v_cndmask_b32 v26, v26, v27, vcc')
    A('v_rcp_f32 v26, v26')
    A('v_sub_f32 v8, v8, v24'); A('v_mul_f32 v8, s64, v8'); A('v_exp_f32 v8, v8'); A('v_mul_f32 v8, v8, v26')
    A(f'ds_write_b32 v7, v8 offset:{L_FAC - LM}')
    A('s_branch L_staged')

    A('L_tabwaves:')
    if 'tab' in cut: A('s_endpgm')
    A('s_waitcnt lgkmcnt(0)')
    svc_setup()
    A('s_cmp_eq_u32 s3, 3'); A('s_cbranch_scc1 L_tabinit')
    if 'noclr' not in cut:
        A('v_mov_b32 v20, -1'); A('v_mov_b32 v21, -1'); A('v_mov_b32 v22, -1'); A('v_mov_b32 v23, -1')
        A('v_lshrrev_b32 v1, 5, v0'); A('v_lshlrev_b32 v1, 15, v1'); A('v_and_b32 v2, 31, v0'); A('v_lshl_add_u32 v1, v2, 4, v1')
        A('v_lshrrev_b32 v3, 3, v0'); A('v_lshlrev_b32 v3, 15, v3'); A('v_and_b32 v2, 7, v0'); A('v_lshl_add_u32 v3, v2, 4, v3')
        A('s_lshl_b32 s8, s4, 17'); A('s_lshl_b32 s10, s5, 9'); A('s_add_u32 s8, s8, s10'); A(f's_add_u32 s8, s8, {WS_T1}'); A('s_add_u32 s10, s8, 0x10000')
        A('s_lshl_b32 s11, s6, 11'); A('s_lshl_b32 s14, s7, 7'); A('s_add_u32 s11, s11, s14'); A(f's_add_u32 s11, s11, {WS_T2}')
        if mk:
            A('buffer_load_dword v24, v1, s[56:59], s8 offen sc1'); A('buffer_load_dword v25, v1, s[56:59], s10 offen sc1')
        else:
            for so in ('s8', 's10'): A(f'buffer_store_dwordx4 v[20:23], v1, s[56:59], {so} offen sc1')
        A('s_mov_b64 exec, 0xff'); A('buffer_store_dwordx4 v[20:23], v3, s[56:59], s11 offen sc1'); A('s_mov_b64 exec, -1')
    A('L_tabinit:')
    A('s_and_b32 s8, s2, 127'); A(f's_mul_i32 s8, s8, {NB}'); A(f's_add_u32 s8, s8, {TAB_E0}')
    A('s_lshr_b32 s10, s2, 7'); A('s_lshl_b32 s10, s10, 15'); A('s_add_u32 s8, s8, s10')
    A('v_add_u32 v2, s8, v0'); A('v_lshlrev_b32 v2, 16, v2')
    A(f'v_cmp_gt_u32 vcc, {NB}, v0'); A('v_cndmask_b32 v12, 0, v2, vcc')
    A('s_mov_b32 s65, 0'); A('v_mov_b32 v239, 0')
    A('s_waitcnt lgkmcnt(0)'); A('s_add_u32 s46, s9, 1')
    if tb0 == 'early': A('s_barrier')
    if mk:
        assert tb0 == 'early' and nrep == 1
        A('s_cmp_eq_u32 s3, 3'); A('s_cbranch_scc1 L_mlp')
        A('s_waitcnt vmcnt(0)')
        A('v_and_b32 v24, 1, v24'); A('v_and_b32 v25, 1, v25'); A('v_cmp_eq_u32 s[16:17], 0, v24'); A('v_cmp_eq_u32 s[18:19], 0, v25')
        for k in range(4): A(f'v_writelane_b32 v24, s{16+k}, {k}')
        A('v_mov_b32 v25, s46'); A('v_lshlrev_b32 v2, 3, v0'); A('v_lshl_add_u32 v3, v0, 2, v13')
        A('s_lshl_b32 s8, s2, 5'); A(f's_add_u32 s8, s8, {WS_MK}')
        A('s_mov_b64 exec, 15'); A('buffer_store_dwordx2 v[24:25], v2, s[56:59], s8 offen sc1'); A(f'ds_write_b32 v3, v24 offset:{L_MKO}'); A('s_mov_b64 exec, -1')
        lds_add(C_Q, 6)
    A('L_mlp:')
    TR = list(range(16, 28)) + list(range(48, 56)) + [36, 37]
    NT = NB + 1
    assert NT <= len(TR) and NT <= 24
    A('s_sub_u32 s8, s3, 2'); A('s_mul_i32 s8, s8, 3584'); A('v_lshl_add_u32 v1, v0, 3, s8')
    def pload():
        for a, ptr in enumerate(('s[28:29]', 's[30:31]', 's[32:33]')):
            if 'tabl' not in cut: A(f'global_load_dwordx2 {v(56 + 2*a, 2)}, v1, {ptr}')
    pload()
    A('s_load_dword s47, s[34:35], 0')
    for k in range(NT): A(f'v_readlane_b32 s{TR[k]}, v12, {k}')
    c0 = -2.0 * math.sqrt(2.0 / math.pi) * LOG2E; c1 = c0 * 0.044715
    A(f's_mov_b32 s72, {f2u(c1):#x}'); A('s_mov_b32 s73, s72'); A(f's_mov_b32 s74, {f2u(3*c1):#x}'); A('s_mov_b32 s75, s74')
    A('s_mov_b32 s66, 1.0'); A('s_mov_b32 s67, 1.0')
    A(f'v_mov_b32 v10, {f2u(c0):#x}'); A('v_mov_b32 v11, v10')
    for k in range(48): A(f'v_mov_b32 v{64+k}, 0')
    A('s_mov_b32 s68, 0')
    if tb0 == 'late':
        A('s_cmp_eq_u32 s65, 1'); A('s_cbranch_scc1 L_mlp_loop'); A('s_barrier')
    A('.p2align 3')
    A('L_mlp_loop:')
    A('s_waitcnt vmcnt(0)')
    CO = 24
    for r in range(2):
        for a in range(3):
            A(f'v_lshlrev_b32 v{2+2*a}, 16, v{56 + 2*a + r}'); A(f'v_and_b32 v{3+2*a}, s62, v{56 + 2*a + r}')
        if r == 1:
            A('v_add_u32 v1, 0x200, v1')
            A('s_cmp_eq_u32 s68, 6'); A('s_cbranch_scc1 L_mlp_nold'); pload(); A('L_mlp_nold:')
        c = CO + 12 * r
        A('v_pk_mul_f32 v[8:9], v[2:3], v[2:3]'); A('v_pk_mul_f32 v[16:17], v[4:5], v[4:5]')
        A('v_pk_mul_f32 v[18:19], v[8:9], s[72:73]'); A('v_pk_mul_f32 v[8:9], v[8:9], s[74:75]')
        A('v_pk_fma_f32 v[20:21], v[16:17], s[74:75], v[10:11]'); A('v_pk_fma_f32 v[16:17], v[16:17], s[72:73], v[10:11]')
        A(f'v_pk_mul_f32 {v(c,2)}, v[18:19], v[2:3]'); A(f'v_pk_mul_f32 {v(c+2,2)}, v[8:9], v[4:5]')
        A(f'v_pk_mul_f32 {v(c+4,2)}, v[20:21], v[2:3]'); A(f'v_pk_mul_f32 {v(c+6,2)}, v[16:17], v[4:5]')
        A(f'v_pk_mul_f32 {v(c+8,2)}, v[2:3], v[6:7]'); A(f'v_pk_mul_f32 {v(c+10,2)}, v[4:5], v[6:7]')
    A('.p2align 3')
    for k in range(NT):
        if k == 4: A('s_cmp_eq_u32 s65, 1'); A('s_cbranch_scc1 L_mlp_next')
        sp = f's[{TR[k] & ~1}:{(TR[k] & ~1) + 1}]'; h_ = TR[k] & 1
        os_ = f'op_sel:[0,{h_},0] op_sel_hi:[1,{h_},1]'
        cs = [CO, CO + 12]
        x0 = 2 if k % 2 == 0 else 48
        for d in range(2): A(f'v_pk_fma_f32 {v(x0+2*d,2)}, {v(cs[d],2)}, {sp}, {v(cs[d]+2,2)} {os_}')
        for d in range(2): A(f'v_pk_fma_f32 {v(x0+2*d,2)}, {v(x0+2*d,2)}, {sp}, {v(cs[d]+4,2)} {os_}')
        for d in range(2): A(f'v_pk_fma_f32 {v(x0+2*d,2)}, {v(x0+2*d,2)}, {sp}, {v(cs[d]+6,2)} {os_}')
        for d in range(4): A(f'v_exp_f32 v{x0+d}, v{x0+d}')
        for d in range(2): A(f'v_pk_fma_f32 {v(x0+4+2*d,2)}, {v(cs[d]+8,2)}, {sp}, {v(cs[d]+10,2)} {os_}')
        for d in range(2): A(f'v_pk_add_f32 {v(x0+2*d,2)}, {v(x0+2*d,2)}, s[66:67]')
        for d in range(4): A(f'v_rcp_f32 v{x0+d}, v{x0+d}')
        for d in range(2): A(f'v_pk_fma_f32 {v(64+2*k,2)}, {v(x0+4+2*d,2)}, {v(x0+2*d,2)}, {v(64+2*k,2)}')
    A('L_mlp_next:')
    A('s_add_u32 s68, s68, 1'); A('s_cmp_lt_u32 s68, 7'); A('s_cbranch_scc1 L_mlp_loop')
    xstamp(4)
    for k in range(NT): A(f'v_add_f32 v{64+2*k}, v{64+2*k}, v{65+2*k}')
    for k in range(0, 24, 2): A(f'v_permlane32_swap_b32 v{64+2*k}, v{66+2*k}')
    for k in range(0, 24, 2): A(f'v_add_f32 v{64+2*k}, v{64+2*k}, v{66+2*k}')
    for k in range(0, 24, 4): A(f'v_permlane16_swap_b32 v{64+2*k}, v{68+2*k}')
    for k in range(0, 24, 4): A(f'v_add_f32 v{64+2*k}, v{64+2*k}, v{68+2*k}')
    row_reduce('v_add_f32', [64 + 8*j for j in range(6)])
    A('s_lshl_b32 s8, s3, 7'); A(f's_add_u32 s8, s8, {L_TP - 256}')
    A('v_lshrrev_b32 v2, 5, v0'); A('v_lshl_add_u32 v2, v2, 2, s8'); A('v_and_b32 v1, 16, v0'); A('v_lshrrev_b32 v1, 1, v1'); A('v_add_u32 v2, v2, v1')
    A('v_and_b32 v1, 31, v0')
    A('s_mov_b32 exec_lo, 0x00010001'); A('s_mov_b32 exec_hi, 0x00010001')
    for j in range(6): A(f'ds_write_b32 v2, v{64+8*j} offset:{16*j}')
    A('s_waitcnt lgkmcnt(0)')
    A('s_lshl_b32 s8, s65, 2'); A('v_add_u32 v3, s8, v13')
    A('s_mov_b64 exec, 1'); A('v_mov_b32 v6, 1'); A(f'ds_add_rtn_u32 v6, v3, v6 offset:{C_TAB}'); A('s_mov_b64 exec, -1')
    A('s_waitcnt lgkmcnt(0)')
    A('v_readfirstlane_b32 s8, v6')
    A('s_bitcmp1_b32 s8, 0'); A('s_cbranch_scc1 L_mlp_last')
    A('s_cmp_eq_u32 s65, 0'); A('s_cbranch_scc1 L_staged')
    A('s_branch L_batchdone')
    A('L_mlp_last:')
    A(f'v_lshlrev_b32 v2, 2, v1'); A(f'v_add_u32 v2, {L_TP}, v2')
    A('ds_read2_b32 v[16:17], v2 offset0:0 offset1:32')
    A('s_lshl_b32 s47, s47, 16')
    A('s_waitcnt lgkmcnt(0)')
    A('v_add_f32 v16, v16, v17'); rnd(16); A('v_add_f32 v16, s47, v16'); rnd(16)
    A('s_cmp_eq_u32 s65, 1'); A('s_cbranch_scc1 L_output')
    A('v_mov_b32_dpp v17, v16 quad_perm:[1,1,3,3] row_mask:0xf bank_mask:0xf')
    A('v_cvt_pk_bf16_f32 v18, v16, v17')
    A('v_lshlrev_b32 v2, 1, v0'); A(f's_mul_i32 s8, s2, {2*NB}'); A(f's_add_u32 s8, s8, {WS_TAB}')
    A(f's_mov_b64 exec, {0x55555555 & ((1 << NB) - 1):#x}'); A('buffer_store_dword v18, v2, s[56:59], s8 offen sc1')
    A(f's_mov_b64 exec, {1 << NB:#x}'); A(f'ds_write_b16 v13, v18 offset:{L_TABLE + 512 * NB - LM}')
    A('s_mov_b64 exec, -1')
    done_event(6)
    stamp(3)
    A('L_staged:')
    if sc and max(sc) >= sc_split:
        A('s_cmp_lg_u32 s3, 3'); A('s_cbranch_scc1 L_noctl')
        for k in range(len(sc)):
            if sc[k] >= sc_split: svc_rank(k)
        A('L_noctl:')
    A('s_setprio 0')
    A('s_add_u32 s3, s3, 4')
    A('s_waitcnt lgkmcnt(0)')
    stamp(5)
    if cut: A('s_endpgm')
    notcons('L_fin')
    A('s_barrier')
    prep()
    A('s_branch L_tail')

    A(';MARK tail')
    A('L_tail:')
    A('s_barrier')
    xstamp(10)
    if nrep < 8: A(f's_cmp_ge_u32 s3, {nrep}'); A('s_cbranch_scc1 L_norep')
    for w in range(2): A(f'ds_read_b128 {v(16+4*w,4)}, v229 offset:{L_RED2 - LM + 1024*w}')
    A('s_waitcnt lgkmcnt(0)')
    A('v_pk_add_f32 v[16:17], v[16:17], v[20:21]'); A('v_pk_add_f32 v[18:19], v[18:19], v[22:23]')
    for e in range(2): A(f'v_permlane32_swap_b32 v{16+e}, v{18+e}')
    A('v_pk_add_f32 v[16:17], v[16:17], v[18:19]')
    A('v_mov_b32 v18, v16'); A('v_mov_b32 v19, v17')
    for e in range(2): A(f'v_permlane16_swap_b32 v{16+e}, v{18+e}')
    A('v_pk_add_f32 v[16:17], v[16:17], v[18:19]')
    A('v_cvt_pk_bf16_f32 v16, v16, v17')
    A('v_min_u32 v16, -2, v16')
    for c in range(1, 4): A(f'v_mov_b32_dpp v{16+c}, v16 quad_perm:[{c},{c},{c},{c}] row_mask:0xf bank_mask:0xf')
    A('s_mov_b32 exec_lo, 0x1111'); A('s_mov_b32 exec_hi, 0x1111')
    A('buffer_store_dwordx4 v[16:19], v230, s[56:59], s72 offen sc1')
    A('s_mov_b64 exec, -1')
    if ackw: A('s_waitcnt vmcnt(0)')
    A('L_norep:')
    xstamp(11)
    if pref:
        def pref_cold():
            A('L_pref:')
            A('s_and_b32 s8, s2, 7'); A(f's_cmp_lg_u32 s8, {cx & 7}'); A('s_cbranch_scc1 L_fin')
            if pref == 1: A('s_barrier')
            A('v_lshlrev_b32 v1, 7, v0'); A('s_lshl_b32 s8, s3, 13'); A(f's_add_u32 s8, s8, {WS_T2}')
            for n_ in range(prefn):
                if n_: A('s_waitcnt vmcnt(0)')
                A('buffer_load_dword v2, v1, s[56:59], s8 offen sc1')
            A('s_branch L_fin')
        COLD.append(pref_cold)
    notcons('L_pref' if pref else 'L_fin')
    A('s_barrier')
    if t2x: A(f's_sleep {t2x}')
    stamp(7)
    def t2_load(n): A(f'buffer_load_dwordx4 {v(16+4*n,4)}, v244, s[56:59], {"s75" if n < 2 else "s73"} offen offset:{2048 * (n & 1)} sc1')
    for n in range(4): t2_load(n)
    sweep('t2', 4, t2_load, lambda k: 16 + 4*k, 240, 6)
    stamp(8)
    rnd(240, 241)
    A('v_pk_mul_f32 v[240:241], v[250:251], v[240:241]'); rnd(240, 241)
    A('v_pk_add_f32 v[240:241], v[248:249], v[240:241]'); rnd(240, 241)
    def stats(a, b, lds_off):
        A(f'v_add_f32 v46, v{a}, v{b}'); A(f'v_mul_f32 v47, v{a}, v{a}'); A(f'v_fmac_f32 v47, v{b}, v{b}')
        A('v_permlane32_swap_b32 v46, v47'); A('v_add_f32 v46, v46, v47')
        A('v_mov_b32 v47, v46'); A('v_permlane16_swap_b32 v46, v47'); A('v_add_f32 v46, v46, v47')
        row_reduce('v_add_f32', [46])
        A('s_mov_b32 exec_lo, 1'); A('s_mov_b32 exec_hi, 1')
        A(f'ds_write_b32 v246, v46 offset:{lds_off}')
        A('s_mov_b64 exec, -1')
        A('s_waitcnt lgkmcnt(0)')
        A('s_barrier')
    def stats_read(lds_off):
        for k in range(4): A(f'ds_read_b128 {v(48+4*k,4)}, v13 offset:{lds_off + 16*k}')
    def stats_calc(pending):
        for k in range(4):
            A(f's_waitcnt lgkmcnt({3 - k + pending})'); A(f'v_pk_add_f32 {v(48+4*k,2)}, {v(48+4*k,2)}, {v(50+4*k,2)}')
        A('v_pk_add_f32 v[48:49], v[48:49], v[52:53]'); A('v_pk_add_f32 v[56:57], v[56:57], v[60:61]')
        A('v_pk_add_f32 v[46:47], v[48:49], v[56:57]')
        A('v_pk_mul_f32 v[46:47], v[46:47], s[66:67]')
        A('v_fma_f32 v47, -v46, v46, v47'); A('v_max_f32 v47, 0, v47'); rnd(47)
        A(f'v_add_f32 v47, {f2u(1e-5):#x}, v47'); rnd(47); A('v_sqrt_f32 v47, v47'); rnd(46); rnd(47); A('v_rcp_f32 v47, v47')
    stats(240, 241, L_ST1)
    xstamp(12)
    stats_read(L_ST1); stats_calc(0)
    A('v_sub_f32 v42, v240, v46'); A('v_sub_f32 v43, v241, v46'); rnd(42, 43)
    A('v_mul_f32 v42, v42, v47'); A('v_mul_f32 v43, v43, v47'); rnd(42, 43)
    A('v_pk_mul_f32 v[42:43], v[42:43], v[254:255]'); rnd(42, 43)
    A('v_pk_add_f32 v[42:43], v[42:43], v[252:253]'); rnd(42, 43)
    stats(42, 43, L_ST2)
    xstamp(13)
    if ncb:
        A('s_lshr_b32 s8, s2, 3'); A('s_xor_b32 s8, s8, s3'); A(f's_and_b32 s8, s8, {(1 << ncb) - 1}'); A('s_cbranch_scc1 L_early')
    stats_read(L_ST2); stats_calc(0)
    A('v_sub_f32 v42, v42, v46'); A('v_sub_f32 v43, v43, v46'); rnd(42, 43)
    A('v_mul_f32 v42, v42, v47'); A('v_mul_f32 v43, v43, v47'); rnd(42, 43)
    stamp(9)
    for e in range(2):
        A(f'v_bfe_u32 v{2+e}, v{42+e}, 16, 15'); A(f'v_lshrrev_b32 v{4+e}, 31, v{42+e}'); A(f'v_subrev_u32 v{6+e}, {TAB_E0}, v{2+e}')
    for e in range(2):
        A(f'v_cmp_eq_u32 s[{16+2*e}:{17+2*e}], 0, v{2+e}'); A(f'v_cmp_gt_u32 s[{20+2*e}:{21+2*e}], v245, v{6+e}')
    for e in range(2): A(f'v_mad_u32_u24 v{6+e}, v{4+e}, v245, v{6+e}')
    for e in range(2): A(f'v_cndmask_b32 v{6+e}, v{6+e}, v247, s[{16+2*e}:{17+2*e}]')
    for e in range(2): A(f'v_lshl_add_u32 v{6+e}, v{6+e}, 1, v13'); A(f'ds_read_u16 v{16+e}, v{6+e} offset:{L_TABLE - LM}')
    for e in range(2):
        A(f's_or_b64 s[{20+2*e}:{21+2*e}], s[{20+2*e}:{21+2*e}], s[{16+2*e}:{17+2*e}]')
        if force_fb: A(f's_and_b64 s[{20+2*e}:{21+2*e}], s[{20+2*e}:{21+2*e}], {force_fb if isinstance(force_fb, str) else "0"}')
    A('s_waitcnt lgkmcnt(0)')
    A('v_lshlrev_b32 v16, 16, v16'); A('v_lshlrev_b32 v17, 16, v17')
    A('v_pk_mul_f32 v[16:17], v[16:17], v[236:237]'); rnd(16, 17)
    A('v_pk_add_f32 v[16:17], v[16:17], v[240:241]'); A('v_cvt_pk_bf16_f32 v16, v16, v17')
    A('s_mov_b64 exec, s[20:21]'); A('global_store_short v238, v16, s[40:41]')
    A('s_mov_b64 exec, s[22:23]'); A('global_store_short_d16_hi v238, v16, s[40:41] offset:16')
    A('s_and_b64 s[16:17], s[20:21], s[22:23]'); A('s_not_b64 s[16:17], s[16:17]'); A('s_cbranch_scc0 L_listed')
    for e in range(2):
        A(f's_not_b64 exec, s[{20+2*e}:{21+2*e}]')
        A('v_mov_b32 v2, 1'); A(f'ds_add_rtn_u32 v2, v13, v2 offset:{C_LIST}')
        A(f'v_mov_b32 v4, v{42+e}'); A(f'v_mov_b32 v5, v{240+e}'); A(f'v_mov_b32 v6, v{236+e}'); A(f'v_add_u32 v7, {16*e}, v238')
        A('s_waitcnt lgkmcnt(0)')
        A('v_lshlrev_b32 v2, 4, v2'); A(f'ds_write_b128 v2, v[4:7] offset:{L_LIST}')
    A('s_waitcnt lgkmcnt(0)')
    A('L_listed:')
    A('s_mov_b64 exec, -1')
    A('L_wait67:')
    A('s_barrier')
    A('s_cmp_lt_u32 s3, 6'); A('s_cbranch_scc1 L_last')
    A(f'ds_read_b32 v2, v13 offset:{C_LIST}'); A('s_waitcnt lgkmcnt(0)')
    A('v_readfirstlane_b32 s69, v2')
    A('s_cmp_eq_u32 s69, 0'); A('s_cbranch_scc1 L_fin')
    A('s_sub_u32 s3, s3, 4'); A('s_mov_b32 s65, 1'); A('s_mov_b32 s76, 0')
    A('L_batch:')
    A('v_and_b32 v2, 3, v0'); A('v_add_u32 v2, s76, v2'); A('v_cmp_gt_u32 s[78:79], s69, v2'); A('s_sub_u32 s8, s69, 1'); A('v_min_u32 v2, s8, v2')
    A('v_lshlrev_b32 v2, 4, v2'); A(f'ds_read_b128 v[236:239], v2 offset:{L_LIST}')
    A('s_waitcnt lgkmcnt(0)')
    A('v_mov_b32 v12, v236')
    A('s_branch L_mlp')
    A('L_output:')
    A('v_mul_f32 v16, v238, v16'); rnd(16)
    A('v_add_f32 v16, v237, v16'); A('v_cvt_pk_bf16_f32 v16, v16, v16')
    A('s_and_b64 exec, s[78:79], 15')
    A('global_store_short v239, v16, s[40:41]')
    A('s_mov_b64 exec, -1')
    A('L_batchdone:')
    A('s_barrier')
    A('s_add_u32 s76, s76, 4'); A('s_cmp_lt_u32 s76, s69'); A('s_cbranch_scc1 L_batch')
    A('s_branch L_fin')
    for c in COLD: c()
    A('L_early:')
    A('s_cmp_ge_u32 s3, 6'); A('s_cbranch_scc1 L_wait67')
    A('L_last:')
    A('s_cmp_lg_u32 s3, 4'); A('s_cbranch_scc1 L_fin')
    A(f's_cmp_lg_u32 s2, {cx}'); A('s_cbranch_scc1 L_fin')
    A('s_mov_b64 exec, 1'); A('v_mov_b32 v16, s46'); A(f's_mov_b32 s8, {WS_EPOCH}')
    A('buffer_store_dword v16, off, s[56:59], s8')
    if endstamp: A('s_mov_b64 exec, -1')
    A('L_fin:')
    if endstamp:
        A('s_waitcnt vmcnt(0)')
        A('s_memrealtime s[100:101]'); A('s_waitcnt lgkmcnt(0)')
        A('v_mov_b32 v61, v15')
        for k in range(11): A(f'v_writelane_b32 v61, s{80+2*k}, {k}')
        A('s_lshl_b32 s8, s2, 3'); A('s_add_u32 s8, s8, s3'); A('s_lshl_b32 s8, s8, 7'); A(f's_add_u32 s8, s8, {WS_STAMP}')
        A('v_lshlrev_b32 v1, 2, v0'); A('s_mov_b32 exec_lo, -1'); A('s_mov_b32 exec_hi, 0')
        A('buffer_store_dword v61, v1, s[56:59], s8 offen')
    if probe:
        k_, wlo, whi, op = probe
        A('s_sleep 127'); A('s_sleep 127')
        A('s_mov_b64 exec, 1')
        A('s_not_b32 s8, s80'); A('v_mov_b32 v1, s8'); A('v_mov_b32 v2, 0')
        A('global_atomic_umax v2, v1, s[42:43] sc1')
        A(f's_cmp_lt_u32 s3, {wlo}'); A('s_cbranch_scc1 L_pskip'); A(f's_cmp_gt_u32 s3, {whi}'); A('s_cbranch_scc1 L_pskip')
        A(f'v_readlane_b32 s8, v61, {k_}')
        if op == 'sum': A('s_sub_u32 s8, s8, s80')
        A('v_mov_b32 v1, s8')
        A(f'global_atomic_{"add" if op in ("sum", "cnt") else "umax"} v2, v1, s[42:43] offset:128 sc1')
        A('L_pskip:')
        A('s_waitcnt vmcnt(0)')
        A('s_cmp_lg_u32 s2, 0'); A('s_cbranch_scc1 L_end'); A('s_cmp_lg_u32 s3, 0'); A('s_cbranch_scc1 L_end')
        A('s_add_u32 s10, s80, 9000')
        A('L_ph1:'); A('s_memrealtime s[100:101]'); A('s_waitcnt lgkmcnt(0)'); A('s_sub_u32 s8, s100, s10'); A('s_cmp_lt_i32 s8, 0'); A('s_cbranch_scc1 L_ph1')
        A('global_load_dword v3, v2, s[42:43] sc1'); A('global_load_dword v4, v2, s[42:43] offset:128 sc1'); A('s_waitcnt vmcnt(0)')
        A('v_readfirstlane_b32 s10, v3'); A('v_readfirstlane_b32 s11, v4')
        A('s_not_b32 s10, s10')
        if op == 'max': A('s_sub_u32 s11, s11, s10')
        if op == 'sum': A(f's_lshr_b32 s11, s11, {(256 * (whi - wlo + 1)).bit_length() - 1}')
        A('s_min_u32 s11, s11, 6000'); A('s_mul_i32 s11, s11, 10')
        A('s_add_u32 s10, s10, 10000'); A('s_add_u32 s10, s10, s11')
        A('L_ph2:'); A('s_memrealtime s[100:101]'); A('s_waitcnt lgkmcnt(0)'); A('s_sub_u32 s8, s100, s10'); A('s_cmp_lt_i32 s8, 0'); A('s_cbranch_scc1 L_ph2')
    A('L_end:')
    A('s_endpgm')
    A('.section .rodata,"a"'); A('.p2align 6'); A(f'.amdhsa_kernel {NAME}_kernel')
    A('.amdhsa_next_free_vgpr 256'); A('.amdhsa_next_free_sgpr 102'); A('.amdhsa_accum_offset 256')
    A('.amdhsa_group_segment_fixed_size 0'); A('.amdhsa_kernarg_size 120'); A('.amdhsa_user_sgpr_count 2')
    A('.amdhsa_user_sgpr_kernarg_segment_ptr 1'); A('.amdhsa_system_sgpr_workgroup_id_x 1')
    A('.amdhsa_float_denorm_mode_32 3')
    A('.end_amdhsa_kernel')
    ia, isv, it_ = (A.L.index(';MARK ' + m) for m in ('attn2', 'service', 'tail'))
    A.L = A.L[:ia] + A.L[isv:it_] + A.L[ia:isv] + A.L[it_:]
    A.L = [l for l in A.L if not l.startswith(';MARK')]
    txt, nn = A.finish()
    return txt

if __name__ == '__main__':
    kw = eval('dict(%s)' % (sys.argv[2] if len(sys.argv) > 2 else ''))
    open(sys.argv[1], 'w').write(gen(**kw))
```

```python
import sys, struct, math
from asmlib import Asm
NAME = 'adaLN_cond__gqa_block_cached__mixer_token_mlp__decode'

def f2u(x): return struct.unpack('<I', struct.pack('<f', x))[0]
LOG2E = 1.4426950408889634

WS_MOD, WS_TAB, WS_ML, WS_Q, WS_CLR, WS_EPOCH, WS_RANK = 0x0, 0x8000, 0x10000, 0x20000, 0x28000, 0x29000, 0x30000
WS_MK = 0x2A000
WS_G = WS_Q - 384 * 64
WS_PART, WS_T2, WS_T1, WS_STAMP = 0x40000, 0xC0000, 0x100000, 0x200000
PSTR = 10240 * 8
RSTR = 256
LM = 131072
C_Q, C_ML, C_PROG, C_TAB, C_FB, C_DONE, C_P2, C_GO, C_RK, C_LEV, C_LIST = 4, 8, 12, 16, 20, 24, 28, 32, 36, 40, 44
L_ST1, L_ST2 = 128, 192
L_ML = LM + 256
L_FAC = LM + 512
L_TP = LM + 768
L_Q = LM + 1024
L_CONST = LM + 3072
NB = 20
L_TABLE = LM + 13312
L_SCR = LM + 13312 + 512 * NB + 256
L_RED2 = L_SCR + 2048
L_LIST = 0
L_MK = L_RED2 + 2048
L_MKO = 64
LDS_BYTES = 163840
assert L_MK + 256 <= LDS_BYTES
OSTRIDE = 528
TAB_E0 = (130 - NB) << 7
SPIN_CAP = 0x40000

def gen(DA=6, DB=5, early=2, WU=20, hu=16, hg=14, p2_at=14, q_at=53, r2_at=1, fin_at=40, ml_at=48,
        cps=(3, 23, 42), lev=(4, 5, 6, 8), thrs=((16, 40, 56), (16, 40, 56), (16, 40, 56), (16, 40, 56), (10, 42, 58), (6, 42, 58), (0, 40, 56)), wsh=2, rd=4, DS=5, wos=(1, 2, 3, 3, 4, 4, 6, 8), wothr=4,
        skipown=True, sc=(1, 9, 18, 27, 36, 44, 52), scr=(3, 5, 7), nshb=3, sc_split=0, mret=True, gsp=0, mk=False, swapw=False, goff=False, scr4=True, sec='late', qsh=1, osc='sc0 sc1', opk=4, otouch=False, rsl=1, gw=0, hw=0, nrep=1, cx=0, ackw=True, ncb=3, t1w='ack', t1x=0, cboost=False, pref=1, prefn=1, t2x=0, h2l=False, l2w=True, tb0='early', diag=False, lite=False, probe=None, force_fb=False, cut=(), trajA=False, header=''):
    A = Asm()
    endstamp = diag or lite
    if lite: diag = False
    COLD = []
    def stamp(k):
        if diag: A(f's_memrealtime s[{80+2*k}:{81+2*k}]'); A('s_waitcnt lgkmcnt(0)')
    def xstamp(k):
        if diag: A('s_memrealtime s[100:101]'); A('s_waitcnt lgkmcnt(0)'); A(f'v_writelane_b32 v15, s100, {16 + k}')
    def sstamp(r):
        A('s_memrealtime s[100:101]'); A('s_waitcnt lgkmcnt(0)'); A(f's_mov_b32 s{r}, s100')
    def v(a, n=1): return f'v{a}' if n == 1 else f'v[{a}:{a+n-1}]'
    def rnd(*regs):
        for a in regs: A(f'v_cvt_pk_bf16_f32 v{a}, 0, v{a}')
    def lds_spin(off, target, vt, sleep=1):
        l0 = A.lab('spin'); l1 = A.lab('spun')
        A('s_mov_b32 s14, 0')
        A(f'{l0}:')
        A(f'ds_read_b32 v{vt}, v13 offset:{off}'); A('s_waitcnt lgkmcnt(0)')
        A(f'v_readfirstlane_b32 s15, v{vt}')
        A(f's_cmp_ge_u32 s15, {target}'); A(f's_cbranch_scc1 {l1}')
        A(f's_sleep {sleep}')
        A('s_add_u32 s14, s14, 1'); A(f's_cmp_lt_u32 s14, {SPIN_CAP}'); A(f's_cbranch_scc1 {l0}')
        A(f'{l1}:')
    def lds_add(off, vt):
        A('s_waitcnt lgkmcnt(0)')
        A('s_mov_b64 exec, 1'); A(f'v_mov_b32 v{vt}, 1'); A(f'ds_add_u32 v13, v{vt} offset:{off}'); A('s_mov_b64 exec, -1')
    def done_event(vt):
        l1 = A.lab('nodone')
        A('s_waitcnt vmcnt(0) lgkmcnt(0)')
        A('s_mov_b64 exec, 1'); A(f'v_mov_b32 v{vt}, 1'); A(f'ds_add_rtn_u32 v{vt}, v13, v{vt} offset:{C_DONE}')
        A('s_waitcnt lgkmcnt(0)')
        A(f'v_readfirstlane_b32 s8, v{vt}')
        A('s_cmp_lg_u32 s8, 1'); A(f's_cbranch_scc1 {l1}')
        A('s_lshl_b32 s8, s2, 2'); A(f's_add_u32 s8, s8, {WS_CLR}'); A(f'v_mov_b32 v{vt}, s46')
        A(f'buffer_store_dword v{vt}, off, s[56:59], s8 sc1')
        A(f'{l1}:')
        A('s_mov_b64 exec, -1')
    def tag_gather(loads, vt, sleep=2, tagregs=(1, 3), cid=None):
        l0 = A.lab('tg'); l1 = A.lab('tgok')
        A('s_mov_b32 s14, 0')
        A(f'{l0}:')
        for n_, (d, txt) in enumerate(loads):
            if gw and n_ >= gw: A(f's_waitcnt vmcnt({gw-1})')
            if gsp and len(loads) == 16 and n_ and n_ % 2 == 0: A(f's_sleep {gsp}')
            A(txt)
        A('s_waitcnt vmcnt(0)')
        regs = [d + r for d, txt in loads for r in tagregs]
        A(f'v_min_u32 v{vt}, v{regs[0]}, v{regs[1]}'); A(f'v_max_u32 v{vt+1}, v{regs[0]}, v{regs[1]}')
        for k in range(2, len(regs), 2):
            A(f'v_min3_u32 v{vt}, v{regs[k]}, v{regs[k+1]}, v{vt}'); A(f'v_max3_u32 v{vt+1}, v{regs[k]}, v{regs[k+1]}, v{vt+1}')
        A(f'v_cmp_ne_u32 vcc, s46, v{vt}'); A(f'v_cmp_ne_u32 s[70:71], s46, v{vt+1}'); A('s_or_b64 vcc, vcc, s[70:71]')
        A(f's_cbranch_vccz {l1}')
        if mret: A('s_mov_b64 exec, vcc')
        A(f's_sleep {sleep * rsl}')
        A('s_add_u32 s14, s14, 1'); A(f's_cmp_lt_u32 s14, {SPIN_CAP}'); A(f's_cbranch_scc1 {l0}')
        A(f'{l1}:')
        if mret: A('s_mov_b64 exec, -1')
        if diag and cid is not None: A(f'v_writelane_b32 v15, s14, {11 + cid}')
    def xg_reduce(op, regs, t):
        for sw_ in (32, 16):
            for k, a in enumerate(regs): A(f'v_mov_b32 v{t+k}, v{a}')
            for k, a in enumerate(regs): A(f'v_permlane{sw_}_swap_b32 v{a}, v{t+k}')
            for k, a in enumerate(regs): A(f'{op} v{a}, v{a}, v{t+k}')
    def row_reduce(op, regs, steps=(8, 4, 2, 1)):
        for sh in steps:
            for a in regs: A(f'{op}_dpp v{a}, v{a}, v{a} row_ror:{sh} row_mask:0xf bank_mask:0xf')
    def perm(dst, base, m, d):
        A(f'v_perm_b32 v{dst}, v{base+8*m+4+(d>>1)}, v{base+8*m+(d>>1)}, s{60+(d&1)}')
    MREG = [16, 18, 20, 22, 24, 26, 36, 38]
    def sweep(name, n, load, dreg, acc, vt):
        marked = mk and name == 't1'
        A('s_mov_b32 s14, 0')
        if marked:
            for k in range(n): A(f's_mov_b64 s[{MREG[k]}:{MREG[k]+1}], -1')
        A(f'L_{name}_chk:')
        for k in range(n):
            d = dreg(k); m = MREG[k]
            def acc_or():
                if k == 2: A(f's_or_b64 vcc, s[{MREG[0]}:{MREG[0]+1}], s[{MREG[1]}:{MREG[1]+1}]')
                elif k > 2: A(f's_or_b64 vcc, vcc, s[{MREG[k-1]}:{MREG[k-1]+1}]')
            mf = f'v_mfma_f32_16x16x32_bf16 {v(acc,4)}, v[232:235], {v(d,4)}, {0 if k == 0 else v(acc,4)}'
            A(f's_waitcnt vmcnt({n-1-k})')
            if marked:
                A(f'v_and_b32 v{vt}, 1, v{d}'); A(f'v_and_b32 v{d}, -2, v{d}'); A(f'v_cmp_ne_u32 s[68:69], v{vt}, v{112+k}')
                acc_or(); A(mf); A(f's_and_b64 s[{m}:{m+1}], s[{m}:{m+1}], s[68:69]')
            else:
                A(f'v_max3_u32 v{vt}, v{d}, v{d+1}, v{d+2}'); A(f'v_max_u32 v{vt}, v{vt}, v{d+3}')
                A(mf); A(f'v_cmp_eq_u32 s[{m}:{m+1}], -1, v{vt}'); acc_or()
        A(f's_or_b64 vcc, vcc, s[{MREG[n-1]}:{MREG[n-1]+1}]')
        A(f's_cbranch_scc1 L_{name}_retry')
        A(f'L_{name}_done:')
        if diag: A(f'v_writelane_b32 v15, s14, {30 if name == "t1" else 31}')
        def cold():
            A(f'L_{name}_retry:')
            for k in range(n):
                A(f's_mov_b64 exec, s[{MREG[k]}:{MREG[k]+1}]'); load(k)
            A('s_mov_b64 exec, -1')
            if marked: A('s_waitcnt vmcnt(0)')
            A('s_add_u32 s14, s14, 1'); A(f's_cmp_lt_u32 s14, {SPIN_CAP}'); A(f's_cbranch_scc1 L_{name}_chk')
            A('s_waitcnt vmcnt(0)')
            A(f's_branch L_{name}_done')
        COLD.append(cold)
    def rb_calc():
        A('s_and_b32 s6, s2, 7'); A('s_lshr_b32 s8, s2, 7'); A('s_lshl1_add_u32 s6, s6, s8')
    def svc_setup():
        A(f's_load_dword s9, s[44:45], {WS_EPOCH}')
        A('s_bfe_u32 s7, s2, 0x40003')
        rb_calc()
        A('s_mov_b32 s60, 0x05040100'); A('s_mov_b32 s61, 0x07060302'); A('s_mov_b32 s62, 0xffff0000')
        A(f's_mov_b32 s64, {f2u(LOG2E):#x}')
        A('s_mov_b64 s[56:57], s[44:45]'); A('s_mov_b32 s58, 0x400000'); A('s_mov_b32 s59, 0x20000')
        A(f'v_mov_b32 v13, {LM}')
    def notcons(label):
        A(f's_and_b32 s8, s2, {0xff & ~(((1 << ncb) - 1) << 3):#x}'); A(f's_cmp_lg_u32 s8, {cx}'); A(f's_cbranch_scc1 {label}')
    def prep():
        l = A.lab('noprep')
        A('v_lshrrev_b32 v4, 4, v0'); A('v_and_b32 v5, 15, v0')
        A('v_lshrrev_b32 v9, 5, v0')
        A('v_lshl_add_u32 v229, v0, 4, v13')
        A('v_lshlrev_b32 v230, 2, v5'); A('v_lshl_add_u32 v230, v9, 6, v230')
        A('s_lshl_b32 s72, s6, 11'); A('s_lshl_b32 s8, s7, 7'); A('s_add_u32 s72, s72, s8'); A(f's_add_u32 s72, s72, {WS_T2}')
        A('v_and_b32 v7, 1, v5'); A('v_lshlrev_b32 v7, 4, v7'); A('v_mov_b32 v8, 0x3f80'); A('v_lshlrev_b32 v7, v7, v8')
        A('v_and_b32 v8, 14, v5')
        for m in range(4):
            A(f'v_cmp_eq_u32 vcc, {4*m}, v8'); A(f'v_cndmask_b32 v{232+m}, 0, v7, vcc')
        A('v_lshlrev_b32 v244, 13, v4'); A('v_lshl_add_u32 v244, v5, 4, v244')
        A('v_lshrrev_b32 v6, 3, v5'); A('v_lshlrev_b32 v6, 6, v6'); A('v_and_b32 v8, 1, v4'); A('v_lshl_add_u32 v6, v8, 5, v6')
        A('v_and_b32 v8, 4, v5'); A('v_lshl_add_u32 v6, v8, 2, v6'); A('v_and_b32 v8, 3, v5'); A('v_lshl_add_u32 v6, v8, 1, v6')
        A('v_lshrrev_b32 v8, 1, v4'); A('s_lshl_b32 s8, s3, 7'); A('v_add3_u32 v6, v6, v8, s8')
        A('v_lshlrev_b32 v238, 1, v6')
        if opk: A('v_mad_u32_u24 v228, v9, 14, v238')
        notcons(l)
        if opk: A('v_mov_b32 v231, 0x02020202'); A('v_mul_lo_u32 v231, v231, v9'); A('v_add_u32 v231, s60, v231')
        A('v_add_u32 v7, v13, v238')
        for a, r in enumerate((248, 250, 252, 254, 236)):
            for e in range(2): A(f'ds_read_u16 v{r+e}, v7 offset:{L_CONST - LM + 2048*a + 16*e}')
        A('s_lshl_b32 s75, s3, 8'); A(f's_add_u32 s75, s75, {WS_T2}'); A('s_add_u32 s73, s75, 4096')
        A(f's_mov_b32 s66, {f2u(1/1024):#x}'); A('s_mov_b32 s67, s66')
        A('v_lshlrev_b32 v246, 2, v9'); A('s_lshl_b32 s8, s3, 3'); A('v_add3_u32 v246, s8, v246, v13')
        A(f'v_mov_b32 v245, {128 * NB}'); A(f'v_mov_b32 v247, {256 * NB}')
        A('s_waitcnt lgkmcnt(0)')
        for r in list(range(248, 256)) + [236, 237]: A(f'v_lshlrev_b32 v{r}, 16, v{r}')
        A('v_add_f32 v254, 1.0, v254'); A('v_add_f32 v255, 1.0, v255'); rnd(254, 255)
        A(f'{l}:')
    def dma(base, dst, cnt):
        for n in range(cnt):
            if n % 4 == 0:
                A(f's_mov_b32 m0, {dst + 1024*n}'); A(f's_mov_b32 s8, {base + 1024*n}')
            A(f'buffer_load_dwordx4 v1, s[56:59], s8 offen offset:{(n % 4) * 1024} sc1 lds')

    for l in header.splitlines(): A(l)
    A(f'; @launch grid=(256,1,1) block=(512,1,1) lds={LDS_BYTES}')
    A('.amdgcn_target "amdgcn-amd-amdhsa--gfx950"')
    A('.text'); A(f'.globl {NAME}_kernel'); A('.p2align 8'); A(f'.type {NAME}_kernel,@function')
    A(f'{NAME}_kernel:')
    A('s_load_dwordx16 s[16:31], s[0:1], 0')
    A('s_load_dwordx8 s[32:39], s[0:1], 64')
    A('s_load_dwordx4 s[40:43], s[0:1], 96')
    A('s_load_dwordx2 s[44:45], s[0:1], 112')
    if endstamp: A('s_memrealtime s[80:81]')
    A('v_lshrrev_b32 v1, 6, v0'); A('v_and_b32 v0, 63, v0')
    A('s_lshr_b32 s4, s2, 8'); A('s_cbranch_scc1 L_end')
    A('v_readfirstlane_b32 s3, v1')
    A('s_mov_b32 s51, 0x20000')
    if swapw: A('s_xor_b32 s3, s3, 4')
    A('s_lshr_b32 s4, s2, 6'); A('s_and_b32 s5, s2, 63')
    A('s_cmp_ge_u32 s3, 4'); A('s_cbranch_scc1 L_service')

    A('; ---- attention waves 0..3: code prefetch, first K loads')
    A('s_getpc_b64 s[70:71]')
    A('L_pcref:')
    A('s_bfe_u32 s7, s2, 0x40003')
    A('s_lshl2_add_u32 s8, s7, s3'); A('s_lshl_b32 s8, s8, 9')
    A('v_lshl_add_u32 v1, v0, 7, s8'); A('v_min_u32 v1, L_end-L_pcref, v1')
    A('s_mov_b64 exec, 15'); A('global_load_dword v12, v1, s[70:71]'); A('s_mov_b64 exec, -1')
    A('s_lshl2_add_u32 s9, s5, s3'); A('s_lshl_b32 s9, s9, 13')
    A(f's_lshl_b32 s8, s4, {22 if goff else 24}'); A('s_add_u32 s9, s9, s8')
    if goff: A('s_lshl_b32 s65, s4, 24')
    A('s_lshl_b32 s12, s3, 15')
    A('v_lshrrev_b32 v13, 4, v0'); A('v_and_b32 v14, 15, v0')
    A('v_lshlrev_b32 v15, 2, v13'); A('v_xor_b32 v1, v14, v15'); A('v_lshlrev_b32 v1, 4, v1')
    A('v_lshl_add_u32 v1, v13, 8, v1')
    A('v_xor_b32 v2, 16, v1'); A('v_xor_b32 v3, 32, v1'); A('v_xor_b32 v4, 48, v1')
    A('s_mov_b32 s50, 0x1000000' if goff else 's_brev_b32 s50, 32')
    A('s_waitcnt lgkmcnt(0)')
    if goff: A('s_add_u32 s48, s18, s65'); A('s_addc_u32 s49, s19, 0')
    else: A('s_mov_b64 s[48:49], s[18:19]')
    def attn_setup():
        A('v_lshlrev_b32 v5, 4, v0')
        A('s_mov_b32 s54, s50'); A('s_mov_b32 s55, 0x20000')
        A('s_mov_b32 s60, 0x05040100'); A('s_mov_b32 s61, 0x07060302')
        A(f's_mov_b32 s63, {f2u(128 ** -0.5):#x}'); A(f's_mov_b32 s64, {f2u(LOG2E):#x}')
        A('s_mov_b32 s58, 0x400000'); A('s_mov_b32 s59, 0x20000')
        A('v_and_b32 v6, 3, v14'); A('v_lshlrev_b32 v6, 2, v6'); A('v_lshrrev_b32 v15, 2, v14'); A('v_add_u32 v6, v6, v15')
        A('v_lshlrev_b32 v6, 8, v6'); A('v_xor_b32 v15, v13, v14'); A('v_lshl_add_u32 v6, v15, 4, v6'); A('v_add_u32 v6, s12, v6')
        A('v_xor_b32 v7, 64, v6'); A('v_xor_b32 v8, 0x80, v6'); A('v_xor_b32 v9, 0xc0, v6')
        A(f'v_mov_b32 v13, {LM}')
        A('v_mov_b32 v14, 0'); A('v_lshl_add_u32 v15, v0, 2, v13'); A('ds_write_b32 v15, v14')
        if swapw: A('s_setprio 1')
        A('s_mov_b32 s70, 0xff00ff00'); A('s_mov_b32 s71, 0xff00ff00')
        if goff: A('s_add_u32 s52, s20, s65'); A('s_addc_u32 s53, s21, 0'); A('s_mov_b32 s65, 0xffffff')
        else: A('s_mov_b64 s[52:53], s[20:21]')
        A('s_mov_b64 s[56:57], s[44:45]'); A('s_mov_b64 s[66:67], s[24:25]')
        A('s_waitcnt lgkmcnt(0)')
        A('s_barrier')
    issued = [0]
    TS = 64 * 4 * 8192
    LEV = list(lev) if lev else [DB]
    if not lev: sc = None
    def throttle(D, boost):
        if issued[0] < D: return
        if boost:
            l = A.lab('go')
            for k in range(len(LEV) - 1, -1, -1):
                A(f's_waitcnt vmcnt({LEV[k]-1})')
                if k == len(LEV) - 1: A(f's_cbranch_vccnz {l}')
                elif k > 0: A(f's_cmp_eq_u32 s13, {k}'); A(f's_cbranch_scc1 {l}')
            A(f'{l}:')
        else: A(f's_waitcnt vmcnt({D-1})')
    def kload(t, n, D, boost=False):
        tolds = t < 4 or (scr4 and t == 4 and n < 4)
        if n % 4 == 0:
            if t < 4: A(f's_add_u32 m0, s12, {t * 8192 + (n // 4) * 4096}')
            elif tolds: A('s_lshl_b32 s8, s3, 12'); A(f's_add_u32 m0, s8, {L_CONST}')
            A(f's_add_u32 s10, s9, {t * TS + (n // 4) * 4096}')
        throttle(D, boost)
        if tolds: A(f'buffer_load_dwordx4 v{1 + n % 4}, s[48:51], s10 offen offset:{(n % 4) * 1024} nt lds')
        else: A(f'buffer_load_dwordx4 {v(128 + 32 * (t % 4) + 4 * n, 4)}, v{1 + n % 4}, s[48:51], s10 offen offset:{(n % 4) * 1024} nt')
        issued[0] += 1
    def vload(t, e, D, boost=False):
        if e % 4 == 0:
            A(f's_add_u32 s10, s9, {t * TS + (e // 4) * 4096}')
            if goff and t >= 2: A('s_and_b32 s10, s10, s65')
        throttle(D, boost)
        A(f'buffer_load_dwordx4 {v(128 + 32 * (t % 4) + 4 * e, 4)}, v5, s[52:55], s10 offen offset:{(e % 4) * 1024} nt')
        issued[0] += 1
    for n in range(64):
        if n == early:
            A('s_branch L_attn2'); A(';MARK attn2')
            A('L_attn2:')
            attn_setup()
            if 'svc' not in cut: lds_spin(C_GO, 1, 14)
        if diag and trajA and n >= early and (n % 8 == 0 or n == early): sstamp(24 + n // 8)
        kload(n // 8, n % 8, DA)
        if issued[0] in (p2_at, q_at): lds_add(C_PROG, 14)
    stamp(1)
    def getq():
        if not cut: lds_spin(C_Q, 2 if mk else 1, 14)
        A('v_and_b32 v14, 7, v0'); A('v_lshlrev_b32 v14, 8, v14'); A('v_lshrrev_b32 v15, 4, v0'); A('v_lshl_add_u32 v14, v15, 4, v14')
        A(f'v_add_u32 v14, {L_Q}, v14')
        for s in range(4): A(f'ds_read_b128 {v(16+4*s,4)}, v14 offset:{64*s}')
        A('v_add_u32 v1, s12, v5')
        stamp(2)
    def flush(t, ns, wait=True):
        for n in ns: A(f'ds_write_b128 v1, {v(128 + 32*t + 4*n, 4)} offset:{t * 8192 + n * 1024}')
        if wait: A('s_waitcnt lgkmcnt(0)')
    def qk(t):
        off = (t % 4) * 8192
        for hb in range(2):
            if scr4 and t == 4 and hb == 0:
                A('s_mul_i32 s8, s3, 0x7000'); A(f's_sub_u32 s8, {L_CONST}, s8')
                for s in range(4): A(f'v_add_u32 v{96+4*s}, s8, v{6+s}'); A(f'ds_read_b128 {v(96+4*s,4)}, v{96+4*s}')
                continue
            for s in range(4): A(f'ds_read_b128 {v(96+16*hb+4*s,4)}, v{6+s} offset:{off + hb*4096}')
        for hb in range(2):
            S = 32 + 8 * t + 4 * hb
            for s in range(4):
                A(f's_waitcnt lgkmcnt({7 - 4*hb - s})')
                A(f'v_mfma_f32_16x16x32_bf16 {v(S,4)}, {v(96+16*hb+4*s,4)}, {v(16+4*s,4)}, {0 if s == 0 else v(S,4)}')
    def rscale(t):
        S = 32 + 8 * t
        rnd(*range(S, S + 8))
        for k in range(8): A(f'v_mul_f32 v{S+k}, s63, v{S+k}')
        rnd(*range(S, S + 8))
        if t == 0: A(f'v_max_f32 v15, v{S}, v{S+1}')
        else: A(f'v_max3_f32 v15, v{S}, v{S+1}, v15')
        for k in range(1, 4): A(f'v_max3_f32 v15, v{S+2*k}, v{S+2*k+1}, v15')
    def mfin():
        xg_reduce('v_max_f32', [15], 14)
        A('v_mov_b32 v10, v15'); A('v_mul_f32 v12, s64, v15')
    def expo(t):
        S = 32 + 8 * t
        for k in range(8): A(f'v_fma_f32 v{S+k}, v{S+k}, s64, -v12')
        for k in range(8): A(f'v_exp_f32 v{S+k}, v{S+k}')
        for k in range(4): A(f'v_add_f32 v{96+k}, v{S+2*k}, v{S+2*k+1}')
        for k in range(4): A(f'v_cvt_pk_bf16_f32 v{S+k}, v{S+2*k}, v{S+2*k+1}')
        for k in range(4): A(f'v_cndmask_b32 v{S+4+k}, 0, v{S+k}, s[70:71]')
        for k in range(4): A(f'v_cndmask_b32 v{S+k}, v{S+k}, 0, s[70:71]')
        A('v_add_f32 v96, v96, v97'); A('v_add_f32 v98, v98, v99')
        if t == 0: A('v_add_f32 v11, v96, v98')
        else: A('v_add_f32 v96, v96, v98'); A('v_add_f32 v11, v11, v96')
    def omf(d, P, first):
        o = 16 + 4 * (d & 3)
        A(f'v_mfma_f32_16x16x32_bf16 {v(o,4)}, {v(96+4*d,4)}, {v(P + (d & 4),4)}, {0 if (first and d < 4) else v(o,4)}')
    def pvt(t, half):
        Vb = 128 + 32 * (t % 4); ds_ = list(range(4 * half, 4 * half + 4))
        for m in range(4): perm(96 + 4*ds_[0] + m, Vb, m, ds_[0])
        for k, d in enumerate(ds_):
            if k + 1 < 4:
                for m in range(4): perm(96 + 4*ds_[k+1] + m, Vb, m, ds_[k+1])
            omf(d, 32 + 8 * t, t == 0)
    def publish_ml():
        xg_reduce('v_add_f32', [11], 14)
        A('v_lshrrev_b32 v14, 1, v5'); A('s_lshl_b32 s8, s3, 6'); A(f's_add_u32 s8, s8, {L_ML}'); A('v_add_u32 v14, s8, v14')
        A('s_mov_b64 exec, 0xff'); A('ds_write_b64 v14, v[10:11]'); A('s_mov_b64 exec, -1')
        lds_add(C_ML, 14)
    def endsetup():
        if mk: A('s_lshl_b32 s8, s3, 2'); A('v_add_u32 v53, s8, v13'); A(f'ds_read_b32 v53, v53 offset:{L_MKO}')
        A('v_bfe_u32 v52, v0, 4, 1'); A('s_lshl_b32 s8, s3, 1'); A('v_add_u32 v52, s8, v52')
        A(f'v_mul_u32_u24 v48, {OSTRIDE}, v52')
        A('v_lshlrev_b32 v52, 4, v52'); A(f'v_add_u32 v52, {L_FAC}, v52')
        A('v_and_b32 v49, 15, v0'); A('v_lshl_add_u32 v48, v49, 5, v48'); A('v_lshrrev_b32 v49, 5, v0')
        A('v_lshl_add_u32 v48, v49, 4, v48'); A('v_add_u32 v49, 0x10000, v48')
        A('v_and_b32 v4, 7, v0'); A(f'v_mul_u32_u24 v50, {OSTRIDE}, v4'); A('v_and_b32 v51, 8, v0'); A('v_lshl_add_u32 v50, v51, 5, v50')
        A('v_lshlrev_b32 v1, 9, v51')
        A('v_lshrrev_b32 v51, 4, v0'); A('v_lshl_add_u32 v50, v51, 4, v50'); A('v_add_u32 v50, s12, v50')
        A('v_lshl_add_u32 v1, v51, 15, v1'); A('v_lshl_add_u32 v1, v4, 4, v1')
        A('v_lshrrev_b32 v2, 3, v0'); A('v_lshlrev_b32 v2, 12, v2'); A('v_lshl_add_u32 v2, v4, 4, v2')
        A('v_and_b32 v3, 16, v0'); A('v_lshlrev_b32 v3, 4, v3'); A('v_lshlrev_b32 v4, 2, v4')
        A('s_lshl_b32 s8, s3, 9'); A(f's_add_u32 s8, s8, {L_RED2}'); A('v_add3_u32 v3, v3, v4, s8')
        rb_calc()
        A('s_mov_b64 s[48:49], s[66:67]'); A('s_mov_b32 s50, 0x800000')
        A('s_lshl_b32 s73, s6, 8'); A('s_lshr_b32 s8, s3, 1'); A('s_lshl_b32 s8, s8, 7'); A('s_add_u32 s73, s73, s8')
        A('s_and_b32 s8, s3, 1'); A('s_lshl2_add_u32 s73, s8, s73'); A('s_lshl_b32 s73, s73, 11')
        A('s_lshl_b32 s8, s7, 7'); A('s_add_u32 s73, s73, s8')
        A('s_lshl_b32 s74, s6, 15'); A('s_lshl_b32 s8, s3, 7'); A('s_add_u32 s74, s74, s8'); A(f's_add_u32 s74, s74, {WS_T1}')
        A('s_lshl2_add_u32 s8, s4, s3'); A('s_lshl_b32 s8, s8, 15'); A('s_lshl_b32 s11, s5, 9'); A('s_add_u32 s11, s11, s8')
        A(f's_add_u32 s11, s11, {WS_T1}')
        if mk: A('s_waitcnt lgkmcnt(0)'); A('v_lshrrev_b32 v53, v0, v53')
    sched = {i: [] for i in range(-1, 64)}
    def put(pos, fn, landed=None): sched[pos].append((fn, landed))
    DM = max(LEV + [DA])
    CP = list(cps) if (len(LEV) > 1 and not sc) else []
    THR = [list(t) for t in thrs] * (len(sc or cps) if len(thrs) == 1 else 1)
    ctl = bool(CP) or bool(sc)
    NRL = (1 << nshb) * len(sc) if sc else (4 << wsh) * len(CP)
    if scr4:
        assert qsh <= 2 and (not sc or min(sc) >= qsh) and r2_at >= qsh
        put(qsh - 1, getq)
        put(qsh, lambda: qk(0)); put(qsh + 1, lambda: flush(0, range(4, 8), qsh == 2), -25)
        for t in range(1, 4):
            put(qsh + 3 * t - 1, (lambda t=t: qk(t)))
            put(qsh + 3 * t, (lambda t=t: flush(t, range(4), False)), 8 * t - 25); put(qsh + 3 * t, (lambda t=t: rscale(t - 1)))
            put(qsh + 3 * t + 1, (lambda t=t: flush(t, range(4, 8), False)))
        put(qsh + 10, lambda: rscale(3))
        for t in range(4, 8): put(qsh + 7 + t, (lambda t=t: qk(t)))
        for t in range(4, 8): put(qsh + 13 + t // 2, (lambda t=t: rscale(t)))
        put(qsh + 17, mfin)
        for t in range(8): put(qsh + 18 + t, (lambda t=t: expo(t)))
        put(qsh + 26, publish_ml)
        pp = qsh + 27
    else:
        put(-1, getq); put(-1, lambda: qk(0)); put(-1, lambda: flush(0, range(0, 3)), -25)
        put(0, lambda: flush(0, range(3, 8)))
        for t in range(1, 4):
            put(2 * t - 1, (lambda t=t: qk(t))); put(2 * t, (lambda t=t: flush(t, range(8))), 8 * t - 25)
        for t in range(4, 8): put(3 + t, (lambda t=t: qk(t)))
        for t in range(8): put(11 + t // 2, (lambda t=t: rscale(t)))
        put(15, mfin)
        for t in range(8): put(16 + t, (lambda t=t: expo(t)))
        put(24, publish_ml)
        pp = 25
    for t in range(6):
        pp = max(pp, 8 * t + 7 + DS)
        put(pp, (lambda t=t: pvt(t, 0)), 8 * t + 7); put(pp + 1, (lambda t=t: pvt(t, 1)))
        assert t >= 4 or pp + 1 < 32 + 8 * t
        pp += 2
    p5 = pp - 2
    put(60, endsetup)
    assert p5 + 1 < 60 and (not CP or max(CP) + rd < 60)
    def run(posn):
        for fn, landed in sched[posn]:
            if landed is not None and posn - landed < DM: A(f's_waitcnt vmcnt({posn - landed})')
            fn()
    if CP:
        A('s_mov_b64 vcc, 0'); A(f's_mov_b32 s13, {LEV.index(DB)}')
        A(f's_bfe_u32 s11, s2, {(wsh << 16) | 3:#x}'); A('s_lshl2_add_u32 s11, s11, s3'); A(f's_mul_i32 s11, s11, {RSTR}')
        A(f's_add_u32 s11, s11, {WS_RANK}')
        if cboost: A(f's_and_b32 s8, s2, {0xff & ~(((1 << ncb) - 1) << 3):#x}'); A(f's_cmp_eq_u32 s8, {cx}'); A(f's_cselect_b32 s68, {cboost}, 0')
        assert (4 << wsh) * len(CP) <= 128
    if sc: A('s_mov_b64 vcc, 0'); A(f's_mov_b32 s13, {LEV.index(DB)}')
    run(-1)
    for L in range(64):
        if diag and not trajA and L % 8 == 0: sstamp(24 + L // 8)
        if L in CP:
            A('s_mov_b32 s47, 1'); A(f's_atomic_add s47, s[44:45], s11 offset:{(4 << wsh) * RSTR * CP.index(L)} glc')
        vload(L // 8, L % 8, DB, ctl)
        if L - rd in CP:
            th = [int(round(t_ * (256 >> wsh) / 64.0)) for t_ in THR[CP.index(L - rd)]]
            A('s_waitcnt lgkmcnt(0)')
            if diag: A(f's_mov_b32 s{32 + CP.index(L - rd)}, s47')
            if cboost: A('s_add_u32 s47, s47, s68')
            A('s_mov_b32 s13, 0')
            for k, t_ in enumerate(th[:-1]):
                A(f's_cmp_ge_u32 s47, {t_}'); A(f's_cselect_b32 s13, {k+1}, s13')
            A(f's_cmp_ge_u32 s47, {th[-1]}'); A('s_cselect_b64 vcc, -1, 0')
        if sc and L in sc: lds_add(C_RK, 14)
        if sc and any(L - r_ in sc for r_ in scr):
            A(f'ds_read_b32 v14, v13 offset:{C_LEV}'); A('s_waitcnt lgkmcnt(0)')
            A('v_readfirstlane_b32 s13, v14'); A(f's_add_u32 s13, s13, {LEV.index(DB)}')
            A(f's_cmp_eq_u32 s13, {len(LEV) - 1}'); A('s_cselect_b64 vcc, -1, 0')
        if L in (r2_at, fin_at, ml_at): lds_add(C_PROG, 14)
        run(L)
    assert r2_at < fin_at < ml_at
    stamp(3)
    NWO = [0]
    def wo_upto(k):
        while NWO[0] < k:
            n = NWO[0]; m, hh = n >> 1, n & 1
            if n < wothr: throttle(DB, ctl)
            A(f's_add_u32 s10, s73, {(64 * (m & 1) + 8 * hh + (m >> 1)) * 2048}')
            A(f'buffer_load_dwordx4 {v(128 + 4*n, 4)}, v1, s[48:51], s10 offen nt')
            NWO[0] += 1
    wo_upto(wos[0])
    A(f's_waitcnt vmcnt({8 + NWO[0]})')
    pvt(6, 0); wo_upto(wos[1]); pvt(6, 1); wo_upto(wos[2])
    Vb = 128 + 96; P = 32 + 56
    for m in range(3):
        A(f's_waitcnt vmcnt({6 - 2*m + NWO[0]})')
        for d in range(8): perm(96 + 4*d + m, Vb, m, d)
        wo_upto(wos[3 + m])
    A(f's_waitcnt vmcnt({NWO[0]})')
    stamp(4)
    if cut:
        for k in range(8): A(f'v_writelane_b32 v15, s{24+k}, {16+k}')
        A('s_branch L_fin')
    order = [0, 4, 1, 5, 2, 6, 3, 7]
    for d in order[:3]: perm(96 + 4*d + 3, Vb, 3, d)
    for k, d in enumerate(order):
        omf(d, P, False)
        if k + 3 < 8: perm(96 + 4*order[k+3] + 3, Vb, 3, order[k+3])
    wo_upto(wos[6])
    for d in range(4): A(f'ds_write_b128 v50, {v(16+4*d,4)} offset:{64*d}')
    wo_upto(wos[7])
    A('s_waitcnt lgkmcnt(0)')
    A('s_barrier')
    A('ds_read_b128 v[16:19], v52')
    A('ds_read_b128 v[32:35], v48'); A('ds_read_b128 v[36:39], v48 offset:32768')
    A('ds_read_b128 v[40:43], v49'); A('ds_read_b128 v[44:47], v49 offset:32768')
    for w in range(4):
        A(f's_waitcnt lgkmcnt({3-w})')
        for k in range(2):
            f_ = v(16 + (w & 2), 2); h_ = w & 1
            if w == 0: A(f'v_pk_mul_f32 {v(32+2*k,2)}, {v(32+2*k,2)}, {f_} op_sel:[0,{h_}] op_sel_hi:[1,{h_}]')
            else: A(f'v_pk_fma_f32 {v(32+2*k,2)}, {v(32+4*w+2*k,2)}, {f_}, {v(32+2*k,2)} op_sel:[0,{h_},0] op_sel_hi:[1,{h_},1]')
    A('v_cvt_pk_bf16_f32 v24, v32, v33'); A('v_cvt_pk_bf16_f32 v25, v34, v35')
    if not mk: A('v_min_u32 v24, -2, v24'); A('v_min_u32 v25, -2, v25')
    A('v_permlane32_swap_b32 v24, v26'); A('v_permlane32_swap_b32 v25, v27')
    if mk: A('v_bfi_b32 v24, 1, v53, v24')
    A('s_mov_b32 exec_hi, 0')
    A('buffer_store_dwordx4 v[24:27], v5, s[56:59], s11 offen sc1')
    A('s_mov_b64 exec, -1')
    late_wo = NWO[0] < 8; nlate = 8 - NWO[0]
    wo_upto(8)
    stamp(5)
    if diag:
        for k in range(8): A(f'v_writelane_b32 v15, s{24+k}, {16+k}')
        for k in range(5): A(f'v_writelane_b32 v15, s{32+k}, {11+k}')
        A('s_load_dwordx16 s[16:31], s[0:1], 0'); A('s_load_dwordx8 s[32:39], s[0:1], 64'); A('s_waitcnt lgkmcnt(0)')
    def t1_load(n): A(f'buffer_load_dwordx4 {v(160+4*n,4)}, v2, s[56:59], s74 offen offset:{512*n} sc1')
    if mk:
        A('v_and_b32 v30, 56, v0'); A('v_lshl_add_u32 v30, v30, 2, v13')
        A(f'ds_read_b128 v[112:115], v30 offset:{L_MK - LM}'); A(f'ds_read_b128 v[116:119], v30 offset:{L_MK - LM + 16}')
    prep()
    if mk:
        A('v_and_b32 v30, 7, v0'); A('s_lshl_b32 s8, s3, 3'); A('v_add_u32 v30, s8, v30')
        A('s_waitcnt lgkmcnt(0)')
        for n in range(8): A(f'v_bfe_u32 v{112+n}, v{112+n}, v30, 1')
    xstamp(8)
    if t1w == 'ack2': A(f's_waitcnt vmcnt({nlate})'); t1w = 'pre'
    if isinstance(t1w, int): A(f's_waitcnt vmcnt({t1w})'); t1w = 'pre'
    if t1w == 'pre':
        if t1x: A(f's_sleep {t1x}')
        for n in range(8): t1_load(n)
    A(f's_waitcnt vmcnt({(9 if t1w == "pre" else 1) - late_wo})')
    for e in range(8):
        for m in range(4): perm(192 + 4*e + m, 128, m, e)
    if t1w == 'ack': A('s_waitcnt vmcnt(0)')
    if t1w != 'pre':
        if t1x: A(f's_sleep {t1x}')
        for n in range(8): t1_load(n)
    xstamp(9)
    sweep('t1', 8, t1_load, lambda k: 160 + 4*k, 60, 6)
    stamp(6)
    row_reduce('v_add_f32', [60, 61], (8,))
    A('v_cvt_pk_bf16_f32 v60, v60, v61')
    for c in range(4): A(f'v_mov_b32_dpp v{224+c}, v60 quad_perm:[{c},{c},{c},{c}] row_mask:0xf bank_mask:0xf')
    for e in range(8): A(f'v_mfma_f32_16x16x32_bf16 {v(64+4*e,4)}, v[224:227], {v(192+4*e,4)}, 0')
    A('s_mov_b32 exec_lo, 0xff0000ff'); A('s_mov_b32 exec_hi, 0')
    for e in range(0, 8, 2): A(f'ds_write2_b32 v3, v{64+4*e}, v{68+4*e} offset0:{8*e} offset1:{8*e+8}')
    A('s_mov_b64 exec, -1')
    A('s_waitcnt lgkmcnt(0)')

    A(';MARK service')
    A('L_service:')
    if 'svc' in cut: A('s_endpgm')
    A('s_sub_u32 s3, s3, 4')
    A('s_cmp_ge_u32 s3, 2'); A('s_cbranch_scc1 L_tabwaves')
    A('s_and_b32 s55, s2, 4'); A('s_lshr_b32 s55, s55, 1')
    A('s_lshr_b32 s53, s2, 3'); A('s_and_b32 s8, s2, 3'); A('s_lshl2_add_u32 s53, s53, s8')
    A('s_cmp_eq_u32 s3, 1'); A('s_cselect_b32 s65, 1, s55')
    A('s_setprio 3')
    A('L_unit:')
    A('s_and_b32 s67, s53, 63'); A('s_add_u32 s67, s67, 32'); A('s_lshr_b32 s69, s53, 6'); A('s_add_u32 s69, s69, s55'); A('s_movk_i32 s66, 0x3000')
    A('s_and_b32 s8, s53, 31'); A('s_lshr_b32 s10, s53, 5')
    A('s_cmp_eq_u32 s65, 0'); A('s_cselect_b32 s67, s8, s67'); A('s_cselect_b32 s69, s10, s69')
    A('s_add_u32 s68, s5, 96')
    A('s_cmp_eq_u32 s65, 1'); A('s_cselect_b32 s68, s68, s67'); A('s_cselect_b32 s67, s5, s67'); A('s_cselect_b32 s66, 0x2000, s66'); A('s_cselect_b32 s69, s4, s69')
    A('s_lshl_b32 s50, s66, 10'); A('s_lshl_b32 s67, s67, 7')
    A('v_and_b32 v1, 56, v0'); A('v_mul_u32_u24 v1, s66, v1')
    A('v_and_b32 v2, 7, v0'); A('v_lshl_add_u32 v1, v2, 4, v1')
    A('s_cmp_eq_u32 s65, 3'); A('s_cselect_b32 s8, 7, 8'); A('s_lshl_b32 s54, s69, s8')
    A('s_mul_i32 s10, s54, s66'); A('s_add_u32 s10, s10, s67')
    A('s_mul_i32 s11, s66, 57')
    A('s_lshl_b32 s8, s54, 1'); A('v_lshl_add_u32 v2, v0, 2, s8')
    A('s_waitcnt lgkmcnt(0)')
    xstamp(0)
    A('s_mov_b64 s[48:49], s[38:39]'); A('s_mov_b64 s[70:71], s[36:37]')
    A('s_cmp_lg_u32 s65, 1'); A('s_cbranch_scc1 L_notq')
    A('s_mov_b64 s[48:49], s[22:23]'); A('s_mov_b64 s[70:71], s[16:17]')
    A('v_lshlrev_b32 v3, 5, v0')
    A('s_barrier')
    A('global_load_dwordx4 v[16:19], v3, s[16:17]'); A('global_load_dwordx4 v[20:23], v3, s[16:17] offset:16')
    A('L_notq:')
    A('global_load_dword v4, v2, s[70:71]'); A('global_load_dword v5, v2, s[70:71] offset:256')
    for G in range(4):
        if G == 2: A('s_cmp_eq_u32 s65, 3'); A('s_cbranch_scc1 L_halfl')
        if G == 1:
            svc_setup()
            if ctl:
                A('s_cmp_lg_u32 s65, 0'); A('s_cbranch_scc1 L_norclr')
                A(f's_cmp_ge_u32 s53, {NRL}'); A('s_cbranch_scc1 L_norclr')
                A(f's_mul_i32 s8, s53, {RSTR}'); A(f's_add_u32 s8, s8, {WS_RANK}')
                A('s_mov_b64 exec, 1'); A('buffer_store_dword v0, off, s[56:59], s8 sc1'); A('s_mov_b64 exec, -1')
                A('L_norclr:')
        for r in range(8):
            if hw and G < 2 and 8*G + r >= hw:
                l = A.lab('hw'); A('s_cmp_lg_u32 s65, 3'); A(f's_cbranch_scc1 {l}'); A(f's_waitcnt vmcnt({hw-1})'); A(f'{l}:')
            if 8*G + r >= WU: A(f's_waitcnt vmcnt({WU-1})')
            A(f'buffer_load_dwordx4 {v(128+32*G+4*r,4)}, v1, s[48:51], s10 offen nt')
            if not (G == 3 and r == 7): A(f's_add_u32 s10, s10, {"s11" if r == 7 else "s66"}')
    A('s_cmp_eq_u32 s65, 1'); A('s_cbranch_scc1 L_go')
    A(f's_waitcnt vmcnt({hu})')
    A('s_barrier')
    A('s_branch L_went')
    A('L_halfl:')
    A('s_waitcnt vmcnt(0)')
    A('s_branch L_went')
    A('L_go:')
    A(f's_waitcnt vmcnt({hg})')
    lds_add(C_GO, 10)
    A('L_went:')
    A('s_waitcnt lgkmcnt(0)'); A('s_add_u32 s46, s9, 1')
    A('s_lshl2_add_u32 s47, s68, s69')
    A('s_lshl_b32 s68, s68, 9'); A(f's_mul_i32 s8, s69, {PSTR}'); A('s_add_u32 s68, s68, s8'); A(f's_add_u32 s68, s68, {WS_PART}')
    xstamp(3)
    A('v_lshlrev_b32 v6, 16, v4'); A('v_and_b32 v7, s62, v4'); A('v_lshlrev_b32 v8, 16, v5'); A('v_and_b32 v9, s62, v5')
    A('s_cmp_eq_u32 s65, 1'); A('s_cbranch_scc1 L_jobq')
    for k in range(4): A(f'v_mul_f32 v{24+k}, s64, v{6+k}')
    for k in range(4): A(f'v_exp_f32 v{24+k}, -v{24+k}')
    for k in range(4): A(f'v_add_f32 v{24+k}, 1.0, v{24+k}')
    for k in range(4): A(f'v_rcp_f32 v{24+k}, v{24+k}')
    for k in range(4): A(f'v_mul_f32 v{6+k}, v{6+k}, v{24+k}')
    A('L_jobcommon:')
    def jobq():
        A('L_jobq:')
        for k in range(8):
            A(f'v_lshlrev_b32 v{96+2*k}, 16, v{16+k}'); A(f'v_and_b32 v{97+2*k}, s62, v{16+k}')
        A('v_add_f32 v24, v96, v97')
        for k in range(2, 16): A(f'v_add_f32 v24, v24, v{96+k}')
        row_reduce('v_add_f32', [24]); xg_reduce('v_add_f32', [24], 25)
        A(f'v_mul_f32 v24, {f2u(1/1024):#x}, v24')
        for k in range(16): A(f'v_sub_f32 v{96+k}, v{96+k}, v24')
        A('v_mul_f32 v26, v96, v96')
        for k in range(1, 16): A(f'v_fmac_f32 v26, v{96+k}, v{96+k}')
        row_reduce('v_add_f32', [26]); xg_reduce('v_add_f32', [26], 25)
        A(f'v_mul_f32 v26, {f2u(1/1024):#x}, v26')
        rnd(24, 26)
        A(f'v_add_f32 v26, {f2u(1e-5):#x}, v26'); rnd(26); A('v_sqrt_f32 v26, v26'); rnd(26); A('v_rcp_f32 v26, v26')
        for k in range(4): A(f'v_sub_f32 v{6+k}, v{6+k}, v24')
        rnd(6, 7, 8, 9)
        for k in range(4): A(f'v_mul_f32 v{6+k}, v{6+k}, v26')
        rnd(6, 7, 8, 9)
        if h2l:
            A('v_lshlrev_b32 v3, 1, v2'); A(f's_mov_b32 s72, {WS_G}'); A(f's_mov_b32 s73, {WS_G + 4096}')
            loads = [(16 + 4*a + 2*k, f'buffer_load_dwordx2 {v(16 + 4*a + 2*k, 2)}, v3, s[56:59], s{72+a} offen offset:{512*k} sc1') for a in range(2) for k in range(2)]
            A('s_waitcnt vmcnt(0)')
            lds_spin(C_PROG, 4, 10)
            if 'p2g' not in cut: tag_gather(loads, 10, cid=0, tagregs=(1,))
            for q_ in range(4): A(f'v_lshlrev_b32 v{96+2*q_}, 16, v{16+2*q_}'); A(f'v_and_b32 v{97+2*q_}, s62, v{16+2*q_}')
        else:
            A('v_lshlrev_b32 v3, 2, v2')
            loads = []
            for a in range(2):
                for rho in range(4):
                    A(f's_mov_b32 s{72 + 4*a + rho}, {WS_PART + rho * PSTR + a * 8192}')
                    for k in range(2):
                        d = 16 + 32*a + 16*k + 4*rho
                        loads.append((d, f'buffer_load_dwordx4 {v(d,4)}, v3, s[56:59], s{72 + 4*a + rho} offen offset:{1024*k} sc1'))
            A('s_waitcnt vmcnt(0)')
            lds_spin(C_PROG, 4, 10)
            if 'p2g' not in cut: tag_gather(loads, 10, cid=0)
            for q_ in range(4):
                b_ = 16 + 16 * q_
                for j in range(2):
                    A(f'v_add_f32 v{b_+2*j}, v{b_+2*j}, v{b_+4+2*j}'); A(f'v_add_f32 v{b_+8+2*j}, v{b_+8+2*j}, v{b_+12+2*j}')
                for j in range(2): A(f'v_add_f32 v{96+2*q_+j}, v{b_+2*j}, v{b_+8+2*j}')
            rnd(*range(96, 104))
        for k in range(4): A(f'v_add_f32 v{100+k}, 1.0, v{100+k}')
        rnd(100, 101, 102, 103)
        for k in range(4): A(f'v_mul_f32 v{6+k}, v{6+k}, v{100+k}')
        rnd(6, 7, 8, 9)
        for k in range(4): A(f'v_add_f32 v{6+k}, v{6+k}, v{96+k}')
        A('s_branch L_jobcommon')
    A('v_cvt_pk_bf16_f32 v4, v6, v7'); A('v_cvt_pk_bf16_f32 v5, v8, v9')
    A('s_lshl_b32 s8, s3, 10'); A(f's_add_u32 s8, s8, {L_SCR}')
    A('v_lshl_add_u32 v2, v0, 2, s8')
    A('ds_write2_b32 v2, v4, v5 offset0:0 offset1:64')
    A('v_lshrrev_b32 v3, 4, v0'); A('v_lshlrev_b32 v3, 1, v3'); A('v_and_b32 v6, 1, v0'); A('v_add_u32 v3, v3, v6'); A('v_lshl_add_u32 v3, v3, 4, s8')
    A('s_waitcnt lgkmcnt(0)')
    for G in range(4): A(f'ds_read_b128 {v(32+8*G,4)}, v3 offset:{128*G}')
    A('s_waitcnt lgkmcnt(0)')
    for G in range(4):
        if G == 2: A('s_cmp_eq_u32 s65, 3'); A('s_cbranch_scc1 L_halfg')
        A(f's_waitcnt vmcnt({24 - 8*G})')
        if G in (0, 3): xstamp(5 if G == 0 else 6)
        for m in range(4): perm(96 + m, 128 + 32*G, m, 0)
        for d in range(8):
            if d + 1 < 8:
                for m in range(4): perm(96 + 4*(d+1) + m, 128 + 32*G, m, d + 1)
            A(f'v_mfma_f32_16x16x32_bf16 {v(64+4*d,4)}, {v(96+4*d,4)}, {v(32+8*G,4)}, {0 if G == 0 else v(64+4*d,4)}')
    A('L_halfg:')
    A('v_lshrrev_b32 v3, 5, v0'); A('v_lshlrev_b32 v3, 8, v3'); A('v_and_b32 v6, 16, v0'); A('v_add3_u32 v3, v3, v6, s8')
    A('v_and_b32 v6, 3, v0'); A('v_lshlrev_b32 v6, 6, v6'); A('v_bfe_u32 v7, v0, 2, 3'); A('v_lshl_add_u32 v6, v7, 2, v6'); A('v_add_u32 v6, s8, v6')
    A('s_mov_b32 exec_lo, 0x00010001'); A('s_mov_b32 exec_hi, 0x00020002')
    for e in range(8): A(f'ds_write_b128 v3, {v(64+4*e,4)} offset:{512 + 32*e}')
    A('s_mov_b32 exec_lo, -1'); A('s_mov_b32 exec_hi, 0')
    A('s_waitcnt lgkmcnt(0)')
    A('ds_read2_b32 v[16:17], v6 offset0:128 offset1:136'); A('ds_read2_b32 v[20:21], v6 offset0:192 offset1:200')
    A('v_lshlrev_b32 v3, 4, v0'); A('v_mov_b32 v19, s46')
    A('s_lshl_b32 s8, s69, 3'); A('s_lshl_b32 s52, 0xff, s8'); A('s_not_b32 s52, s52')
    if not skipown: A('s_mov_b32 s52, -1')
    if not h2l: A('s_cmp_eq_u32 s65, 0'); A('s_cselect_b32 s52, -1, s52')
    A('s_waitcnt lgkmcnt(0)')
    A('v_add_f32 v18, v17, v21'); A('v_add_f32 v16, v16, v20'); A('v_mov_b32 v17, s46')
    A('s_cmp_lg_u32 s65, 3'); A('s_cbranch_scc1 L_nomrg')
    A('v_add_f32 v16, v16, v28'); A('v_add_f32 v18, v18, v29')
    A('L_nomrg:')
    A('v_mov_b32 v28, v16'); A('v_mov_b32 v29, v18')
    A('s_cmp_eq_u32 s65, 2'); A('s_cbranch_scc1 L_nopub')
    A('v_mov_b32 v28, 0'); A('v_mov_b32 v29, 0')
    A('s_mov_b32 exec_lo, s52')
    if 'nopub' not in cut: A('buffer_store_dwordx4 v[16:19], v3, s[56:59], s68 offen sc1')
    A('L_nopub:')
    A('s_mov_b64 exec, -1')
    A('s_bitcmp1_b32 s65, 0'); A('s_cbranch_scc1 L_unit_done')
    if h2l and 'nopub' not in cut: A('s_cmp_eq_u32 s65, 0'); A('s_cbranch_scc1 L_lvl2')
    A('L_second:')
    xstamp(7)
    if sec == 'late': lds_spin(C_P2, 1, 6, sleep=4)
    A('s_mov_b32 s65, 3'); A('s_branch L_unit')
    jobq()
    A('L_unit_done:')
    stamp(1)
    if 'qg' in cut: lds_add(C_P2, 10); A('s_endpgm')
    A('s_cmp_eq_u32 s3, 1'); A('s_cbranch_scc1 L_lvl2')
    if 'late' in cut: A('s_endpgm')
    lds_spin(C_PROG, 12, 6, sleep=8)
    A('L_lvl2:')
    if l2w is True: A('s_waitcnt vmcnt(0)')
    elif l2w: A(f's_sleep {l2w}')
    A('v_lshrrev_b32 v1, 3, v0'); A(f's_mov_b32 s8, {PSTR}'); A('v_mul_lo_u32 v1, v1, s8'); A('v_and_b32 v2, 7, v0'); A('v_lshl_add_u32 v1, v2, 4, v1')
    A('s_lshl_b32 s8, s47, 7'); A(f's_add_u32 s8, s8, {WS_PART}')
    A('s_mov_b32 exec_lo, s52'); A('s_mov_b32 exec_hi, 0')
    tag_gather([(16, 'buffer_load_dwordx4 v[16:19], v1, s[56:59], s8 offen sc1')], 10, sleep=6, cid=3)
    A('s_mov_b64 exec, -1')
    row_reduce('v_add_f32', [16, 18], (8,))
    for r in (16, 18): A(f'v_mov_b32 v{r+4}, v{r}')
    for r in (16, 18): A(f'v_permlane16_swap_b32 v{r}, v{r+4}')
    for r in (16, 18): A(f'v_add_f32 v{r}, v{r}, v{r+4}')
    A('v_cvt_pk_bf16_f32 v16, v16, v18')
    A('s_cmp_eq_u32 s65, 3'); A('s_cbranch_scc1 L_rest2')
    A('; ---- wave 5: publish and gather q, later stage the modulation vectors')
    A('v_lshlrev_b32 v2, 3, v2'); A('s_lshl_b32 s8, s47, 6'); A(f's_add_u32 s8, s8, {WS_G}')
    A('s_mov_b64 exec, 0xff'); A('buffer_store_dwordx2 v[16:17], v2, s[56:59], s8 offen sc1'); A('s_mov_b64 exec, -1')
    A('s_cmp_eq_u32 s65, 0'); A('s_cbranch_scc1 L_second')
    lds_add(C_P2, 10)
    xstamp(7)
    lds_spin(C_PROG, 8, 6, sleep=4)
    A('s_lshl_b32 s8, s4, 12'); A(f's_add_u32 s8, s8, {WS_Q}'); A('v_lshlrev_b32 v1, 4, v0')
    tag_gather([(20+4*n, f'buffer_load_dwordx4 {v(20+4*n,4)}, v1, s[56:59], s8 offen offset:{1024*n} sc1') for n in range(4)], 10, sleep=6, cid=1)
    A('v_lshrrev_b32 v2, 1, v1'); A(f'v_add_u32 v2, {L_Q}, v2')
    for n in range(4):
        A(f'v_mov_b32 v{21+4*n}, v{22+4*n}'); A(f'ds_write_b64 v2, {v(20+4*n,2)} offset:{512*n}')
    lds_add(C_Q, 6)
    stamp(2)
    if 'late' in cut: A('s_endpgm')
    if mk:
        A('s_lshr_b32 s8, s6, 2'); A('s_lshl_b32 s8, s8, 11'); A('s_and_b32 s10, s6, 3'); A('s_lshl3_add_u32 s8, s10, s8'); A(f's_add_u32 s8, s8, {WS_MK}')
        A('v_lshlrev_b32 v2, 5, v0')
        tag_gather([(16, 'buffer_load_dwordx2 v[16:17], v2, s[56:59], s8 offen sc1')], 10, sleep=8, tagregs=(1, 1))
        A('v_lshl_add_u32 v2, v0, 2, v13'); A(f'ds_write_b32 v2, v16 offset:{L_MK - LM}')
        assert not sc or sc_split == 0
        notcons('L_staged')
    def svc_rank(k):
        lds_spin(C_RK, 4 * (k + 1), 6, sleep=1)
        A(f's_bfe_u32 s10, s2, {(nshb << 16) | 3:#x}'); A(f's_mul_i32 s10, s10, {RSTR}'); A(f's_add_u32 s10, s10, {WS_RANK + (RSTR << nshb) * k}')
        A('s_mov_b32 s11, 1'); A('s_atomic_add s11, s[44:45], s10 glc'); A('s_waitcnt lgkmcnt(0)')
        A(f's_mov_b32 s8, {-LEV.index(DB)}')
        for j, t_ in enumerate(THR[k]):
            A(f's_cmp_ge_u32 s11, {int(round(t_ * (256 >> nshb) / 64.0))}'); A(f's_cselect_b32 s8, {j + 1 - LEV.index(DB)}, s8')
        A('v_mov_b32 v6, s8'); A(f'ds_write_b32 v13, v6 offset:{C_LEV}')
    for k in range(len(sc or ())):
        if sc[k] < sc_split: svc_rank(k)
    lds_spin(C_PROG, 16, 6, sleep=8)
    A(f's_mov_b32 s8, {WS_CLR}')
    tag_gather([(16, 'buffer_load_dwordx4 v[16:19], v1, s[56:59], s8 offen sc1')], 10, sleep=16, tagregs=(0, 1, 2, 3), cid=2)
    notcons('L_staged')
    lds_spin(C_ML, 4, 6, sleep=4)
    A(f's_mov_b32 m0, {L_CONST}')
    A('global_load_lds_dwordx4 v1, s[16:17]'); A('global_load_lds_dwordx4 v1, s[16:17] offset:1024')
    dma(WS_MOD, L_CONST + 2048, 8)
    dma(WS_TAB, L_TABLE, NB // 2)
    if otouch: A('v_lshlrev_b32 v2, 5, v0'); A('global_load_dword v3, v2, s[40:41]')
    A('s_waitcnt vmcnt(0)')
    stamp(3)
    A('s_branch L_staged')
    A('; ---- wave 4: publish the rest of the modulation, exchange the softmax statistics of the group')
    A('L_rest2:')
    A('v_lshlrev_b32 v2, 2, v2'); A('s_lshl_b32 s8, s47, 5'); A(f's_sub_u32 s8, s8, {128 * 32 - WS_MOD}')
    A('s_mov_b64 exec, 0xff'); A('buffer_store_dword v16, v2, s[56:59], s8 offen sc1'); A('s_mov_b64 exec, -1')
    done_event(6)
    stamp(2)
    lds_spin(C_ML, 4, 6, sleep=2)
    A('v_and_b32 v1, 7, v0'); A('v_lshlrev_b32 v1, 3, v1'); A(f'v_add_u32 v2, {L_ML}, v1')
    for w in range(4): A(f'ds_read_b64 {v(16+2*w,2)}, v2 offset:{64*w}')
    A('s_waitcnt lgkmcnt(0)')
    A('v_max_f32 v24, v16, v18'); A('v_max3_f32 v24, v20, v22, v24')
    for w in range(4): A(f'v_sub_f32 v{28+w}, v{16+2*w}, v24')
    for w in range(4): A(f'v_mul_f32 v{28+w}, s64, v{28+w}')
    for w in range(4): A(f'v_exp_f32 v{28+w}, v{28+w}')
    A('v_mul_f32 v25, v28, v17')
    for w in range(1, 4): A(f'v_fmac_f32 v25, v{28+w}, v{17+2*w}')
    A('v_mov_b32_dpp v28, v24 quad_perm:[1,1,3,3] row_mask:0xf bank_mask:0xf')
    A('v_mov_b32 v27, s46')
    A('v_mov_b32_dpp v26, v25 quad_perm:[1,1,3,3] row_mask:0xf bank_mask:0xf')
    A('v_cvt_pk_bf16_f32 v24, v24, v28')
    A('s_lshl_b32 s8, s2, 6'); A(f's_add_u32 s8, s8, {WS_ML}')
    A('s_mov_b64 exec, 0x55'); A('buffer_store_dwordx4 v[24:27], v1, s[56:59], s8 offen sc1'); A('s_mov_b64 exec, -1')
    stamp(3)
    A('v_and_b32 v2, 3, v0'); A('v_bfe_u32 v3, v0, 2, 1'); A('v_lshl_add_u32 v2, v2, 1, v3'); A('v_bfe_u32 v4, v0, 3, 2')
    A('v_lshlrev_b32 v7, 6, v4'); A('v_lshl_add_u32 v7, v2, 3, v7'); A('v_add_u32 v7, v7, v13')
    A(f'ds_read_b32 v8, v7 offset:{L_ML - LM}')
    A('v_lshlrev_b32 v7, 2, v4'); A('v_lshl_add_u32 v7, v2, 4, v7'); A('v_add_u32 v7, v7, v13')
    A('s_lshl_b32 s10, s4, 12'); A(f's_add_u32 s10, s10, {WS_ML}'); A('v_lshlrev_b32 v1, 4, v0')
    lds_spin(C_PROG, 20, 6, sleep=2)
    tag_gather([(32+4*n, f'buffer_load_dwordx4 {v(32+4*n,4)}, v1, s[56:59], s10 offen offset:{1024*n} sc1') for n in range(4)], 10, sleep=6, cid=4, tagregs=(3,))
    stamp(4)
    for n in range(4): A(f'v_lshlrev_b32 v{16+n}, 16, v{32+4*n}'); A(f'v_and_b32 v{20+n}, s62, v{32+4*n}')
    for h in range(2): A(f'v_max_f32 v{24+h}, v{16+4*h}, v{17+4*h}'); A(f'v_max3_f32 v{24+h}, v{18+4*h}, v{19+4*h}, v{24+h}')
    row_reduce('v_max_f32', [24, 25], (8, 4)); xg_reduce('v_max_f32', [24, 25], 28)
    for k in range(8): A(f'v_sub_f32 v{16+k}, v{16+k}, v{24 + k//4}')
    for k in range(8): A(f'v_mul_f32 v{16+k}, s64, v{16+k}')
    for k in range(8): A(f'v_exp_f32 v{16+k}, v{16+k}')
    for n in range(4):
        for h in range(2): A(f'{"v_mul_f32" if n == 0 else "v_fmac_f32"} v{26+h}, v{16+4*h+n}, v{33+4*n+h}')
    row_reduce('v_add_f32', [26, 27], (8, 4)); xg_reduce('v_add_f32', [26, 27], 28)
    A('v_cmp_eq_u32 vcc, 1, v3'); A('v_cndmask_b32 v24, v24, v25, vcc'); A('v_cndmask_b32 v26, v26, v27, vcc')
    A('v_rcp_f32 v26, v26')
    A('v_sub_f32 v8, v8, v24'); A('v_mul_f32 v8, s64, v8'); A('v_exp_f32 v8, v8'); A('v_mul_f32 v8, v8, v26')
    A(f'ds_write_b32 v7, v8 offset:{L_FAC - LM}')
    A('s_branch L_staged')

    A('L_tabwaves:')
    if 'tab' in cut: A('s_endpgm')
    A('s_waitcnt lgkmcnt(0)')
    svc_setup()
    A('s_cmp_eq_u32 s3, 3'); A('s_cbranch_scc1 L_tabinit')
    if 'noclr' not in cut:
        A('v_mov_b32 v20, -1'); A('v_mov_b32 v21, -1'); A('v_mov_b32 v22, -1'); A('v_mov_b32 v23, -1')
        A('v_lshrrev_b32 v1, 5, v0'); A('v_lshlrev_b32 v1, 15, v1'); A('v_and_b32 v2, 31, v0'); A('v_lshl_add_u32 v1, v2, 4, v1')
        A('v_lshrrev_b32 v3, 3, v0'); A('v_lshlrev_b32 v3, 15, v3'); A('v_and_b32 v2, 7, v0'); A('v_lshl_add_u32 v3, v2, 4, v3')
        A('s_lshl_b32 s8, s4, 17'); A('s_lshl_b32 s10, s5, 9'); A('s_add_u32 s8, s8, s10'); A(f's_add_u32 s8, s8, {WS_T1}'); A('s_add_u32 s10, s8, 0x10000')
        A('s_lshl_b32 s11, s6, 11'); A('s_lshl_b32 s14, s7, 7'); A('s_add_u32 s11, s11, s14'); A(f's_add_u32 s11, s11, {WS_T2}')
        if mk:
            A('buffer_load_dword v24, v1, s[56:59], s8 offen sc1'); A('buffer_load_dword v25, v1, s[56:59], s10 offen sc1')
        else:
            for so in ('s8', 's10'): A(f'buffer_store_dwordx4 v[20:23], v1, s[56:59], {so} offen sc1')
        A('s_mov_b64 exec, 0xff'); A('buffer_store_dwordx4 v[20:23], v3, s[56:59], s11 offen sc1'); A('s_mov_b64 exec, -1')
    A('L_tabinit:')
    A('s_and_b32 s8, s2, 127'); A(f's_mul_i32 s8, s8, {NB}'); A(f's_add_u32 s8, s8, {TAB_E0}')
    A('s_lshr_b32 s10, s2, 7'); A('s_lshl_b32 s10, s10, 15'); A('s_add_u32 s8, s8, s10')
    A('v_add_u32 v2, s8, v0'); A('v_lshlrev_b32 v2, 16, v2')
    A(f'v_cmp_gt_u32 vcc, {NB}, v0'); A('v_cndmask_b32 v12, 0, v2, vcc')
    A('s_mov_b32 s65, 0'); A('v_mov_b32 v239, 0')
    A('s_waitcnt lgkmcnt(0)'); A('s_add_u32 s46, s9, 1')
    if tb0 == 'early': A('s_barrier')
    if mk:
        assert tb0 == 'early' and nrep == 1
        A('s_cmp_eq_u32 s3, 3'); A('s_cbranch_scc1 L_mlp')
        A('s_waitcnt vmcnt(0)')
        A('v_and_b32 v24, 1, v24'); A('v_and_b32 v25, 1, v25'); A('v_cmp_eq_u32 s[16:17], 0, v24'); A('v_cmp_eq_u32 s[18:19], 0, v25')
        for k in range(4): A(f'v_writelane_b32 v24, s{16+k}, {k}')
        A('v_mov_b32 v25, s46'); A('v_lshlrev_b32 v2, 3, v0'); A('v_lshl_add_u32 v3, v0, 2, v13')
        A('s_lshl_b32 s8, s2, 5'); A(f's_add_u32 s8, s8, {WS_MK}')
        A('s_mov_b64 exec, 15'); A('buffer_store_dwordx2 v[24:25], v2, s[56:59], s8 offen sc1'); A(f'ds_write_b32 v3, v24 offset:{L_MKO}'); A('s_mov_b64 exec, -1')
        lds_add(C_Q, 6)
    A('L_mlp:')
    TR = list(range(16, 28)) + list(range(48, 56)) + [36, 37]
    NT = NB + 1
    assert NT <= len(TR) and NT <= 24
    A('s_sub_u32 s8, s3, 2'); A('s_mul_i32 s8, s8, 3584'); A('v_lshl_add_u32 v1, v0, 3, s8')
    def pload():
        for a, ptr in enumerate(('s[28:29]', 's[30:31]', 's[32:33]')):
            if 'tabl' not in cut: A(f'global_load_dwordx2 {v(56 + 2*a, 2)}, v1, {ptr}')
    pload()
    A('s_load_dword s47, s[34:35], 0')
    for k in range(NT): A(f'v_readlane_b32 s{TR[k]}, v12, {k}')
    c0 = -2.0 * math.sqrt(2.0 / math.pi) * LOG2E; c1 = c0 * 0.044715
    A(f's_mov_b32 s72, {f2u(c1):#x}'); A('s_mov_b32 s73, s72'); A(f's_mov_b32 s74, {f2u(3*c1):#x}'); A('s_mov_b32 s75, s74')
    A('s_mov_b32 s66, 1.0'); A('s_mov_b32 s67, 1.0')
    A(f'v_mov_b32 v10, {f2u(c0):#x}'); A('v_mov_b32 v11, v10')
    for k in range(48): A(f'v_mov_b32 v{64+k}, 0')
    A('s_mov_b32 s68, 0')
    if tb0 == 'late':
        A('s_cmp_eq_u32 s65, 1'); A('s_cbranch_scc1 L_mlp_loop'); A('s_barrier')
    A('.p2align 3')
    A('L_mlp_loop:')
    A('s_waitcnt vmcnt(0)')
    CO = 24
    for r in range(2):
        for a in range(3):
            A(f'v_lshlrev_b32 v{2+2*a}, 16, v{56 + 2*a + r}'); A(f'v_and_b32 v{3+2*a}, s62, v{56 + 2*a + r}')
        if r == 1:
            A('v_add_u32 v1, 0x200, v1')
            A('s_cmp_eq_u32 s68, 6'); A('s_cbranch_scc1 L_mlp_nold'); pload(); A('L_mlp_nold:')
        c = CO + 12 * r
        A('v_pk_mul_f32 v[8:9], v[2:3], v[2:3]'); A('v_pk_mul_f32 v[16:17], v[4:5], v[4:5]')
        A('v_pk_mul_f32 v[18:19], v[8:9], s[72:73]'); A('v_pk_mul_f32 v[8:9], v[8:9], s[74:75]')
        A('v_pk_fma_f32 v[20:21], v[16:17], s[74:75], v[10:11]'); A('v_pk_fma_f32 v[16:17], v[16:17], s[72:73], v[10:11]')
        A(f'v_pk_mul_f32 {v(c,2)}, v[18:19], v[2:3]'); A(f'v_pk_mul_f32 {v(c+2,2)}, v[8:9], v[4:5]')
        A(f'v_pk_mul_f32 {v(c+4,2)}, v[20:21], v[2:3]'); A(f'v_pk_mul_f32 {v(c+6,2)}, v[16:17], v[4:5]')
        A(f'v_pk_mul_f32 {v(c+8,2)}, v[2:3], v[6:7]'); A(f'v_pk_mul_f32 {v(c+10,2)}, v[4:5], v[6:7]')
    A('.p2align 3')
    for k in range(NT):
        if k == 4: A('s_cmp_eq_u32 s65, 1'); A('s_cbranch_scc1 L_mlp_next')
        sp = f's[{TR[k] & ~1}:{(TR[k] & ~1) + 1}]'; h_ = TR[k] & 1
        os_ = f'op_sel:[0,{h_},0] op_sel_hi:[1,{h_},1]'
        cs = [CO, CO + 12]
        x0 = 2 if k % 2 == 0 else 48
        for d in range(2): A(f'v_pk_fma_f32 {v(x0+2*d,2)}, {v(cs[d],2)}, {sp}, {v(cs[d]+2,2)} {os_}')
        for d in range(2): A(f'v_pk_fma_f32 {v(x0+2*d,2)}, {v(x0+2*d,2)}, {sp}, {v(cs[d]+4,2)} {os_}')
        for d in range(2): A(f'v_pk_fma_f32 {v(x0+2*d,2)}, {v(x0+2*d,2)}, {sp}, {v(cs[d]+6,2)} {os_}')
        for d in range(4): A(f'v_exp_f32 v{x0+d}, v{x0+d}')
        for d in range(2): A(f'v_pk_fma_f32 {v(x0+4+2*d,2)}, {v(cs[d]+8,2)}, {sp}, {v(cs[d]+10,2)} {os_}')
        for d in range(2): A(f'v_pk_add_f32 {v(x0+2*d,2)}, {v(x0+2*d,2)}, s[66:67]')
        for d in range(4): A(f'v_rcp_f32 v{x0+d}, v{x0+d}')
        for d in range(2): A(f'v_pk_fma_f32 {v(64+2*k,2)}, {v(x0+4+2*d,2)}, {v(x0+2*d,2)}, {v(64+2*k,2)}')
    A('L_mlp_next:')
    A('s_add_u32 s68, s68, 1'); A('s_cmp_lt_u32 s68, 7'); A('s_cbranch_scc1 L_mlp_loop')
    xstamp(4)
    for k in range(NT): A(f'v_add_f32 v{64+2*k}, v{64+2*k}, v{65+2*k}')
    for k in range(0, 24, 2): A(f'v_permlane32_swap_b32 v{64+2*k}, v{66+2*k}')
    for k in range(0, 24, 2): A(f'v_add_f32 v{64+2*k}, v{64+2*k}, v{66+2*k}')
    for k in range(0, 24, 4): A(f'v_permlane16_swap_b32 v{64+2*k}, v{68+2*k}')
    for k in range(0, 24, 4): A(f'v_add_f32 v{64+2*k}, v{64+2*k}, v{68+2*k}')
    row_reduce('v_add_f32', [64 + 8*j for j in range(6)])
    A('s_lshl_b32 s8, s3, 7'); A(f's_add_u32 s8, s8, {L_TP - 256}')
    A('v_lshrrev_b32 v2, 5, v0'); A('v_lshl_add_u32 v2, v2, 2, s8'); A('v_and_b32 v1, 16, v0'); A('v_lshrrev_b32 v1, 1, v1'); A('v_add_u32 v2, v2, v1')
    A('v_and_b32 v1, 31, v0')
    A('s_mov_b32 exec_lo, 0x00010001'); A('s_mov_b32 exec_hi, 0x00010001')
    for j in range(6): A(f'ds_write_b32 v2, v{64+8*j} offset:{16*j}')
    A('s_waitcnt lgkmcnt(0)')
    A('s_lshl_b32 s8, s65, 2'); A('v_add_u32 v3, s8, v13')
    A('s_mov_b64 exec, 1'); A('v_mov_b32 v6, 1'); A(f'ds_add_rtn_u32 v6, v3, v6 offset:{C_TAB}'); A('s_mov_b64 exec, -1')
    A('s_waitcnt lgkmcnt(0)')
    A('v_readfirstlane_b32 s8, v6')
    A('s_bitcmp1_b32 s8, 0'); A('s_cbranch_scc1 L_mlp_last')
    A('s_cmp_eq_u32 s65, 0'); A('s_cbranch_scc1 L_staged')
    A('s_branch L_batchdone')
    A('L_mlp_last:')
    A(f'v_lshlrev_b32 v2, 2, v1'); A(f'v_add_u32 v2, {L_TP}, v2')
    A('ds_read2_b32 v[16:17], v2 offset0:0 offset1:32')
    A('s_lshl_b32 s47, s47, 16')
    A('s_waitcnt lgkmcnt(0)')
    A('v_add_f32 v16, v16, v17'); rnd(16); A('v_add_f32 v16, s47, v16'); rnd(16)
    A('s_cmp_eq_u32 s65, 1'); A('s_cbranch_scc1 L_output')
    A('v_mov_b32_dpp v17, v16 quad_perm:[1,1,3,3] row_mask:0xf bank_mask:0xf')
    A('v_cvt_pk_bf16_f32 v18, v16, v17')
    A('v_lshlrev_b32 v2, 1, v0'); A(f's_mul_i32 s8, s2, {2*NB}'); A(f's_add_u32 s8, s8, {WS_TAB}')
    A(f's_mov_b64 exec, {0x55555555 & ((1 << NB) - 1):#x}'); A('buffer_store_dword v18, v2, s[56:59], s8 offen sc1')
    A(f's_mov_b64 exec, {1 << NB:#x}'); A(f'ds_write_b16 v13, v18 offset:{L_TABLE + 512 * NB - LM}')
    A('s_mov_b64 exec, -1')
    done_event(6)
    stamp(3)
    A('L_staged:')
    if sc and max(sc) >= sc_split:
        A('s_cmp_lg_u32 s3, 3'); A('s_cbranch_scc1 L_noctl')
        for k in range(len(sc)):
            if sc[k] >= sc_split: svc_rank(k)
        A('L_noctl:')
    A('s_setprio 0')
    A('s_add_u32 s3, s3, 4')
    A('s_waitcnt lgkmcnt(0)')
    stamp(5)
    if cut: A('s_endpgm')
    notcons('L_fin')
    A('s_barrier')
    prep()
    A('s_branch L_tail')

    A(';MARK tail')
    A('L_tail:')
    A('s_barrier')
    xstamp(10)
    if nrep < 8: A(f's_cmp_ge_u32 s3, {nrep}'); A('s_cbranch_scc1 L_norep')
    for w in range(2): A(f'ds_read_b128 {v(16+4*w,4)}, v229 offset:{L_RED2 - LM + 1024*w}')
    A('s_waitcnt lgkmcnt(0)')
    A('v_pk_add_f32 v[16:17], v[16:17], v[20:21]'); A('v_pk_add_f32 v[18:19], v[18:19], v[22:23]')
    for e in range(2): A(f'v_permlane32_swap_b32 v{16+e}, v{18+e}')
    A('v_pk_add_f32 v[16:17], v[16:17], v[18:19]')
    A('v_mov_b32 v18, v16'); A('v_mov_b32 v19, v17')
    for e in range(2): A(f'v_permlane16_swap_b32 v{16+e}, v{18+e}')
    A('v_pk_add_f32 v[16:17], v[16:17], v[18:19]')
    A('v_cvt_pk_bf16_f32 v16, v16, v17')
    A('v_min_u32 v16, -2, v16')
    for c in range(1, 4): A(f'v_mov_b32_dpp v{16+c}, v16 quad_perm:[{c},{c},{c},{c}] row_mask:0xf bank_mask:0xf')
    A('s_mov_b32 exec_lo, 0x1111'); A('s_mov_b32 exec_hi, 0x1111')
    A('buffer_store_dwordx4 v[16:19], v230, s[56:59], s72 offen sc1')
    A('s_mov_b64 exec, -1')
    if ackw: A('s_waitcnt vmcnt(0)')
    A('L_norep:')
    xstamp(11)
    if pref:
        def pref_cold():
            A('L_pref:')
            A('s_and_b32 s8, s2, 7'); A(f's_cmp_lg_u32 s8, {cx & 7}'); A('s_cbranch_scc1 L_fin')
            if pref == 1: A('s_barrier')
            A('v_lshlrev_b32 v1, 7, v0'); A('s_lshl_b32 s8, s3, 13'); A(f's_add_u32 s8, s8, {WS_T2}')
            for n_ in range(prefn):
                if n_: A('s_waitcnt vmcnt(0)')
                A('buffer_load_dword v2, v1, s[56:59], s8 offen sc1')
            A('s_branch L_fin')
        COLD.append(pref_cold)
    notcons('L_pref' if pref else 'L_fin')
    A('s_barrier')
    if t2x: A(f's_sleep {t2x}')
    stamp(7)
    def t2_load(n): A(f'buffer_load_dwordx4 {v(16+4*n,4)}, v244, s[56:59], {"s75" if n < 2 else "s73"} offen offset:{2048 * (n & 1)} sc1')
    for n in range(4): t2_load(n)
    sweep('t2', 4, t2_load, lambda k: 16 + 4*k, 240, 6)
    stamp(8)
    rnd(240, 241)
    A('v_pk_mul_f32 v[240:241], v[250:251], v[240:241]'); rnd(240, 241)
    A('v_pk_add_f32 v[240:241], v[248:249], v[240:241]'); rnd(240, 241)
    def stats(a, b, lds_off):
        A(f'v_add_f32 v46, v{a}, v{b}'); A(f'v_mul_f32 v47, v{a}, v{a}'); A(f'v_fmac_f32 v47, v{b}, v{b}')
        A('v_permlane32_swap_b32 v46, v47'); A('v_add_f32 v46, v46, v47')
        A('v_mov_b32 v47, v46'); A('v_permlane16_swap_b32 v46, v47'); A('v_add_f32 v46, v46, v47')
        row_reduce('v_add_f32', [46])
        A('s_mov_b32 exec_lo, 1'); A('s_mov_b32 exec_hi, 1')
        A(f'ds_write_b32 v246, v46 offset:{lds_off}')
        A('s_mov_b64 exec, -1')
        A('s_waitcnt lgkmcnt(0)')
        A('s_barrier')
    def stats_read(lds_off):
        for k in range(4): A(f'ds_read_b128 {v(48+4*k,4)}, v13 offset:{lds_off + 16*k}')
    def stats_calc(pending):
        for k in range(4):
            A(f's_waitcnt lgkmcnt({3 - k + pending})'); A(f'v_pk_add_f32 {v(48+4*k,2)}, {v(48+4*k,2)}, {v(50+4*k,2)}')
        A('v_pk_add_f32 v[48:49], v[48:49], v[52:53]'); A('v_pk_add_f32 v[56:57], v[56:57], v[60:61]')
        A('v_pk_add_f32 v[46:47], v[48:49], v[56:57]')
        A('v_pk_mul_f32 v[46:47], v[46:47], s[66:67]')
        A('v_fma_f32 v47, -v46, v46, v47'); A('v_max_f32 v47, 0, v47'); rnd(47)
        A(f'v_add_f32 v47, {f2u(1e-5):#x}, v47'); rnd(47); A('v_sqrt_f32 v47, v47'); rnd(46); rnd(47); A('v_rcp_f32 v47, v47')
    stats(240, 241, L_ST1)
    xstamp(12)
    stats_read(L_ST1); stats_calc(0)
    A('v_sub_f32 v42, v240, v46'); A('v_sub_f32 v43, v241, v46'); rnd(42, 43)
    A('v_mul_f32 v42, v42, v47'); A('v_mul_f32 v43, v43, v47'); rnd(42, 43)
    A('v_pk_mul_f32 v[42:43], v[42:43], v[254:255]'); rnd(42, 43)
    A('v_pk_add_f32 v[42:43], v[42:43], v[252:253]'); rnd(42, 43)
    stats(42, 43, L_ST2)
    xstamp(13)
    if ncb:
        A('s_lshr_b32 s8, s2, 3'); A('s_xor_b32 s8, s8, s3'); A(f's_and_b32 s8, s8, {(1 << ncb) - 1}'); A('s_cbranch_scc1 L_early')
    stats_read(L_ST2); stats_calc(0)
    A('v_sub_f32 v42, v42, v46'); A('v_sub_f32 v43, v43, v46'); rnd(42, 43)
    A('v_mul_f32 v42, v42, v47'); A('v_mul_f32 v43, v43, v47'); rnd(42, 43)
    stamp(9)
    for e in range(2):
        A(f'v_bfe_u32 v{2+e}, v{42+e}, 16, 15'); A(f'v_lshrrev_b32 v{4+e}, 31, v{42+e}'); A(f'v_subrev_u32 v{6+e}, {TAB_E0}, v{2+e}')
    for e in range(2):
        A(f'v_cmp_eq_u32 s[{16+2*e}:{17+2*e}], 0, v{2+e}'); A(f'v_cmp_gt_u32 s[{20+2*e}:{21+2*e}], v245, v{6+e}')
    for e in range(2): A(f'v_mad_u32_u24 v{6+e}, v{4+e}, v245, v{6+e}')
    for e in range(2): A(f'v_cndmask_b32 v{6+e}, v{6+e}, v247, s[{16+2*e}:{17+2*e}]')
    for e in range(2): A(f'v_lshl_add_u32 v{6+e}, v{6+e}, 1, v13'); A(f'ds_read_u16 v{16+e}, v{6+e} offset:{L_TABLE - LM}')
    for e in range(2):
        A(f's_or_b64 s[{20+2*e}:{21+2*e}], s[{20+2*e}:{21+2*e}], s[{16+2*e}:{17+2*e}]')
        if force_fb: A(f's_and_b64 s[{20+2*e}:{21+2*e}], s[{20+2*e}:{21+2*e}], {force_fb if isinstance(force_fb, str) else "0"}')
    A('s_waitcnt lgkmcnt(0)')
    A('v_lshlrev_b32 v16, 16, v16'); A('v_lshlrev_b32 v17, 16, v17')
    A('v_pk_mul_f32 v[16:17], v[16:17], v[236:237]'); rnd(16, 17)
    A('v_pk_add_f32 v[16:17], v[16:17], v[240:241]'); A('v_cvt_pk_bf16_f32 v16, v16, v17')
    if opk:
        A('v_mov_b32 v17, v16'); A('s_and_b64 s[16:17], s[20:21], s[22:23]'); A('s_not_b64 s[16:17], s[16:17]')
        A('v_permlane32_swap_b32 v16, v17')
        A('s_cbranch_scc1 L_slowout')
        A('v_perm_b32 v16, v17, v16, v231')
        if opk == 4:
            for c in range(1, 4): A(f'v_mov_b32_dpp v{16+c}, v16 quad_perm:[{c},{c},{c},{c}] row_mask:0xf bank_mask:0xf')
            A('s_mov_b32 exec_lo, 0x11111111'); A('s_mov_b32 exec_hi, 0x11111111')
            A(f'global_store_dwordx4 v228, v[16:19], s[40:41] {osc}')
        else: A(f'global_store_dword v228, v16, s[40:41] {osc}')
        A('s_branch L_listed')
        A('L_slowout:')
        A('v_permlane32_swap_b32 v16, v17')
        A('s_mov_b64 exec, s[20:21]'); A('global_store_short v238, v16, s[40:41]')
        A('s_mov_b64 exec, s[22:23]'); A('global_store_short_d16_hi v238, v16, s[40:41] offset:16')
    else:
        A('s_mov_b64 exec, s[20:21]'); A(f'global_store_short v238, v16, s[40:41] {osc}')
        A('s_mov_b64 exec, s[22:23]'); A(f'global_store_short_d16_hi v238, v16, s[40:41] offset:16 {osc}')
        A('s_and_b64 s[16:17], s[20:21], s[22:23]'); A('s_not_b64 s[16:17], s[16:17]'); A('s_cbranch_scc0 L_listed')
    for e in range(2):
        A(f's_not_b64 exec, s[{20+2*e}:{21+2*e}]')
        A('v_mov_b32 v2, 1'); A(f'ds_add_rtn_u32 v2, v13, v2 offset:{C_LIST}')
        A(f'v_mov_b32 v4, v{42+e}'); A(f'v_mov_b32 v5, v{240+e}'); A(f'v_mov_b32 v6, v{236+e}'); A(f'v_add_u32 v7, {16*e}, v238')
        A('s_waitcnt lgkmcnt(0)')
        A('v_lshlrev_b32 v2, 4, v2'); A(f'ds_write_b128 v2, v[4:7] offset:{L_LIST}')
    A('s_waitcnt lgkmcnt(0)')
    A('L_listed:')
    A('s_mov_b64 exec, -1')
    A('L_wait67:')
    A('s_barrier')
    A('s_cmp_lt_u32 s3, 6'); A('s_cbranch_scc1 L_last')
    A(f'ds_read_b32 v2, v13 offset:{C_LIST}'); A('s_waitcnt lgkmcnt(0)')
    A('v_readfirstlane_b32 s69, v2')
    A('s_cmp_eq_u32 s69, 0'); A('s_cbranch_scc1 L_fin')
    A('s_sub_u32 s3, s3, 4'); A('s_mov_b32 s65, 1'); A('s_mov_b32 s76, 0')
    A('L_batch:')
    A('v_and_b32 v2, 3, v0'); A('v_add_u32 v2, s76, v2'); A('v_cmp_gt_u32 s[78:79], s69, v2'); A('s_sub_u32 s8, s69, 1'); A('v_min_u32 v2, s8, v2')
    A('v_lshlrev_b32 v2, 4, v2'); A(f'ds_read_b128 v[236:239], v2 offset:{L_LIST}')
    A('s_waitcnt lgkmcnt(0)')
    A('v_mov_b32 v12, v236')
    A('s_branch L_mlp')
    A('L_output:')
    A('v_mul_f32 v16, v238, v16'); rnd(16)
    A('v_add_f32 v16, v237, v16'); A('v_cvt_pk_bf16_f32 v16, v16, v16')
    A('s_and_b64 exec, s[78:79], 15')
    A('global_store_short v239, v16, s[40:41]')
    A('s_mov_b64 exec, -1')
    A('L_batchdone:')
    A('s_barrier')
    A('s_add_u32 s76, s76, 4'); A('s_cmp_lt_u32 s76, s69'); A('s_cbranch_scc1 L_batch')
    A('s_branch L_fin')
    for c in COLD: c()
    A('L_early:')
    A('s_cmp_ge_u32 s3, 6'); A('s_cbranch_scc1 L_wait67')
    A('L_last:')
    A('s_cmp_lg_u32 s3, 4'); A('s_cbranch_scc1 L_fin')
    A(f's_cmp_lg_u32 s2, {cx}'); A('s_cbranch_scc1 L_fin')
    A('s_mov_b64 exec, 1'); A('v_mov_b32 v16, s46'); A(f's_mov_b32 s8, {WS_EPOCH}')
    A(f'buffer_store_dword v16, off, s[56:59], s8 {osc}')
    if endstamp: A('s_mov_b64 exec, -1')
    A('L_fin:')
    if endstamp:
        A('s_waitcnt vmcnt(0)')
        A('s_memrealtime s[100:101]'); A('s_waitcnt lgkmcnt(0)')
        A('v_mov_b32 v61, v15')
        for k in range(11): A(f'v_writelane_b32 v61, s{80+2*k}, {k}')
        A('s_lshl_b32 s8, s2, 3'); A('s_add_u32 s8, s8, s3'); A('s_lshl_b32 s8, s8, 7'); A(f's_add_u32 s8, s8, {WS_STAMP}')
        A('v_lshlrev_b32 v1, 2, v0'); A('s_mov_b32 exec_lo, -1'); A('s_mov_b32 exec_hi, 0')
        A('buffer_store_dword v61, v1, s[56:59], s8 offen')
    if probe:
        k_, wlo, whi, op = probe
        A('s_sleep 127'); A('s_sleep 127')
        A('s_mov_b64 exec, 1')
        A('s_not_b32 s8, s80'); A('v_mov_b32 v1, s8'); A('v_mov_b32 v2, 0')
        A('global_atomic_umax v2, v1, s[42:43] sc1')
        A(f's_cmp_lt_u32 s3, {wlo}'); A('s_cbranch_scc1 L_pskip'); A(f's_cmp_gt_u32 s3, {whi}'); A('s_cbranch_scc1 L_pskip')
        A(f'v_readlane_b32 s8, v61, {k_}')
        if op == 'sum': A('s_sub_u32 s8, s8, s80')
        A('v_mov_b32 v1, s8')
        A(f'global_atomic_{"add" if op in ("sum", "cnt") else "umax"} v2, v1, s[42:43] offset:128 sc1')
        A('L_pskip:')
        A('s_waitcnt vmcnt(0)')
        A('s_cmp_lg_u32 s2, 0'); A('s_cbranch_scc1 L_end'); A('s_cmp_lg_u32 s3, 0'); A('s_cbranch_scc1 L_end')
        A('s_add_u32 s10, s80, 9000')
        A('L_ph1:'); A('s_memrealtime s[100:101]'); A('s_waitcnt lgkmcnt(0)'); A('s_sub_u32 s8, s100, s10'); A('s_cmp_lt_i32 s8, 0'); A('s_cbranch_scc1 L_ph1')
        A('global_load_dword v3, v2, s[42:43] sc1'); A('global_load_dword v4, v2, s[42:43] offset:128 sc1'); A('s_waitcnt vmcnt(0)')
        A('v_readfirstlane_b32 s10, v3'); A('v_readfirstlane_b32 s11, v4')
        A('s_not_b32 s10, s10')
        if op == 'max': A('s_sub_u32 s11, s11, s10')
        if op == 'sum': A(f's_lshr_b32 s11, s11, {(256 * (whi - wlo + 1)).bit_length() - 1}')
        A('s_min_u32 s11, s11, 6000'); A('s_mul_i32 s11, s11, 10')
        A('s_add_u32 s10, s10, 10000'); A('s_add_u32 s10, s10, s11')
        A('L_ph2:'); A('s_memrealtime s[100:101]'); A('s_waitcnt lgkmcnt(0)'); A('s_sub_u32 s8, s100, s10'); A('s_cmp_lt_i32 s8, 0'); A('s_cbranch_scc1 L_ph2')
    A('L_end:')
    A('s_endpgm')
    A('.section .rodata,"a"'); A('.p2align 6'); A(f'.amdhsa_kernel {NAME}_kernel')
    A('.amdhsa_next_free_vgpr 256'); A('.amdhsa_next_free_sgpr 102'); A('.amdhsa_accum_offset 256')
    A('.amdhsa_group_segment_fixed_size 0'); A('.amdhsa_kernarg_size 120'); A('.amdhsa_user_sgpr_count 2')
    A('.amdhsa_user_sgpr_kernarg_segment_ptr 1'); A('.amdhsa_system_sgpr_workgroup_id_x 1')
    A('.amdhsa_float_denorm_mode_32 3')
    A('.end_amdhsa_kernel')
    ia, isv, it_ = (A.L.index(';MARK ' + m) for m in ('attn2', 'service', 'tail'))
    A.L = A.L[:ia] + A.L[isv:it_] + A.L[ia:isv] + A.L[it_:]
    A.L = [l for l in A.L if not l.startswith(';MARK')]
    txt, nn = A.finish()
    return txt

if __name__ == '__main__':
    kw = eval('dict(%s)' % (sys.argv[2] if len(sys.argv) > 2 else ''))
    open(sys.argv[1], 'w').write(gen(**kw))
```

```python
import sys, struct, math
from asmlib import Asm
NAME = 'adaLN_cond__gqa_block_cached__mixer_token_mlp__decode'

def f2u(x): return struct.unpack('<I', struct.pack('<f', x))[0]
LOG2E = 1.4426950408889634

WS_MOD, WS_TAB, WS_ML, WS_Q, WS_CLR, WS_EPOCH, WS_RANK = 0x0, 0x8000, 0x10000, 0x20000, 0x28000, 0x29000, 0x30000
WS_MK = 0x2A000
WS_G = WS_Q - 384 * 64
WS_PART, WS_T2, WS_T1, WS_STAMP = 0x40000, 0xC0000, 0x100000, 0x200000
PSTR = 10240 * 8
RSTR = 256
LM = 131072
C_Q, C_ML, C_PROG, C_TAB, C_FB, C_DONE, C_P2, C_GO, C_RK, C_LEV, C_LIST = 4, 8, 12, 16, 20, 24, 28, 32, 36, 40, 44
L_ST1, L_ST2 = 128, 192
L_ML = LM + 256
L_FAC = LM + 512
L_TP = LM + 768
L_Q = LM + 1024
L_CONST = LM + 3072
NB = 20
L_TABLE = LM + 13312
L_SCR = LM + 13312 + 512 * NB + 256
L_RED2 = L_SCR + 2048
L_LIST = 0
L_MK = L_RED2 + 2048
L_MKO = 64
LDS_BYTES = 163840
assert L_MK + 256 <= LDS_BYTES
OSTRIDE = 528
TAB_E0 = (130 - NB) << 7
SPIN_CAP = 0x40000

def gen(DA=6, DB=5, early=2, WU=20, hu=16, hg=14, p2_at=14, q_at=53, r2_at=1, fin_at=40, ml_at=48,
        cps=(3, 23, 42), lev=(4, 5, 6, 8), thrs=((16, 40, 56), (16, 40, 56), (16, 40, 56), (16, 40, 56), (10, 42, 58), (6, 42, 58), (0, 40, 56)), wsh=2, rd=4, DS=5, wos=(1, 2, 3, 3, 4, 4, 6, 8), wothr=4,
        skipown=True, sc=(1, 9, 18, 27, 36, 44, 52), scr=(3, 5, 7), nshb=3, sc_split=0, mret=True, gsp=0, mk=False, swapw=False, goff=False, scr4=True, sec='late', qsh=1, osc='sc0 sc1', opk=4, otouch=False, trim=True, retouch=False, rsl=1, gw=0, hw=0, nrep=1, cx=0, ackw=True, ncb=3, t1w='ack', t1x=0, cboost=False, pref=1, prefn=1, t2x=0, h2l=False, l2w=True, tb0='early', diag=False, lite=False, probe=None, force_fb=False, cut=(), trajA=False, header=''):
    A = Asm()
    endstamp = diag or lite
    if lite: diag = False
    COLD = []
    def stamp(k):
        if diag: A(f's_memrealtime s[{80+2*k}:{81+2*k}]'); A('s_waitcnt lgkmcnt(0)')
    def xstamp(k):
        if diag: A('s_memrealtime s[100:101]'); A('s_waitcnt lgkmcnt(0)'); A(f'v_writelane_b32 v15, s100, {16 + k}')
    def sstamp(r):
        A('s_memrealtime s[100:101]'); A('s_waitcnt lgkmcnt(0)'); A(f's_mov_b32 s{r}, s100')
    def v(a, n=1): return f'v{a}' if n == 1 else f'v[{a}:{a+n-1}]'
    def rnd(*regs):
        for a in regs: A(f'v_cvt_pk_bf16_f32 v{a}, 0, v{a}')
    def lds_spin(off, target, vt, sleep=1):
        l0 = A.lab('spin'); l1 = A.lab('spun')
        A('s_mov_b32 s14, 0')
        A(f'{l0}:')
        A(f'ds_read_b32 v{vt}, v13 offset:{off}'); A('s_waitcnt lgkmcnt(0)')
        A(f'v_readfirstlane_b32 s15, v{vt}')
        A(f's_cmp_ge_u32 s15, {target}'); A(f's_cbranch_scc1 {l1}')
        A(f's_sleep {sleep}')
        A('s_add_u32 s14, s14, 1'); A(f's_cmp_lt_u32 s14, {SPIN_CAP}'); A(f's_cbranch_scc1 {l0}')
        A(f'{l1}:')
    def lds_add(off, vt):
        A('s_waitcnt lgkmcnt(0)')
        A('s_mov_b64 exec, 1'); A(f'v_mov_b32 v{vt}, 1'); A(f'ds_add_u32 v13, v{vt} offset:{off}'); A('s_mov_b64 exec, -1')
    def done_event(vt):
        l1 = A.lab('nodone')
        A('s_waitcnt vmcnt(0) lgkmcnt(0)')
        A('s_mov_b64 exec, 1'); A(f'v_mov_b32 v{vt}, 1'); A(f'ds_add_rtn_u32 v{vt}, v13, v{vt} offset:{C_DONE}')
        A('s_waitcnt lgkmcnt(0)')
        A(f'v_readfirstlane_b32 s8, v{vt}')
        A('s_cmp_lg_u32 s8, 1'); A(f's_cbranch_scc1 {l1}')
        A('s_lshl_b32 s8, s2, 2'); A(f's_add_u32 s8, s8, {WS_CLR}'); A(f'v_mov_b32 v{vt}, s46')
        A(f'buffer_store_dword v{vt}, off, s[56:59], s8 sc1')
        A(f'{l1}:')
        A('s_mov_b64 exec, -1')
    def tag_gather(loads, vt, sleep=2, tagregs=(1, 3), cid=None):
        l0 = A.lab('tg'); l1 = A.lab('tgok')
        A('s_mov_b32 s14, 0')
        A(f'{l0}:')
        for n_, (d, txt) in enumerate(loads):
            if gw and n_ >= gw: A(f's_waitcnt vmcnt({gw-1})')
            if gsp and len(loads) == 16 and n_ and n_ % 2 == 0: A(f's_sleep {gsp}')
            A(txt)
        A('s_waitcnt vmcnt(0)')
        regs = [d + r for d, txt in loads for r in tagregs]
        A(f'v_min_u32 v{vt}, v{regs[0]}, v{regs[1]}'); A(f'v_max_u32 v{vt+1}, v{regs[0]}, v{regs[1]}')
        for k in range(2, len(regs), 2):
            A(f'v_min3_u32 v{vt}, v{regs[k]}, v{regs[k+1]}, v{vt}'); A(f'v_max3_u32 v{vt+1}, v{regs[k]}, v{regs[k+1]}, v{vt+1}')
        A(f'v_cmp_ne_u32 vcc, s46, v{vt}'); A(f'v_cmp_ne_u32 s[70:71], s46, v{vt+1}'); A('s_or_b64 vcc, vcc, s[70:71]')
        A(f's_cbranch_vccz {l1}')
        if mret: A('s_mov_b64 exec, vcc')
        A(f's_sleep {sleep * rsl}')
        A('s_add_u32 s14, s14, 1'); A(f's_cmp_lt_u32 s14, {SPIN_CAP}'); A(f's_cbranch_scc1 {l0}')
        A(f'{l1}:')
        if mret: A('s_mov_b64 exec, -1')
        if diag and cid is not None: A(f'v_writelane_b32 v15, s14, {11 + cid}')
    def xg_reduce(op, regs, t):
        for sw_ in (32, 16):
            for k, a in enumerate(regs): A(f'v_mov_b32 v{t+k}, v{a}')
            for k, a in enumerate(regs): A(f'v_permlane{sw_}_swap_b32 v{a}, v{t+k}')
            for k, a in enumerate(regs): A(f'{op} v{a}, v{a}, v{t+k}')
    def row_reduce(op, regs, steps=(8, 4, 2, 1)):
        for sh in steps:
            for a in regs: A(f'{op}_dpp v{a}, v{a}, v{a} row_ror:{sh} row_mask:0xf bank_mask:0xf')
    def perm(dst, base, m, d):
        A(f'v_perm_b32 v{dst}, v{base+8*m+4+(d>>1)}, v{base+8*m+(d>>1)}, s{60+(d&1)}')
    MREG = [16, 18, 20, 22, 24, 26, 36, 38]
    def sweep(name, n, load, dreg, acc, vt):
        marked = mk and name == 't1'
        A('s_mov_b32 s14, 0')
        if marked:
            for k in range(n): A(f's_mov_b64 s[{MREG[k]}:{MREG[k]+1}], -1')
        A(f'L_{name}_chk:')
        for k in range(n):
            d = dreg(k); m = MREG[k]
            def acc_or():
                if k == 2: A(f's_or_b64 vcc, s[{MREG[0]}:{MREG[0]+1}], s[{MREG[1]}:{MREG[1]+1}]')
                elif k > 2: A(f's_or_b64 vcc, vcc, s[{MREG[k-1]}:{MREG[k-1]+1}]')
            mf = f'v_mfma_f32_16x16x32_bf16 {v(acc,4)}, v[232:235], {v(d,4)}, {0 if k == 0 else v(acc,4)}'
            A(f's_waitcnt vmcnt({n-1-k})')
            if marked:
                A(f'v_and_b32 v{vt}, 1, v{d}'); A(f'v_and_b32 v{d}, -2, v{d}'); A(f'v_cmp_ne_u32 s[68:69], v{vt}, v{112+k}')
                acc_or(); A(mf); A(f's_and_b64 s[{m}:{m+1}], s[{m}:{m+1}], s[68:69]')
            else:
                A(f'v_max3_u32 v{vt}, v{d}, v{d+1}, v{d+2}'); A(f'v_max_u32 v{vt}, v{vt}, v{d+3}')
                A(mf); A(f'v_cmp_eq_u32 s[{m}:{m+1}], -1, v{vt}'); acc_or()
        A(f's_or_b64 vcc, vcc, s[{MREG[n-1]}:{MREG[n-1]+1}]')
        A(f's_cbranch_scc1 L_{name}_retry')
        A(f'L_{name}_done:')
        if diag: A(f'v_writelane_b32 v15, s14, {30 if name == "t1" else 31}')
        def cold():
            A(f'L_{name}_retry:')
            for k in range(n):
                A(f's_mov_b64 exec, s[{MREG[k]}:{MREG[k]+1}]'); load(k)
            A('s_mov_b64 exec, -1')
            if marked: A('s_waitcnt vmcnt(0)')
            A('s_add_u32 s14, s14, 1'); A(f's_cmp_lt_u32 s14, {SPIN_CAP}'); A(f's_cbranch_scc1 L_{name}_chk')
            A('s_waitcnt vmcnt(0)')
            A(f's_branch L_{name}_done')
        COLD.append(cold)
    def rb_calc():
        A('s_and_b32 s6, s2, 7'); A('s_lshr_b32 s8, s2, 7'); A('s_lshl1_add_u32 s6, s6, s8')
    def svc_setup():
        A(f's_load_dword s9, s[44:45], {WS_EPOCH}')
        A('s_bfe_u32 s7, s2, 0x40003')
        rb_calc()
        A('s_mov_b32 s60, 0x05040100'); A('s_mov_b32 s61, 0x07060302'); A('s_mov_b32 s62, 0xffff0000')
        A(f's_mov_b32 s64, {f2u(LOG2E):#x}')
        A('s_mov_b64 s[56:57], s[44:45]'); A('s_mov_b32 s58, 0x400000'); A('s_mov_b32 s59, 0x20000')
        A(f'v_mov_b32 v13, {LM}')
    def notcons(label):
        A(f's_and_b32 s8, s2, {0xff & ~(((1 << ncb) - 1) << 3):#x}'); A(f's_cmp_lg_u32 s8, {cx}'); A(f's_cbranch_scc1 {label}')
    def prep():
        l = A.lab('noprep')
        A('v_lshrrev_b32 v4, 4, v0'); A('v_and_b32 v5, 15, v0')
        A('v_lshrrev_b32 v9, 5, v0')
        A('s_movk_i32 s76, 0x1111'); A('s_mov_b32 s77, s76')
        A('v_lshl_add_u32 v229, v0, 4, v13')
        A('v_lshlrev_b32 v230, 2, v5'); A('v_lshl_add_u32 v230, v9, 6, v230')
        A('s_lshl_b32 s72, s6, 11'); A('s_lshl_b32 s8, s7, 7'); A('s_add_u32 s72, s72, s8'); A(f's_add_u32 s72, s72, {WS_T2}')
        A('v_and_b32 v7, 1, v5'); A('v_lshlrev_b32 v7, 4, v7'); A('v_mov_b32 v8, 0x3f80'); A('v_lshlrev_b32 v7, v7, v8')
        A('v_and_b32 v8, 14, v5')
        for m in range(4):
            A(f'v_cmp_eq_u32 vcc, {4*m}, v8'); A(f'v_cndmask_b32 v{232+m}, 0, v7, vcc')
        A('v_lshlrev_b32 v244, 13, v4'); A('v_lshl_add_u32 v244, v5, 4, v244')
        A('v_lshrrev_b32 v6, 3, v5'); A('v_lshlrev_b32 v6, 6, v6'); A('v_and_b32 v8, 1, v4'); A('v_lshl_add_u32 v6, v8, 5, v6')
        A('v_and_b32 v8, 4, v5'); A('v_lshl_add_u32 v6, v8, 2, v6'); A('v_and_b32 v8, 3, v5'); A('v_lshl_add_u32 v6, v8, 1, v6')
        A('v_lshrrev_b32 v8, 1, v4'); A('s_lshl_b32 s8, s3, 7'); A('v_add3_u32 v6, v6, v8, s8')
        A('v_lshlrev_b32 v238, 1, v6')
        if opk: A('v_mad_u32_u24 v228, v9, 14, v238')
        notcons(l)
        if opk: A('v_mov_b32 v231, 0x02020202'); A('v_mul_lo_u32 v231, v231, v9'); A('v_add_u32 v231, s60, v231')
        A('v_add_u32 v7, v13, v238')
        for a, r in enumerate((248, 250, 252, 254, 236)):
            for e in range(2): A(f'ds_read_u16 v{r+e}, v7 offset:{L_CONST - LM + 2048*a + 16*e}')
        A('s_lshl_b32 s75, s3, 8'); A(f's_add_u32 s75, s75, {WS_T2}'); A('s_add_u32 s73, s75, 4096')
        A(f's_mov_b32 s66, {f2u(1/1024):#x}'); A('s_mov_b32 s67, s66')
        A('v_lshlrev_b32 v246, 2, v9'); A('s_lshl_b32 s8, s3, 3'); A('v_add3_u32 v246, s8, v246, v13')
        A(f'v_mov_b32 v245, {256 * NB}'); A(f'v_mov_b32 v247, {L_TABLE + 512 * NB}'); A(f's_mov_b32 s68, {L_TABLE - 2 * TAB_E0}')
        A('s_mov_b32 s78, 0x10000'); A('s_mov_b32 s79, s78'); A('s_mov_b32 s70, 0x11111111'); A('s_mov_b32 s71, s70')
        A('s_waitcnt lgkmcnt(0)')
        for r in list(range(248, 256)) + [236, 237]: A(f'v_lshlrev_b32 v{r}, 16, v{r}')
        A('v_add_f32 v254, 1.0, v254'); A('v_add_f32 v255, 1.0, v255'); rnd(254, 255)
        A(f'{l}:')
    def dma(base, dst, cnt):
        for n in range(cnt):
            if n % 4 == 0:
                A(f's_mov_b32 m0, {dst + 1024*n}'); A(f's_mov_b32 s8, {base + 1024*n}')
            A(f'buffer_load_dwordx4 v1, s[56:59], s8 offen offset:{(n % 4) * 1024} sc1 lds')

    for l in header.splitlines(): A(l)
    A(f'; @launch grid=(256,1,1) block=(512,1,1) lds={LDS_BYTES}')
    A('.amdgcn_target "amdgcn-amd-amdhsa--gfx950"')
    A('.text'); A(f'.globl {NAME}_kernel'); A('.p2align 8'); A(f'.type {NAME}_kernel,@function')
    A(f'{NAME}_kernel:')
    A('s_load_dwordx16 s[16:31], s[0:1], 0')
    A('s_load_dwordx8 s[32:39], s[0:1], 64')
    A('s_load_dwordx4 s[40:43], s[0:1], 96')
    A('s_load_dwordx2 s[44:45], s[0:1], 112')
    if endstamp: A('s_memrealtime s[80:81]')
    A('v_lshrrev_b32 v1, 6, v0'); A('v_and_b32 v0, 63, v0')
    A('s_lshr_b32 s4, s2, 8'); A('s_cbranch_scc1 L_end')
    A('v_readfirstlane_b32 s3, v1')
    A('s_mov_b32 s51, 0x20000')
    if swapw: A('s_xor_b32 s3, s3, 4')
    A('s_lshr_b32 s4, s2, 6'); A('s_and_b32 s5, s2, 63')
    A('s_cmp_ge_u32 s3, 4'); A('s_cbranch_scc1 L_service')

    A('; ---- attention waves 0..3: code prefetch, first K loads')
    A('s_getpc_b64 s[70:71]')
    A('L_pcref:')
    A('s_bfe_u32 s7, s2, 0x40003')
    A('s_lshl2_add_u32 s8, s7, s3'); A('s_lshl_b32 s8, s8, 9')
    A('v_lshl_add_u32 v1, v0, 7, s8'); A('v_min_u32 v1, L_end-L_pcref, v1')
    A('s_mov_b64 exec, 15'); A('global_load_dword v12, v1, s[70:71]'); A('s_mov_b64 exec, -1')
    A('s_lshl2_add_u32 s9, s5, s3'); A('s_lshl_b32 s9, s9, 13')
    A(f's_lshl_b32 s8, s4, {22 if goff else 24}'); A('s_add_u32 s9, s9, s8')
    if goff: A('s_lshl_b32 s65, s4, 24')
    A('s_lshl_b32 s12, s3, 15')
    A('v_lshrrev_b32 v13, 4, v0'); A('v_and_b32 v14, 15, v0')
    A('v_lshlrev_b32 v15, 2, v13'); A('v_xor_b32 v1, v14, v15'); A('v_lshlrev_b32 v1, 4, v1')
    A('v_lshl_add_u32 v1, v13, 8, v1')
    A('v_xor_b32 v2, 16, v1'); A('v_xor_b32 v3, 32, v1'); A('v_xor_b32 v4, 48, v1')
    A('s_mov_b32 s50, 0x1000000' if goff else 's_brev_b32 s50, 32')
    A('s_waitcnt lgkmcnt(0)')
    if goff: A('s_add_u32 s48, s18, s65'); A('s_addc_u32 s49, s19, 0')
    else: A('s_mov_b64 s[48:49], s[18:19]')
    def attn_setup():
        A('v_lshlrev_b32 v5, 4, v0')
        A('s_mov_b32 s54, s50'); A('s_mov_b32 s55, 0x20000')
        A('s_mov_b32 s60, 0x05040100'); A('s_mov_b32 s61, 0x07060302')
        A(f's_mov_b32 s63, {f2u(128 ** -0.5):#x}'); A(f's_mov_b32 s64, {f2u(LOG2E):#x}')
        A('s_mov_b32 s58, 0x400000'); A('s_mov_b32 s59, 0x20000')
        A('v_and_b32 v6, 3, v14'); A('v_lshlrev_b32 v6, 2, v6'); A('v_lshrrev_b32 v15, 2, v14'); A('v_add_u32 v6, v6, v15')
        A('v_lshlrev_b32 v6, 8, v6'); A('v_xor_b32 v15, v13, v14'); A('v_lshl_add_u32 v6, v15, 4, v6'); A('v_add_u32 v6, s12, v6')
        A('v_xor_b32 v7, 64, v6'); A('v_xor_b32 v8, 0x80, v6'); A('v_xor_b32 v9, 0xc0, v6')
        A(f'v_mov_b32 v13, {LM}')
        A('v_mov_b32 v14, 0'); A('v_lshl_add_u32 v15, v0, 2, v13'); A('ds_write_b32 v15, v14')
        if swapw: A('s_setprio 1')
        A('s_mov_b32 s70, 0xff00ff00'); A('s_mov_b32 s71, 0xff00ff00')
        if goff: A('s_add_u32 s52, s20, s65'); A('s_addc_u32 s53, s21, 0'); A('s_mov_b32 s65, 0xffffff')
        else: A('s_mov_b64 s[52:53], s[20:21]')
        A('s_mov_b64 s[56:57], s[44:45]'); A('s_mov_b64 s[66:67], s[24:25]')
        A('s_waitcnt lgkmcnt(0)')
        A('s_barrier')
    issued = [0]
    TS = 64 * 4 * 8192
    LEV = list(lev) if lev else [DB]
    if not lev: sc = None
    def throttle(D, boost):
        if issued[0] < D: return
        if boost:
            l = A.lab('go')
            for k in range(len(LEV) - 1, -1, -1):
                A(f's_waitcnt vmcnt({LEV[k]-1})')
                if k == len(LEV) - 1: A(f's_cbranch_vccnz {l}')
                elif k > 0: A(f's_cmp_eq_u32 s13, {k}'); A(f's_cbranch_scc1 {l}')
            A(f'{l}:')
        else: A(f's_waitcnt vmcnt({D-1})')
    def kload(t, n, D, boost=False):
        tolds = t < 4 or (scr4 and t == 4 and n < 4)
        if n % 4 == 0:
            if t < 4: A(f's_add_u32 m0, s12, {t * 8192 + (n // 4) * 4096}')
            elif tolds: A('s_lshl_b32 s8, s3, 12'); A(f's_add_u32 m0, s8, {L_CONST}')
            A(f's_add_u32 s10, s9, {t * TS + (n // 4) * 4096}')
        throttle(D, boost)
        if tolds: A(f'buffer_load_dwordx4 v{1 + n % 4}, s[48:51], s10 offen offset:{(n % 4) * 1024} nt lds')
        else: A(f'buffer_load_dwordx4 {v(128 + 32 * (t % 4) + 4 * n, 4)}, v{1 + n % 4}, s[48:51], s10 offen offset:{(n % 4) * 1024} nt')
        issued[0] += 1
    def vload(t, e, D, boost=False):
        if e % 4 == 0:
            A(f's_add_u32 s10, s9, {t * TS + (e // 4) * 4096}')
            if goff and t >= 2: A('s_and_b32 s10, s10, s65')
        throttle(D, boost)
        A(f'buffer_load_dwordx4 {v(128 + 32 * (t % 4) + 4 * e, 4)}, v5, s[52:55], s10 offen offset:{(e % 4) * 1024} nt')
        issued[0] += 1
    for n in range(64):
        if n == early:
            A('s_branch L_attn2'); A(';MARK attn2')
            A('L_attn2:')
            attn_setup()
            if 'svc' not in cut: lds_spin(C_GO, 1, 14)
        if diag and trajA and n >= early and (n % 8 == 0 or n == early): sstamp(24 + n // 8)
        kload(n // 8, n % 8, DA)
        if issued[0] in (p2_at, q_at): lds_add(C_PROG, 14)
    stamp(1)
    def getq():
        if not cut: lds_spin(C_Q, 2 if mk else 1, 14)
        A('v_and_b32 v14, 7, v0'); A('v_lshlrev_b32 v14, 8, v14'); A('v_lshrrev_b32 v15, 4, v0'); A('v_lshl_add_u32 v14, v15, 4, v14')
        A(f'v_add_u32 v14, {L_Q}, v14')
        for s in range(4): A(f'ds_read_b128 {v(16+4*s,4)}, v14 offset:{64*s}')
        A('v_add_u32 v1, s12, v5')
        stamp(2)
    def flush(t, ns, wait=True):
        for n in ns: A(f'ds_write_b128 v1, {v(128 + 32*t + 4*n, 4)} offset:{t * 8192 + n * 1024}')
        if wait: A('s_waitcnt lgkmcnt(0)')
    def qk(t):
        off = (t % 4) * 8192
        for hb in range(2):
            if scr4 and t == 4 and hb == 0:
                A('s_mul_i32 s8, s3, 0x7000'); A(f's_sub_u32 s8, {L_CONST}, s8')
                for s in range(4): A(f'v_add_u32 v{96+4*s}, s8, v{6+s}'); A(f'ds_read_b128 {v(96+4*s,4)}, v{96+4*s}')
                continue
            for s in range(4): A(f'ds_read_b128 {v(96+16*hb+4*s,4)}, v{6+s} offset:{off + hb*4096}')
        for hb in range(2):
            S = 32 + 8 * t + 4 * hb
            for s in range(4):
                A(f's_waitcnt lgkmcnt({7 - 4*hb - s})')
                A(f'v_mfma_f32_16x16x32_bf16 {v(S,4)}, {v(96+16*hb+4*s,4)}, {v(16+4*s,4)}, {0 if s == 0 else v(S,4)}')
    def rscale(t):
        S = 32 + 8 * t
        rnd(*range(S, S + 8))
        for k in range(8): A(f'v_mul_f32 v{S+k}, s63, v{S+k}')
        rnd(*range(S, S + 8))
        if t == 0: A(f'v_max_f32 v15, v{S}, v{S+1}')
        else: A(f'v_max3_f32 v15, v{S}, v{S+1}, v15')
        for k in range(1, 4): A(f'v_max3_f32 v15, v{S+2*k}, v{S+2*k+1}, v15')
    def mfin():
        xg_reduce('v_max_f32', [15], 14)
        A('v_mov_b32 v10, v15'); A('v_mul_f32 v12, s64, v15')
    def expo(t):
        S = 32 + 8 * t
        for k in range(8): A(f'v_fma_f32 v{S+k}, v{S+k}, s64, -v12')
        for k in range(8): A(f'v_exp_f32 v{S+k}, v{S+k}')
        for k in range(4): A(f'v_add_f32 v{96+k}, v{S+2*k}, v{S+2*k+1}')
        for k in range(4): A(f'v_cvt_pk_bf16_f32 v{S+k}, v{S+2*k}, v{S+2*k+1}')
        for k in range(4): A(f'v_cndmask_b32 v{S+4+k}, 0, v{S+k}, s[70:71]')
        for k in range(4): A(f'v_cndmask_b32 v{S+k}, v{S+k}, 0, s[70:71]')
        A('v_add_f32 v96, v96, v97'); A('v_add_f32 v98, v98, v99')
        if t == 0: A('v_add_f32 v11, v96, v98')
        else: A('v_add_f32 v96, v96, v98'); A('v_add_f32 v11, v11, v96')
    def omf(d, P, first):
        o = 16 + 4 * (d & 3)
        A(f'v_mfma_f32_16x16x32_bf16 {v(o,4)}, {v(96+4*d,4)}, {v(P + (d & 4),4)}, {0 if (first and d < 4) else v(o,4)}')
    def pvt(t, half):
        Vb = 128 + 32 * (t % 4); ds_ = list(range(4 * half, 4 * half + 4))
        for m in range(4): perm(96 + 4*ds_[0] + m, Vb, m, ds_[0])
        for k, d in enumerate(ds_):
            if k + 1 < 4:
                for m in range(4): perm(96 + 4*ds_[k+1] + m, Vb, m, ds_[k+1])
            omf(d, 32 + 8 * t, t == 0)
    def publish_ml():
        xg_reduce('v_add_f32', [11], 14)
        A('v_lshrrev_b32 v14, 1, v5'); A('s_lshl_b32 s8, s3, 6'); A(f's_add_u32 s8, s8, {L_ML}'); A('v_add_u32 v14, s8, v14')
        A('s_mov_b64 exec, 0xff'); A('ds_write_b64 v14, v[10:11]'); A('s_mov_b64 exec, -1')
        lds_add(C_ML, 14)
    def endsetup():
        if mk: A('s_lshl_b32 s8, s3, 2'); A('v_add_u32 v53, s8, v13'); A(f'ds_read_b32 v53, v53 offset:{L_MKO}')
        A('v_bfe_u32 v52, v0, 4, 1'); A('s_lshl_b32 s8, s3, 1'); A('v_add_u32 v52, s8, v52')
        A(f'v_mul_u32_u24 v48, {OSTRIDE}, v52')
        A('v_lshlrev_b32 v52, 4, v52'); A(f'v_add_u32 v52, {L_FAC}, v52')
        A('v_and_b32 v49, 15, v0'); A('v_lshl_add_u32 v48, v49, 5, v48'); A('v_lshrrev_b32 v49, 5, v0')
        A('v_lshl_add_u32 v48, v49, 4, v48'); A('v_add_u32 v49, 0x10000, v48')
        A('v_and_b32 v4, 7, v0'); A(f'v_mul_u32_u24 v50, {OSTRIDE}, v4'); A('v_and_b32 v51, 8, v0'); A('v_lshl_add_u32 v50, v51, 5, v50')
        A('v_lshlrev_b32 v1, 9, v51')
        A('v_lshrrev_b32 v51, 4, v0'); A('v_lshl_add_u32 v50, v51, 4, v50'); A('v_add_u32 v50, s12, v50')
        A('v_lshl_add_u32 v1, v51, 15, v1'); A('v_lshl_add_u32 v1, v4, 4, v1')
        A('v_lshrrev_b32 v2, 3, v0'); A('v_lshlrev_b32 v2, 12, v2'); A('v_lshl_add_u32 v2, v4, 4, v2')
        A('v_and_b32 v3, 16, v0'); A('v_lshlrev_b32 v3, 4, v3'); A('v_lshlrev_b32 v4, 2, v4')
        A('s_lshl_b32 s8, s3, 9'); A(f's_add_u32 s8, s8, {L_RED2}'); A('v_add3_u32 v3, v3, v4, s8')
        rb_calc()
        A('s_mov_b64 s[48:49], s[66:67]'); A('s_mov_b32 s50, 0x800000')
        A('s_lshl_b32 s73, s6, 8'); A('s_lshr_b32 s8, s3, 1'); A('s_lshl_b32 s8, s8, 7'); A('s_add_u32 s73, s73, s8')
        A('s_and_b32 s8, s3, 1'); A('s_lshl2_add_u32 s73, s8, s73'); A('s_lshl_b32 s73, s73, 11')
        A('s_lshl_b32 s8, s7, 7'); A('s_add_u32 s73, s73, s8')
        A('s_lshl_b32 s74, s6, 15'); A('s_lshl_b32 s8, s3, 7'); A('s_add_u32 s74, s74, s8'); A(f's_add_u32 s74, s74, {WS_T1}')
        A('s_lshl2_add_u32 s8, s4, s3'); A('s_lshl_b32 s8, s8, 15'); A('s_lshl_b32 s11, s5, 9'); A('s_add_u32 s11, s11, s8')
        A(f's_add_u32 s11, s11, {WS_T1}')
        if mk: A('s_waitcnt lgkmcnt(0)'); A('v_lshrrev_b32 v53, v0, v53')
    sched = {i: [] for i in range(-1, 64)}
    def put(pos, fn, landed=None): sched[pos].append((fn, landed))
    DM = max(LEV + [DA])
    CP = list(cps) if (len(LEV) > 1 and not sc) else []
    THR = [list(t) for t in thrs] * (len(sc or cps) if len(thrs) == 1 else 1)
    ctl = bool(CP) or bool(sc)
    NRL = (1 << nshb) * len(sc) if sc else (4 << wsh) * len(CP)
    if scr4:
        assert qsh <= 2 and (not sc or min(sc) >= qsh) and r2_at >= qsh
        put(qsh - 1, getq)
        put(qsh, lambda: qk(0)); put(qsh + 1, lambda: flush(0, range(4, 8), qsh == 2), -25)
        for t in range(1, 4):
            put(qsh + 3 * t - 1, (lambda t=t: qk(t)))
            put(qsh + 3 * t, (lambda t=t: flush(t, range(4), False)), 8 * t - 25); put(qsh + 3 * t, (lambda t=t: rscale(t - 1)))
            put(qsh + 3 * t + 1, (lambda t=t: flush(t, range(4, 8), False)))
        put(qsh + 10, lambda: rscale(3))
        for t in range(4, 8): put(qsh + 7 + t, (lambda t=t: qk(t)))
        for t in range(4, 8): put(qsh + 13 + t // 2, (lambda t=t: rscale(t)))
        put(qsh + 17, mfin)
        for t in range(8): put(qsh + 18 + t, (lambda t=t: expo(t)))
        put(qsh + 26, publish_ml)
        pp = qsh + 27
    else:
        put(-1, getq); put(-1, lambda: qk(0)); put(-1, lambda: flush(0, range(0, 3)), -25)
        put(0, lambda: flush(0, range(3, 8)))
        for t in range(1, 4):
            put(2 * t - 1, (lambda t=t: qk(t))); put(2 * t, (lambda t=t: flush(t, range(8))), 8 * t - 25)
        for t in range(4, 8): put(3 + t, (lambda t=t: qk(t)))
        for t in range(8): put(11 + t // 2, (lambda t=t: rscale(t)))
        put(15, mfin)
        for t in range(8): put(16 + t, (lambda t=t: expo(t)))
        put(24, publish_ml)
        pp = 25
    for t in range(6):
        pp = max(pp, 8 * t + 7 + DS)
        put(pp, (lambda t=t: pvt(t, 0)), 8 * t + 7); put(pp + 1, (lambda t=t: pvt(t, 1)))
        assert t >= 4 or pp + 1 < 32 + 8 * t
        pp += 2
    p5 = pp - 2
    put(60, endsetup)
    assert p5 + 1 < 60 and (not CP or max(CP) + rd < 60)
    def run(posn):
        for fn, landed in sched[posn]:
            if landed is not None and posn - landed < DM: A(f's_waitcnt vmcnt({posn - landed})')
            fn()
    if CP:
        A('s_mov_b64 vcc, 0'); A(f's_mov_b32 s13, {LEV.index(DB)}')
        A(f's_bfe_u32 s11, s2, {(wsh << 16) | 3:#x}'); A('s_lshl2_add_u32 s11, s11, s3'); A(f's_mul_i32 s11, s11, {RSTR}')
        A(f's_add_u32 s11, s11, {WS_RANK}')
        if cboost: A(f's_and_b32 s8, s2, {0xff & ~(((1 << ncb) - 1) << 3):#x}'); A(f's_cmp_eq_u32 s8, {cx}'); A(f's_cselect_b32 s68, {cboost}, 0')
        assert (4 << wsh) * len(CP) <= 128
    if sc: A('s_mov_b64 vcc, 0'); A(f's_mov_b32 s13, {LEV.index(DB)}')
    run(-1)
    for L in range(64):
        if diag and not trajA and L % 8 == 0: sstamp(24 + L // 8)
        if L in CP:
            A('s_mov_b32 s47, 1'); A(f's_atomic_add s47, s[44:45], s11 offset:{(4 << wsh) * RSTR * CP.index(L)} glc')
        vload(L // 8, L % 8, DB, ctl)
        if L - rd in CP:
            th = [int(round(t_ * (256 >> wsh) / 64.0)) for t_ in THR[CP.index(L - rd)]]
            A('s_waitcnt lgkmcnt(0)')
            if diag: A(f's_mov_b32 s{32 + CP.index(L - rd)}, s47')
            if cboost: A('s_add_u32 s47, s47, s68')
            A('s_mov_b32 s13, 0')
            for k, t_ in enumerate(th[:-1]):
                A(f's_cmp_ge_u32 s47, {t_}'); A(f's_cselect_b32 s13, {k+1}, s13')
            A(f's_cmp_ge_u32 s47, {th[-1]}'); A('s_cselect_b64 vcc, -1, 0')
        if sc and L in sc: lds_add(C_RK, 14)
        if sc and any(L - r_ in sc for r_ in scr):
            A(f'ds_read_b32 v14, v13 offset:{C_LEV}'); A('s_waitcnt lgkmcnt(0)')
            A('v_readfirstlane_b32 s13, v14'); A(f's_add_u32 s13, s13, {LEV.index(DB)}')
            A(f's_cmp_eq_u32 s13, {len(LEV) - 1}'); A('s_cselect_b64 vcc, -1, 0')
        if L in (r2_at, fin_at, ml_at): lds_add(C_PROG, 14)
        run(L)
    assert r2_at < fin_at < ml_at
    stamp(3)
    A('L_endgame:')
    NWO = [0]
    def wo_upto(k):
        while NWO[0] < k:
            n = NWO[0]; m, hh = n >> 1, n & 1
            if n < wothr: throttle(DB, ctl)
            A(f's_add_u32 s10, s73, {(64 * (m & 1) + 8 * hh + (m >> 1)) * 2048}')
            A(f'buffer_load_dwordx4 {v(128 + 4*n, 4)}, v1, s[48:51], s10 offen nt')
            NWO[0] += 1
    wo_upto(wos[0])
    A(f's_waitcnt vmcnt({8 + NWO[0]})')
    pvt(6, 0); wo_upto(wos[1]); pvt(6, 1); wo_upto(wos[2])
    Vb = 128 + 96; P = 32 + 56
    for m in range(3):
        A(f's_waitcnt vmcnt({6 - 2*m + NWO[0]})')
        for d in range(8): perm(96 + 4*d + m, Vb, m, d)
        wo_upto(wos[3 + m])
    A(f's_waitcnt vmcnt({NWO[0]})')
    stamp(4)
    if cut:
        for k in range(8): A(f'v_writelane_b32 v15, s{24+k}, {16+k}')
        A('s_branch L_fin')
    order = [0, 4, 1, 5, 2, 6, 3, 7]
    for d in order[:3]: perm(96 + 4*d + 3, Vb, 3, d)
    for k, d in enumerate(order):
        omf(d, P, False)
        if k + 3 < 8: perm(96 + 4*order[k+3] + 3, Vb, 3, order[k+3])
    wo_upto(wos[6])
    for d in range(4): A(f'ds_write_b128 v50, {v(16+4*d,4)} offset:{64*d}')
    wo_upto(wos[7])
    A('s_waitcnt lgkmcnt(0)')
    A('s_barrier')
    A('ds_read_b128 v[16:19], v52')
    A('ds_read_b128 v[32:35], v48'); A('ds_read_b128 v[36:39], v48 offset:32768')
    A('ds_read_b128 v[40:43], v49'); A('ds_read_b128 v[44:47], v49 offset:32768')
    for w in range(4):
        A(f's_waitcnt lgkmcnt({3-w})')
        for k in range(2):
            f_ = v(16 + (w & 2), 2); h_ = w & 1
            if w == 0: A(f'v_pk_mul_f32 {v(32+2*k,2)}, {v(32+2*k,2)}, {f_} op_sel:[0,{h_}] op_sel_hi:[1,{h_}]')
            else: A(f'v_pk_fma_f32 {v(32+2*k,2)}, {v(32+4*w+2*k,2)}, {f_}, {v(32+2*k,2)} op_sel:[0,{h_},0] op_sel_hi:[1,{h_},1]')
    A('v_cvt_pk_bf16_f32 v24, v32, v33'); A('v_cvt_pk_bf16_f32 v25, v34, v35')
    if not mk: A('v_min_u32 v24, -2, v24'); A('v_min_u32 v25, -2, v25')
    A('v_permlane32_swap_b32 v24, v26'); A('v_permlane32_swap_b32 v25, v27')
    if mk: A('v_bfi_b32 v24, 1, v53, v24')
    A('s_mov_b32 exec_hi, 0')
    A('buffer_store_dwordx4 v[24:27], v5, s[56:59], s11 offen sc1')
    A('s_mov_b64 exec, -1')
    late_wo = NWO[0] < 8; nlate = 8 - NWO[0]
    wo_upto(8)
    stamp(5)
    if diag:
        for k in range(8): A(f'v_writelane_b32 v15, s{24+k}, {16+k}')
        for k in range(5): A(f'v_writelane_b32 v15, s{32+k}, {11+k}')
        A('s_load_dwordx16 s[16:31], s[0:1], 0'); A('s_load_dwordx8 s[32:39], s[0:1], 64'); A('s_waitcnt lgkmcnt(0)')
    def t1_load(n): A(f'buffer_load_dwordx4 {v(160+4*n,4)}, v2, s[56:59], s74 offen offset:{512*n} sc1')
    if mk:
        A('v_and_b32 v30, 56, v0'); A('v_lshl_add_u32 v30, v30, 2, v13')
        A(f'ds_read_b128 v[112:115], v30 offset:{L_MK - LM}'); A(f'ds_read_b128 v[116:119], v30 offset:{L_MK - LM + 16}')
    prep()
    if mk:
        A('v_and_b32 v30, 7, v0'); A('s_lshl_b32 s8, s3, 3'); A('v_add_u32 v30, s8, v30')
        A('s_waitcnt lgkmcnt(0)')
        for n in range(8): A(f'v_bfe_u32 v{112+n}, v{112+n}, v30, 1')
    xstamp(8)
    if t1w == 'ack2': A(f's_waitcnt vmcnt({nlate})'); t1w = 'pre'
    if isinstance(t1w, int): A(f's_waitcnt vmcnt({t1w})'); t1w = 'pre'
    if t1w == 'pre':
        if t1x: A(f's_sleep {t1x}')
        for n in range(8): t1_load(n)
    A(f's_waitcnt vmcnt({(9 if t1w == "pre" else 1) - late_wo})')
    for e in range(8):
        for m in range(4): perm(192 + 4*e + m, 128, m, e)
    if t1w == 'ack': A('s_waitcnt vmcnt(0)')
    if t1w != 'pre':
        if t1x: A(f's_sleep {t1x}')
        for n in range(8): t1_load(n)
    xstamp(9)
    sweep('t1', 8, t1_load, lambda k: 160 + 4*k, 60, 6)
    stamp(6)
    row_reduce('v_add_f32', [60, 61], (8,))
    A('v_cvt_pk_bf16_f32 v60, v60, v61')
    for c in range(4): A(f'v_mov_b32_dpp v{224+c}, v60 quad_perm:[{c},{c},{c},{c}] row_mask:0xf bank_mask:0xf')
    for e in range(8): A(f'v_mfma_f32_16x16x32_bf16 {v(64+4*e,4)}, v[224:227], {v(192+4*e,4)}, 0')
    A('s_mov_b32 exec_lo, 0xff0000ff'); A('s_mov_b32 exec_hi, 0')
    for e in range(0, 8, 2): A(f'ds_write2_b32 v3, v{64+4*e}, v{68+4*e} offset0:{8*e} offset1:{8*e+8}')
    A('s_mov_b64 exec, -1')
    A('s_waitcnt lgkmcnt(0)')

    A(';MARK service')
    A('L_service:')
    if 'svc' in cut: A('s_endpgm')
    A('s_sub_u32 s3, s3, 4')
    A('s_cmp_ge_u32 s3, 2'); A('s_cbranch_scc1 L_tabwaves')
    A('s_and_b32 s55, s2, 4'); A('s_lshr_b32 s55, s55, 1')
    A('s_lshr_b32 s53, s2, 3'); A('s_and_b32 s8, s2, 3'); A('s_lshl2_add_u32 s53, s53, s8')
    A('s_cmp_eq_u32 s3, 1'); A('s_cselect_b32 s65, 1, s55')
    A('s_setprio 3')
    A('L_unit:')
    A('s_and_b32 s67, s53, 63'); A('s_add_u32 s67, s67, 32'); A('s_lshr_b32 s69, s53, 6'); A('s_add_u32 s69, s69, s55'); A('s_movk_i32 s66, 0x3000')
    A('s_and_b32 s8, s53, 31'); A('s_lshr_b32 s10, s53, 5')
    A('s_cmp_eq_u32 s65, 0'); A('s_cselect_b32 s67, s8, s67'); A('s_cselect_b32 s69, s10, s69')
    A('s_add_u32 s68, s5, 96')
    A('s_cmp_eq_u32 s65, 1'); A('s_cselect_b32 s68, s68, s67'); A('s_cselect_b32 s67, s5, s67'); A('s_cselect_b32 s66, 0x2000, s66'); A('s_cselect_b32 s69, s4, s69')
    A('s_lshl_b32 s50, s66, 10'); A('s_lshl_b32 s67, s67, 7')
    A('v_and_b32 v1, 56, v0'); A('v_mul_u32_u24 v1, s66, v1')
    A('v_and_b32 v2, 7, v0'); A('v_lshl_add_u32 v1, v2, 4, v1')
    A('s_cmp_eq_u32 s65, 3'); A('s_cselect_b32 s8, 7, 8'); A('s_lshl_b32 s54, s69, s8')
    A('s_mul_i32 s10, s54, s66'); A('s_add_u32 s10, s10, s67')
    A('s_mul_i32 s11, s66, 57')
    A('s_lshl_b32 s8, s54, 1'); A('v_lshl_add_u32 v2, v0, 2, s8')
    A('s_waitcnt lgkmcnt(0)')
    xstamp(0)
    A('s_mov_b64 s[48:49], s[38:39]'); A('s_mov_b64 s[70:71], s[36:37]')
    A('s_cmp_lg_u32 s65, 1'); A('s_cbranch_scc1 L_notq')
    A('s_mov_b64 s[48:49], s[22:23]'); A('s_mov_b64 s[70:71], s[16:17]')
    A('v_lshlrev_b32 v3, 5, v0')
    A('s_barrier')
    A('global_load_dwordx4 v[16:19], v3, s[16:17]'); A('global_load_dwordx4 v[20:23], v3, s[16:17] offset:16')
    A('L_notq:')
    A('global_load_dword v4, v2, s[70:71]'); A('global_load_dword v5, v2, s[70:71] offset:256')
    for G in range(4):
        if G == 2: A('s_cmp_eq_u32 s65, 3'); A('s_cbranch_scc1 L_halfl')
        if G == 1:
            svc_setup()
            if ctl:
                A('s_cmp_lg_u32 s65, 0'); A('s_cbranch_scc1 L_norclr')
                A(f's_cmp_ge_u32 s53, {NRL}'); A('s_cbranch_scc1 L_norclr')
                A(f's_mul_i32 s8, s53, {RSTR}'); A(f's_add_u32 s8, s8, {WS_RANK}')
                A('s_mov_b64 exec, 1'); A('buffer_store_dword v0, off, s[56:59], s8 sc1'); A('s_mov_b64 exec, -1')
                A('L_norclr:')
        for r in range(8):
            if hw and G < 2 and 8*G + r >= hw:
                l = A.lab('hw'); A('s_cmp_lg_u32 s65, 3'); A(f's_cbranch_scc1 {l}'); A(f's_waitcnt vmcnt({hw-1})'); A(f'{l}:')
            if 8*G + r >= WU: A(f's_waitcnt vmcnt({WU-1})')
            A(f'buffer_load_dwordx4 {v(128+32*G+4*r,4)}, v1, s[48:51], s10 offen nt')
            if not (G == 3 and r == 7): A(f's_add_u32 s10, s10, {"s11" if r == 7 else "s66"}')
    A('s_cmp_eq_u32 s65, 1'); A('s_cbranch_scc1 L_go')
    A(f's_waitcnt vmcnt({hu})')
    A('s_barrier')
    A('s_branch L_went')
    A('L_halfl:')
    A('s_waitcnt vmcnt(0)')
    A('s_branch L_went')
    A('L_go:')
    A(f's_waitcnt vmcnt({hg})')
    lds_add(C_GO, 10)
    A('L_went:')
    A('s_waitcnt lgkmcnt(0)'); A('s_add_u32 s46, s9, 1')
    A('s_lshl2_add_u32 s47, s68, s69')
    A('s_lshl_b32 s68, s68, 9'); A(f's_mul_i32 s8, s69, {PSTR}'); A('s_add_u32 s68, s68, s8'); A(f's_add_u32 s68, s68, {WS_PART}')
    xstamp(3)
    A('v_lshlrev_b32 v6, 16, v4'); A('v_and_b32 v7, s62, v4'); A('v_lshlrev_b32 v8, 16, v5'); A('v_and_b32 v9, s62, v5')
    A('s_cmp_eq_u32 s65, 1'); A('s_cbranch_scc1 L_jobq')
    for k in range(4): A(f'v_mul_f32 v{24+k}, s64, v{6+k}')
    for k in range(4): A(f'v_exp_f32 v{24+k}, -v{24+k}')
    for k in range(4): A(f'v_add_f32 v{24+k}, 1.0, v{24+k}')
    for k in range(4): A(f'v_rcp_f32 v{24+k}, v{24+k}')
    for k in range(4): A(f'v_mul_f32 v{6+k}, v{6+k}, v{24+k}')
    A('L_jobcommon:')
    def jobq():
        A('L_jobq:')
        for k in range(8):
            A(f'v_lshlrev_b32 v{96+2*k}, 16, v{16+k}'); A(f'v_and_b32 v{97+2*k}, s62, v{16+k}')
        A('v_add_f32 v24, v96, v97')
        for k in range(2, 16): A(f'v_add_f32 v24, v24, v{96+k}')
        row_reduce('v_add_f32', [24]); xg_reduce('v_add_f32', [24], 25)
        A(f'v_mul_f32 v24, {f2u(1/1024):#x}, v24')
        for k in range(16): A(f'v_sub_f32 v{96+k}, v{96+k}, v24')
        A('v_mul_f32 v26, v96, v96')
        for k in range(1, 16): A(f'v_fmac_f32 v26, v{96+k}, v{96+k}')
        row_reduce('v_add_f32', [26]); xg_reduce('v_add_f32', [26], 25)
        A(f'v_mul_f32 v26, {f2u(1/1024):#x}, v26')
        rnd(24, 26)
        A(f'v_add_f32 v26, {f2u(1e-5):#x}, v26'); rnd(26); A('v_sqrt_f32 v26, v26'); rnd(26); A('v_rcp_f32 v26, v26')
        for k in range(4): A(f'v_sub_f32 v{6+k}, v{6+k}, v24')
        rnd(6, 7, 8, 9)
        for k in range(4): A(f'v_mul_f32 v{6+k}, v{6+k}, v26')
        rnd(6, 7, 8, 9)
        if h2l:
            A('v_lshlrev_b32 v3, 1, v2'); A(f's_mov_b32 s72, {WS_G}'); A(f's_mov_b32 s73, {WS_G + 4096}')
            loads = [(16 + 4*a + 2*k, f'buffer_load_dwordx2 {v(16 + 4*a + 2*k, 2)}, v3, s[56:59], s{72+a} offen offset:{512*k} sc1') for a in range(2) for k in range(2)]
            A('s_waitcnt vmcnt(0)')
            lds_spin(C_PROG, 4, 10)
            if 'p2g' not in cut: tag_gather(loads, 10, cid=0, tagregs=(1,))
            for q_ in range(4): A(f'v_lshlrev_b32 v{96+2*q_}, 16, v{16+2*q_}'); A(f'v_and_b32 v{97+2*q_}, s62, v{16+2*q_}')
        else:
            A('v_lshlrev_b32 v3, 2, v2')
            loads = []
            for a in range(2):
                for rho in range(4):
                    A(f's_mov_b32 s{72 + 4*a + rho}, {WS_PART + rho * PSTR + a * 8192}')
                    for k in range(2):
                        d = 16 + 32*a + 16*k + 4*rho
                        loads.append((d, f'buffer_load_dwordx4 {v(d,4)}, v3, s[56:59], s{72 + 4*a + rho} offen offset:{1024*k} sc1'))
            A('s_waitcnt vmcnt(0)')
            lds_spin(C_PROG, 4, 10)
            if 'p2g' not in cut: tag_gather(loads, 10, cid=0)
            for q_ in range(4):
                b_ = 16 + 16 * q_
                for j in range(2):
                    A(f'v_add_f32 v{b_+2*j}, v{b_+2*j}, v{b_+4+2*j}'); A(f'v_add_f32 v{b_+8+2*j}, v{b_+8+2*j}, v{b_+12+2*j}')
                for j in range(2): A(f'v_add_f32 v{96+2*q_+j}, v{b_+2*j}, v{b_+8+2*j}')
            rnd(*range(96, 104))
        for k in range(4): A(f'v_add_f32 v{100+k}, 1.0, v{100+k}')
        rnd(100, 101, 102, 103)
        for k in range(4): A(f'v_mul_f32 v{6+k}, v{6+k}, v{100+k}')
        rnd(6, 7, 8, 9)
        for k in range(4): A(f'v_add_f32 v{6+k}, v{6+k}, v{96+k}')
        A('s_branch L_jobcommon')
    A('v_cvt_pk_bf16_f32 v4, v6, v7'); A('v_cvt_pk_bf16_f32 v5, v8, v9')
    A('s_lshl_b32 s8, s3, 10'); A(f's_add_u32 s8, s8, {L_SCR}')
    A('v_lshl_add_u32 v2, v0, 2, s8')
    A('ds_write2_b32 v2, v4, v5 offset0:0 offset1:64')
    A('v_lshrrev_b32 v3, 4, v0'); A('v_lshlrev_b32 v3, 1, v3'); A('v_and_b32 v6, 1, v0'); A('v_add_u32 v3, v3, v6'); A('v_lshl_add_u32 v3, v3, 4, s8')
    A('s_waitcnt lgkmcnt(0)')
    for G in range(4): A(f'ds_read_b128 {v(32+8*G,4)}, v3 offset:{128*G}')
    A('s_waitcnt lgkmcnt(0)')
    for G in range(4):
        if G == 2: A('s_cmp_eq_u32 s65, 3'); A('s_cbranch_scc1 L_halfg')
        A(f's_waitcnt vmcnt({24 - 8*G})')
        if G in (0, 3): xstamp(5 if G == 0 else 6)
        for m in range(4): perm(96 + m, 128 + 32*G, m, 0)
        for d in range(8):
            if d + 1 < 8:
                for m in range(4): perm(96 + 4*(d+1) + m, 128 + 32*G, m, d + 1)
            A(f'v_mfma_f32_16x16x32_bf16 {v(64+4*d,4)}, {v(96+4*d,4)}, {v(32+8*G,4)}, {0 if G == 0 else v(64+4*d,4)}')
    A('L_halfg:')
    A('v_lshrrev_b32 v3, 5, v0'); A('v_lshlrev_b32 v3, 8, v3'); A('v_and_b32 v6, 16, v0'); A('v_add3_u32 v3, v3, v6, s8')
    A('v_and_b32 v6, 3, v0'); A('v_lshlrev_b32 v6, 6, v6'); A('v_bfe_u32 v7, v0, 2, 3'); A('v_lshl_add_u32 v6, v7, 2, v6'); A('v_add_u32 v6, s8, v6')
    A('s_mov_b32 exec_lo, 0x00010001'); A('s_mov_b32 exec_hi, 0x00020002')
    for e in range(8): A(f'ds_write_b128 v3, {v(64+4*e,4)} offset:{512 + 32*e}')
    A('s_mov_b32 exec_lo, -1'); A('s_mov_b32 exec_hi, 0')
    A('s_waitcnt lgkmcnt(0)')
    A('ds_read2_b32 v[16:17], v6 offset0:128 offset1:136'); A('ds_read2_b32 v[20:21], v6 offset0:192 offset1:200')
    A('v_lshlrev_b32 v3, 4, v0'); A('v_mov_b32 v19, s46')
    A('s_lshl_b32 s8, s69, 3'); A('s_lshl_b32 s52, 0xff, s8'); A('s_not_b32 s52, s52')
    if not skipown: A('s_mov_b32 s52, -1')
    if not h2l: A('s_cmp_eq_u32 s65, 0'); A('s_cselect_b32 s52, -1, s52')
    A('s_waitcnt lgkmcnt(0)')
    A('v_add_f32 v18, v17, v21'); A('v_add_f32 v16, v16, v20'); A('v_mov_b32 v17, s46')
    A('s_cmp_lg_u32 s65, 3'); A('s_cbranch_scc1 L_nomrg')
    A('v_add_f32 v16, v16, v28'); A('v_add_f32 v18, v18, v29')
    A('L_nomrg:')
    A('v_mov_b32 v28, v16'); A('v_mov_b32 v29, v18')
    A('s_cmp_eq_u32 s65, 2'); A('s_cbranch_scc1 L_nopub')
    A('v_mov_b32 v28, 0'); A('v_mov_b32 v29, 0')
    A('s_mov_b32 exec_lo, s52')
    if 'nopub' not in cut: A('buffer_store_dwordx4 v[16:19], v3, s[56:59], s68 offen sc1')
    A('L_nopub:')
    A('s_mov_b64 exec, -1')
    A('s_bitcmp1_b32 s65, 0'); A('s_cbranch_scc1 L_unit_done')
    if h2l and 'nopub' not in cut: A('s_cmp_eq_u32 s65, 0'); A('s_cbranch_scc1 L_lvl2')
    A('L_second:')
    xstamp(7)
    if sec == 'late': lds_spin(C_P2, 1, 6, sleep=4)
    A('s_mov_b32 s65, 3'); A('s_branch L_unit')
    jobq()
    A('L_unit_done:')
    stamp(1)
    if 'qg' in cut: lds_add(C_P2, 10); A('s_endpgm')
    A('s_cmp_eq_u32 s3, 1'); A('s_cbranch_scc1 L_lvl2')
    if 'late' in cut: A('s_endpgm')
    lds_spin(C_PROG, 12, 6, sleep=8)
    A('L_lvl2:')
    if l2w is True: A('s_waitcnt vmcnt(0)')
    elif l2w: A(f's_sleep {l2w}')
    A('v_lshrrev_b32 v1, 3, v0'); A(f's_mov_b32 s8, {PSTR}'); A('v_mul_lo_u32 v1, v1, s8'); A('v_and_b32 v2, 7, v0'); A('v_lshl_add_u32 v1, v2, 4, v1')
    A('s_lshl_b32 s8, s47, 7'); A(f's_add_u32 s8, s8, {WS_PART}')
    A('s_mov_b32 exec_lo, s52'); A('s_mov_b32 exec_hi, 0')
    tag_gather([(16, 'buffer_load_dwordx4 v[16:19], v1, s[56:59], s8 offen sc1')], 10, sleep=6, cid=3)
    A('s_mov_b64 exec, -1')
    row_reduce('v_add_f32', [16, 18], (8,))
    for r in (16, 18): A(f'v_mov_b32 v{r+4}, v{r}')
    for r in (16, 18): A(f'v_permlane16_swap_b32 v{r}, v{r+4}')
    for r in (16, 18): A(f'v_add_f32 v{r}, v{r}, v{r+4}')
    A('v_cvt_pk_bf16_f32 v16, v16, v18')
    A('s_cmp_eq_u32 s65, 3'); A('s_cbranch_scc1 L_rest2')
    A('; ---- wave 5: publish and gather q, later stage the modulation vectors')
    A('v_lshlrev_b32 v2, 3, v2'); A('s_lshl_b32 s8, s47, 6'); A(f's_add_u32 s8, s8, {WS_G}')
    A('s_mov_b64 exec, 0xff'); A('buffer_store_dwordx2 v[16:17], v2, s[56:59], s8 offen sc1'); A('s_mov_b64 exec, -1')
    A('s_cmp_eq_u32 s65, 0'); A('s_cbranch_scc1 L_second')
    lds_add(C_P2, 10)
    xstamp(7)
    lds_spin(C_PROG, 8, 6, sleep=4)
    A('s_lshl_b32 s8, s4, 12'); A(f's_add_u32 s8, s8, {WS_Q}'); A('v_lshlrev_b32 v1, 4, v0')
    tag_gather([(20+4*n, f'buffer_load_dwordx4 {v(20+4*n,4)}, v1, s[56:59], s8 offen offset:{1024*n} sc1') for n in range(4)], 10, sleep=6, cid=1)
    A('v_lshrrev_b32 v2, 1, v1'); A(f'v_add_u32 v2, {L_Q}, v2')
    for n in range(4):
        A(f'v_mov_b32 v{21+4*n}, v{22+4*n}'); A(f'ds_write_b64 v2, {v(20+4*n,2)} offset:{512*n}')
    lds_add(C_Q, 6)
    stamp(2)
    if 'late' in cut: A('s_endpgm')
    if mk:
        A('s_lshr_b32 s8, s6, 2'); A('s_lshl_b32 s8, s8, 11'); A('s_and_b32 s10, s6, 3'); A('s_lshl3_add_u32 s8, s10, s8'); A(f's_add_u32 s8, s8, {WS_MK}')
        A('v_lshlrev_b32 v2, 5, v0')
        tag_gather([(16, 'buffer_load_dwordx2 v[16:17], v2, s[56:59], s8 offen sc1')], 10, sleep=8, tagregs=(1, 1))
        A('v_lshl_add_u32 v2, v0, 2, v13'); A(f'ds_write_b32 v2, v16 offset:{L_MK - LM}')
        assert not sc or sc_split == 0
        notcons('L_staged')
    def svc_rank(k):
        lds_spin(C_RK, 4 * (k + 1), 6, sleep=1)
        A(f's_bfe_u32 s10, s2, {(nshb << 16) | 3:#x}'); A(f's_mul_i32 s10, s10, {RSTR}'); A(f's_add_u32 s10, s10, {WS_RANK + (RSTR << nshb) * k}')
        A('s_mov_b32 s11, 1'); A('s_atomic_add s11, s[44:45], s10 glc'); A('s_waitcnt lgkmcnt(0)')
        A(f's_mov_b32 s8, {-LEV.index(DB)}')
        for j, t_ in enumerate(THR[k]):
            A(f's_cmp_ge_u32 s11, {int(round(t_ * (256 >> nshb) / 64.0))}'); A(f's_cselect_b32 s8, {j + 1 - LEV.index(DB)}, s8')
        A('v_mov_b32 v6, s8'); A(f'ds_write_b32 v13, v6 offset:{C_LEV}')
    for k in range(len(sc or ())):
        if sc[k] < sc_split: svc_rank(k)
    lds_spin(C_PROG, 16, 6, sleep=8)
    A(f's_mov_b32 s8, {WS_CLR}')
    tag_gather([(16, 'buffer_load_dwordx4 v[16:19], v1, s[56:59], s8 offen sc1')], 10, sleep=16, tagregs=(0, 1, 2, 3), cid=2)
    if retouch:
        A('s_cmp_lg_u32 s7, 0'); A('s_cbranch_scc1 L_notouch')
        A('s_getpc_b64 s[70:71]')
        A('L_pcref2:')
        A('v_lshlrev_b32 v2, 7, v0'); A('v_add_u32 v2, L_endgame-L_pcref2, v2'); A('v_min_u32 v2, L_end-L_pcref2, v2')
        A('global_load_dword v3, v2, s[70:71]')
        A('L_notouch:')
    notcons('L_staged')
    lds_spin(C_ML, 4, 6, sleep=4)
    A(f's_mov_b32 m0, {L_CONST}')
    A('global_load_lds_dwordx4 v1, s[16:17]'); A('global_load_lds_dwordx4 v1, s[16:17] offset:1024')
    dma(WS_MOD, L_CONST + 2048, 8)
    dma(WS_TAB, L_TABLE, NB // 2)
    if otouch: A('v_lshlrev_b32 v2, 5, v0'); A('global_load_dword v3, v2, s[40:41]')
    A('s_waitcnt vmcnt(0)')
    stamp(3)
    A('s_branch L_staged')
    A('; ---- wave 4: publish the rest of the modulation, exchange the softmax statistics of the group')
    A('L_rest2:')
    A('v_lshlrev_b32 v2, 2, v2'); A('s_lshl_b32 s8, s47, 5'); A(f's_sub_u32 s8, s8, {128 * 32 - WS_MOD}')
    A('s_mov_b64 exec, 0xff'); A('buffer_store_dword v16, v2, s[56:59], s8 offen sc1'); A('s_mov_b64 exec, -1')
    done_event(6)
    stamp(2)
    lds_spin(C_ML, 4, 6, sleep=2)
    A('v_and_b32 v1, 7, v0'); A('v_lshlrev_b32 v1, 3, v1'); A(f'v_add_u32 v2, {L_ML}, v1')
    for w in range(4): A(f'ds_read_b64 {v(16+2*w,2)}, v2 offset:{64*w}')
    A('s_waitcnt lgkmcnt(0)')
    A('v_max_f32 v24, v16, v18'); A('v_max3_f32 v24, v20, v22, v24')
    for w in range(4): A(f'v_sub_f32 v{28+w}, v{16+2*w}, v24')
    for w in range(4): A(f'v_mul_f32 v{28+w}, s64, v{28+w}')
    for w in range(4): A(f'v_exp_f32 v{28+w}, v{28+w}')
    A('v_mul_f32 v25, v28, v17')
    for w in range(1, 4): A(f'v_fmac_f32 v25, v{28+w}, v{17+2*w}')
    A('v_mov_b32_dpp v28, v24 quad_perm:[1,1,3,3] row_mask:0xf bank_mask:0xf')
    A('v_mov_b32 v27, s46')
    A('v_mov_b32_dpp v26, v25 quad_perm:[1,1,3,3] row_mask:0xf bank_mask:0xf')
    A('v_cvt_pk_bf16_f32 v24, v24, v28')
    A('s_lshl_b32 s8, s2, 6'); A(f's_add_u32 s8, s8, {WS_ML}')
    A('s_mov_b64 exec, 0x55'); A('buffer_store_dwordx4 v[24:27], v1, s[56:59], s8 offen sc1'); A('s_mov_b64 exec, -1')
    stamp(3)
    A('v_and_b32 v2, 3, v0'); A('v_bfe_u32 v3, v0, 2, 1'); A('v_lshl_add_u32 v2, v2, 1, v3'); A('v_bfe_u32 v4, v0, 3, 2')
    A('v_lshlrev_b32 v7, 6, v4'); A('v_lshl_add_u32 v7, v2, 3, v7'); A('v_add_u32 v7, v7, v13')
    A(f'ds_read_b32 v8, v7 offset:{L_ML - LM}')
    A('v_lshlrev_b32 v7, 2, v4'); A('v_lshl_add_u32 v7, v2, 4, v7'); A('v_add_u32 v7, v7, v13')
    A('s_lshl_b32 s10, s4, 12'); A(f's_add_u32 s10, s10, {WS_ML}'); A('v_lshlrev_b32 v1, 4, v0')
    lds_spin(C_PROG, 20, 6, sleep=2)
    tag_gather([(32+4*n, f'buffer_load_dwordx4 {v(32+4*n,4)}, v1, s[56:59], s10 offen offset:{1024*n} sc1') for n in range(4)], 10, sleep=6, cid=4, tagregs=(3,))
    stamp(4)
    for n in range(4): A(f'v_lshlrev_b32 v{16+n}, 16, v{32+4*n}'); A(f'v_and_b32 v{20+n}, s62, v{32+4*n}')
    for h in range(2): A(f'v_max_f32 v{24+h}, v{16+4*h}, v{17+4*h}'); A(f'v_max3_f32 v{24+h}, v{18+4*h}, v{19+4*h}, v{24+h}')
    row_reduce('v_max_f32', [24, 25], (8, 4)); xg_reduce('v_max_f32', [24, 25], 28)
    for k in range(8): A(f'v_sub_f32 v{16+k}, v{16+k}, v{24 + k//4}')
    for k in range(8): A(f'v_mul_f32 v{16+k}, s64, v{16+k}')
    for k in range(8): A(f'v_exp_f32 v{16+k}, v{16+k}')
    for n in range(4):
        for h in range(2): A(f'{"v_mul_f32" if n == 0 else "v_fmac_f32"} v{26+h}, v{16+4*h+n}, v{33+4*n+h}')
    row_reduce('v_add_f32', [26, 27], (8, 4)); xg_reduce('v_add_f32', [26, 27], 28)
    A('v_cmp_eq_u32 vcc, 1, v3'); A('v_cndmask_b32 v24, v24, v25, vcc'); A('v_cndmask_b32 v26, v26, v27, vcc')
    A('v_rcp_f32 v26, v26')
    A('v_sub_f32 v8, v8, v24'); A('v_mul_f32 v8, s64, v8'); A('v_exp_f32 v8, v8'); A('v_mul_f32 v8, v8, v26')
    A(f'ds_write_b32 v7, v8 offset:{L_FAC - LM}')
    A('s_branch L_staged')

    A('L_tabwaves:')
    if 'tab' in cut: A('s_endpgm')
    A('s_waitcnt lgkmcnt(0)')
    svc_setup()
    A('s_cmp_eq_u32 s3, 3'); A('s_cbranch_scc1 L_tabinit')
    if 'noclr' not in cut:
        A('v_mov_b32 v20, -1'); A('v_mov_b32 v21, -1'); A('v_mov_b32 v22, -1'); A('v_mov_b32 v23, -1')
        A('v_lshrrev_b32 v1, 5, v0'); A('v_lshlrev_b32 v1, 15, v1'); A('v_and_b32 v2, 31, v0'); A('v_lshl_add_u32 v1, v2, 4, v1')
        A('v_lshrrev_b32 v3, 3, v0'); A('v_lshlrev_b32 v3, 15, v3'); A('v_and_b32 v2, 7, v0'); A('v_lshl_add_u32 v3, v2, 4, v3')
        A('s_lshl_b32 s8, s4, 17'); A('s_lshl_b32 s10, s5, 9'); A('s_add_u32 s8, s8, s10'); A(f's_add_u32 s8, s8, {WS_T1}'); A('s_add_u32 s10, s8, 0x10000')
        A('s_lshl_b32 s11, s6, 11'); A('s_lshl_b32 s14, s7, 7'); A('s_add_u32 s11, s11, s14'); A(f's_add_u32 s11, s11, {WS_T2}')
        if mk:
            A('buffer_load_dword v24, v1, s[56:59], s8 offen sc1'); A('buffer_load_dword v25, v1, s[56:59], s10 offen sc1')
        else:
            for so in ('s8', 's10'): A(f'buffer_store_dwordx4 v[20:23], v1, s[56:59], {so} offen sc1')
        A('s_mov_b64 exec, 0xff'); A('buffer_store_dwordx4 v[20:23], v3, s[56:59], s11 offen sc1'); A('s_mov_b64 exec, -1')
    A('L_tabinit:')
    A('s_and_b32 s8, s2, 127'); A(f's_mul_i32 s8, s8, {NB}'); A(f's_add_u32 s8, s8, {TAB_E0}')
    A('s_lshr_b32 s10, s2, 7'); A('s_lshl_b32 s10, s10, 15'); A('s_add_u32 s8, s8, s10')
    A('v_add_u32 v2, s8, v0'); A('v_lshlrev_b32 v2, 16, v2')
    A(f'v_cmp_gt_u32 vcc, {NB}, v0'); A('v_cndmask_b32 v12, 0, v2, vcc')
    A('s_mov_b32 s65, 0'); A('v_mov_b32 v239, 0')
    A('s_waitcnt lgkmcnt(0)'); A('s_add_u32 s46, s9, 1')
    if tb0 == 'early': A('s_barrier')
    if mk:
        assert tb0 == 'early' and nrep == 1
        A('s_cmp_eq_u32 s3, 3'); A('s_cbranch_scc1 L_mlp')
        A('s_waitcnt vmcnt(0)')
        A('v_and_b32 v24, 1, v24'); A('v_and_b32 v25, 1, v25'); A('v_cmp_eq_u32 s[16:17], 0, v24'); A('v_cmp_eq_u32 s[18:19], 0, v25')
        for k in range(4): A(f'v_writelane_b32 v24, s{16+k}, {k}')
        A('v_mov_b32 v25, s46'); A('v_lshlrev_b32 v2, 3, v0'); A('v_lshl_add_u32 v3, v0, 2, v13')
        A('s_lshl_b32 s8, s2, 5'); A(f's_add_u32 s8, s8, {WS_MK}')
        A('s_mov_b64 exec, 15'); A('buffer_store_dwordx2 v[24:25], v2, s[56:59], s8 offen sc1'); A(f'ds_write_b32 v3, v24 offset:{L_MKO}'); A('s_mov_b64 exec, -1')
        lds_add(C_Q, 6)
    A('L_mlp:')
    TR = list(range(16, 28)) + list(range(48, 56)) + [36, 37]
    NT = NB + 1
    assert NT <= len(TR) and NT <= 24
    A('s_sub_u32 s8, s3, 2'); A('s_mul_i32 s8, s8, 3584'); A('v_lshl_add_u32 v1, v0, 3, s8')
    def pload():
        for a, ptr in enumerate(('s[28:29]', 's[30:31]', 's[32:33]')):
            if 'tabl' not in cut: A(f'global_load_dwordx2 {v(56 + 2*a, 2)}, v1, {ptr}')
    pload()
    A('s_load_dword s47, s[34:35], 0')
    for k in range(NT): A(f'v_readlane_b32 s{TR[k]}, v12, {k}')
    c0 = -2.0 * math.sqrt(2.0 / math.pi) * LOG2E; c1 = c0 * 0.044715
    A(f's_mov_b32 s72, {f2u(c1):#x}'); A('s_mov_b32 s73, s72'); A(f's_mov_b32 s74, {f2u(3*c1):#x}'); A('s_mov_b32 s75, s74')
    A('s_mov_b32 s66, 1.0'); A('s_mov_b32 s67, 1.0')
    A(f'v_mov_b32 v10, {f2u(c0):#x}'); A('v_mov_b32 v11, v10')
    for k in range(48): A(f'v_mov_b32 v{64+k}, 0')
    A('s_mov_b32 s68, 0')
    if tb0 == 'late':
        A('s_cmp_eq_u32 s65, 1'); A('s_cbranch_scc1 L_mlp_loop'); A('s_barrier')
    A('.p2align 3')
    A('L_mlp_loop:')
    A('s_waitcnt vmcnt(0)')
    CO = 24
    for r in range(2):
        for a in range(3):
            A(f'v_lshlrev_b32 v{2+2*a}, 16, v{56 + 2*a + r}'); A(f'v_and_b32 v{3+2*a}, s62, v{56 + 2*a + r}')
        if r == 1:
            A('v_add_u32 v1, 0x200, v1')
            A('s_cmp_eq_u32 s68, 6'); A('s_cbranch_scc1 L_mlp_nold'); pload(); A('L_mlp_nold:')
        c = CO + 12 * r
        A('v_pk_mul_f32 v[8:9], v[2:3], v[2:3]'); A('v_pk_mul_f32 v[16:17], v[4:5], v[4:5]')
        A('v_pk_mul_f32 v[18:19], v[8:9], s[72:73]'); A('v_pk_mul_f32 v[8:9], v[8:9], s[74:75]')
        A('v_pk_fma_f32 v[20:21], v[16:17], s[74:75], v[10:11]'); A('v_pk_fma_f32 v[16:17], v[16:17], s[72:73], v[10:11]')
        A(f'v_pk_mul_f32 {v(c,2)}, v[18:19], v[2:3]'); A(f'v_pk_mul_f32 {v(c+2,2)}, v[8:9], v[4:5]')
        A(f'v_pk_mul_f32 {v(c+4,2)}, v[20:21], v[2:3]'); A(f'v_pk_mul_f32 {v(c+6,2)}, v[16:17], v[4:5]')
        A(f'v_pk_mul_f32 {v(c+8,2)}, v[2:3], v[6:7]'); A(f'v_pk_mul_f32 {v(c+10,2)}, v[4:5], v[6:7]')
    A('.p2align 3')
    for k in range(NT):
        if k == 4: A('s_cmp_eq_u32 s65, 1'); A('s_cbranch_scc1 L_mlp_next')
        sp = f's[{TR[k] & ~1}:{(TR[k] & ~1) + 1}]'; h_ = TR[k] & 1
        os_ = f'op_sel:[0,{h_},0] op_sel_hi:[1,{h_},1]'
        cs = [CO, CO + 12]
        x0 = 2 if k % 2 == 0 else 48
        for d in range(2): A(f'v_pk_fma_f32 {v(x0+2*d,2)}, {v(cs[d],2)}, {sp}, {v(cs[d]+2,2)} {os_}')
        for d in range(2): A(f'v_pk_fma_f32 {v(x0+2*d,2)}, {v(x0+2*d,2)}, {sp}, {v(cs[d]+4,2)} {os_}')
        for d in range(2): A(f'v_pk_fma_f32 {v(x0+2*d,2)}, {v(x0+2*d,2)}, {sp}, {v(cs[d]+6,2)} {os_}')
        for d in range(4): A(f'v_exp_f32 v{x0+d}, v{x0+d}')
        for d in range(2): A(f'v_pk_fma_f32 {v(x0+4+2*d,2)}, {v(cs[d]+8,2)}, {sp}, {v(cs[d]+10,2)} {os_}')
        for d in range(2): A(f'v_pk_add_f32 {v(x0+2*d,2)}, {v(x0+2*d,2)}, s[66:67]')
        for d in range(4): A(f'v_rcp_f32 v{x0+d}, v{x0+d}')
        for d in range(2): A(f'v_pk_fma_f32 {v(64+2*k,2)}, {v(x0+4+2*d,2)}, {v(x0+2*d,2)}, {v(64+2*k,2)}')
    A('L_mlp_next:')
    A('s_add_u32 s68, s68, 1'); A('s_cmp_lt_u32 s68, 7'); A('s_cbranch_scc1 L_mlp_loop')
    xstamp(4)
    for k in range(NT): A(f'v_add_f32 v{64+2*k}, v{64+2*k}, v{65+2*k}')
    for k in range(0, 24, 2): A(f'v_permlane32_swap_b32 v{64+2*k}, v{66+2*k}')
    for k in range(0, 24, 2): A(f'v_add_f32 v{64+2*k}, v{64+2*k}, v{66+2*k}')
    for k in range(0, 24, 4): A(f'v_permlane16_swap_b32 v{64+2*k}, v{68+2*k}')
    for k in range(0, 24, 4): A(f'v_add_f32 v{64+2*k}, v{64+2*k}, v{68+2*k}')
    row_reduce('v_add_f32', [64 + 8*j for j in range(6)])
    A('s_lshl_b32 s8, s3, 7'); A(f's_add_u32 s8, s8, {L_TP - 256}')
    A('v_lshrrev_b32 v2, 5, v0'); A('v_lshl_add_u32 v2, v2, 2, s8'); A('v_and_b32 v1, 16, v0'); A('v_lshrrev_b32 v1, 1, v1'); A('v_add_u32 v2, v2, v1')
    A('v_and_b32 v1, 31, v0')
    A('s_mov_b32 exec_lo, 0x00010001'); A('s_mov_b32 exec_hi, 0x00010001')
    for j in range(6): A(f'ds_write_b32 v2, v{64+8*j} offset:{16*j}')
    A('s_waitcnt lgkmcnt(0)')
    A('s_lshl_b32 s8, s65, 2'); A('v_add_u32 v3, s8, v13')
    A('s_mov_b64 exec, 1'); A('v_mov_b32 v6, 1'); A(f'ds_add_rtn_u32 v6, v3, v6 offset:{C_TAB}'); A('s_mov_b64 exec, -1')
    A('s_waitcnt lgkmcnt(0)')
    A('v_readfirstlane_b32 s8, v6')
    A('s_bitcmp1_b32 s8, 0'); A('s_cbranch_scc1 L_mlp_last')
    A('s_cmp_eq_u32 s65, 0'); A('s_cbranch_scc1 L_staged')
    A('s_branch L_batchdone')
    A('L_mlp_last:')
    A(f'v_lshlrev_b32 v2, 2, v1'); A(f'v_add_u32 v2, {L_TP}, v2')
    A('ds_read2_b32 v[16:17], v2 offset0:0 offset1:32')
    A('s_lshl_b32 s47, s47, 16')
    A('s_waitcnt lgkmcnt(0)')
    A('v_add_f32 v16, v16, v17'); rnd(16); A('v_add_f32 v16, s47, v16'); rnd(16)
    A('s_cmp_eq_u32 s65, 1'); A('s_cbranch_scc1 L_output')
    A('v_mov_b32_dpp v17, v16 quad_perm:[1,1,3,3] row_mask:0xf bank_mask:0xf')
    A('v_cvt_pk_bf16_f32 v18, v16, v17')
    A('v_lshlrev_b32 v2, 1, v0'); A(f's_mul_i32 s8, s2, {2*NB}'); A(f's_add_u32 s8, s8, {WS_TAB}')
    A(f's_mov_b64 exec, {0x55555555 & ((1 << NB) - 1):#x}'); A('buffer_store_dword v18, v2, s[56:59], s8 offen sc1')
    A(f's_mov_b64 exec, {1 << NB:#x}'); A(f'ds_write_b16 v13, v18 offset:{L_TABLE + 512 * NB - LM}')
    A('s_mov_b64 exec, -1')
    done_event(6)
    stamp(3)
    A('L_staged:')
    if sc and max(sc) >= sc_split:
        A('s_cmp_lg_u32 s3, 3'); A('s_cbranch_scc1 L_noctl')
        for k in range(len(sc)):
            if sc[k] >= sc_split: svc_rank(k)
        A('L_noctl:')
    A('s_setprio 0')
    A('s_add_u32 s3, s3, 4')
    A('s_waitcnt lgkmcnt(0)')
    stamp(5)
    if cut: A('s_endpgm')
    notcons('L_fin')
    A('s_barrier')
    prep()
    A('s_branch L_tail')

    A(';MARK tail')
    A('L_tail:')
    if trim: A(f's_cmp_ge_u32 s3, {nrep}')
    A('s_barrier')
    xstamp(10)
    if not trim: A(f's_cmp_ge_u32 s3, {nrep}')
    A('s_cbranch_scc1 L_norep')
    for w in range(2): A(f'ds_read_b128 {v(16+4*w,4)}, v229 offset:{L_RED2 - LM + 1024*w}')
    A('s_waitcnt lgkmcnt(0)')
    A('v_pk_add_f32 v[16:17], v[16:17], v[20:21]'); A('v_pk_add_f32 v[18:19], v[18:19], v[22:23]')
    for e in range(2): A(f'v_permlane32_swap_b32 v{16+e}, v{18+e}')
    A('v_pk_add_f32 v[16:17], v[16:17], v[18:19]')
    A('v_mov_b32 v18, v16'); A('v_mov_b32 v19, v17')
    for e in range(2): A(f'v_permlane16_swap_b32 v{16+e}, v{18+e}')
    A('v_pk_add_f32 v[16:17], v[16:17], v[18:19]')
    A('v_cvt_pk_bf16_f32 v16, v16, v17')
    A('v_min_u32 v16, -2, v16')
    for c in range(1, 4): A(f'v_mov_b32_dpp v{16+c}, v16 quad_perm:[{c},{c},{c},{c}] row_mask:0xf bank_mask:0xf')
    if trim: A('s_mov_b64 exec, s[76:77]')
    else: A('s_mov_b32 exec_lo, 0x1111'); A('s_mov_b32 exec_hi, 0x1111')
    A('buffer_store_dwordx4 v[16:19], v230, s[56:59], s72 offen sc1')
    A('s_mov_b64 exec, -1')
    if ackw and not trim: A('s_waitcnt vmcnt(0)')
    A('L_norep:')
    if not trim: xstamp(11)
    if pref:
        def pref_cold():
            A('L_pref:')
            A('s_and_b32 s8, s2, 7'); A(f's_cmp_lg_u32 s8, {cx & 7}'); A('s_cbranch_scc1 L_fin')
            if trim: A('s_waitcnt vmcnt(0)')
            if pref == 1: A('s_barrier')
            A('v_lshlrev_b32 v1, 7, v0'); A('s_lshl_b32 s8, s3, 13'); A(f's_add_u32 s8, s8, {WS_T2}')
            for n_ in range(prefn):
                if n_: A('s_waitcnt vmcnt(0)')
                A('buffer_load_dword v2, v1, s[56:59], s8 offen sc1')
            A('s_branch L_fin')
        COLD.append(pref_cold)
    notcons('L_pref' if pref else 'L_fin')
    if trim: A('s_waitcnt vmcnt(0)')
    A('s_barrier')
    if t2x: A(f's_sleep {t2x}')
    stamp(7)
    def t2_load(n): A(f'buffer_load_dwordx4 {v(16+4*n,4)}, v244, s[56:59], {"s75" if n < 2 else "s73"} offen offset:{2048 * (n & 1)} sc1')
    for n in range(4): t2_load(n)
    sweep('t2', 4, t2_load, lambda k: 16 + 4*k, 240, 6)
    stamp(8)
    rnd(240, 241)
    A('v_pk_mul_f32 v[240:241], v[250:251], v[240:241]'); rnd(240, 241)
    A('v_pk_add_f32 v[240:241], v[248:249], v[240:241]'); rnd(240, 241)
    def stats(a, b, lds_off, pre=None):
        A(f'v_add_f32 v46, v{a}, v{b}'); A(f'v_mul_f32 v47, v{a}, v{a}'); A(f'v_fmac_f32 v47, v{b}, v{b}')
        A('v_permlane32_swap_b32 v46, v47'); A('v_add_f32 v46, v46, v47')
        row_reduce('v_add_f32', [46])
        A('v_add_f32_dpp v46, v46, v46 row_bcast:15 row_mask:0xa bank_mask:0xf')
        A('s_mov_b64 exec, s[78:79]')
        A(f'ds_write_b32 v246, v46 offset:{lds_off}')
        A('s_mov_b64 exec, -1')
        if pre: pre()
        A('s_waitcnt lgkmcnt(0)')
        A('s_barrier')
    def stats_calc(lds_off):
        for k in range(4): A(f'ds_read_b128 {v(48+4*k,4)}, v13 offset:{lds_off + 16*k}')
        for k in range(4):
            A(f's_waitcnt lgkmcnt({3 - k})'); A(f'v_pk_add_f32 {v(48+4*k,2)}, {v(48+4*k,2)}, {v(50+4*k,2)}')
            if k == 1: A('v_pk_add_f32 v[48:49], v[48:49], v[52:53]')
        A('v_pk_add_f32 v[56:57], v[56:57], v[60:61]')
        A('v_pk_add_f32 v[46:47], v[48:49], v[56:57]')
        A('v_pk_mul_f32 v[46:47], v[46:47], s[66:67]')
        A('v_fma_f32 v47, -v46, v46, v47'); A('v_cvt_pk_bf16_f32 v47, 0, abs(v47)')
        A(f'v_add_f32 v47, {f2u(1e-5):#x}, v47'); rnd(47); A('v_sqrt_f32 v47, v47'); rnd(46); rnd(47)
    def normalise(src):
        A(f'v_pk_add_f32 v[42:43], {v(src,2)}, v[46:47] op_sel:[0,0] op_sel_hi:[1,0] neg_lo:[0,1] neg_hi:[0,1]'); A('v_rcp_f32 v47, v47'); rnd(42, 43)
        A('v_pk_mul_f32 v[42:43], v[42:43], v[46:47] op_sel:[0,1] op_sel_hi:[1,1]'); rnd(42, 43)
    stats(240, 241, L_ST1)
    xstamp(12)
    stats_calc(L_ST1); normalise(240)
    A('v_pk_mul_f32 v[42:43], v[42:43], v[254:255]'); rnd(42, 43)
    A('v_pk_add_f32 v[42:43], v[42:43], v[252:253]'); rnd(42, 43)
    def outwave():
        A('v_mov_b32 v16, 0'); A('v_mov_b32 v17, 0')
        A('s_lshr_b32 s8, s2, 3'); A('s_xor_b32 s8, s8, s3'); A(f's_and_b32 s8, s8, {(1 << ncb) - 1}')
    stats(42, 43, L_ST2, outwave)
    xstamp(13)
    A('s_cbranch_scc1 L_early')
    stats_calc(L_ST2); normalise(42)
    stamp(9)
    for e in range(2): A(f'v_bfe_u32 v{2+e}, v{42+e}, 15, 16'); A(f'v_ashrrev_i32 v{4+e}, 31, v{42+e}')
    for e in range(2): A(f'v_cmp_eq_u32 s[{16+2*e}:{17+2*e}], 0, v{2+e}'); A(f'v_and_b32 v{4+e}, v245, v{4+e}')
    for e in range(2): A(f'v_add3_u32 v{4+e}, v{2+e}, v{4+e}, s68')
    for e in range(2): A(f'v_cndmask_b32 v{4+e}, v{4+e}, v247, s[{16+2*e}:{17+2*e}]'); A(f'ds_read_u16_d16_hi v{16+e}, v{4+e}')
    for e in range(2): A(f'v_subrev_u32 v{2+e}, {2 * TAB_E0}, v{2+e}'); A(f'v_cmp_gt_u32 s[{20+2*e}:{21+2*e}], v245, v{2+e}')
    for e in range(2):
        A(f's_or_b64 s[{20+2*e}:{21+2*e}], s[{20+2*e}:{21+2*e}], s[{16+2*e}:{17+2*e}]')
        if force_fb: A(f's_and_b64 s[{20+2*e}:{21+2*e}], s[{20+2*e}:{21+2*e}], {force_fb if isinstance(force_fb, str) else "0"}')
    A('s_waitcnt lgkmcnt(0)')
    A('v_pk_mul_f32 v[16:17], v[16:17], v[236:237]'); rnd(16, 17)
    A('v_pk_add_f32 v[16:17], v[16:17], v[240:241]'); A('v_cvt_pk_bf16_f32 v16, v16, v17')
    if opk:
        A('v_mov_b32 v17, v16'); A('s_and_b64 s[16:17], s[20:21], s[22:23]'); A('s_not_b64 s[16:17], s[16:17]')
        A('v_permlane32_swap_b32 v16, v17')
        A('s_cbranch_scc1 L_slowout')
        A('v_perm_b32 v16, v17, v16, v231')
        if opk == 4:
            for c in range(1, 4): A(f'v_mov_b32_dpp v{16+c}, v16 quad_perm:[{c},{c},{c},{c}] row_mask:0xf bank_mask:0xf')
            A('s_mov_b64 exec, s[70:71]')
            A(f'global_store_dwordx4 v228, v[16:19], s[40:41] {osc}')
        else: A(f'global_store_dword v228, v16, s[40:41] {osc}')
        A('s_branch L_listed')
        A('L_slowout:')
        A('v_permlane32_swap_b32 v16, v17')
        A('s_mov_b64 exec, s[20:21]'); A('global_store_short v238, v16, s[40:41]')
        A('s_mov_b64 exec, s[22:23]'); A('global_store_short_d16_hi v238, v16, s[40:41] offset:16')
    else:
        A('s_mov_b64 exec, s[20:21]'); A(f'global_store_short v238, v16, s[40:41] {osc}')
        A('s_mov_b64 exec, s[22:23]'); A(f'global_store_short_d16_hi v238, v16, s[40:41] offset:16 {osc}')
        A('s_and_b64 s[16:17], s[20:21], s[22:23]'); A('s_not_b64 s[16:17], s[16:17]'); A('s_cbranch_scc0 L_listed')
    for e in range(2):
        A(f's_not_b64 exec, s[{20+2*e}:{21+2*e}]')
        A('v_mov_b32 v2, 1'); A(f'ds_add_rtn_u32 v2, v13, v2 offset:{C_LIST}')
        A(f'v_mov_b32 v4, v{42+e}'); A(f'v_mov_b32 v5, v{240+e}'); A(f'v_mov_b32 v6, v{236+e}'); A(f'v_add_u32 v7, {16*e}, v238')
        A('s_waitcnt lgkmcnt(0)')
        A('v_lshlrev_b32 v2, 4, v2'); A(f'ds_write_b128 v2, v[4:7] offset:{L_LIST}')
    A('s_waitcnt lgkmcnt(0)')
    A('L_listed:')
    A('s_mov_b64 exec, -1')
    A('L_wait67:')
    A('s_barrier')
    A('s_cmp_lt_u32 s3, 6'); A('s_cbranch_scc1 L_last')
    A(f'ds_read_b32 v2, v13 offset:{C_LIST}'); A('s_waitcnt lgkmcnt(0)')
    A('v_readfirstlane_b32 s69, v2')
    A('s_cmp_eq_u32 s69, 0'); A('s_cbranch_scc1 L_fin')
    A('s_sub_u32 s3, s3, 4'); A('s_mov_b32 s65, 1'); A('s_mov_b32 s76, 0')
    A('L_batch:')
    A('v_and_b32 v2, 3, v0'); A('v_add_u32 v2, s76, v2'); A('v_cmp_gt_u32 s[78:79], s69, v2'); A('s_sub_u32 s8, s69, 1'); A('v_min_u32 v2, s8, v2')
    A('v_lshlrev_b32 v2, 4, v2'); A(f'ds_read_b128 v[236:239], v2 offset:{L_LIST}')
    A('s_waitcnt lgkmcnt(0)')
    A('v_mov_b32 v12, v236')
    A('s_branch L_mlp')
    A('L_output:')
    A('v_mul_f32 v16, v238, v16'); rnd(16)
    A('v_add_f32 v16, v237, v16'); A('v_cvt_pk_bf16_f32 v16, v16, v16')
    A('s_and_b64 exec, s[78:79], 15')
    A('global_store_short v239, v16, s[40:41]')
    A('s_mov_b64 exec, -1')
    A('L_batchdone:')
    A('s_barrier')
    A('s_add_u32 s76, s76, 4'); A('s_cmp_lt_u32 s76, s69'); A('s_cbranch_scc1 L_batch')
    A('s_branch L_fin')
    for c in COLD: c()
    A('L_early:')
    A('s_cmp_ge_u32 s3, 6'); A('s_cbranch_scc1 L_wait67')
    A('L_last:')
    A('s_cmp_lg_u32 s3, 4'); A('s_cbranch_scc1 L_fin')
    A(f's_cmp_lg_u32 s2, {cx}'); A('s_cbranch_scc1 L_fin')
    A('s_mov_b64 exec, 1'); A('v_mov_b32 v16, s46'); A(f's_mov_b32 s8, {WS_EPOCH}')
    A(f'buffer_store_dword v16, off, s[56:59], s8 {osc}')
    if endstamp: A('s_mov_b64 exec, -1')
    A('L_fin:')
    if endstamp:
        A('s_waitcnt vmcnt(0)')
        A('s_memrealtime s[100:101]'); A('s_waitcnt lgkmcnt(0)')
        A('v_mov_b32 v61, v15')
        for k in range(11): A(f'v_writelane_b32 v61, s{80+2*k}, {k}')
        A('s_lshl_b32 s8, s2, 3'); A('s_add_u32 s8, s8, s3'); A('s_lshl_b32 s8, s8, 7'); A(f's_add_u32 s8, s8, {WS_STAMP}')
        A('v_lshlrev_b32 v1, 2, v0'); A('s_mov_b32 exec_lo, -1'); A('s_mov_b32 exec_hi, 0')
        A('buffer_store_dword v61, v1, s[56:59], s8 offen')
    if probe:
        k_, wlo, whi, op = probe
        A('s_sleep 127'); A('s_sleep 127')
        A('s_mov_b64 exec, 1')
        A('s_not_b32 s8, s80'); A('v_mov_b32 v1, s8'); A('v_mov_b32 v2, 0')
        A('global_atomic_umax v2, v1, s[42:43] sc1')
        A(f's_cmp_lt_u32 s3, {wlo}'); A('s_cbranch_scc1 L_pskip'); A(f's_cmp_gt_u32 s3, {whi}'); A('s_cbranch_scc1 L_pskip')
        A(f'v_readlane_b32 s8, v61, {k_}')
        if op == 'sum': A('s_sub_u32 s8, s8, s80')
        A('v_mov_b32 v1, s8')
        A(f'global_atomic_{"add" if op in ("sum", "cnt") else "umax"} v2, v1, s[42:43] offset:128 sc1')
        A('L_pskip:')
        A('s_waitcnt vmcnt(0)')
        A('s_cmp_lg_u32 s2, 0'); A('s_cbranch_scc1 L_end'); A('s_cmp_lg_u32 s3, 0'); A('s_cbranch_scc1 L_end')
        A('s_add_u32 s10, s80, 9000')
        A('L_ph1:'); A('s_memrealtime s[100:101]'); A('s_waitcnt lgkmcnt(0)'); A('s_sub_u32 s8, s100, s10'); A('s_cmp_lt_i32 s8, 0'); A('s_cbranch_scc1 L_ph1')
        A('global_load_dword v3, v2, s[42:43] sc1'); A('global_load_dword v4, v2, s[42:43] offset:128 sc1'); A('s_waitcnt vmcnt(0)')
        A('v_readfirstlane_b32 s10, v3'); A('v_readfirstlane_b32 s11, v4')
        A('s_not_b32 s10, s10')
        if op == 'max': A('s_sub_u32 s11, s11, s10')
        if op == 'sum': A(f's_lshr_b32 s11, s11, {(256 * (whi - wlo + 1)).bit_length() - 1}')
        A('s_min_u32 s11, s11, 6000'); A('s_mul_i32 s11, s11, 10')
        A('s_add_u32 s10, s10, 10000'); A('s_add_u32 s10, s10, s11')
        A('L_ph2:'); A('s_memrealtime s[100:101]'); A('s_waitcnt lgkmcnt(0)'); A('s_sub_u32 s8, s100, s10'); A('s_cmp_lt_i32 s8, 0'); A('s_cbranch_scc1 L_ph2')
    A('L_end:')
    A('s_endpgm')
    A('.section .rodata,"a"'); A('.p2align 6'); A(f'.amdhsa_kernel {NAME}_kernel')
    A('.amdhsa_next_free_vgpr 256'); A('.amdhsa_next_free_sgpr 102'); A('.amdhsa_accum_offset 256')
    A('.amdhsa_group_segment_fixed_size 0'); A('.amdhsa_kernarg_size 120'); A('.amdhsa_user_sgpr_count 2')
    A('.amdhsa_user_sgpr_kernarg_segment_ptr 1'); A('.amdhsa_system_sgpr_workgroup_id_x 1')
    A('.amdhsa_float_denorm_mode_32 3')
    A('.end_amdhsa_kernel')
    ia, isv, it_ = (A.L.index(';MARK ' + m) for m in ('attn2', 'service', 'tail'))
    A.L = A.L[:ia] + A.L[isv:it_] + A.L[ia:isv] + A.L[it_:]
    A.L = [l for l in A.L if not l.startswith(';MARK')]
    txt, nn = A.finish()
    return txt

if __name__ == '__main__':
    kw = eval('dict(%s)' % (sys.argv[2] if len(sys.argv) > 2 else ''))
    open(sys.argv[1], 'w').write(gen(**kw))
```

```python
import sys, struct, math
from asmlib import Asm
NAME = 'adaLN_cond__gqa_block_cached__mixer_token_mlp__decode'

def f2u(x): return struct.unpack('<I', struct.pack('<f', x))[0]
LOG2E = 1.4426950408889634

WS_MOD, WS_TAB, WS_ML, WS_Q, WS_CLR, WS_EPOCH, WS_RANK = 0x0, 0x8000, 0x10000, 0x20000, 0x28000, 0x29000, 0x30000
WS_MK = 0x2A000
WS_G = WS_Q - 384 * 64
WS_PART, WS_T2, WS_T1, WS_STAMP = 0x40000, 0xC0000, 0x100000, 0x200000
PSTR = 10240 * 8
RSTR = 256
LM = 131072
C_Q, C_ML, C_PROG, C_TAB, C_FB, C_DONE, C_P2, C_GO, C_RK, C_LEV, C_LIST = 4, 8, 12, 16, 20, 24, 28, 32, 36, 40, 44
L_ST1, L_ST2 = 128, 192
L_ML = LM + 256
L_FAC = LM + 512
L_TP = LM + 768
L_Q = LM + 1024
L_CONST = LM + 3072
NB = 20
L_TABLE = LM + 13312
L_SCR = LM + 13312 + 512 * NB + 256
L_RED2 = L_SCR + 2048
L_LIST = 0
L_MK = L_RED2 + 2048
L_SD = L_MK + 256
L_SC = L_SD + 256
L_MKO = 64
LDS_BYTES = 163840
assert L_SC + 256 <= LDS_BYTES
OSTRIDE = 528
TAB_E0 = (130 - NB) << 7
SPIN_CAP = 0x40000

def gen(DA=6, DB=5, early=2, WU=20, hu=16, hg=14, p2_at=14, q_at=53, r2_at=1, fin_at=40, ml_at=48,
        cps=(3, 23, 42), lev=(4, 5, 6, 8), thrs=((16, 40, 56), (16, 40, 56), (16, 40, 56), (16, 40, 56), (10, 42, 58), (6, 42, 58), (0, 40, 56)), wsh=2, rd=4, DS=5, wos=(1, 2, 3, 3, 4, 4, 6, 8), wothr=4,
        skipown=True, sc=(1, 9, 18, 27, 36, 44, 52), scr=(3, 5, 7), nshb=3, sc_split=0, mret=True, gsp=0, mk=False, swapw=False, goff=False, scr4=True, sec='late', qsh=1, osc='sc0 sc1', opk=4, otouch=False, trim=True, alg=True, retouch=False, rsl=1, gw=0, hw=0, nrep=1, cx=0, ackw=True, ncb=3, t1w='ack', t1x=0, cboost=False, pref=1, prefn=1, t2x=0, h2l=False, l2w=True, tb0='early', diag=False, lite=False, probe=None, force_fb=False, cut=(), trajA=False, header=''):
    A = Asm()
    endstamp = diag or lite
    if lite: diag = False
    COLD = []
    def stamp(k):
        if diag: A(f's_memrealtime s[{80+2*k}:{81+2*k}]'); A('s_waitcnt lgkmcnt(0)')
    def xstamp(k):
        if diag: A('s_memrealtime s[100:101]'); A('s_waitcnt lgkmcnt(0)'); A(f'v_writelane_b32 v15, s100, {16 + k}')
    def sstamp(r):
        A('s_memrealtime s[100:101]'); A('s_waitcnt lgkmcnt(0)'); A(f's_mov_b32 s{r}, s100')
    def v(a, n=1): return f'v{a}' if n == 1 else f'v[{a}:{a+n-1}]'
    def rnd(*regs):
        for a in regs: A(f'v_cvt_pk_bf16_f32 v{a}, 0, v{a}')
    def lds_spin(off, target, vt, sleep=1):
        l0 = A.lab('spin'); l1 = A.lab('spun')
        A('s_mov_b32 s14, 0')
        A(f'{l0}:')
        A(f'ds_read_b32 v{vt}, v13 offset:{off}'); A('s_waitcnt lgkmcnt(0)')
        A(f'v_readfirstlane_b32 s15, v{vt}')
        A(f's_cmp_ge_u32 s15, {target}'); A(f's_cbranch_scc1 {l1}')
        A(f's_sleep {sleep}')
        A('s_add_u32 s14, s14, 1'); A(f's_cmp_lt_u32 s14, {SPIN_CAP}'); A(f's_cbranch_scc1 {l0}')
        A(f'{l1}:')
    def lds_add(off, vt):
        A('s_waitcnt lgkmcnt(0)')
        A('s_mov_b64 exec, 1'); A(f'v_mov_b32 v{vt}, 1'); A(f'ds_add_u32 v13, v{vt} offset:{off}'); A('s_mov_b64 exec, -1')
    def done_event(vt):
        l1 = A.lab('nodone')
        A('s_waitcnt vmcnt(0) lgkmcnt(0)')
        A('s_mov_b64 exec, 1'); A(f'v_mov_b32 v{vt}, 1'); A(f'ds_add_rtn_u32 v{vt}, v13, v{vt} offset:{C_DONE}')
        A('s_waitcnt lgkmcnt(0)')
        A(f'v_readfirstlane_b32 s8, v{vt}')
        A('s_cmp_lg_u32 s8, 1'); A(f's_cbranch_scc1 {l1}')
        A('s_lshl_b32 s8, s2, 2'); A(f's_add_u32 s8, s8, {WS_CLR}'); A(f'v_mov_b32 v{vt}, s46')
        A(f'buffer_store_dword v{vt}, off, s[56:59], s8 sc1')
        A(f'{l1}:')
        A('s_mov_b64 exec, -1')
    def tag_gather(loads, vt, sleep=2, tagregs=(1, 3), cid=None):
        l0 = A.lab('tg'); l1 = A.lab('tgok')
        A('s_mov_b32 s14, 0')
        A(f'{l0}:')
        for n_, (d, txt) in enumerate(loads):
            if gw and n_ >= gw: A(f's_waitcnt vmcnt({gw-1})')
            if gsp and len(loads) == 16 and n_ and n_ % 2 == 0: A(f's_sleep {gsp}')
            A(txt)
        A('s_waitcnt vmcnt(0)')
        regs = [d + r for d, txt in loads for r in tagregs]
        A(f'v_min_u32 v{vt}, v{regs[0]}, v{regs[1]}'); A(f'v_max_u32 v{vt+1}, v{regs[0]}, v{regs[1]}')
        for k in range(2, len(regs), 2):
            A(f'v_min3_u32 v{vt}, v{regs[k]}, v{regs[k+1]}, v{vt}'); A(f'v_max3_u32 v{vt+1}, v{regs[k]}, v{regs[k+1]}, v{vt+1}')
        A(f'v_cmp_ne_u32 vcc, s46, v{vt}'); A(f'v_cmp_ne_u32 s[70:71], s46, v{vt+1}'); A('s_or_b64 vcc, vcc, s[70:71]')
        A(f's_cbranch_vccz {l1}')
        if mret: A('s_mov_b64 exec, vcc')
        A(f's_sleep {sleep * rsl}')
        A('s_add_u32 s14, s14, 1'); A(f's_cmp_lt_u32 s14, {SPIN_CAP}'); A(f's_cbranch_scc1 {l0}')
        A(f'{l1}:')
        if mret: A('s_mov_b64 exec, -1')
        if diag and cid is not None: A(f'v_writelane_b32 v15, s14, {11 + cid}')
    def xg_reduce(op, regs, t):
        for sw_ in (32, 16):
            for k, a in enumerate(regs): A(f'v_mov_b32 v{t+k}, v{a}')
            for k, a in enumerate(regs): A(f'v_permlane{sw_}_swap_b32 v{a}, v{t+k}')
            for k, a in enumerate(regs): A(f'{op} v{a}, v{a}, v{t+k}')
    def row_reduce(op, regs, steps=(8, 4, 2, 1)):
        for sh in steps:
            for a in regs: A(f'{op}_dpp v{a}, v{a}, v{a} row_ror:{sh} row_mask:0xf bank_mask:0xf')
    def perm(dst, base, m, d):
        A(f'v_perm_b32 v{dst}, v{base+8*m+4+(d>>1)}, v{base+8*m+(d>>1)}, s{60+(d&1)}')
    MREG = [16, 18, 20, 22, 24, 26, 36, 38]
    def sweep(name, n, load, dreg, acc, vt):
        marked = mk and name == 't1'
        A('s_mov_b32 s14, 0')
        if marked:
            for k in range(n): A(f's_mov_b64 s[{MREG[k]}:{MREG[k]+1}], -1')
        A(f'L_{name}_chk:')
        for k in range(n):
            d = dreg(k); m = MREG[k]
            def acc_or():
                if k == 2: A(f's_or_b64 vcc, s[{MREG[0]}:{MREG[0]+1}], s[{MREG[1]}:{MREG[1]+1}]')
                elif k > 2: A(f's_or_b64 vcc, vcc, s[{MREG[k-1]}:{MREG[k-1]+1}]')
            mf = f'v_mfma_f32_16x16x32_bf16 {v(acc,4)}, v[232:235], {v(d,4)}, {0 if k == 0 else v(acc,4)}'
            A(f's_waitcnt vmcnt({n-1-k})')
            if marked:
                A(f'v_and_b32 v{vt}, 1, v{d}'); A(f'v_and_b32 v{d}, -2, v{d}'); A(f'v_cmp_ne_u32 s[68:69], v{vt}, v{112+k}')
                acc_or(); A(mf); A(f's_and_b64 s[{m}:{m+1}], s[{m}:{m+1}], s[68:69]')
            else:
                A(f'v_max3_u32 v{vt}, v{d}, v{d+1}, v{d+2}'); A(f'v_max_u32 v{vt}, v{vt}, v{d+3}')
                A(mf); A(f'v_cmp_eq_u32 s[{m}:{m+1}], -1, v{vt}'); acc_or()
        A(f's_or_b64 vcc, vcc, s[{MREG[n-1]}:{MREG[n-1]+1}]')
        A(f's_cbranch_scc1 L_{name}_retry')
        A(f'L_{name}_done:')
        if diag: A(f'v_writelane_b32 v15, s14, {30 if name == "t1" else 31}')
        def cold():
            A(f'L_{name}_retry:')
            for k in range(n):
                A(f's_mov_b64 exec, s[{MREG[k]}:{MREG[k]+1}]'); load(k)
            A('s_mov_b64 exec, -1')
            if marked: A('s_waitcnt vmcnt(0)')
            A('s_add_u32 s14, s14, 1'); A(f's_cmp_lt_u32 s14, {SPIN_CAP}'); A(f's_cbranch_scc1 L_{name}_chk')
            A('s_waitcnt vmcnt(0)')
            A(f's_branch L_{name}_done')
        COLD.append(cold)
    def rb_calc():
        A('s_and_b32 s6, s2, 7'); A('s_lshr_b32 s8, s2, 7'); A('s_lshl1_add_u32 s6, s6, s8')
    def svc_setup():
        A(f's_load_dword s9, s[44:45], {WS_EPOCH}')
        A('s_bfe_u32 s7, s2, 0x40003')
        rb_calc()
        A('s_mov_b32 s60, 0x05040100'); A('s_mov_b32 s61, 0x07060302'); A('s_mov_b32 s62, 0xffff0000')
        A(f's_mov_b32 s64, {f2u(LOG2E):#x}')
        A('s_mov_b64 s[56:57], s[44:45]'); A('s_mov_b32 s58, 0x400000'); A('s_mov_b32 s59, 0x20000')
        A(f'v_mov_b32 v13, {LM}')
    def moments_out(lds_off):
        for k in range(3): A(f'v_permlane32_swap_b32 v{44+2*k}, v{45+2*k}')
        for k in range(3): A(f'v_add_f32 v{44+2*k}, v{44+2*k}, v{45+2*k}')
        A('v_permlane16_swap_b32 v44, v46'); A('v_add_f32 v44, v44, v46')
        row_reduce('v_add_f32', [48, 44])
        A('s_mov_b64 exec, s[78:79]')
        A(f'ds_write2_b32 v246, v44, v48 offset0:{(lds_off - L_SD) // 4} offset1:{(lds_off - L_SD) // 4 + 1}')
        A('s_mov_b64 exec, -1')
    def moments_in(lds_off, sreg):
        A(f'ds_read_b64 v[44:45], v239 offset:{lds_off - L_SD}')
        A('s_waitcnt lgkmcnt(0)')
        A('v_mov_b32 v50, s66')
        row_reduce('v_add_f32', [45, 44], (4, 2, 1))
        A('v_add_f32_dpp v45, v45, v45 row_bcast:15 row_mask:0xa bank_mask:0xf')
        for q_, ln in enumerate((0, 32, 16, 48)): A(f'v_readlane_b32 s{sreg+q_}, v44, {ln}')
        A(f'v_readlane_b32 s{sreg+4}, v45, 16'); A(f'v_readlane_b32 s{sreg+5}, v45, 48')
    def notcons(label):
        A(f's_and_b32 s8, s2, {0xff & ~(((1 << ncb) - 1) << 3):#x}'); A(f's_cmp_lg_u32 s8, {cx}'); A(f's_cbranch_scc1 {label}')
    def prep():
        l = A.lab('noprep')
        A('v_lshrrev_b32 v4, 4, v0'); A('v_and_b32 v5, 15, v0')
        A('v_lshrrev_b32 v9, 5, v0')
        A('s_movk_i32 s76, 0x1111'); A('s_mov_b32 s77, s76')
        A('v_lshl_add_u32 v229, v0, 4, v13')
        A('v_lshlrev_b32 v230, 2, v5'); A('v_lshl_add_u32 v230, v9, 6, v230')
        A('s_lshl_b32 s72, s6, 11'); A('s_lshl_b32 s8, s7, 7'); A('s_add_u32 s72, s72, s8'); A(f's_add_u32 s72, s72, {WS_T2}')
        A('v_and_b32 v7, 1, v5'); A('v_lshlrev_b32 v7, 4, v7'); A('v_mov_b32 v8, 0x3f80'); A('v_lshlrev_b32 v7, v7, v8')
        A('v_and_b32 v8, 14, v5')
        for m in range(4):
            A(f'v_cmp_eq_u32 vcc, {4*m}, v8'); A(f'v_cndmask_b32 v{232+m}, 0, v7, vcc')
        A('v_lshlrev_b32 v244, 13, v4'); A('v_lshl_add_u32 v244, v5, 4, v244')
        A('v_lshrrev_b32 v6, 3, v5'); A('v_lshlrev_b32 v6, 6, v6'); A('v_and_b32 v8, 1, v4'); A('v_lshl_add_u32 v6, v8, 5, v6')
        A('v_and_b32 v8, 4, v5'); A('v_lshl_add_u32 v6, v8, 2, v6'); A('v_and_b32 v8, 3, v5'); A('v_lshl_add_u32 v6, v8, 1, v6')
        A('v_lshrrev_b32 v8, 1, v4'); A('s_lshl_b32 s8, s3, 7'); A('v_add3_u32 v6, v6, v8, s8')
        A('v_lshlrev_b32 v238, 1, v6')
        if opk: A('v_mad_u32_u24 v228, v9, 14, v238')
        notcons(l)
        if opk: A('v_mov_b32 v231, 0x02020202'); A('v_mul_lo_u32 v231, v231, v9'); A('v_add_u32 v231, s60, v231')
        A('v_add_u32 v7, v13, v238')
        for a, r in enumerate((248, 250, 252, 254, 236)):
            for e in range(2): A(f'ds_read_u16 v{r+e}, v7 offset:{L_CONST - LM + 2048*a + 16*e}')
        A('s_lshl_b32 s75, s3, 8'); A(f's_add_u32 s75, s75, {WS_T2}'); A('s_add_u32 s73, s75, 4096')
        A(f's_mov_b32 s66, {f2u(1/1024):#x}'); A('s_mov_b32 s67, s66')
        A('v_lshlrev_b32 v246, 2, v9'); A('s_lshl_b32 s8, s3, 3'); A('v_add3_u32 v246, s8, v246, v13')
        A(f'v_mov_b32 v245, {256 * NB}'); A(f'v_mov_b32 v247, {L_TABLE + 512 * NB}'); A(f's_mov_b32 s68, {L_TABLE - 2 * TAB_E0}'); A(f's_mov_b32 s69, {f2u(1e-5):#x}')
        A('s_mov_b32 s78, 0x10000'); A('s_mov_b32 s79, s78'); A('s_mov_b32 s70, 0x11111111'); A('s_mov_b32 s71, s70')
        A('s_waitcnt lgkmcnt(0)')
        for r in list(range(248, 256)) + [236, 237]: A(f'v_lshlrev_b32 v{r}, 16, v{r}')
        A('v_add_f32 v254, 1.0, v254'); A('v_add_f32 v255, 1.0, v255'); rnd(254, 255)
        if alg:
            A('s_lshl_b32 s8, s3, 5'); A(f's_add_u32 s8, s8, {L_SD}'); A('v_lshl_add_u32 v246, v4, 3, s8')
            A('v_and_b32 v8, 7, v0'); A('v_lshlrev_b32 v8, 5, v8'); A('v_lshl_add_u32 v239, v4, 3, v8'); A(f'v_add_u32 v239, {L_SD}, v239')
            A('s_mov_b32 s78, 0x10001'); A('s_mov_b32 s79, s78')
            A('v_add_f32 v44, v254, v255'); A('v_mul_f32 v45, v254, v254'); A('v_fmac_f32 v45, v255, v255')
            A('v_add_f32 v46, v252, v253'); A('v_mul_f32 v47, v252, v252'); A('v_fmac_f32 v47, v253, v253')
            A('v_mul_f32 v48, v254, v252'); A('v_fmac_f32 v48, v255, v253'); A('v_mov_b32 v49, 0')
            moments_out(L_SC)
            A('s_waitcnt lgkmcnt(0)')
        A(f'{l}:')
    def dma(base, dst, cnt):
        for n in range(cnt):
            if n % 4 == 0:
                A(f's_mov_b32 m0, {dst + 1024*n}'); A(f's_mov_b32 s8, {base + 1024*n}')
            A(f'buffer_load_dwordx4 v1, s[56:59], s8 offen offset:{(n % 4) * 1024} sc1 lds')

    for l in header.splitlines(): A(l)
    A(f'; @launch grid=(256,1,1) block=(512,1,1) lds={LDS_BYTES}')
    A('.amdgcn_target "amdgcn-amd-amdhsa--gfx950"')
    A('.text'); A(f'.globl {NAME}_kernel'); A('.p2align 8'); A(f'.type {NAME}_kernel,@function')
    A(f'{NAME}_kernel:')
    A('s_load_dwordx16 s[16:31], s[0:1], 0')
    A('s_load_dwordx8 s[32:39], s[0:1], 64')
    A('s_load_dwordx4 s[40:43], s[0:1], 96')
    A('s_load_dwordx2 s[44:45], s[0:1], 112')
    if endstamp: A('s_memrealtime s[80:81]')
    A('v_lshrrev_b32 v1, 6, v0'); A('v_and_b32 v0, 63, v0')
    A('s_lshr_b32 s4, s2, 8'); A('s_cbranch_scc1 L_end')
    A('v_readfirstlane_b32 s3, v1')
    A('s_mov_b32 s51, 0x20000')
    if swapw: A('s_xor_b32 s3, s3, 4')
    A('s_lshr_b32 s4, s2, 6'); A('s_and_b32 s5, s2, 63')
    A('s_cmp_ge_u32 s3, 4'); A('s_cbranch_scc1 L_service')

    A('; ---- attention waves 0..3: code prefetch, first K loads')
    A('s_getpc_b64 s[70:71]')
    A('L_pcref:')
    A('s_bfe_u32 s7, s2, 0x40003')
    A('s_lshl2_add_u32 s8, s7, s3'); A('s_lshl_b32 s8, s8, 9')
    A('v_lshl_add_u32 v1, v0, 7, s8'); A('v_min_u32 v1, L_end-L_pcref, v1')
    A('s_mov_b64 exec, 15'); A('global_load_dword v12, v1, s[70:71]'); A('s_mov_b64 exec, -1')
    A('s_lshl2_add_u32 s9, s5, s3'); A('s_lshl_b32 s9, s9, 13')
    A(f's_lshl_b32 s8, s4, {22 if goff else 24}'); A('s_add_u32 s9, s9, s8')
    if goff: A('s_lshl_b32 s65, s4, 24')
    A('s_lshl_b32 s12, s3, 15')
    A('v_lshrrev_b32 v13, 4, v0'); A('v_and_b32 v14, 15, v0')
    A('v_lshlrev_b32 v15, 2, v13'); A('v_xor_b32 v1, v14, v15'); A('v_lshlrev_b32 v1, 4, v1')
    A('v_lshl_add_u32 v1, v13, 8, v1')
    A('v_xor_b32 v2, 16, v1'); A('v_xor_b32 v3, 32, v1'); A('v_xor_b32 v4, 48, v1')
    A('s_mov_b32 s50, 0x1000000' if goff else 's_brev_b32 s50, 32')
    A('s_waitcnt lgkmcnt(0)')
    if goff: A('s_add_u32 s48, s18, s65'); A('s_addc_u32 s49, s19, 0')
    else: A('s_mov_b64 s[48:49], s[18:19]')
    def attn_setup():
        A('v_lshlrev_b32 v5, 4, v0')
        A('s_mov_b32 s54, s50'); A('s_mov_b32 s55, 0x20000')
        A('s_mov_b32 s60, 0x05040100'); A('s_mov_b32 s61, 0x07060302')
        A(f's_mov_b32 s63, {f2u(128 ** -0.5):#x}'); A(f's_mov_b32 s64, {f2u(LOG2E):#x}')
        A('s_mov_b32 s58, 0x400000'); A('s_mov_b32 s59, 0x20000')
        A('v_and_b32 v6, 3, v14'); A('v_lshlrev_b32 v6, 2, v6'); A('v_lshrrev_b32 v15, 2, v14'); A('v_add_u32 v6, v6, v15')
        A('v_lshlrev_b32 v6, 8, v6'); A('v_xor_b32 v15, v13, v14'); A('v_lshl_add_u32 v6, v15, 4, v6'); A('v_add_u32 v6, s12, v6')
        A('v_xor_b32 v7, 64, v6'); A('v_xor_b32 v8, 0x80, v6'); A('v_xor_b32 v9, 0xc0, v6')
        A(f'v_mov_b32 v13, {LM}')
        A('v_mov_b32 v14, 0'); A('v_lshl_add_u32 v15, v0, 2, v13'); A('ds_write_b32 v15, v14')
        if swapw: A('s_setprio 1')
        A('s_mov_b32 s70, 0xff00ff00'); A('s_mov_b32 s71, 0xff00ff00')
        if goff: A('s_add_u32 s52, s20, s65'); A('s_addc_u32 s53, s21, 0'); A('s_mov_b32 s65, 0xffffff')
        else: A('s_mov_b64 s[52:53], s[20:21]')
        A('s_mov_b64 s[56:57], s[44:45]'); A('s_mov_b64 s[66:67], s[24:25]')
        A('s_waitcnt lgkmcnt(0)')
        A('s_barrier')
    issued = [0]
    TS = 64 * 4 * 8192
    LEV = list(lev) if lev else [DB]
    if not lev: sc = None
    def throttle(D, boost):
        if issued[0] < D: return
        if boost:
            l = A.lab('go')
            for k in range(len(LEV) - 1, -1, -1):
                A(f's_waitcnt vmcnt({LEV[k]-1})')
                if k == len(LEV) - 1: A(f's_cbranch_vccnz {l}')
                elif k > 0: A(f's_cmp_eq_u32 s13, {k}'); A(f's_cbranch_scc1 {l}')
            A(f'{l}:')
        else: A(f's_waitcnt vmcnt({D-1})')
    def kload(t, n, D, boost=False):
        tolds = t < 4 or (scr4 and t == 4 and n < 4)
        if n % 4 == 0:
            if t < 4: A(f's_add_u32 m0, s12, {t * 8192 + (n // 4) * 4096}')
            elif tolds: A('s_lshl_b32 s8, s3, 12'); A(f's_add_u32 m0, s8, {L_CONST}')
            A(f's_add_u32 s10, s9, {t * TS + (n // 4) * 4096}')
        throttle(D, boost)
        if tolds: A(f'buffer_load_dwordx4 v{1 + n % 4}, s[48:51], s10 offen offset:{(n % 4) * 1024} nt lds')
        else: A(f'buffer_load_dwordx4 {v(128 + 32 * (t % 4) + 4 * n, 4)}, v{1 + n % 4}, s[48:51], s10 offen offset:{(n % 4) * 1024} nt')
        issued[0] += 1
    def vload(t, e, D, boost=False):
        if e % 4 == 0:
            A(f's_add_u32 s10, s9, {t * TS + (e // 4) * 4096}')
            if goff and t >= 2: A('s_and_b32 s10, s10, s65')
        throttle(D, boost)
        A(f'buffer_load_dwordx4 {v(128 + 32 * (t % 4) + 4 * e, 4)}, v5, s[52:55], s10 offen offset:{(e % 4) * 1024} nt')
        issued[0] += 1
    for n in range(64):
        if n == early:
            A('s_branch L_attn2'); A(';MARK attn2')
            A('L_attn2:')
            attn_setup()
            if 'svc' not in cut: lds_spin(C_GO, 1, 14)
        if diag and trajA and n >= early and (n % 8 == 0 or n == early): sstamp(24 + n // 8)
        kload(n // 8, n % 8, DA)
        if issued[0] in (p2_at, q_at): lds_add(C_PROG, 14)
    stamp(1)
    def getq():
        if not cut: lds_spin(C_Q, 2 if mk else 1, 14)
        A('v_and_b32 v14, 7, v0'); A('v_lshlrev_b32 v14, 8, v14'); A('v_lshrrev_b32 v15, 4, v0'); A('v_lshl_add_u32 v14, v15, 4, v14')
        A(f'v_add_u32 v14, {L_Q}, v14')
        for s in range(4): A(f'ds_read_b128 {v(16+4*s,4)}, v14 offset:{64*s}')
        A('v_add_u32 v1, s12, v5')
        stamp(2)
    def flush(t, ns, wait=True):
        for n in ns: A(f'ds_write_b128 v1, {v(128 + 32*t + 4*n, 4)} offset:{t * 8192 + n * 1024}')
        if wait: A('s_waitcnt lgkmcnt(0)')
    def qk(t):
        off = (t % 4) * 8192
        for hb in range(2):
            if scr4 and t == 4 and hb == 0:
                A('s_mul_i32 s8, s3, 0x7000'); A(f's_sub_u32 s8, {L_CONST}, s8')
                for s in range(4): A(f'v_add_u32 v{96+4*s}, s8, v{6+s}'); A(f'ds_read_b128 {v(96+4*s,4)}, v{96+4*s}')
                continue
            for s in range(4): A(f'ds_read_b128 {v(96+16*hb+4*s,4)}, v{6+s} offset:{off + hb*4096}')
        for hb in range(2):
            S = 32 + 8 * t + 4 * hb
            for s in range(4):
                A(f's_waitcnt lgkmcnt({7 - 4*hb - s})')
                A(f'v_mfma_f32_16x16x32_bf16 {v(S,4)}, {v(96+16*hb+4*s,4)}, {v(16+4*s,4)}, {0 if s == 0 else v(S,4)}')
    def rscale(t):
        S = 32 + 8 * t
        rnd(*range(S, S + 8))
        for k in range(8): A(f'v_mul_f32 v{S+k}, s63, v{S+k}')
        rnd(*range(S, S + 8))
        if t == 0: A(f'v_max_f32 v15, v{S}, v{S+1}')
        else: A(f'v_max3_f32 v15, v{S}, v{S+1}, v15')
        for k in range(1, 4): A(f'v_max3_f32 v15, v{S+2*k}, v{S+2*k+1}, v15')
    def mfin():
        xg_reduce('v_max_f32', [15], 14)
        A('v_mov_b32 v10, v15'); A('v_mul_f32 v12, s64, v15')
    def expo(t):
        S = 32 + 8 * t
        for k in range(8): A(f'v_fma_f32 v{S+k}, v{S+k}, s64, -v12')
        for k in range(8): A(f'v_exp_f32 v{S+k}, v{S+k}')
        for k in range(4): A(f'v_add_f32 v{96+k}, v{S+2*k}, v{S+2*k+1}')
        for k in range(4): A(f'v_cvt_pk_bf16_f32 v{S+k}, v{S+2*k}, v{S+2*k+1}')
        for k in range(4): A(f'v_cndmask_b32 v{S+4+k}, 0, v{S+k}, s[70:71]')
        for k in range(4): A(f'v_cndmask_b32 v{S+k}, v{S+k}, 0, s[70:71]')
        A('v_add_f32 v96, v96, v97'); A('v_add_f32 v98, v98, v99')
        if t == 0: A('v_add_f32 v11, v96, v98')
        else: A('v_add_f32 v96, v96, v98'); A('v_add_f32 v11, v11, v96')
    def omf(d, P, first):
        o = 16 + 4 * (d & 3)
        A(f'v_mfma_f32_16x16x32_bf16 {v(o,4)}, {v(96+4*d,4)}, {v(P + (d & 4),4)}, {0 if (first and d < 4) else v(o,4)}')
    def pvt(t, half):
        Vb = 128 + 32 * (t % 4); ds_ = list(range(4 * half, 4 * half + 4))
        for m in range(4): perm(96 + 4*ds_[0] + m, Vb, m, ds_[0])
        for k, d in enumerate(ds_):
            if k + 1 < 4:
                for m in range(4): perm(96 + 4*ds_[k+1] + m, Vb, m, ds_[k+1])
            omf(d, 32 + 8 * t, t == 0)
    def publish_ml():
        xg_reduce('v_add_f32', [11], 14)
        A('v_lshrrev_b32 v14, 1, v5'); A('s_lshl_b32 s8, s3, 6'); A(f's_add_u32 s8, s8, {L_ML}'); A('v_add_u32 v14, s8, v14')
        A('s_mov_b64 exec, 0xff'); A('ds_write_b64 v14, v[10:11]'); A('s_mov_b64 exec, -1')
        lds_add(C_ML, 14)
    def endsetup():
        if mk: A('s_lshl_b32 s8, s3, 2'); A('v_add_u32 v53, s8, v13'); A(f'ds_read_b32 v53, v53 offset:{L_MKO}')
        A('v_bfe_u32 v52, v0, 4, 1'); A('s_lshl_b32 s8, s3, 1'); A('v_add_u32 v52, s8, v52')
        A(f'v_mul_u32_u24 v48, {OSTRIDE}, v52')
        A('v_lshlrev_b32 v52, 4, v52'); A(f'v_add_u32 v52, {L_FAC}, v52')
        A('v_and_b32 v49, 15, v0'); A('v_lshl_add_u32 v48, v49, 5, v48'); A('v_lshrrev_b32 v49, 5, v0')
        A('v_lshl_add_u32 v48, v49, 4, v48'); A('v_add_u32 v49, 0x10000, v48')
        A('v_and_b32 v4, 7, v0'); A(f'v_mul_u32_u24 v50, {OSTRIDE}, v4'); A('v_and_b32 v51, 8, v0'); A('v_lshl_add_u32 v50, v51, 5, v50')
        A('v_lshlrev_b32 v1, 9, v51')
        A('v_lshrrev_b32 v51, 4, v0'); A('v_lshl_add_u32 v50, v51, 4, v50'); A('v_add_u32 v50, s12, v50')
        A('v_lshl_add_u32 v1, v51, 15, v1'); A('v_lshl_add_u32 v1, v4, 4, v1')
        A('v_lshrrev_b32 v2, 3, v0'); A('v_lshlrev_b32 v2, 12, v2'); A('v_lshl_add_u32 v2, v4, 4, v2')
        A('v_and_b32 v3, 16, v0'); A('v_lshlrev_b32 v3, 4, v3'); A('v_lshlrev_b32 v4, 2, v4')
        A('s_lshl_b32 s8, s3, 9'); A(f's_add_u32 s8, s8, {L_RED2}'); A('v_add3_u32 v3, v3, v4, s8')
        rb_calc()
        A('s_mov_b64 s[48:49], s[66:67]'); A('s_mov_b32 s50, 0x800000')
        A('s_lshl_b32 s73, s6, 8'); A('s_lshr_b32 s8, s3, 1'); A('s_lshl_b32 s8, s8, 7'); A('s_add_u32 s73, s73, s8')
        A('s_and_b32 s8, s3, 1'); A('s_lshl2_add_u32 s73, s8, s73'); A('s_lshl_b32 s73, s73, 11')
        A('s_lshl_b32 s8, s7, 7'); A('s_add_u32 s73, s73, s8')
        A('s_lshl_b32 s74, s6, 15'); A('s_lshl_b32 s8, s3, 7'); A('s_add_u32 s74, s74, s8'); A(f's_add_u32 s74, s74, {WS_T1}')
        A('s_lshl2_add_u32 s8, s4, s3'); A('s_lshl_b32 s8, s8, 15'); A('s_lshl_b32 s11, s5, 9'); A('s_add_u32 s11, s11, s8')
        A(f's_add_u32 s11, s11, {WS_T1}')
        if mk: A('s_waitcnt lgkmcnt(0)'); A('v_lshrrev_b32 v53, v0, v53')
    sched = {i: [] for i in range(-1, 64)}
    def put(pos, fn, landed=None): sched[pos].append((fn, landed))
    DM = max(LEV + [DA])
    CP = list(cps) if (len(LEV) > 1 and not sc) else []
    THR = [list(t) for t in thrs] * (len(sc or cps) if len(thrs) == 1 else 1)
    ctl = bool(CP) or bool(sc)
    NRL = (1 << nshb) * len(sc) if sc else (4 << wsh) * len(CP)
    if scr4:
        assert qsh <= 2 and (not sc or min(sc) >= qsh) and r2_at >= qsh
        put(qsh - 1, getq)
        put(qsh, lambda: qk(0)); put(qsh + 1, lambda: flush(0, range(4, 8), qsh == 2), -25)
        for t in range(1, 4):
            put(qsh + 3 * t - 1, (lambda t=t: qk(t)))
            put(qsh + 3 * t, (lambda t=t: flush(t, range(4), False)), 8 * t - 25); put(qsh + 3 * t, (lambda t=t: rscale(t - 1)))
            put(qsh + 3 * t + 1, (lambda t=t: flush(t, range(4, 8), False)))
        put(qsh + 10, lambda: rscale(3))
        for t in range(4, 8): put(qsh + 7 + t, (lambda t=t: qk(t)))
        for t in range(4, 8): put(qsh + 13 + t // 2, (lambda t=t: rscale(t)))
        put(qsh + 17, mfin)
        for t in range(8): put(qsh + 18 + t, (lambda t=t: expo(t)))
        put(qsh + 26, publish_ml)
        pp = qsh + 27
    else:
        put(-1, getq); put(-1, lambda: qk(0)); put(-1, lambda: flush(0, range(0, 3)), -25)
        put(0, lambda: flush(0, range(3, 8)))
        for t in range(1, 4):
            put(2 * t - 1, (lambda t=t: qk(t))); put(2 * t, (lambda t=t: flush(t, range(8))), 8 * t - 25)
        for t in range(4, 8): put(3 + t, (lambda t=t: qk(t)))
        for t in range(8): put(11 + t // 2, (lambda t=t: rscale(t)))
        put(15, mfin)
        for t in range(8): put(16 + t, (lambda t=t: expo(t)))
        put(24, publish_ml)
        pp = 25
    for t in range(6):
        pp = max(pp, 8 * t + 7 + DS)
        put(pp, (lambda t=t: pvt(t, 0)), 8 * t + 7); put(pp + 1, (lambda t=t: pvt(t, 1)))
        assert t >= 4 or pp + 1 < 32 + 8 * t
        pp += 2
    p5 = pp - 2
    put(60, endsetup)
    assert p5 + 1 < 60 and (not CP or max(CP) + rd < 60)
    def run(posn):
        for fn, landed in sched[posn]:
            if landed is not None and posn - landed < DM: A(f's_waitcnt vmcnt({posn - landed})')
            fn()
    if CP:
        A('s_mov_b64 vcc, 0'); A(f's_mov_b32 s13, {LEV.index(DB)}')
        A(f's_bfe_u32 s11, s2, {(wsh << 16) | 3:#x}'); A('s_lshl2_add_u32 s11, s11, s3'); A(f's_mul_i32 s11, s11, {RSTR}')
        A(f's_add_u32 s11, s11, {WS_RANK}')
        if cboost: A(f's_and_b32 s8, s2, {0xff & ~(((1 << ncb) - 1) << 3):#x}'); A(f's_cmp_eq_u32 s8, {cx}'); A(f's_cselect_b32 s68, {cboost}, 0')
        assert (4 << wsh) * len(CP) <= 128
    if sc: A('s_mov_b64 vcc, 0'); A(f's_mov_b32 s13, {LEV.index(DB)}')
    run(-1)
    for L in range(64):
        if diag and not trajA and L % 8 == 0: sstamp(24 + L // 8)
        if L in CP:
            A('s_mov_b32 s47, 1'); A(f's_atomic_add s47, s[44:45], s11 offset:{(4 << wsh) * RSTR * CP.index(L)} glc')
        vload(L // 8, L % 8, DB, ctl)
        if L - rd in CP:
            th = [int(round(t_ * (256 >> wsh) / 64.0)) for t_ in THR[CP.index(L - rd)]]
            A('s_waitcnt lgkmcnt(0)')
            if diag: A(f's_mov_b32 s{32 + CP.index(L - rd)}, s47')
            if cboost: A('s_add_u32 s47, s47, s68')
            A('s_mov_b32 s13, 0')
            for k, t_ in enumerate(th[:-1]):
                A(f's_cmp_ge_u32 s47, {t_}'); A(f's_cselect_b32 s13, {k+1}, s13')
            A(f's_cmp_ge_u32 s47, {th[-1]}'); A('s_cselect_b64 vcc, -1, 0')
        if sc and L in sc: lds_add(C_RK, 14)
        if sc and any(L - r_ in sc for r_ in scr):
            A(f'ds_read_b32 v14, v13 offset:{C_LEV}'); A('s_waitcnt lgkmcnt(0)')
            A('v_readfirstlane_b32 s13, v14'); A(f's_add_u32 s13, s13, {LEV.index(DB)}')
            A(f's_cmp_eq_u32 s13, {len(LEV) - 1}'); A('s_cselect_b64 vcc, -1, 0')
        if L in (r2_at, fin_at, ml_at): lds_add(C_PROG, 14)
        run(L)
    assert r2_at < fin_at < ml_at
    stamp(3)
    A('L_endgame:')
    NWO = [0]
    def wo_upto(k):
        while NWO[0] < k:
            n = NWO[0]; m, hh = n >> 1, n & 1
            if n < wothr: throttle(DB, ctl)
            A(f's_add_u32 s10, s73, {(64 * (m & 1) + 8 * hh + (m >> 1)) * 2048}')
            A(f'buffer_load_dwordx4 {v(128 + 4*n, 4)}, v1, s[48:51], s10 offen nt')
            NWO[0] += 1
    wo_upto(wos[0])
    A(f's_waitcnt vmcnt({8 + NWO[0]})')
    pvt(6, 0); wo_upto(wos[1]); pvt(6, 1); wo_upto(wos[2])
    Vb = 128 + 96; P = 32 + 56
    for m in range(3):
        A(f's_waitcnt vmcnt({6 - 2*m + NWO[0]})')
        for d in range(8): perm(96 + 4*d + m, Vb, m, d)
        wo_upto(wos[3 + m])
    A(f's_waitcnt vmcnt({NWO[0]})')
    stamp(4)
    if cut:
        for k in range(8): A(f'v_writelane_b32 v15, s{24+k}, {16+k}')
        A('s_branch L_fin')
    order = [0, 4, 1, 5, 2, 6, 3, 7]
    for d in order[:3]: perm(96 + 4*d + 3, Vb, 3, d)
    for k, d in enumerate(order):
        omf(d, P, False)
        if k + 3 < 8: perm(96 + 4*order[k+3] + 3, Vb, 3, order[k+3])
    wo_upto(wos[6])
    for d in range(4): A(f'ds_write_b128 v50, {v(16+4*d,4)} offset:{64*d}')
    wo_upto(wos[7])
    A('s_waitcnt lgkmcnt(0)')
    A('s_barrier')
    A('ds_read_b128 v[16:19], v52')
    A('ds_read_b128 v[32:35], v48'); A('ds_read_b128 v[36:39], v48 offset:32768')
    A('ds_read_b128 v[40:43], v49'); A('ds_read_b128 v[44:47], v49 offset:32768')
    for w in range(4):
        A(f's_waitcnt lgkmcnt({3-w})')
        for k in range(2):
            f_ = v(16 + (w & 2), 2); h_ = w & 1
            if w == 0: A(f'v_pk_mul_f32 {v(32+2*k,2)}, {v(32+2*k,2)}, {f_} op_sel:[0,{h_}] op_sel_hi:[1,{h_}]')
            else: A(f'v_pk_fma_f32 {v(32+2*k,2)}, {v(32+4*w+2*k,2)}, {f_}, {v(32+2*k,2)} op_sel:[0,{h_},0] op_sel_hi:[1,{h_},1]')
    A('v_cvt_pk_bf16_f32 v24, v32, v33'); A('v_cvt_pk_bf16_f32 v25, v34, v35')
    if not mk: A('v_min_u32 v24, -2, v24'); A('v_min_u32 v25, -2, v25')
    A('v_permlane32_swap_b32 v24, v26'); A('v_permlane32_swap_b32 v25, v27')
    if mk: A('v_bfi_b32 v24, 1, v53, v24')
    A('s_mov_b32 exec_hi, 0')
    A('buffer_store_dwordx4 v[24:27], v5, s[56:59], s11 offen sc1')
    A('s_mov_b64 exec, -1')
    late_wo = NWO[0] < 8; nlate = 8 - NWO[0]
    wo_upto(8)
    stamp(5)
    if diag:
        for k in range(8): A(f'v_writelane_b32 v15, s{24+k}, {16+k}')
        for k in range(5): A(f'v_writelane_b32 v15, s{32+k}, {11+k}')
        A('s_load_dwordx16 s[16:31], s[0:1], 0'); A('s_load_dwordx8 s[32:39], s[0:1], 64'); A('s_waitcnt lgkmcnt(0)')
    def t1_load(n): A(f'buffer_load_dwordx4 {v(160+4*n,4)}, v2, s[56:59], s74 offen offset:{512*n} sc1')
    if mk:
        A('v_and_b32 v30, 56, v0'); A('v_lshl_add_u32 v30, v30, 2, v13')
        A(f'ds_read_b128 v[112:115], v30 offset:{L_MK - LM}'); A(f'ds_read_b128 v[116:119], v30 offset:{L_MK - LM + 16}')
    prep()
    if mk:
        A('v_and_b32 v30, 7, v0'); A('s_lshl_b32 s8, s3, 3'); A('v_add_u32 v30, s8, v30')
        A('s_waitcnt lgkmcnt(0)')
        for n in range(8): A(f'v_bfe_u32 v{112+n}, v{112+n}, v30, 1')
    xstamp(8)
    if t1w == 'ack2': A(f's_waitcnt vmcnt({nlate})'); t1w = 'pre'
    if isinstance(t1w, int): A(f's_waitcnt vmcnt({t1w})'); t1w = 'pre'
    if t1w == 'pre':
        if t1x: A(f's_sleep {t1x}')
        for n in range(8): t1_load(n)
    A(f's_waitcnt vmcnt({(9 if t1w == "pre" else 1) - late_wo})')
    for e in range(8):
        for m in range(4): perm(192 + 4*e + m, 128, m, e)
    if t1w == 'ack': A('s_waitcnt vmcnt(0)')
    if t1w != 'pre':
        if t1x: A(f's_sleep {t1x}')
        for n in range(8): t1_load(n)
    xstamp(9)
    sweep('t1', 8, t1_load, lambda k: 160 + 4*k, 60, 6)
    stamp(6)
    row_reduce('v_add_f32', [60, 61], (8,))
    A('v_cvt_pk_bf16_f32 v60, v60, v61')
    for c in range(4): A(f'v_mov_b32_dpp v{224+c}, v60 quad_perm:[{c},{c},{c},{c}] row_mask:0xf bank_mask:0xf')
    for e in range(8): A(f'v_mfma_f32_16x16x32_bf16 {v(64+4*e,4)}, v[224:227], {v(192+4*e,4)}, 0')
    A('s_mov_b32 exec_lo, 0xff0000ff'); A('s_mov_b32 exec_hi, 0')
    for e in range(0, 8, 2): A(f'ds_write2_b32 v3, v{64+4*e}, v{68+4*e} offset0:{8*e} offset1:{8*e+8}')
    A('s_mov_b64 exec, -1')
    A('s_waitcnt lgkmcnt(0)')

    A(';MARK service')
    A('L_service:')
    if 'svc' in cut: A('s_endpgm')
    A('s_sub_u32 s3, s3, 4')
    A('s_cmp_ge_u32 s3, 2'); A('s_cbranch_scc1 L_tabwaves')
    A('s_and_b32 s55, s2, 4'); A('s_lshr_b32 s55, s55, 1')
    A('s_lshr_b32 s53, s2, 3'); A('s_and_b32 s8, s2, 3'); A('s_lshl2_add_u32 s53, s53, s8')
    A('s_cmp_eq_u32 s3, 1'); A('s_cselect_b32 s65, 1, s55')
    A('s_setprio 3')
    A('L_unit:')
    A('s_and_b32 s67, s53, 63'); A('s_add_u32 s67, s67, 32'); A('s_lshr_b32 s69, s53, 6'); A('s_add_u32 s69, s69, s55'); A('s_movk_i32 s66, 0x3000')
    A('s_and_b32 s8, s53, 31'); A('s_lshr_b32 s10, s53, 5')
    A('s_cmp_eq_u32 s65, 0'); A('s_cselect_b32 s67, s8, s67'); A('s_cselect_b32 s69, s10, s69')
    A('s_add_u32 s68, s5, 96')
    A('s_cmp_eq_u32 s65, 1'); A('s_cselect_b32 s68, s68, s67'); A('s_cselect_b32 s67, s5, s67'); A('s_cselect_b32 s66, 0x2000, s66'); A('s_cselect_b32 s69, s4, s69')
    A('s_lshl_b32 s50, s66, 10'); A('s_lshl_b32 s67, s67, 7')
    A('v_and_b32 v1, 56, v0'); A('v_mul_u32_u24 v1, s66, v1')
    A('v_and_b32 v2, 7, v0'); A('v_lshl_add_u32 v1, v2, 4, v1')
    A('s_cmp_eq_u32 s65, 3'); A('s_cselect_b32 s8, 7, 8'); A('s_lshl_b32 s54, s69, s8')
    A('s_mul_i32 s10, s54, s66'); A('s_add_u32 s10, s10, s67')
    A('s_mul_i32 s11, s66, 57')
    A('s_lshl_b32 s8, s54, 1'); A('v_lshl_add_u32 v2, v0, 2, s8')
    A('s_waitcnt lgkmcnt(0)')
    xstamp(0)
    A('s_mov_b64 s[48:49], s[38:39]'); A('s_mov_b64 s[70:71], s[36:37]')
    A('s_cmp_lg_u32 s65, 1'); A('s_cbranch_scc1 L_notq')
    A('s_mov_b64 s[48:49], s[22:23]'); A('s_mov_b64 s[70:71], s[16:17]')
    A('v_lshlrev_b32 v3, 5, v0')
    A('s_barrier')
    A('global_load_dwordx4 v[16:19], v3, s[16:17]'); A('global_load_dwordx4 v[20:23], v3, s[16:17] offset:16')
    A('L_notq:')
    A('global_load_dword v4, v2, s[70:71]'); A('global_load_dword v5, v2, s[70:71] offset:256')
    for G in range(4):
        if G == 2: A('s_cmp_eq_u32 s65, 3'); A('s_cbranch_scc1 L_halfl')
        if G == 1:
            svc_setup()
            if ctl:
                A('s_cmp_lg_u32 s65, 0'); A('s_cbranch_scc1 L_norclr')
                A(f's_cmp_ge_u32 s53, {NRL}'); A('s_cbranch_scc1 L_norclr')
                A(f's_mul_i32 s8, s53, {RSTR}'); A(f's_add_u32 s8, s8, {WS_RANK}')
                A('s_mov_b64 exec, 1'); A('buffer_store_dword v0, off, s[56:59], s8 sc1'); A('s_mov_b64 exec, -1')
                A('L_norclr:')
        for r in range(8):
            if hw and G < 2 and 8*G + r >= hw:
                l = A.lab('hw'); A('s_cmp_lg_u32 s65, 3'); A(f's_cbranch_scc1 {l}'); A(f's_waitcnt vmcnt({hw-1})'); A(f'{l}:')
            if 8*G + r >= WU: A(f's_waitcnt vmcnt({WU-1})')
            A(f'buffer_load_dwordx4 {v(128+32*G+4*r,4)}, v1, s[48:51], s10 offen nt')
            if not (G == 3 and r == 7): A(f's_add_u32 s10, s10, {"s11" if r == 7 else "s66"}')
    A('s_cmp_eq_u32 s65, 1'); A('s_cbranch_scc1 L_go')
    A(f's_waitcnt vmcnt({hu})')
    A('s_barrier')
    A('s_branch L_went')
    A('L_halfl:')
    A('s_waitcnt vmcnt(0)')
    A('s_branch L_went')
    A('L_go:')
    A(f's_waitcnt vmcnt({hg})')
    lds_add(C_GO, 10)
    A('L_went:')
    A('s_waitcnt lgkmcnt(0)'); A('s_add_u32 s46, s9, 1')
    A('s_lshl2_add_u32 s47, s68, s69')
    A('s_lshl_b32 s68, s68, 9'); A(f's_mul_i32 s8, s69, {PSTR}'); A('s_add_u32 s68, s68, s8'); A(f's_add_u32 s68, s68, {WS_PART}')
    xstamp(3)
    A('v_lshlrev_b32 v6, 16, v4'); A('v_and_b32 v7, s62, v4'); A('v_lshlrev_b32 v8, 16, v5'); A('v_and_b32 v9, s62, v5')
    A('s_cmp_eq_u32 s65, 1'); A('s_cbranch_scc1 L_jobq')
    for k in range(4): A(f'v_mul_f32 v{24+k}, s64, v{6+k}')
    for k in range(4): A(f'v_exp_f32 v{24+k}, -v{24+k}')
    for k in range(4): A(f'v_add_f32 v{24+k}, 1.0, v{24+k}')
    for k in range(4): A(f'v_rcp_f32 v{24+k}, v{24+k}')
    for k in range(4): A(f'v_mul_f32 v{6+k}, v{6+k}, v{24+k}')
    A('L_jobcommon:')
    def jobq():
        A('L_jobq:')
        for k in range(8):
            A(f'v_lshlrev_b32 v{96+2*k}, 16, v{16+k}'); A(f'v_and_b32 v{97+2*k}, s62, v{16+k}')
        A('v_add_f32 v24, v96, v97')
        for k in range(2, 16): A(f'v_add_f32 v24, v24, v{96+k}')
        row_reduce('v_add_f32', [24]); xg_reduce('v_add_f32', [24], 25)
        A(f'v_mul_f32 v24, {f2u(1/1024):#x}, v24')
        for k in range(16): A(f'v_sub_f32 v{96+k}, v{96+k}, v24')
        A('v_mul_f32 v26, v96, v96')
        for k in range(1, 16): A(f'v_fmac_f32 v26, v{96+k}, v{96+k}')
        row_reduce('v_add_f32', [26]); xg_reduce('v_add_f32', [26], 25)
        A(f'v_mul_f32 v26, {f2u(1/1024):#x}, v26')
        rnd(24, 26)
        A(f'v_add_f32 v26, {f2u(1e-5):#x}, v26'); rnd(26); A('v_sqrt_f32 v26, v26'); rnd(26); A('v_rcp_f32 v26, v26')
        for k in range(4): A(f'v_sub_f32 v{6+k}, v{6+k}, v24')
        rnd(6, 7, 8, 9)
        for k in range(4): A(f'v_mul_f32 v{6+k}, v{6+k}, v26')
        rnd(6, 7, 8, 9)
        if h2l:
            A('v_lshlrev_b32 v3, 1, v2'); A(f's_mov_b32 s72, {WS_G}'); A(f's_mov_b32 s73, {WS_G + 4096}')
            loads = [(16 + 4*a + 2*k, f'buffer_load_dwordx2 {v(16 + 4*a + 2*k, 2)}, v3, s[56:59], s{72+a} offen offset:{512*k} sc1') for a in range(2) for k in range(2)]
            A('s_waitcnt vmcnt(0)')
            lds_spin(C_PROG, 4, 10)
            if 'p2g' not in cut: tag_gather(loads, 10, cid=0, tagregs=(1,))
            for q_ in range(4): A(f'v_lshlrev_b32 v{96+2*q_}, 16, v{16+2*q_}'); A(f'v_and_b32 v{97+2*q_}, s62, v{16+2*q_}')
        else:
            A('v_lshlrev_b32 v3, 2, v2')
            loads = []
            for a in range(2):
                for rho in range(4):
                    A(f's_mov_b32 s{72 + 4*a + rho}, {WS_PART + rho * PSTR + a * 8192}')
                    for k in range(2):
                        d = 16 + 32*a + 16*k + 4*rho
                        loads.append((d, f'buffer_load_dwordx4 {v(d,4)}, v3, s[56:59], s{72 + 4*a + rho} offen offset:{1024*k} sc1'))
            A('s_waitcnt vmcnt(0)')
            lds_spin(C_PROG, 4, 10)
            if 'p2g' not in cut: tag_gather(loads, 10, cid=0)
            for q_ in range(4):
                b_ = 16 + 16 * q_
                for j in range(2):
                    A(f'v_add_f32 v{b_+2*j}, v{b_+2*j}, v{b_+4+2*j}'); A(f'v_add_f32 v{b_+8+2*j}, v{b_+8+2*j}, v{b_+12+2*j}')
                for j in range(2): A(f'v_add_f32 v{96+2*q_+j}, v{b_+2*j}, v{b_+8+2*j}')
            rnd(*range(96, 104))
        for k in range(4): A(f'v_add_f32 v{100+k}, 1.0, v{100+k}')
        rnd(100, 101, 102, 103)
        for k in range(4): A(f'v_mul_f32 v{6+k}, v{6+k}, v{100+k}')
        rnd(6, 7, 8, 9)
        for k in range(4): A(f'v_add_f32 v{6+k}, v{6+k}, v{96+k}')
        A('s_branch L_jobcommon')
    A('v_cvt_pk_bf16_f32 v4, v6, v7'); A('v_cvt_pk_bf16_f32 v5, v8, v9')
    A('s_lshl_b32 s8, s3, 10'); A(f's_add_u32 s8, s8, {L_SCR}')
    A('v_lshl_add_u32 v2, v0, 2, s8')
    A('ds_write2_b32 v2, v4, v5 offset0:0 offset1:64')
    A('v_lshrrev_b32 v3, 4, v0'); A('v_lshlrev_b32 v3, 1, v3'); A('v_and_b32 v6, 1, v0'); A('v_add_u32 v3, v3, v6'); A('v_lshl_add_u32 v3, v3, 4, s8')
    A('s_waitcnt lgkmcnt(0)')
    for G in range(4): A(f'ds_read_b128 {v(32+8*G,4)}, v3 offset:{128*G}')
    A('s_waitcnt lgkmcnt(0)')
    for G in range(4):
        if G == 2: A('s_cmp_eq_u32 s65, 3'); A('s_cbranch_scc1 L_halfg')
        A(f's_waitcnt vmcnt({24 - 8*G})')
        if G in (0, 3): xstamp(5 if G == 0 else 6)
        for m in range(4): perm(96 + m, 128 + 32*G, m, 0)
        for d in range(8):
            if d + 1 < 8:
                for m in range(4): perm(96 + 4*(d+1) + m, 128 + 32*G, m, d + 1)
            A(f'v_mfma_f32_16x16x32_bf16 {v(64+4*d,4)}, {v(96+4*d,4)}, {v(32+8*G,4)}, {0 if G == 0 else v(64+4*d,4)}')
    A('L_halfg:')
    A('v_lshrrev_b32 v3, 5, v0'); A('v_lshlrev_b32 v3, 8, v3'); A('v_and_b32 v6, 16, v0'); A('v_add3_u32 v3, v3, v6, s8')
    A('v_and_b32 v6, 3, v0'); A('v_lshlrev_b32 v6, 6, v6'); A('v_bfe_u32 v7, v0, 2, 3'); A('v_lshl_add_u32 v6, v7, 2, v6'); A('v_add_u32 v6, s8, v6')
    A('s_mov_b32 exec_lo, 0x00010001'); A('s_mov_b32 exec_hi, 0x00020002')
    for e in range(8): A(f'ds_write_b128 v3, {v(64+4*e,4)} offset:{512 + 32*e}')
    A('s_mov_b32 exec_lo, -1'); A('s_mov_b32 exec_hi, 0')
    A('s_waitcnt lgkmcnt(0)')
    A('ds_read2_b32 v[16:17], v6 offset0:128 offset1:136'); A('ds_read2_b32 v[20:21], v6 offset0:192 offset1:200')
    A('v_lshlrev_b32 v3, 4, v0'); A('v_mov_b32 v19, s46')
    A('s_lshl_b32 s8, s69, 3'); A('s_lshl_b32 s52, 0xff, s8'); A('s_not_b32 s52, s52')
    if not skipown: A('s_mov_b32 s52, -1')
    if not h2l: A('s_cmp_eq_u32 s65, 0'); A('s_cselect_b32 s52, -1, s52')
    A('s_waitcnt lgkmcnt(0)')
    A('v_add_f32 v18, v17, v21'); A('v_add_f32 v16, v16, v20'); A('v_mov_b32 v17, s46')
    A('s_cmp_lg_u32 s65, 3'); A('s_cbranch_scc1 L_nomrg')
    A('v_add_f32 v16, v16, v28'); A('v_add_f32 v18, v18, v29')
    A('L_nomrg:')
    A('v_mov_b32 v28, v16'); A('v_mov_b32 v29, v18')
    A('s_cmp_eq_u32 s65, 2'); A('s_cbranch_scc1 L_nopub')
    A('v_mov_b32 v28, 0'); A('v_mov_b32 v29, 0')
    A('s_mov_b32 exec_lo, s52')
    if 'nopub' not in cut: A('buffer_store_dwordx4 v[16:19], v3, s[56:59], s68 offen sc1')
    A('L_nopub:')
    A('s_mov_b64 exec, -1')
    A('s_bitcmp1_b32 s65, 0'); A('s_cbranch_scc1 L_unit_done')
    if h2l and 'nopub' not in cut: A('s_cmp_eq_u32 s65, 0'); A('s_cbranch_scc1 L_lvl2')
    A('L_second:')
    xstamp(7)
    if sec == 'late': lds_spin(C_P2, 1, 6, sleep=4)
    A('s_mov_b32 s65, 3'); A('s_branch L_unit')
    jobq()
    A('L_unit_done:')
    stamp(1)
    if 'qg' in cut: lds_add(C_P2, 10); A('s_endpgm')
    A('s_cmp_eq_u32 s3, 1'); A('s_cbranch_scc1 L_lvl2')
    if 'late' in cut: A('s_endpgm')
    lds_spin(C_PROG, 12, 6, sleep=8)
    A('L_lvl2:')
    if l2w is True: A('s_waitcnt vmcnt(0)')
    elif l2w: A(f's_sleep {l2w}')
    A('v_lshrrev_b32 v1, 3, v0'); A(f's_mov_b32 s8, {PSTR}'); A('v_mul_lo_u32 v1, v1, s8'); A('v_and_b32 v2, 7, v0'); A('v_lshl_add_u32 v1, v2, 4, v1')
    A('s_lshl_b32 s8, s47, 7'); A(f's_add_u32 s8, s8, {WS_PART}')
    A('s_mov_b32 exec_lo, s52'); A('s_mov_b32 exec_hi, 0')
    tag_gather([(16, 'buffer_load_dwordx4 v[16:19], v1, s[56:59], s8 offen sc1')], 10, sleep=6, cid=3)
    A('s_mov_b64 exec, -1')
    row_reduce('v_add_f32', [16, 18], (8,))
    for r in (16, 18): A(f'v_mov_b32 v{r+4}, v{r}')
    for r in (16, 18): A(f'v_permlane16_swap_b32 v{r}, v{r+4}')
    for r in (16, 18): A(f'v_add_f32 v{r}, v{r}, v{r+4}')
    A('v_cvt_pk_bf16_f32 v16, v16, v18')
    A('s_cmp_eq_u32 s65, 3'); A('s_cbranch_scc1 L_rest2')
    A('; ---- wave 5: publish and gather q, later stage the modulation vectors')
    A('v_lshlrev_b32 v2, 3, v2'); A('s_lshl_b32 s8, s47, 6'); A(f's_add_u32 s8, s8, {WS_G}')
    A('s_mov_b64 exec, 0xff'); A('buffer_store_dwordx2 v[16:17], v2, s[56:59], s8 offen sc1'); A('s_mov_b64 exec, -1')
    A('s_cmp_eq_u32 s65, 0'); A('s_cbranch_scc1 L_second')
    lds_add(C_P2, 10)
    xstamp(7)
    lds_spin(C_PROG, 8, 6, sleep=4)
    A('s_lshl_b32 s8, s4, 12'); A(f's_add_u32 s8, s8, {WS_Q}'); A('v_lshlrev_b32 v1, 4, v0')
    tag_gather([(20+4*n, f'buffer_load_dwordx4 {v(20+4*n,4)}, v1, s[56:59], s8 offen offset:{1024*n} sc1') for n in range(4)], 10, sleep=6, cid=1)
    A('v_lshrrev_b32 v2, 1, v1'); A(f'v_add_u32 v2, {L_Q}, v2')
    for n in range(4):
        A(f'v_mov_b32 v{21+4*n}, v{22+4*n}'); A(f'ds_write_b64 v2, {v(20+4*n,2)} offset:{512*n}')
    lds_add(C_Q, 6)
    stamp(2)
    if 'late' in cut: A('s_endpgm')
    if mk:
        A('s_lshr_b32 s8, s6, 2'); A('s_lshl_b32 s8, s8, 11'); A('s_and_b32 s10, s6, 3'); A('s_lshl3_add_u32 s8, s10, s8'); A(f's_add_u32 s8, s8, {WS_MK}')
        A('v_lshlrev_b32 v2, 5, v0')
        tag_gather([(16, 'buffer_load_dwordx2 v[16:17], v2, s[56:59], s8 offen sc1')], 10, sleep=8, tagregs=(1, 1))
        A('v_lshl_add_u32 v2, v0, 2, v13'); A(f'ds_write_b32 v2, v16 offset:{L_MK - LM}')
        assert not sc or sc_split == 0
        notcons('L_staged')
    def svc_rank(k):
        lds_spin(C_RK, 4 * (k + 1), 6, sleep=1)
        A(f's_bfe_u32 s10, s2, {(nshb << 16) | 3:#x}'); A(f's_mul_i32 s10, s10, {RSTR}'); A(f's_add_u32 s10, s10, {WS_RANK + (RSTR << nshb) * k}')
        A('s_mov_b32 s11, 1'); A('s_atomic_add s11, s[44:45], s10 glc'); A('s_waitcnt lgkmcnt(0)')
        A(f's_mov_b32 s8, {-LEV.index(DB)}')
        for j, t_ in enumerate(THR[k]):
            A(f's_cmp_ge_u32 s11, {int(round(t_ * (256 >> nshb) / 64.0))}'); A(f's_cselect_b32 s8, {j + 1 - LEV.index(DB)}, s8')
        A('v_mov_b32 v6, s8'); A(f'ds_write_b32 v13, v6 offset:{C_LEV}')
    for k in range(len(sc or ())):
        if sc[k] < sc_split: svc_rank(k)
    lds_spin(C_PROG, 16, 6, sleep=8)
    A(f's_mov_b32 s8, {WS_CLR}')
    tag_gather([(16, 'buffer_load_dwordx4 v[16:19], v1, s[56:59], s8 offen sc1')], 10, sleep=16, tagregs=(0, 1, 2, 3), cid=2)
    if retouch:
        A('s_cmp_lg_u32 s7, 0'); A('s_cbranch_scc1 L_notouch')
        A('s_getpc_b64 s[70:71]')
        A('L_pcref2:')
        A('v_lshlrev_b32 v2, 7, v0'); A('v_add_u32 v2, L_endgame-L_pcref2, v2'); A('v_min_u32 v2, L_end-L_pcref2, v2')
        A('global_load_dword v3, v2, s[70:71]')
        A('L_notouch:')
    notcons('L_staged')
    lds_spin(C_ML, 4, 6, sleep=4)
    A(f's_mov_b32 m0, {L_CONST}')
    A('global_load_lds_dwordx4 v1, s[16:17]'); A('global_load_lds_dwordx4 v1, s[16:17] offset:1024')
    dma(WS_MOD, L_CONST + 2048, 8)
    dma(WS_TAB, L_TABLE, NB // 2)
    if otouch: A('v_lshlrev_b32 v2, 5, v0'); A('global_load_dword v3, v2, s[40:41]')
    A('s_waitcnt vmcnt(0)')
    stamp(3)
    A('s_branch L_staged')
    A('; ---- wave 4: publish the rest of the modulation, exchange the softmax statistics of the group')
    A('L_rest2:')
    A('v_lshlrev_b32 v2, 2, v2'); A('s_lshl_b32 s8, s47, 5'); A(f's_sub_u32 s8, s8, {128 * 32 - WS_MOD}')
    A('s_mov_b64 exec, 0xff'); A('buffer_store_dword v16, v2, s[56:59], s8 offen sc1'); A('s_mov_b64 exec, -1')
    done_event(6)
    stamp(2)
    lds_spin(C_ML, 4, 6, sleep=2)
    A('v_and_b32 v1, 7, v0'); A('v_lshlrev_b32 v1, 3, v1'); A(f'v_add_u32 v2, {L_ML}, v1')
    for w in range(4): A(f'ds_read_b64 {v(16+2*w,2)}, v2 offset:{64*w}')
    A('s_waitcnt lgkmcnt(0)')
    A('v_max_f32 v24, v16, v18'); A('v_max3_f32 v24, v20, v22, v24')
    for w in range(4): A(f'v_sub_f32 v{28+w}, v{16+2*w}, v24')
    for w in range(4): A(f'v_mul_f32 v{28+w}, s64, v{28+w}')
    for w in range(4): A(f'v_exp_f32 v{28+w}, v{28+w}')
    A('v_mul_f32 v25, v28, v17')
    for w in range(1, 4): A(f'v_fmac_f32 v25, v{28+w}, v{17+2*w}')
    A('v_mov_b32_dpp v28, v24 quad_perm:[1,1,3,3] row_mask:0xf bank_mask:0xf')
    A('v_mov_b32 v27, s46')
    A('v_mov_b32_dpp v26, v25 quad_perm:[1,1,3,3] row_mask:0xf bank_mask:0xf')
    A('v_cvt_pk_bf16_f32 v24, v24, v28')
    A('s_lshl_b32 s8, s2, 6'); A(f's_add_u32 s8, s8, {WS_ML}')
    A('s_mov_b64 exec, 0x55'); A('buffer_store_dwordx4 v[24:27], v1, s[56:59], s8 offen sc1'); A('s_mov_b64 exec, -1')
    stamp(3)
    A('v_and_b32 v2, 3, v0'); A('v_bfe_u32 v3, v0, 2, 1'); A('v_lshl_add_u32 v2, v2, 1, v3'); A('v_bfe_u32 v4, v0, 3, 2')
    A('v_lshlrev_b32 v7, 6, v4'); A('v_lshl_add_u32 v7, v2, 3, v7'); A('v_add_u32 v7, v7, v13')
    A(f'ds_read_b32 v8, v7 offset:{L_ML - LM}')
    A('v_lshlrev_b32 v7, 2, v4'); A('v_lshl_add_u32 v7, v2, 4, v7'); A('v_add_u32 v7, v7, v13')
    A('s_lshl_b32 s10, s4, 12'); A(f's_add_u32 s10, s10, {WS_ML}'); A('v_lshlrev_b32 v1, 4, v0')
    lds_spin(C_PROG, 20, 6, sleep=2)
    tag_gather([(32+4*n, f'buffer_load_dwordx4 {v(32+4*n,4)}, v1, s[56:59], s10 offen offset:{1024*n} sc1') for n in range(4)], 10, sleep=6, cid=4, tagregs=(3,))
    stamp(4)
    for n in range(4): A(f'v_lshlrev_b32 v{16+n}, 16, v{32+4*n}'); A(f'v_and_b32 v{20+n}, s62, v{32+4*n}')
    for h in range(2): A(f'v_max_f32 v{24+h}, v{16+4*h}, v{17+4*h}'); A(f'v_max3_f32 v{24+h}, v{18+4*h}, v{19+4*h}, v{24+h}')
    row_reduce('v_max_f32', [24, 25], (8, 4)); xg_reduce('v_max_f32', [24, 25], 28)
    for k in range(8): A(f'v_sub_f32 v{16+k}, v{16+k}, v{24 + k//4}')
    for k in range(8): A(f'v_mul_f32 v{16+k}, s64, v{16+k}')
    for k in range(8): A(f'v_exp_f32 v{16+k}, v{16+k}')
    for n in range(4):
        for h in range(2): A(f'{"v_mul_f32" if n == 0 else "v_fmac_f32"} v{26+h}, v{16+4*h+n}, v{33+4*n+h}')
    row_reduce('v_add_f32', [26, 27], (8, 4)); xg_reduce('v_add_f32', [26, 27], 28)
    A('v_cmp_eq_u32 vcc, 1, v3'); A('v_cndmask_b32 v24, v24, v25, vcc'); A('v_cndmask_b32 v26, v26, v27, vcc')
    A('v_rcp_f32 v26, v26')
    A('v_sub_f32 v8, v8, v24'); A('v_mul_f32 v8, s64, v8'); A('v_exp_f32 v8, v8'); A('v_mul_f32 v8, v8, v26')
    A(f'ds_write_b32 v7, v8 offset:{L_FAC - LM}')
    A('s_branch L_staged')

    A('L_tabwaves:')
    if 'tab' in cut: A('s_endpgm')
    A('s_waitcnt lgkmcnt(0)')
    svc_setup()
    A('s_cmp_eq_u32 s3, 3'); A('s_cbranch_scc1 L_tabinit')
    if 'noclr' not in cut:
        A('v_mov_b32 v20, -1'); A('v_mov_b32 v21, -1'); A('v_mov_b32 v22, -1'); A('v_mov_b32 v23, -1')
        A('v_lshrrev_b32 v1, 5, v0'); A('v_lshlrev_b32 v1, 15, v1'); A('v_and_b32 v2, 31, v0'); A('v_lshl_add_u32 v1, v2, 4, v1')
        A('v_lshrrev_b32 v3, 3, v0'); A('v_lshlrev_b32 v3, 15, v3'); A('v_and_b32 v2, 7, v0'); A('v_lshl_add_u32 v3, v2, 4, v3')
        A('s_lshl_b32 s8, s4, 17'); A('s_lshl_b32 s10, s5, 9'); A('s_add_u32 s8, s8, s10'); A(f's_add_u32 s8, s8, {WS_T1}'); A('s_add_u32 s10, s8, 0x10000')
        A('s_lshl_b32 s11, s6, 11'); A('s_lshl_b32 s14, s7, 7'); A('s_add_u32 s11, s11, s14'); A(f's_add_u32 s11, s11, {WS_T2}')
        if mk:
            A('buffer_load_dword v24, v1, s[56:59], s8 offen sc1'); A('buffer_load_dword v25, v1, s[56:59], s10 offen sc1')
        else:
            for so in ('s8', 's10'): A(f'buffer_store_dwordx4 v[20:23], v1, s[56:59], {so} offen sc1')
        A('s_mov_b64 exec, 0xff'); A('buffer_store_dwordx4 v[20:23], v3, s[56:59], s11 offen sc1'); A('s_mov_b64 exec, -1')
    A('L_tabinit:')
    A('s_and_b32 s8, s2, 127'); A(f's_mul_i32 s8, s8, {NB}'); A(f's_add_u32 s8, s8, {TAB_E0}')
    A('s_lshr_b32 s10, s2, 7'); A('s_lshl_b32 s10, s10, 15'); A('s_add_u32 s8, s8, s10')
    A('v_add_u32 v2, s8, v0'); A('v_lshlrev_b32 v2, 16, v2')
    A(f'v_cmp_gt_u32 vcc, {NB}, v0'); A('v_cndmask_b32 v12, 0, v2, vcc')
    A('s_mov_b32 s65, 0'); A('v_mov_b32 v239, 0')
    A('s_waitcnt lgkmcnt(0)'); A('s_add_u32 s46, s9, 1')
    if tb0 == 'early': A('s_barrier')
    if mk:
        assert tb0 == 'early' and nrep == 1
        A('s_cmp_eq_u32 s3, 3'); A('s_cbranch_scc1 L_mlp')
        A('s_waitcnt vmcnt(0)')
        A('v_and_b32 v24, 1, v24'); A('v_and_b32 v25, 1, v25'); A('v_cmp_eq_u32 s[16:17], 0, v24'); A('v_cmp_eq_u32 s[18:19], 0, v25')
        for k in range(4): A(f'v_writelane_b32 v24, s{16+k}, {k}')
        A('v_mov_b32 v25, s46'); A('v_lshlrev_b32 v2, 3, v0'); A('v_lshl_add_u32 v3, v0, 2, v13')
        A('s_lshl_b32 s8, s2, 5'); A(f's_add_u32 s8, s8, {WS_MK}')
        A('s_mov_b64 exec, 15'); A('buffer_store_dwordx2 v[24:25], v2, s[56:59], s8 offen sc1'); A(f'ds_write_b32 v3, v24 offset:{L_MKO}'); A('s_mov_b64 exec, -1')
        lds_add(C_Q, 6)
    A('L_mlp:')
    TR = list(range(16, 28)) + list(range(48, 56)) + [36, 37]
    NT = NB + 1
    assert NT <= len(TR) and NT <= 24
    A('s_sub_u32 s8, s3, 2'); A('s_mul_i32 s8, s8, 3584'); A('v_lshl_add_u32 v1, v0, 3, s8')
    def pload():
        for a, ptr in enumerate(('s[28:29]', 's[30:31]', 's[32:33]')):
            if 'tabl' not in cut: A(f'global_load_dwordx2 {v(56 + 2*a, 2)}, v1, {ptr}')
    pload()
    A('s_load_dword s47, s[34:35], 0')
    for k in range(NT): A(f'v_readlane_b32 s{TR[k]}, v12, {k}')
    c0 = -2.0 * math.sqrt(2.0 / math.pi) * LOG2E; c1 = c0 * 0.044715
    A(f's_mov_b32 s72, {f2u(c1):#x}'); A('s_mov_b32 s73, s72'); A(f's_mov_b32 s74, {f2u(3*c1):#x}'); A('s_mov_b32 s75, s74')
    A('s_mov_b32 s66, 1.0'); A('s_mov_b32 s67, 1.0')
    A(f'v_mov_b32 v10, {f2u(c0):#x}'); A('v_mov_b32 v11, v10')
    for k in range(48): A(f'v_mov_b32 v{64+k}, 0')
    A('s_mov_b32 s68, 0')
    if tb0 == 'late':
        A('s_cmp_eq_u32 s65, 1'); A('s_cbranch_scc1 L_mlp_loop'); A('s_barrier')
    A('.p2align 3')
    A('L_mlp_loop:')
    A('s_waitcnt vmcnt(0)')
    CO = 24
    for r in range(2):
        for a in range(3):
            A(f'v_lshlrev_b32 v{2+2*a}, 16, v{56 + 2*a + r}'); A(f'v_and_b32 v{3+2*a}, s62, v{56 + 2*a + r}')
        if r == 1:
            A('v_add_u32 v1, 0x200, v1')
            A('s_cmp_eq_u32 s68, 6'); A('s_cbranch_scc1 L_mlp_nold'); pload(); A('L_mlp_nold:')
        c = CO + 12 * r
        A('v_pk_mul_f32 v[8:9], v[2:3], v[2:3]'); A('v_pk_mul_f32 v[16:17], v[4:5], v[4:5]')
        A('v_pk_mul_f32 v[18:19], v[8:9], s[72:73]'); A('v_pk_mul_f32 v[8:9], v[8:9], s[74:75]')
        A('v_pk_fma_f32 v[20:21], v[16:17], s[74:75], v[10:11]'); A('v_pk_fma_f32 v[16:17], v[16:17], s[72:73], v[10:11]')
        A(f'v_pk_mul_f32 {v(c,2)}, v[18:19], v[2:3]'); A(f'v_pk_mul_f32 {v(c+2,2)}, v[8:9], v[4:5]')
        A(f'v_pk_mul_f32 {v(c+4,2)}, v[20:21], v[2:3]'); A(f'v_pk_mul_f32 {v(c+6,2)}, v[16:17], v[4:5]')
        A(f'v_pk_mul_f32 {v(c+8,2)}, v[2:3], v[6:7]'); A(f'v_pk_mul_f32 {v(c+10,2)}, v[4:5], v[6:7]')
    A('.p2align 3')
    for k in range(NT):
        if k == 4: A('s_cmp_eq_u32 s65, 1'); A('s_cbranch_scc1 L_mlp_next')
        sp = f's[{TR[k] & ~1}:{(TR[k] & ~1) + 1}]'; h_ = TR[k] & 1
        os_ = f'op_sel:[0,{h_},0] op_sel_hi:[1,{h_},1]'
        cs = [CO, CO + 12]
        x0 = 2 if k % 2 == 0 else 48
        for d in range(2): A(f'v_pk_fma_f32 {v(x0+2*d,2)}, {v(cs[d],2)}, {sp}, {v(cs[d]+2,2)} {os_}')
        for d in range(2): A(f'v_pk_fma_f32 {v(x0+2*d,2)}, {v(x0+2*d,2)}, {sp}, {v(cs[d]+4,2)} {os_}')
        for d in range(2): A(f'v_pk_fma_f32 {v(x0+2*d,2)}, {v(x0+2*d,2)}, {sp}, {v(cs[d]+6,2)} {os_}')
        for d in range(4): A(f'v_exp_f32 v{x0+d}, v{x0+d}')
        for d in range(2): A(f'v_pk_fma_f32 {v(x0+4+2*d,2)}, {v(cs[d]+8,2)}, {sp}, {v(cs[d]+10,2)} {os_}')
        for d in range(2): A(f'v_pk_add_f32 {v(x0+2*d,2)}, {v(x0+2*d,2)}, s[66:67]')
        for d in range(4): A(f'v_rcp_f32 v{x0+d}, v{x0+d}')
        for d in range(2): A(f'v_pk_fma_f32 {v(64+2*k,2)}, {v(x0+4+2*d,2)}, {v(x0+2*d,2)}, {v(64+2*k,2)}')
    A('L_mlp_next:')
    A('s_add_u32 s68, s68, 1'); A('s_cmp_lt_u32 s68, 7'); A('s_cbranch_scc1 L_mlp_loop')
    xstamp(4)
    for k in range(NT): A(f'v_add_f32 v{64+2*k}, v{64+2*k}, v{65+2*k}')
    for k in range(0, 24, 2): A(f'v_permlane32_swap_b32 v{64+2*k}, v{66+2*k}')
    for k in range(0, 24, 2): A(f'v_add_f32 v{64+2*k}, v{64+2*k}, v{66+2*k}')
    for k in range(0, 24, 4): A(f'v_permlane16_swap_b32 v{64+2*k}, v{68+2*k}')
    for k in range(0, 24, 4): A(f'v_add_f32 v{64+2*k}, v{64+2*k}, v{68+2*k}')
    row_reduce('v_add_f32', [64 + 8*j for j in range(6)])
    A('s_lshl_b32 s8, s3, 7'); A(f's_add_u32 s8, s8, {L_TP - 256}')
    A('v_lshrrev_b32 v2, 5, v0'); A('v_lshl_add_u32 v2, v2, 2, s8'); A('v_and_b32 v1, 16, v0'); A('v_lshrrev_b32 v1, 1, v1'); A('v_add_u32 v2, v2, v1')
    A('v_and_b32 v1, 31, v0')
    A('s_mov_b32 exec_lo, 0x00010001'); A('s_mov_b32 exec_hi, 0x00010001')
    for j in range(6): A(f'ds_write_b32 v2, v{64+8*j} offset:{16*j}')
    A('s_waitcnt lgkmcnt(0)')
    A('s_lshl_b32 s8, s65, 2'); A('v_add_u32 v3, s8, v13')
    A('s_mov_b64 exec, 1'); A('v_mov_b32 v6, 1'); A(f'ds_add_rtn_u32 v6, v3, v6 offset:{C_TAB}'); A('s_mov_b64 exec, -1')
    A('s_waitcnt lgkmcnt(0)')
    A('v_readfirstlane_b32 s8, v6')
    A('s_bitcmp1_b32 s8, 0'); A('s_cbranch_scc1 L_mlp_last')
    A('s_cmp_eq_u32 s65, 0'); A('s_cbranch_scc1 L_staged')
    A('s_branch L_batchdone')
    A('L_mlp_last:')
    A(f'v_lshlrev_b32 v2, 2, v1'); A(f'v_add_u32 v2, {L_TP}, v2')
    A('ds_read2_b32 v[16:17], v2 offset0:0 offset1:32')
    A('s_lshl_b32 s47, s47, 16')
    A('s_waitcnt lgkmcnt(0)')
    A('v_add_f32 v16, v16, v17'); rnd(16); A('v_add_f32 v16, s47, v16'); rnd(16)
    A('s_cmp_eq_u32 s65, 1'); A('s_cbranch_scc1 L_output')
    A('v_mov_b32_dpp v17, v16 quad_perm:[1,1,3,3] row_mask:0xf bank_mask:0xf')
    A('v_cvt_pk_bf16_f32 v18, v16, v17')
    A('v_lshlrev_b32 v2, 1, v0'); A(f's_mul_i32 s8, s2, {2*NB}'); A(f's_add_u32 s8, s8, {WS_TAB}')
    A(f's_mov_b64 exec, {0x55555555 & ((1 << NB) - 1):#x}'); A('buffer_store_dword v18, v2, s[56:59], s8 offen sc1')
    A(f's_mov_b64 exec, {1 << NB:#x}'); A(f'ds_write_b16 v13, v18 offset:{L_TABLE + 512 * NB - LM}')
    A('s_mov_b64 exec, -1')
    done_event(6)
    stamp(3)
    A('L_staged:')
    if sc and max(sc) >= sc_split:
        A('s_cmp_lg_u32 s3, 3'); A('s_cbranch_scc1 L_noctl')
        for k in range(len(sc)):
            if sc[k] >= sc_split: svc_rank(k)
        A('L_noctl:')
    A('s_setprio 0')
    A('s_add_u32 s3, s3, 4')
    A('s_waitcnt lgkmcnt(0)')
    stamp(5)
    if cut: A('s_endpgm')
    notcons('L_fin')
    A('s_barrier')
    prep()
    A('s_branch L_tail')

    A(';MARK tail')
    A('L_tail:')
    if trim: A(f's_cmp_ge_u32 s3, {nrep}')
    A('s_barrier')
    xstamp(10)
    if not trim: A(f's_cmp_ge_u32 s3, {nrep}')
    A('s_cbranch_scc1 L_norep')
    for w in range(2): A(f'ds_read_b128 {v(16+4*w,4)}, v229 offset:{L_RED2 - LM + 1024*w}')
    A('s_waitcnt lgkmcnt(0)')
    A('v_pk_add_f32 v[16:17], v[16:17], v[20:21]'); A('v_pk_add_f32 v[18:19], v[18:19], v[22:23]')
    for e in range(2): A(f'v_permlane32_swap_b32 v{16+e}, v{18+e}')
    A('v_pk_add_f32 v[16:17], v[16:17], v[18:19]')
    A('v_mov_b32 v18, v16'); A('v_mov_b32 v19, v17')
    for e in range(2): A(f'v_permlane16_swap_b32 v{16+e}, v{18+e}')
    A('v_pk_add_f32 v[16:17], v[16:17], v[18:19]')
    A('v_cvt_pk_bf16_f32 v16, v16, v17')
    A('v_min_u32 v16, -2, v16')
    for c in range(1, 4): A(f'v_mov_b32_dpp v{16+c}, v16 quad_perm:[{c},{c},{c},{c}] row_mask:0xf bank_mask:0xf')
    if trim: A('s_mov_b64 exec, s[76:77]')
    else: A('s_mov_b32 exec_lo, 0x1111'); A('s_mov_b32 exec_hi, 0x1111')
    A('buffer_store_dwordx4 v[16:19], v230, s[56:59], s72 offen sc1')
    A('s_mov_b64 exec, -1')
    if ackw and not trim: A('s_waitcnt vmcnt(0)')
    A('L_norep:')
    if not trim: xstamp(11)
    if pref:
        def pref_cold():
            A('L_pref:')
            A('s_and_b32 s8, s2, 7'); A(f's_cmp_lg_u32 s8, {cx & 7}'); A('s_cbranch_scc1 L_fin')
            if trim: A('s_waitcnt vmcnt(0)')
            if pref == 1: A('s_barrier')
            A('v_lshlrev_b32 v1, 7, v0'); A('s_lshl_b32 s8, s3, 13'); A(f's_add_u32 s8, s8, {WS_T2}')
            for n_ in range(prefn):
                if n_: A('s_waitcnt vmcnt(0)')
                A('buffer_load_dword v2, v1, s[56:59], s8 offen sc1')
            A('s_branch L_fin')
        COLD.append(pref_cold)
    notcons('L_pref' if pref else 'L_fin')
    if trim: A('s_waitcnt vmcnt(0)')
    A('s_barrier')
    if t2x: A(f's_sleep {t2x}')
    stamp(7)
    def t2_load(n): A(f'buffer_load_dwordx4 {v(16+4*n,4)}, v244, s[56:59], {"s75" if n < 2 else "s73"} offen offset:{2048 * (n & 1)} sc1')
    for n in range(4): t2_load(n)
    if alg:
        moments_in(L_SC, 48)
        for k in range(5): A(f'v_mul_f32 v{52+k}, s{48+k}, v50')
    sweep('t2', 4, t2_load, lambda k: 16 + 4*k, 240, 6)
    stamp(8)
    if alg:
        A('v_pk_fma_f32 v[240:241], v[250:251], v[240:241], v[248:249]')
        A('v_pk_mul_f32 v[42:43], v[240:241], v[254:255]')
        A('v_add_f32 v44, v240, v241'); A('v_mul_f32 v45, v240, v240'); A('v_add_f32 v46, v42, v43'); A('v_mul_f32 v47, v42, v42')
        A('v_mul_f32 v48, v42, v254'); A('v_mul_f32 v49, v42, v252')
        A('v_fmac_f32 v45, v241, v241'); A('v_fmac_f32 v47, v43, v43'); A('v_fmac_f32 v48, v43, v255'); A('v_fmac_f32 v49, v43, v253')
        moments_out(L_SD)
        A('v_mov_b32 v16, 0'); A('v_mov_b32 v17, 0')
        A('s_lshr_b32 s8, s2, 3'); A('s_xor_b32 s8, s8, s3'); A(f's_and_b32 s8, s8, {(1 << ncb) - 1}')
        A('s_waitcnt lgkmcnt(0)')
        A('s_barrier')
        xstamp(12); xstamp(13)
        A('s_cbranch_scc1 L_early')
        moments_in(L_SD, 48)
        A('v_mul_f32 v46, s48, v50'); A('v_mul_f32 v47, s49, v50')
        A('v_mul_f32 v44, s50, v50'); A('v_mul_f32 v45, s51, v50')
        A('v_fma_f32 v47, -v46, v46, v47')
        A('v_mul_f32 v48, s52, v50'); A('v_mul_f32 v49, s53, v50')
        A('v_add_f32 v47, s69, abs(v47)')
        A('v_fma_f32 v44, -v46, v52, v44')
        A('v_rsq_f32 v47, v47')
        A('v_mul_f32 v48, -2.0, v48')
        A('v_fma_f32 v49, -v46, v56, v49')
        A('v_fmac_f32 v48, v46, v53')
        A('v_pk_fma_f32 v[42:43], v[254:255], v[46:47], v[42:43] op_sel:[0,0,0] op_sel_hi:[1,0,1] neg_lo:[0,1,0] neg_hi:[0,1,0]')
        A('v_fmac_f32 v45, v46, v48')
        A('v_add_f32 v49, v49, v49')
        A('v_fma_f32 v44, v44, v47, v54')
        A('v_fmac_f32 v49, v45, v47')
        A('v_pk_fma_f32 v[42:43], v[42:43], v[46:47], v[252:253] op_sel:[0,1,0] op_sel_hi:[1,1,1]')
        A('v_fma_f32 v45, v49, v47, v55')
        A('v_fma_f32 v45, -v44, v44, v45')
        A('v_add_f32 v45, s69, abs(v45)')
        A('v_pk_add_f32 v[42:43], v[42:43], v[44:45] op_sel:[0,0] op_sel_hi:[1,0] neg_lo:[0,1] neg_hi:[0,1]')
        A('v_rsq_f32 v45, v45')
        A('v_pk_mul_f32 v[42:43], v[42:43], v[44:45] op_sel:[0,1] op_sel_hi:[1,1]'); rnd(42, 43)
    if not alg:
        rnd(240, 241)
        A('v_pk_mul_f32 v[240:241], v[250:251], v[240:241]'); rnd(240, 241)
        A('v_pk_add_f32 v[240:241], v[248:249], v[240:241]'); rnd(240, 241)
        def stats(a, b, lds_off, pre=None):
            A(f'v_add_f32 v46, v{a}, v{b}'); A(f'v_mul_f32 v47, v{a}, v{a}'); A(f'v_fmac_f32 v47, v{b}, v{b}')
            A('v_permlane32_swap_b32 v46, v47'); A('v_add_f32 v46, v46, v47')
            row_reduce('v_add_f32', [46])
            A('v_add_f32_dpp v46, v46, v46 row_bcast:15 row_mask:0xa bank_mask:0xf')
            A('s_mov_b64 exec, s[78:79]')
            A(f'ds_write_b32 v246, v46 offset:{lds_off}')
            A('s_mov_b64 exec, -1')
            if pre: pre()
            A('s_waitcnt lgkmcnt(0)')
            A('s_barrier')
        def stats_calc(lds_off):
            for k in range(4): A(f'ds_read_b128 {v(48+4*k,4)}, v13 offset:{lds_off + 16*k}')
            for k in range(4):
                A(f's_waitcnt lgkmcnt({3 - k})'); A(f'v_pk_add_f32 {v(48+4*k,2)}, {v(48+4*k,2)}, {v(50+4*k,2)}')
                if k == 1: A('v_pk_add_f32 v[48:49], v[48:49], v[52:53]')
            A('v_pk_add_f32 v[56:57], v[56:57], v[60:61]')
            A('v_pk_add_f32 v[46:47], v[48:49], v[56:57]')
            A('v_pk_mul_f32 v[46:47], v[46:47], s[66:67]')
            A('v_fma_f32 v47, -v46, v46, v47'); A('v_cvt_pk_bf16_f32 v47, 0, abs(v47)')
            A(f'v_add_f32 v47, {f2u(1e-5):#x}, v47'); rnd(47); A('v_sqrt_f32 v47, v47'); rnd(46); rnd(47)
        def normalise(src):
            A(f'v_pk_add_f32 v[42:43], {v(src,2)}, v[46:47] op_sel:[0,0] op_sel_hi:[1,0] neg_lo:[0,1] neg_hi:[0,1]'); A('v_rcp_f32 v47, v47'); rnd(42, 43)
            A('v_pk_mul_f32 v[42:43], v[42:43], v[46:47] op_sel:[0,1] op_sel_hi:[1,1]'); rnd(42, 43)
        stats(240, 241, L_ST1)
        xstamp(12)
        stats_calc(L_ST1); normalise(240)
        A('v_pk_mul_f32 v[42:43], v[42:43], v[254:255]'); rnd(42, 43)
        A('v_pk_add_f32 v[42:43], v[42:43], v[252:253]'); rnd(42, 43)
        def outwave():
            A('v_mov_b32 v16, 0'); A('v_mov_b32 v17, 0')
            A('s_lshr_b32 s8, s2, 3'); A('s_xor_b32 s8, s8, s3'); A(f's_and_b32 s8, s8, {(1 << ncb) - 1}')
        stats(42, 43, L_ST2, outwave)
        xstamp(13)
        A('s_cbranch_scc1 L_early')
        stats_calc(L_ST2); normalise(42)
    stamp(9)
    for e in range(2): A(f'v_bfe_u32 v{2+e}, v{42+e}, 15, 16'); A(f'v_ashrrev_i32 v{4+e}, 31, v{42+e}')
    for e in range(2): A(f'v_cmp_eq_u32 s[{16+2*e}:{17+2*e}], 0, v{2+e}'); A(f'v_and_b32 v{4+e}, v245, v{4+e}')
    for e in range(2): A(f'v_add3_u32 v{4+e}, v{2+e}, v{4+e}, s68')
    for e in range(2): A(f'v_cndmask_b32 v{4+e}, v{4+e}, v247, s[{16+2*e}:{17+2*e}]'); A(f'ds_read_u16_d16_hi v{16+e}, v{4+e}')
    for e in range(2): A(f'v_subrev_u32 v{2+e}, {2 * TAB_E0}, v{2+e}'); A(f'v_cmp_gt_u32 s[{20+2*e}:{21+2*e}], v245, v{2+e}')
    for e in range(2):
        A(f's_or_b64 s[{20+2*e}:{21+2*e}], s[{20+2*e}:{21+2*e}], s[{16+2*e}:{17+2*e}]')
        if force_fb: A(f's_and_b64 s[{20+2*e}:{21+2*e}], s[{20+2*e}:{21+2*e}], {force_fb if isinstance(force_fb, str) else "0"}')
    A('s_waitcnt lgkmcnt(0)')
    if alg: A('v_pk_fma_f32 v[16:17], v[16:17], v[236:237], v[240:241]')
    else:
        A('v_pk_mul_f32 v[16:17], v[16:17], v[236:237]'); rnd(16, 17)
        A('v_pk_add_f32 v[16:17], v[16:17], v[240:241]')
    A('v_cvt_pk_bf16_f32 v16, v16, v17')
    if opk:
        A('v_mov_b32 v17, v16'); A('s_and_b64 s[16:17], s[20:21], s[22:23]'); A('s_not_b64 s[16:17], s[16:17]')
        A('v_permlane32_swap_b32 v16, v17')
        A('s_cbranch_scc1 L_slowout')
        A('v_perm_b32 v16, v17, v16, v231')
        if opk == 4:
            for c in range(1, 4): A(f'v_mov_b32_dpp v{16+c}, v16 quad_perm:[{c},{c},{c},{c}] row_mask:0xf bank_mask:0xf')
            A('s_mov_b64 exec, s[70:71]')
            A(f'global_store_dwordx4 v228, v[16:19], s[40:41] {osc}')
        else: A(f'global_store_dword v228, v16, s[40:41] {osc}')
        A('s_branch L_listed')
        A('L_slowout:')
        A('v_permlane32_swap_b32 v16, v17')
        A('s_mov_b64 exec, s[20:21]'); A('global_store_short v238, v16, s[40:41]')
        A('s_mov_b64 exec, s[22:23]'); A('global_store_short_d16_hi v238, v16, s[40:41] offset:16')
    else:
        A('s_mov_b64 exec, s[20:21]'); A(f'global_store_short v238, v16, s[40:41] {osc}')
        A('s_mov_b64 exec, s[22:23]'); A(f'global_store_short_d16_hi v238, v16, s[40:41] offset:16 {osc}')
        A('s_and_b64 s[16:17], s[20:21], s[22:23]'); A('s_not_b64 s[16:17], s[16:17]'); A('s_cbranch_scc0 L_listed')
    for e in range(2):
        A(f's_not_b64 exec, s[{20+2*e}:{21+2*e}]')
        A('v_mov_b32 v2, 1'); A(f'ds_add_rtn_u32 v2, v13, v2 offset:{C_LIST}')
        A(f'v_mov_b32 v4, v{42+e}'); A(f'v_mov_b32 v5, v{240+e}'); A(f'v_mov_b32 v6, v{236+e}'); A(f'v_add_u32 v7, {16*e}, v238')
        A('s_waitcnt lgkmcnt(0)')
        A('v_lshlrev_b32 v2, 4, v2'); A(f'ds_write_b128 v2, v[4:7] offset:{L_LIST}')
    A('s_waitcnt lgkmcnt(0)')
    A('L_listed:')
    A('s_mov_b64 exec, -1')
    A('L_wait67:')
    A('s_barrier')
    A('s_cmp_lt_u32 s3, 6'); A('s_cbranch_scc1 L_last')
    A(f'ds_read_b32 v2, v13 offset:{C_LIST}'); A('s_waitcnt lgkmcnt(0)')
    A('v_readfirstlane_b32 s69, v2')
    A('s_cmp_eq_u32 s69, 0'); A('s_cbranch_scc1 L_fin')
    A('s_sub_u32 s3, s3, 4'); A('s_mov_b32 s65, 1'); A('s_mov_b32 s76, 0')
    A('L_batch:')
    A('v_and_b32 v2, 3, v0'); A('v_add_u32 v2, s76, v2'); A('v_cmp_gt_u32 s[78:79], s69, v2'); A('s_sub_u32 s8, s69, 1'); A('v_min_u32 v2, s8, v2')
    A('v_lshlrev_b32 v2, 4, v2'); A(f'ds_read_b128 v[236:239], v2 offset:{L_LIST}')
    A('s_waitcnt lgkmcnt(0)')
    A('v_mov_b32 v12, v236')
    A('s_branch L_mlp')
    A('L_output:')
    if alg: A('v_fma_f32 v16, v238, v16, v237')
    else: A('v_mul_f32 v16, v238, v16'); rnd(16); A('v_add_f32 v16, v237, v16')
    A('v_cvt_pk_bf16_f32 v16, v16, v16')
    A('s_and_b64 exec, s[78:79], 15')
    A('global_store_short v239, v16, s[40:41]')
    A('s_mov_b64 exec, -1')
    A('L_batchdone:')
    A('s_barrier')
    A('s_add_u32 s76, s76, 4'); A('s_cmp_lt_u32 s76, s69'); A('s_cbranch_scc1 L_batch')
    A('s_branch L_fin')
    for c in COLD: c()
    A('L_early:')
    A('s_cmp_ge_u32 s3, 6'); A('s_cbranch_scc1 L_wait67')
    A('L_last:')
    A('s_cmp_lg_u32 s3, 4'); A('s_cbranch_scc1 L_fin')
    A(f's_cmp_lg_u32 s2, {cx}'); A('s_cbranch_scc1 L_fin')
    A('s_mov_b64 exec, 1'); A('v_mov_b32 v16, s46'); A(f's_mov_b32 s8, {WS_EPOCH}')
    A(f'buffer_store_dword v16, off, s[56:59], s8 {osc}')
    if endstamp: A('s_mov_b64 exec, -1')
    A('L_fin:')
    if endstamp:
        A('s_waitcnt vmcnt(0)')
        A('s_memrealtime s[100:101]'); A('s_waitcnt lgkmcnt(0)')
        A('v_mov_b32 v61, v15')
        for k in range(11): A(f'v_writelane_b32 v61, s{80+2*k}, {k}')
        A('s_lshl_b32 s8, s2, 3'); A('s_add_u32 s8, s8, s3'); A('s_lshl_b32 s8, s8, 7'); A(f's_add_u32 s8, s8, {WS_STAMP}')
        A('v_lshlrev_b32 v1, 2, v0'); A('s_mov_b32 exec_lo, -1'); A('s_mov_b32 exec_hi, 0')
        A('buffer_store_dword v61, v1, s[56:59], s8 offen')
    if probe:
        k_, wlo, whi, op = probe
        A('s_sleep 127'); A('s_sleep 127')
        A('s_mov_b64 exec, 1')
        A('s_not_b32 s8, s80'); A('v_mov_b32 v1, s8'); A('v_mov_b32 v2, 0')
        A('global_atomic_umax v2, v1, s[42:43] sc1')
        A(f's_cmp_lt_u32 s3, {wlo}'); A('s_cbranch_scc1 L_pskip'); A(f's_cmp_gt_u32 s3, {whi}'); A('s_cbranch_scc1 L_pskip')
        A(f'v_readlane_b32 s8, v61, {k_}')
        if op == 'sum': A('s_sub_u32 s8, s8, s80')
        A('v_mov_b32 v1, s8')
        A(f'global_atomic_{"add" if op in ("sum", "cnt") else "umax"} v2, v1, s[42:43] offset:128 sc1')
        A('L_pskip:')
        A('s_waitcnt vmcnt(0)')
        A('s_cmp_lg_u32 s2, 0'); A('s_cbranch_scc1 L_end'); A('s_cmp_lg_u32 s3, 0'); A('s_cbranch_scc1 L_end')
        A('s_add_u32 s10, s80, 9000')
        A('L_ph1:'); A('s_memrealtime s[100:101]'); A('s_waitcnt lgkmcnt(0)'); A('s_sub_u32 s8, s100, s10'); A('s_cmp_lt_i32 s8, 0'); A('s_cbranch_scc1 L_ph1')
        A('global_load_dword v3, v2, s[42:43] sc1'); A('global_load_dword v4, v2, s[42:43] offset:128 sc1'); A('s_waitcnt vmcnt(0)')
        A('v_readfirstlane_b32 s10, v3'); A('v_readfirstlane_b32 s11, v4')
        A('s_not_b32 s10, s10')
        if op == 'max': A('s_sub_u32 s11, s11, s10')
        if op == 'sum': A(f's_lshr_b32 s11, s11, {(256 * (whi - wlo + 1)).bit_length() - 1}')
        A('s_min_u32 s11, s11, 6000'); A('s_mul_i32 s11, s11, 10')
        A('s_add_u32 s10, s10, 10000'); A('s_add_u32 s10, s10, s11')
        A('L_ph2:'); A('s_memrealtime s[100:101]'); A('s_waitcnt lgkmcnt(0)'); A('s_sub_u32 s8, s100, s10'); A('s_cmp_lt_i32 s8, 0'); A('s_cbranch_scc1 L_ph2')
    A('L_end:')
    A('s_endpgm')
    A('.section .rodata,"a"'); A('.p2align 6'); A(f'.amdhsa_kernel {NAME}_kernel')
    A('.amdhsa_next_free_vgpr 256'); A('.amdhsa_next_free_sgpr 102'); A('.amdhsa_accum_offset 256')
    A('.amdhsa_group_segment_fixed_size 0'); A('.amdhsa_kernarg_size 120'); A('.amdhsa_user_sgpr_count 2')
    A('.amdhsa_user_sgpr_kernarg_segment_ptr 1'); A('.amdhsa_system_sgpr_workgroup_id_x 1')
    A('.amdhsa_float_denorm_mode_32 3')
    A('.end_amdhsa_kernel')
    ia, isv, it_ = (A.L.index(';MARK ' + m) for m in ('attn2', 'service', 'tail'))
    A.L = A.L[:ia] + A.L[isv:it_] + A.L[ia:isv] + A.L[it_:]
    A.L = [l for l in A.L if not l.startswith(';MARK')]
    txt, nn = A.finish()
    return txt

if __name__ == '__main__':
    kw = eval('dict(%s)' % (sys.argv[2] if len(sys.argv) > 2 else ''))
    open(sys.argv[1], 'w').write(gen(**kw))
```
